```python
import torch

def _softmax(x, axis=-1):
    return torch.softmax(x, dim=axis)
def _gelu(x):
    return torch.nn.functional.gelu(x, approximate="tanh")
def _silu(x):
    return torch.nn.functional.silu(x)
def _sigmoid(x):
    return torch.sigmoid(x)
def _layernorm(x, axis=-1, eps=1e-5):
    m = x.mean(dim=axis, keepdim=True)
    v = x.var(dim=axis, keepdim=True, unbiased=False)
    return (x - m) / torch.sqrt(v + eps)
def _scatter_add(tgt, idx, src, axis=0):
    return tgt.clone().index_add_(axis, idx, src)
def _segment_sum(src, seg, n):
    out = torch.zeros((n,) + src.shape[1:], dtype=src.dtype)
    return out.index_add_(0, seg, src)
def _pad(x, pw):
    flat = tuple(v for pair in reversed(pw) for v in pair)
    return torch.nn.functional.pad(x, flat)

kernel_name = 'recurrent_scan__linear_kernel_hedgehog__swiglu_ffn__prompt'

def setup_inputs():

    _w = (lambda a: (lambda t: t.to(torch.bfloat16) if t.is_floating_point() else t)(torch.as_tensor(a)))
    def _A_setup():
        B, S, D, H = 1, 2048, 640, 32
        Dh = D // H
        return {
            "x": _w((lambda *s: torch.randn(*s, dtype=torch.bfloat16) * 0.05)(B, S, D)),
            "wqkv": _w((lambda *s: torch.randn(*s, dtype=torch.bfloat16) * 0.2)(D, 3 * D)),
            "w_phi": _w((lambda *s: torch.randn(*s, dtype=torch.bfloat16) * 0.2)(H, Dh, Dh) * (Dh ** -0.5)),
            "wo": _w((lambda *s: torch.randn(*s, dtype=torch.bfloat16) * 0.05)(D, D)),
        }
    _A_in = _A_setup()

    def _B_setup():
        B, S, D, F = 1, 2048, 640, 1728
        return {
            "x": _w((lambda *s: torch.randn(*s, dtype=torch.bfloat16) * 0.05)(B, S, D)),
            "w_gate": _w((lambda *s: torch.randn(*s, dtype=torch.bfloat16) * 0.05)(D, F)),
            "w_up": _w((lambda *s: torch.randn(*s, dtype=torch.bfloat16) * 0.05)(D, F)),
            "w_down": _w((lambda *s: torch.randn(*s, dtype=torch.bfloat16) * 0.05)(F, D)),
        }
    _B_in = _B_setup()

    return {
        "A_x": _A_in["x"],
        "A_wqkv": _A_in["wqkv"],
        "A_w_phi": _A_in["w_phi"],
        "A_wo": _A_in["wo"],
        "B_x": _B_in["x"],
        "B_w_gate": _B_in["w_gate"],
        "B_w_up": _B_in["w_up"],
        "B_w_down": _B_in["w_down"],
    }

def reference(A_x, A_wqkv, A_w_phi, A_wo, B_x, B_w_gate, B_w_up, B_w_down):
    def _A_ref(x, wqkv, w_phi, wo):
        B, S, D = x.shape
        H = 32; Dh = D // H
        qkv = (lambda x, *d: x.permute(*d))((x @ wqkv).reshape(B, S, 3, H, Dh), 2, 0, 3, 1, 4)
        q, k, v = qkv[0], qkv[1], qkv[2]
        pq = torch.einsum("bhsd,hdf->bhsf", q, w_phi)
        pk = torch.einsum("bhsd,hdf->bhsf", k, w_phi)
        phi_q = torch.concatenate([_softmax(pq, axis=-1), _softmax(-pq, axis=-1)], axis=-1)
        phi_k = torch.concatenate([_softmax(pk, axis=-1), _softmax(-pk, axis=-1)], axis=-1)
        kv = torch.einsum("bhsf,bhsd->bhfd", phi_k, v)
        z  = torch.einsum("bhsf->bhf", phi_k)
        num = torch.einsum("bhqf,bhfd->bhqd", phi_q, kv)
        den = torch.einsum("bhqf,bhf->bhq", phi_q, z)[..., None] + 1e-6
        o = num / den
        return (lambda x, *d: x.permute(*d))(o, 0, 2, 1, 3).reshape(B, S, D) @ wo

    def _B_ref(x, w_gate, w_up, w_down):
        g = _silu(x @ w_gate)
        u = x @ w_up
        return (g * u) @ w_down

    x = A_x
    xn = _layernorm(x, axis=-1)
    s = _A_ref(xn, A_wqkv, A_w_phi, A_wo)
    g = _silu(_B_ref(xn, B_w_gate, B_w_up, B_w_down))
    return x + s * g
```

```python
import re

def v(i, n=1): return f"v{i}" if n == 1 else f"v[{i}:{i+n-1}]"
def a(i, n=1): return f"a{i}" if n == 1 else f"a[{i}:{i+n-1}]"
def s(i, n=1): return f"s{i}" if n == 1 else f"s[{i}:{i+n-1}]"

_REG = re.compile(r"\b([vas])(?:(\d+)|\[(\d+):(\d+)\])")
TRANS = ("v_exp_f32", "v_log_f32", "v_rcp_f32", "v_rsq_f32", "v_sqrt_f32", "v_sin_f32", "v_cos_f32", "v_rcp_iflag_f32")

def regs_of(tok):
    out = []
    for m in _REG.finditer(tok):
        k = m.group(1)
        if m.group(2) is not None: out.append((k, int(m.group(2))))
        else: out += [(k, i) for i in range(int(m.group(3)), int(m.group(4)) + 1)]
    if re.search(r"\bvcc\b", tok): out += [("s", 106), ("s", 107)]
    if re.search(r"\bexec\b", tok): out += [("s", 126), ("s", 127)]
    if re.search(r"\bm0\b", tok): out += [("s", 124)]
    return out

def split_ops(rest):
    ops, depth, cur = [], 0, ""
    for ch in rest:
        if ch == "[": depth += 1
        if ch == "]": depth -= 1
        if ch == "," and depth == 0: ops.append(cur.strip()); cur = ""
        else: cur += ch
    if cur.strip(): ops.append(cur.strip())
    return ops

class Ins:
    __slots__ = ("text", "op", "kind", "w", "r", "passes", "srcc", "ab", "states", "dpp", "lds")
    def __init__(self, text):
        self.text = text
        t = text.split(";")[0].strip()
        parts = t.split(None, 1)
        op = parts[0]; rest = parts[1] if len(parts) > 1 else ""
        for suf in ("_e32", "_e64", "_dpp", "_sdwa"):
            if op.endswith(suf): op = op[: -len(suf)]
        self.op = op
        ops = split_ops(rest)
        self.w, self.r, self.passes, self.srcc, self.ab = [], [], 0, [], []
        self.states = 1
        self.dpp = ("row_" in rest) or ("quad_perm" in rest) or ("wave_" in rest)
        self.lds = bool(re.search(r"\blds\b", rest))
        if op == "s_nop":
            self.kind = "nop"; self.states = int(ops[0], 0) + 1
        elif op.startswith("v_mfma"):
            self.kind = "mfma"
            self.passes = 8 if "32x32x16" in op else 4 if ("16x16x32" in op or "16x16x16" in op) else 16
            self.w = regs_of(ops[0]); self.ab = regs_of(ops[1]) + regs_of(ops[2])
            self.srcc = regs_of(ops[3].split()[0]); self.r = self.ab + self.srcc
        elif op.startswith("v_cmp"):
            self.kind = "valu"; self.w = regs_of(ops[0]); self.r = sum((regs_of(o) for o in ops[1:]), [])
        elif op in ("v_readfirstlane_b32", "v_readlane_b32"):
            self.kind = "valu"; self.w = regs_of(ops[0]); self.r = sum((regs_of(o) for o in ops[1:]), [])
        elif op.startswith("v_permlane") and "swap" in op:
            self.kind = "valu"; self.w = regs_of(ops[0]) + regs_of(ops[1]); self.r = list(self.w)
        elif op.startswith("v_"):
            self.kind = "valu"; self.w = regs_of(ops[0]); k = 1
            if op in ("v_add_co_u32", "v_sub_co_u32", "v_addc_co_u32", "v_subb_co_u32", "v_div_scale_f32", "v_mad_u64_u32"):
                self.w += regs_of(ops[1]); k = 2
            self.r = sum((regs_of(o) for o in ops[k:]), [])
            if op.startswith(("v_fmac", "v_pk_fmac", "v_dot2c", "v_writelane")) or self.dpp: self.r += regs_of(ops[0])
            if op in ("v_cndmask_b32",) and len(ops) == 3: self.r += [("s", 106), ("s", 107)]
        elif op.startswith(("buffer_", "global_", "flat_")):
            self.kind = "vmem"
            allr = [regs_of(o) for o in ops]
            if "load" in op and not self.lds:
                self.w = allr[0]; self.r = sum(allr[1:], [])
            elif "atomic" in op:
                self.r = sum(allr, [])
                if re.search(r"\bsc0\b", rest): self.w = allr[0]
            else:
                self.r = sum(allr, [])
            if self.lds: self.r += [("s", 124)]
        elif op.startswith("ds_"):
            self.kind = "ds"
            allr = [regs_of(o) for o in ops]
            if op.startswith(("ds_read", "ds_bpermute", "ds_permute", "ds_swizzle")) or "rtn" in op:
                self.w = allr[0]; self.r = sum(allr[1:], [])
            else:
                self.r = sum(allr, [])
        elif op.startswith("s_"):
            self.kind = "salu"
            allr = [regs_of(o) for o in ops]
            if op.startswith(("s_cmp", "s_cbranch", "s_branch", "s_waitcnt", "s_barrier", "s_endpgm", "s_setprio", "s_sleep", "s_sethalt")):
                self.r = sum(allr, [])
            else:
                self.w = allr[0] if allr else []; self.r = sum(allr[1:], [])
                if "saveexec" in op: self.w = self.w + [("s", 126), ("s", 127)]
        else:
            raise ValueError("unknown instruction: " + text)

def wide_store_data(i):
    if i.kind == "vmem" and ("store_dwordx4" in i.op or "store_dwordx3" in i.op):
        ops = split_ops(i.text.split(";")[0].strip().split(None, 1)[1])
        return regs_of(ops[0]) if i.op.startswith("buffer") else regs_of(ops[1])
    return []

def need(p, c):
    n = 0
    pw = set(p.w)
    if p.kind == "valu":
        vw = {x for x in pw if x[0] in "va"}; sw = {x for x in pw if x[0] == "s"}
        if c.kind == "mfma" and vw & set(c.r): n = max(n, 2)
        if c.kind == "mfma" and ("s", 126) in sw: n = max(n, 4)
        if c.kind == "valu":
            if p.op in TRANS and vw & set(c.r) : n = max(n, 1)
            if c.op in ("v_readfirstlane_b32", "v_readlane_b32") and vw & set(c.r): n = max(n, 1)
            if (c.dpp or c.op.startswith("v_permlane")) and vw & set(c.r): n = max(n, 2)
            if sw & set(c.r): n = max(n, 4 if c.op in ("v_readlane_b32", "v_writelane_b32", "v_div_fmas_f32") else 2)
            if ("s", 126) in sw and (c.dpp): n = max(n, 5)
            if ("s", 126) in sw and (c.op.startswith(("v_readlane", "v_readfirstlane", "v_writelane", "v_permlane"))): n = max(n, 4)
            if "op_sel" in p.text or "sdwa" in p.text or "dst_sel" in p.text:
                if vw & (set(c.r) | set(c.w)): n = max(n, 1)
        if c.kind == "vmem" and sw & set(c.r): n = max(n, 5)
        if c.kind == "salu" and sw & set(c.r): n = max(n, 1)
    if p.kind == "mfma":
        P = {2: 0, 4: 1, 8: 2, 16: 3}[p.passes]
        if c.kind == "mfma":
            if pw & set(c.ab): n = max(n, [5, 8, 12, 20][P])
            if pw & set(c.srcc):
                if c.srcc == p.w and c.passes == p.passes: n = max(n, [2, 0, 0, 0][P])
                else: n = max(n, [4, 6, 10, 18][P])
            elif pw & set(c.w): n = max(n, [4, 6, 10, 18][P])
        elif c.kind in ("valu", "vmem", "ds"):
            if pw & (set(c.r) | set(c.w)): n = max(n, [5, 8, 12, 20][P])
        if c.kind in ("valu", "vmem", "ds") and set(p.srcc) & set(c.w): n = max(n, [1, 3, 7, 15][P])
    if p.kind == "salu" and ("s", 124) in pw and (c.kind == "vmem" and c.lds or "addtid" in c.op): n = max(n, 1)
    wsd = wide_store_data(p)
    if wsd and set(wsd) & set(c.w): n = max(n, 2)
    return n

class Asm:
    def __init__(self):
        self.lines = []
    def __call__(self, text):
        for l in text.strip("\n").split("\n"):
            l = l.strip()
            if l: self.lines.append(l)
    def label(self, l): self.lines.append(l + ":")
    def comment(self, c): self.lines.append("; " + c)
    def text(self, pad=True):
        return pad_hazards(self.lines) if pad else "\n".join(self.lines)

def is_ins(l):
    t = l.split(";")[0].strip()
    return bool(t) and not t.endswith(":") and not t.startswith(".")

def pad_hazards(lines, verbose=False):
    items = [Ins(l) if is_ins(l) else l for l in lines]
    W = 22
    def lab(it):
        t = it.split(";")[0].strip()
        return t[:-1] if t.endswith(":") else None
    preds = {}
    for it in items:
        if isinstance(it, Ins) and it.op.startswith(("s_cbranch", "s_branch")):
            preds.setdefault(it.text.split(";")[0].split()[-1], []).append(it)
    pos = {}
    def reindex():
        pos.clear()
        for i, it in enumerate(items):
            if isinstance(it, Ins) and it.op.startswith(("s_cbranch", "s_branch")): pos[id(it)] = i
    def back(i, dist, c, seen, entered=False):
        worst = 0
        while i >= 0 and dist < W:
            it = items[i]
            if isinstance(it, str):
                l = lab(it)
                if l in preds:
                    for br in preds[l]:
                        k = (id(br), dist)
                        if k not in seen:
                            seen.add(k); worst = max(worst, back(pos[id(br)], dist, c, seen, True))
                i -= 1; continue
            if it.op == "s_endpgm": break
            if it.op == "s_branch" and not entered: break
            entered = False
            n = need(it, c)
            if n - dist > worst: worst = n - dist
            dist += it.states
            i -= 1
        return worst
    npad = 0
    changed = True
    while changed:
        changed = False
        reindex()
        i = 0
        while i < len(items):
            c = items[i]
            if isinstance(c, Ins) and c.kind != "nop":
                d = back(i - 1, 0, c, set())
                if d > 0:
                    ins = []
                    while d > 0:
                        t = min(d, 16); ins.append(Ins(f"s_nop {t-1}")); d -= t
                    items[i:i] = ins
                    i += len(ins); npad += 1; changed = True
                    reindex()
            i += 1
    if verbose: print("hazard pads inserted:", npad)
    return "\n".join(("    " + it.text) if isinstance(it, Ins) else it for it in items)

def kernel_desc(name, vgpr, sgpr=100, accum=None, wg_y=False):
    accum = accum if accum is not None else ((vgpr + 3) // 4) * 4
    t = f""".amdhsa_kernel {name}
  .amdhsa_next_free_vgpr {vgpr}
  .amdhsa_next_free_sgpr {sgpr}
  .amdhsa_accum_offset {accum}
  .amdhsa_group_segment_fixed_size 0
  .amdhsa_kernarg_size 88
  .amdhsa_user_sgpr_count 2
  .amdhsa_user_sgpr_kernarg_segment_ptr 1
  .amdhsa_system_sgpr_workgroup_id_x 1
"""
    if wg_y: t += "  .amdhsa_system_sgpr_workgroup_id_y 1\n"
    t += ".end_amdhsa_kernel\n"
    return t

def kernel_head(name):
    return f""".globl {name}
.p2align 8
.type {name},@function
{name}:
"""
```

```python
import sys
from asmlib import *

NAME = "recurrent_scan__linear_kernel_hedgehog__swiglu_ffn__prompt"
USE_XN = False
WS_AF  = 0x300000
WS_WF  = 0xD00000
WS_PQ  = 0x1000000
WS_KVT = 0x1300000
WS_FLG = WS_KVT + 122880
WS_WPF = 0x1340000
WS_ST  = 0x1380000
WS_CSP = 0x1390000
WS_SIZE = 0x10000000
LOG2E = 0x3fb8aa3b
NLOG2E = 0xbfb8aa3b
OOB = 0x7ff00000
SPIN_MAX = 100000
K2D = 3
PROF = False
EXP = set()
HST = ''
WS_PROF = 0x2000000

def prof_start(A):
    if PROF:
        A("s_memrealtime s[80:81]")
        for i in range(6): A(f"s_mov_b32 s{82+2*i}, 0")
def prof_stamp(A, i):
    if PROF: A(f"s_memrealtime s[{82+2*i}:{83+2*i}]\ns_waitcnt lgkmcnt(0)")
def endpgm(A, kid):
    if PROF:
        A(f"""s_waitcnt vmcnt(0)
        s_memrealtime s[94:95]
        s_mov_b64 exec, -1
        s_lshl_b32 s96, s2, 3
        s_add_u32 s96, s96, s3
        s_lshl_b32 s96, s96, 5
        s_add_u32 s96, s96, {WS_PROF + kid*272*8*32}
        s_waitcnt lgkmcnt(0)""")
        for i in range(8): A(f"v_mov_b32 v{i}, s{80+2*i}")
        A("""v_mov_b32 v8, 0
        buffer_store_dwordx4 v[0:3], v8, s[20:23], s96 offen
        buffer_store_dwordx4 v[4:7], v8, s[20:23], s96 offen offset:16""")
    A("s_endpgm")

def srd(A, d, b, nbytes, off=0):
    if off: A(f"s_add_u32 s{d}, s{b}, {off}\ns_addc_u32 s{d+1}, s{b+1}, 0")
    else: A(f"s_mov_b32 s{d}, s{b}\ns_mov_b32 s{d+1}, s{b+1}")
    A(f"s_mov_b32 s{d+2}, {nbytes}\ns_mov_b32 s{d+3}, 0x20000")

def bf16_round(A, d):
    A(f"v_cvt_pk_bf16_f32 v{d}, v{d}, v{d}\nv_lshlrev_b32 v{d}, 16, v{d}")

def row16_sum(A, r):
    for k in (8, 4, 2, 1):
        A(f"v_add_f32_dpp v{r}, v{r}, v{r} row_ror:{k} row_mask:0xf bank_mask:0xf")

class Q:
    def __init__(self, A, name, mx): self.A, self.name, self.mx, self.q = A, name, mx, []
    def issue(self, tag):
        self.q.append(tag); assert len(self.q) <= self.mx + (0 if self.name == "vmcnt" else 99), (self.name, len(self.q))
    def wait(self, tags):
        idx = [i for i, t in enumerate(self.q) if t in tags]
        if not idx: return
        n = len(self.q) - 1 - max(idx)
        assert n <= self.mx
        self.A(f"s_waitcnt {self.name}({n})")
        self.q = self.q[max(idx) + 1:]

def code_warm(A, tag, endlabel, piece, vt, vd):
    A(f"s_getpc_b64 s[70:71]")
    A.label(tag)
    A(f"""s_lshl_b32 s72, {piece}, 13
    v_lshlrev_b32 v{vt}, 7, v0
    v_add_u32 v{vt}, s72, v{vt}
    v_min_u32 v{vt}, {endlabel}-{tag}, v{vt}
    global_load_dword v{vd}, v{vt}, s[70:71]""")

def stats_issue(A, q, R):
    A(f"""v_bfe_u32 v{R+20}, v0, 4, 1
    v_mul_u32_u24 v{R+20}, 1280, v{R+20}
    v_and_b32 v{R+21}, 15, v0
    v_lshl_add_u32 v{R+20}, v{R+21}, 4, v{R+20}
    s_mul_i32 s67, s66, 1280""")
    for c in range(5):
        A(f"buffer_load_dwordx4 {v(R+4*c,4)}, v{R+20}, s[16:19], s67 offen offset:{256*c}"); q.issue("ST")
def stats_part1(A, R, X):
    for i in range(20):
        A(f"v_lshlrev_b32 v{X+2*i}, 16, v{R+i}\nv_and_b32 v{X+2*i+1}, 0xffff0000, v{R+i}")
    m = R + 20
    A(f"v_add_f32 v{m}, v{X}, v{X+1}\nv_add_f32 v{m+1}, v{X+2}, v{X+3}")
    for i in range(4, 40, 2): A(f"v_add_f32 v{m}, v{m}, v{X+i}\nv_add_f32 v{m+1}, v{m+1}, v{X+i+1}")
    A(f"v_add_f32 v{m}, v{m}, v{m+1}")
    row16_sum(A, m)
    A(f"v_mul_f32 v{m}, 0x3acccccd, v{m}")
def stats_part2(A, q, R, X):
    m = R + 20; s_ = R + 21
    for i in range(40): A(f"v_sub_f32 v{X+i}, v{X+i}, v{m}")
    A(f"v_mul_f32 v{s_}, v{X}, v{X}\nv_mul_f32 v{R}, v{X+1}, v{X+1}")
    for i in range(2, 40, 2): A(f"v_fmac_f32 v{s_}, v{X+i}, v{X+i}\nv_fmac_f32 v{R}, v{X+i+1}, v{X+i+1}")
    A(f"v_add_f32 v{s_}, v{s_}, v{R}")
    row16_sum(A, s_)
    A(f"v_mul_f32 v{s_}, 0x3acccccd, v{s_}")
    bf16_round(A, m); bf16_round(A, s_)
    A(f"v_add_f32 v{s_}, 0x3727c5ac, v{s_}")
    bf16_round(A, s_)
    A(f"v_sqrt_f32 v{s_}, v{s_}")
    bf16_round(A, s_)
    A(f"""v_rcp_f32 v{s_}, v{s_}
    v_bfe_u32 v{R}, v0, 4, 1
    v_lshlrev_b32 v{R}, 3, v{R}
    s_lshl_b32 s67, s66, 3
    s_add_u32 s67, s67, {WS_ST}
    s_mov_b64 exec, 0x10001
    buffer_store_dwordx2 {v(m,2)}, v{R}, s[20:23], s67 offen sc1
    s_mov_b64 exec, -1""")
    q.issue("PUB")

def signal(A, vt):
    A(f"""s_and_b32 s67, s2, 3
    s_lshl_b32 s67, s67, 6
    v_mov_b32 v{vt}, s67
    v_mov_b32 v{vt+1}, 1
    s_mov_b64 exec, 1
    global_atomic_add v{vt}, v{vt+1}, s[14:15]
    s_mov_b64 exec, -1""")

def relayout_issue(A, it, slot, lab):
    A(f"""
    s_add_u32 s30, s60, {128*it}
    s_min_u32 s30, s30, 739
    s_mul_i32 s31, s30, 6554
    s_lshr_b32 s31, s31, 16         ; s = U/10
    s_mul_i32 s32, s31, 10
    s_sub_u32 s32, s30, s32         ; cq
    s_mov_b32 s{72+slot}, s31
    s_mov_b32 s{76+slot}, s32
    s_cmp_lt_u32 s31, 54
    s_cselect_b32 s40, s64, s62
    s_cselect_b32 s41, s65, s63
    s_mov_b32 s42, {640*1280}
    s_cselect_b32 s42, {1728*1280}, s42
    s_mov_b32 s43, 0x20000
    s_cselect_b32 s34, 4, 20        ; gmul(1)
    s_cselect_b32 s35, 8, 40        ; gmul(2)
    s_cselect_b32 s36, 12, 60       ; gmul(3)
    s_lshl_b32 s37, s31, 5
    s_mov_b32 s38, 16
    s_cmp_lt_u32 s31, 54
    s_cbranch_scc1 {lab}
    s_sub_u32 s33, s31, 54          ; s'
    s_mul_i32 s37, s33, 205
    s_lshr_b32 s37, s37, 10         ; P
    s_mul_i32 s39, s37, 5
    s_sub_u32 s33, s33, s39         ; ty
    s_mul_i32 s37, s37, 160
    s_lshl_b32 s39, s33, 3
    s_cmp_ge_u32 s33, 3
    s_cselect_b32 s44, 56, 0
    s_add_u32 s39, s39, s44
    s_add_u32 s37, s37, s39
    s_cmp_eq_u32 s33, 2
    s_cselect_b32 s38, 80, 4
    """)
    A.label(lab)
    A(f"""
    v_lshrrev_b32 v1, 5, v0
    v_mul_lo_u32 v1, v1, s38
    v_bfe_u32 v2, v0, 3, 2
    v_add_u32 v1, v1, v2
    v_mul_u32_u24 v1, 1280, v1
    v_and_b32 v2, 7, v0
    v_lshl_add_u32 v1, v2, 4, v1
    s_lshl_b32 s45, s32, 7          ; cq*128
    """)
    for g in range(4):
        if g == 0: A("s_mov_b32 s47, s37")
        else: A(f"s_add_u32 s47, s37, s{33+g}")
        A(f"""s_mul_i32 s47, s47, 1280
        s_add_u32 s47, s47, s45
        s_add_u32 m0, s46, {slot*4096 + g*1024}
        s_nop 0
        buffer_load_dwordx4 v1, s[40:43], s47 offen lds""")
def relayout_finish(A, slot):
    for tq in range(4):
        A(f"ds_read_b64_tr_b16 {v(8+4*tq,2)}, v4 offset:{slot*4096+tq*32}\nds_read_b64_tr_b16 {v(10+4*tq,2)}, v4 offset:{slot*4096+tq*32+512}")
    A("s_waitcnt lgkmcnt(0)")
    for tq in range(4):
        A(f"""s_lshl_b32 s47, s{76+slot}, 2
        s_add_u32 s47, s47, {tq}          ; gt
        s_mul_i32 s48, s47, 205
        s_lshr_b32 s48, s48, 10          ; cb
        s_mul_i32 s49, s48, 5
        s_sub_u32 s47, s47, s49          ; ct
        s_mul_i32 s48, s48, 74
        s_add_u32 s48, s48, s{72+slot}
        s_mul_i32 s48, s48, 5
        s_add_u32 s48, s48, s47
        s_lshl_b32 s48, s48, 10
        s_add_u32 s48, s48, {WS_WF}
        buffer_store_dwordx4 {v(8+4*tq,4)}, v3, s[20:23], s48 offen {HST}""")

def wpf_issue(A):
    A(f"""
    s_mul_i32 s31, s30, 4370
    s_lshr_b32 s31, s31, 16          ; hg = F/15
    s_mul_i32 s32, s31, 15
    s_sub_u32 s32, s30, s32
    s_mul_i32 s33, s32, 86
    s_lshr_b32 s33, s33, 8           ; tau
    s_mul_i32 s34, s33, 3
    s_sub_u32 s35, s32, s34          ; c
    s_lshl_b32 s33, s33, 2
    s_mul_i32 s39, s31, 1600
    s_add_u32 s39, s39, s33
    v_bfe_u32 v4, v0, 2, 2           ; head_out
    v_and_b32 v5, 3, v0
    v_mul_u32_u24 v6, 400, v4
    v_add_u32 v6, v6, v5
    v_add_u32 v6, s39, v6
    v_lshrrev_b32 v7, 4, v0
    v_lshlrev_b32 v7, 2, v7          ; 4*g
    s_lshl_b32 s35, s35, 5
    v_add_u32 v7, s35, v7            ; 32c + 4g
    v_mov_b32 v11, 0x7ffffff0
    """)
    for j in range(8):
        A(f"""v_add_u32 v8, {16*(j>>2)+(j&3)}, v7
        v_mul_u32_u24 v9, 205, v8
        v_lshrrev_b32 v9, 12, v9          ; head_in
        v_mul_u32_u24 v10, 20, v9
        v_sub_u32 v10, v8, v10            ; d
        v_mul_u32_u24 v10, 20, v10
        v_add_u32 v10, v10, v6
        v_lshlrev_b32 v10, 1, v10
        v_cmp_eq_u32 vcc, v9, v4
        v_cndmask_b32 v10, v11, v10, vcc
        buffer_load_ushort v{16+j}, v10, s[24:27], 0 offen""")

def k1_spare(A):
    q = Q(A, "vmcnt", 63)
    A(f"""
    s_load_dwordx2 s[60:61], s[0:1], 16
    s_load_dwordx2 s[62:63], s[0:1], 24
    s_load_dwordx2 s[64:65], s[0:1], 56
    s_lshl_b32 s66, s32, 8
    s_lshl_b32 s67, s28, 3
    s_add_u32 s66, s66, s67
    s_and_b32 s67, s3, 3
    s_lshl_b32 s67, s67, 1
    s_add_u32 s66, s66, s67
    """)
    stats_issue(A, q, 40)
    A("s_waitcnt lgkmcnt(0)")
    srd(A, 24, 60, 25600)
    A(f"""
    s_lshl_b32 s60, s32, 1
    s_add_u32 s60, s60, s30
    s_sub_u32 s60, s60, 2
    s_lshl_b32 s60, s60, 3
    s_add_u32 s60, s60, s3              ; SW 0..127
    s_min_u32 s30, s60, 119
    s_mov_b32 s61, s30
    """)
    wpf_issue(A)
    A(f"""
    v_mov_b32 v28, 0
    v_mov_b32 v29, 0
    v_mov_b32 v30, 0
    v_mov_b32 v31, 0
    v_lshlrev_b32 v3, 4, v0
    s_min_u32 s30, s60, 123
    s_lshl_b32 s30, s30, 10
    s_add_u32 s30, s30, {WS_KVT}
    buffer_store_dwordx4 v[28:31], v3, s[20:23], s30 offen sc1
    s_mul_i32 s46, s3, {4*4096}
    """)
    for it in range(3): relayout_issue(A, it, it, f"RL{it}")
    A("s_waitcnt vmcnt(13)")
    for p in range(4): A(f"v_lshl_or_b32 v{24+p}, v{17+2*p}, 16, v{16+2*p}")
    A(f"""s_lshl_b32 s30, s61, 10
    s_add_u32 s30, s30, {WS_WPF}
    buffer_store_dwordx4 v[24:27], v3, s[20:23], s30 offen sc1""")
    stats_part1(A, 40, 64); stats_part2(A, q, 40, 64)
    A(f"""
    v_lshrrev_b32 v4, 4, v0
    v_lshlrev_b32 v4, 10, v4
    v_bfe_u32 v5, v0, 2, 2
    v_lshl_add_u32 v4, v5, 7, v4
    v_and_b32 v5, 3, v0
    v_lshl_add_u32 v4, v5, 3, v4
    v_add_u32 v4, s46, v4
    s_waitcnt vmcnt(0)
    s_barrier
    s_cmp_lg_u32 s3, 0
    s_cbranch_scc1 SP_nosig
    """)
    signal(A, 32)
    A.label("SP_nosig")
    for it in range(3): relayout_finish(A, it)
    for it in range(3): relayout_issue(A, 3 + it, it, f"RL{3+it}")
    A(f"""
    v_mov_b32 v28, -1
    v_mov_b32 v29, -1
    v_mov_b32 v30, -1
    v_mov_b32 v31, -1
    s_lshr_b32 s30, s60, 2
    s_mul_i32 s30, s30, 74
    s_and_b32 s31, s60, 3
    s_mul_i32 s31, s31, 5
    s_add_u32 s30, s30, s31
    s_add_u32 s30, s30, 54
    s_lshl_b32 s30, s30, 12
    s_add_u32 s30, s30, {WS_AF}
    """)
    for i in range(5):
        for T in range(4): A(f"buffer_store_dwordx4 v[28:31], v3, s[20:23], s30 offen offset:{T*1024} {HST}")
        if i < 4: A("s_add_u32 s30, s30, 4096")
    A("s_waitcnt vmcnt(20)")
    for it in range(3): relayout_finish(A, it)

def dual_softmax(A, P, E, OUT, T, SL):
    mx, mn = T, T + 2
    lo = SL.replace("[", "").split(":")[0]
    A(f"v_max3_f32 v{mx}, v{P}, v{P+1}, v{P+2}\nv_min3_f32 v{mn}, v{P}, v{P+1}, v{P+2}")
    for i in range(3, 19, 2):
        A(f"v_max3_f32 v{mx}, v{mx}, v{P+i}, v{P+i+1}\nv_min3_f32 v{mn}, v{mn}, v{P+i}, v{P+i+1}")
    A(f"v_max_f32 v{mx}, v{mx}, v{P+19}\nv_min_f32 v{mn}, v{mn}, v{P+19}")
    A(f"v_mul_f32 v{mx}, {lo}, v{mx}\nv_mul_f32 v{mn}, {lo}, v{mn}")
    for k in range(10):
        A(f"v_pk_fma_f32 {v(E+2*k,2)}, {v(P+2*k,2)}, {SL}, {v(mx,2)} op_sel_hi:[1,0,0] neg_lo:[0,0,1] neg_hi:[0,0,1]")
        A(f"v_pk_fma_f32 {v(E+20+2*k,2)}, {v(P+2*k,2)}, {SL}, {v(mn,2)} op_sel_hi:[1,0,0] neg_lo:[1,0,0] neg_hi:[1,0,0]")
    for i in range(40): A(f"v_exp_f32 v{E+i}, v{E+i}")
    sp, sm = T, T + 2
    A(f"v_pk_add_f32 {v(sp,2)}, {v(E,2)}, {v(E+2,2)}\nv_pk_add_f32 {v(sm,2)}, {v(E+20,2)}, {v(E+22,2)}")
    for k in range(2, 10):
        A(f"v_pk_add_f32 {v(sp,2)}, {v(sp,2)}, {v(E+2*k,2)}\nv_pk_add_f32 {v(sm,2)}, {v(sm,2)}, {v(E+20+2*k,2)}")
    A(f"v_add_f32 v{sp}, v{sp}, v{sp+1}\nv_add_f32 v{sm}, v{sm}, v{sm+1}")
    A(f"v_rcp_f32 v{sp}, v{sp}\nv_rcp_f32 v{sm}, v{sm}")
    for k in range(10):
        A(f"v_pk_mul_f32 {v(E+2*k,2)}, {v(E+2*k,2)}, {v(sp,2)} op_sel_hi:[1,0]")
        A(f"v_pk_mul_f32 {v(E+20+2*k,2)}, {v(E+20+2*k,2)}, {v(sm,2)} op_sel_hi:[1,0]")
    for k in range(20):
        A(f"v_cvt_pk_bf16_f32 v{OUT+k}, v{E+2*k}, v{E+2*k+1}")

XSLOT = 8192; XWAVE = 3 * XSLOT; WBASE = 4 * XWAVE
NWS = 5
PHI_P = 336; V_P = 208; PHI_BASE = 0; V_BASE = 256 * PHI_P
L_ST = 159744; L_CS = L_ST + 2048
K1_LDS = 160 * 1024
def wpf_lds(i): return (i >> 3) * XWAVE + XSLOT + (i & 7) * 1024

def k1_loader(A, gu, nW, tag):
    WU = 12288 if gu else 10240
    NCH = 12 if gu else 10
    q = Q(A, "vmcnt", 63)
    def X(j, half=None):
        for e in (range(8) if half is None else range(4 * half, 4 * half + 4)):
            A(f"s_add_u32 s48, s40, {e*8*1280 + j*128}\ns_add_u32 m0, s43, {(j%3)*XSLOT + e*1024}\ns_nop 0")
            A(f"buffer_load_dwordx4 v{2+(e&1)}, s[16:19], s48 offen lds"); q.issue(("X", j))
    def W(u):
        A(f"s_mul_i32 s49, s42, {u}")
        for e in range(nW):
            A(f"s_add_u32 m0, s{44+e}, {WBASE + (u%NWS)*WU}\ns_nop 0")
            A(f"buffer_load_dwordx4 v{4+e}, s[24:27], s49 offen lds"); q.issue(("W", u))
    R, XU, C, CA = 16, 40, 80, 120
    def cs_issue(lo, hi):
        for i in range(lo, hi):
            A(f"buffer_load_dwordx4 {v(C+4*i,4)}, v7, s[24:27], s50 offen"); q.issue("CS")
            if i < 9: A("s_add_u32 s50, s50, s51")
    def cs_acc(lo, hi):
        for i in range(lo, hi):
            for k in range(4):
                r = C + 4 * i + k
                if i == 0: A(f"v_lshlrev_b32 v{CA+2*k}, 16, v{r}\nv_and_b32 v{CA+2*k+1}, 0xffff0000, v{r}")
                else: A(f"v_lshlrev_b32 v{CA+8}, 16, v{r}\nv_and_b32 v{r}, 0xffff0000, v{r}\nv_add_f32 v{CA+2*k}, v{CA+2*k}, v{CA+8}\nv_add_f32 v{CA+2*k+1}, v{CA+2*k+1}, v{r}")
    def cs_fin():
        for sw in ("v_permlane32_swap_b32", "v_permlane16_swap_b32"):
            for k in range(8): A(f"v_mov_b32 v{C+k}, v{CA+k}")
            for k in range(8): A(f"{sw} v{CA+k}, v{C+k}")
            for k in range(8): A(f"v_add_f32 v{CA+k}, v{CA+k}, v{C+k}")
        A(f"""v_lshlrev_b32 v{C}, 5, v0
        s_mov_b64 exec, {(1<<NCH)-1}
        buffer_store_dwordx4 {v(CA,4)}, v{C}, s[20:23], s52 offen sc1
        buffer_store_dwordx4 {v(CA+4,4)}, v{C}, s[20:23], s52 offen offset:16 sc1
        s_mov_b64 exec, -1""")
        q.issue("PUB"); q.issue("PUB")
    def poll_issue():
        A(f"v_and_b32 v{R}, 3, v0\nv_lshlrev_b32 v{R}, 6, v{R}\nglobal_load_dword v{R+1}, v{R}, s[14:15] sc1"); q.issue("POLL")
    def poll_check():
        q.wait({"POLL"})
        A(f"s_mov_b32 s68, {SPIN_MAX}\ns_branch {tag}_chk")
        A.label(f"{tag}_spin")
        A(f"s_sub_u32 s68, s68, 1\ns_cbranch_scc1 {tag}_out\ns_sleep 2\nglobal_load_dword v{R+1}, v{R}, s[14:15] sc1\ns_waitcnt vmcnt(0)")
        A.label(f"{tag}_chk")
        A(f"v_cmp_ne_u32 vcc, 64, v{R+1}\ns_cbranch_vccnz {tag}_spin")
        A.label(f"{tag}_out")
    def cons_issue():
        A(f"""v_lshlrev_b32 v{R}, 3, v0
        s_lshl_b32 s48, s32, 8
        s_lshl_b32 s49, s41, 6
        s_add_u32 s48, s48, s49
        s_lshl_b32 s48, s48, 3
        s_add_u32 s48, s48, {WS_ST}
        buffer_load_dwordx2 {v(R+2,2)}, v{R}, s[20:23], s48 offen sc1
        v_lshlrev_b32 v{R+1}, 2, v0""")
        q.issue("C1")
        for i in range(16):
            if i and i % 5 == 0: A(f"s_add_u32 s53, s53, {5*768}")
            A(f"buffer_load_dword v{XU+i}, v{R+1}, s[20:23], s53 offen offset:{(i%5)*768} sc1"); q.issue("C1")
        if not gu:
            A(f"v_lshlrev_b32 v{R+4}, 4, v0")
            for e in range(8):
                A(f"s_add_u32 s48, s54, {e*1024}\ns_cmp_lt_u32 {e}, s55\ns_cselect_b32 s48, s48, {OOB}")
                A(f"buffer_load_dwordx4 {v(C+4*e,4)}, v{R+4}, s[20:23], s48 offen sc1"); q.issue("C2")
    def cons_fin():
        q.wait({"C1"})
        A(f"s_lshl_b32 s48, s41, 9\ns_add_u32 s48, s48, {L_ST}\nv_add_u32 v{R}, s48, v{R}\nds_write_b64 v{R}, {v(R+2,2)}")
        for st in (8, 4, 2, 1):
            for i in range(st): A(f"v_add_f32 v{XU+i}, v{XU+i}, v{XU+i+st}")
        A(f"""s_mul_i32 s48, s41, 192
        s_add_u32 s48, s48, {L_CS}
        v_add_u32 v{R+1}, s48, v{R+1}
        s_mov_b32 exec_hi, 0xffff
        ds_write_b32 v{R+1}, v{XU}
        s_mov_b64 exec, -1""")
        if not gu:
            q.wait({"C2"})
            A(f"v_add_u32 v{R+4}, s43, v{R+4}")
            for e in range(8): A(f"ds_write_b128 v{R+4}, {v(C+4*e,4)} offset:{XSLOT + e*1024}")
        A("s_waitcnt lgkmcnt(0)")
    q.q = [("X", 0)] * 8 + [("W", 0)] * 3 + [("W", 1)] * 3
    def sig():
        A(f"s_cmp_lg_u32 s41, 0\ns_cbranch_scc1 {tag}_nosig")
        signal(A, R)
        A.label(f"{tag}_nosig")
    sched = {u: [] for u in range(20)}
    sched[0] += [lambda: X(1), lambda: W(2)]
    sched[1] += [lambda: W(3), lambda: X(2, 0)]
    sched[2] += [lambda: X(2, 1), lambda: W(4), lambda: stats_issue(A, q, R)]
    sched[3] += [lambda: W(5), lambda: X(3, 0), lambda: W(6)]
    sched[4] += [lambda: X(3, 1), lambda: W(7), lambda: cs_issue(0, 3)]
    sched[5] += [lambda: X(4, 0), lambda: W(8), lambda: cs_issue(3, 6)]
    sched[6] += [lambda: X(4, 1), lambda: W(9), lambda: cs_issue(6, 10), lambda: q.wait({"ST"}), lambda: stats_part1(A, R, XU)]
    sched[7] += [lambda: X(5), lambda: W(10), lambda: stats_part2(A, q, R, XU)]
    for u in range(8, 17):
        j = u // 2 + 2
        if j < 10: sched[u].append(lambda j=j, h=u % 2: X(j, h))
        sched[u].append(lambda u=u: W(u + 3))
    sched[8] += [lambda: q.wait({"CS"}), lambda: cs_acc(0, 7)]
    sched[9] += [lambda: cs_acc(7, 10), cs_fin]
    sched[11] = [sig] + sched[11]
    sched[16] += [poll_issue]
    sched[17] += [poll_check, lambda: prof_stamp(A, 5), cons_issue]
    sched[19] += [cons_fin]
    for u in range(20):
        q.wait({("W", u), ("X", u // 2)})
        if u == 0: prof_stamp(A, 3)
        if u == 8: prof_stamp(A, 4)
        if u == 11: q.wait({"PUB"})
        A("s_barrier")
        for f in sched[u]: f()
    A("s_barrier")

ACC = 0
XF = 192
WFR = 224
NWF = 5
VX = 244
VW = 246
VL = 248
def acc(T, ct): return ACC + (T * 12 + ct) * 4

def k1_mainloop(A, gu):
    NT = 12 if gu else 10
    WU = 12288 if gu else 10240
    pitch = 192 if gu else 320
    LA = NWF - 1
    q = Q(A, "lgkmcnt", 15)
    def woff(n):
        u, ct = divmod(n, NT)
        o = (u % NWS) * WU
        o += (ct % 6) * 32 + (ct // 6) * 6144 if gu else ct * 32
        return o
    def rdW(n, halves=(0, 1)):
        r = WFR + 4 * (n % NWF); ad = VW + (n % NT) % 2
        for h in halves:
            A(f"ds_read_b64_tr_b16 {v(r+2*h,2)}, v{ad} offset:{woff(n)+4*pitch*h}"); q.issue(("W", n))
    def rdX(u, T):
        j, kh = divmod(u, 2)
        A(f"ds_read_b128 {v(XF+16*(u&1)+4*T,4)}, v{VX+kh} offset:{(j%3)*XSLOT + T*2048}"); q.issue(("X", u, T))
    NTOT = 20 * NT
    A("s_barrier")
    prof_stamp(A, 1)
    if PROF: A("s_memtime s[76:77]\ns_waitcnt lgkmcnt(0)")
    rdX(0, 0); rdW(0); rdX(0, 1); rdX(0, 2); rdX(0, 3)
    for n in range(1, LA): rdW(n)
    for n in range(NTOT):
        u, ct = divmod(n, NT)
        for T in range(4):
            q.wait({("W", n), ("X", u, T)})
            c = "0" if u == 0 else v(acc(T, ct), 4)
            A(f"v_mfma_f32_16x16x32_bf16 {v(acc(T,ct),4)}, {v(WFR+4*(n%NWF),4)}, {v(XF+16*(u&1)+4*T,4)}, {c}")
            m = n + LA
            if T == 0 and m < NTOT:
                if m % NT == 0: A("s_barrier")
                rdW(m, (0,))
            if T == 1 and m < NTOT: rdW(m, (1,))
            if T == 2 and u + 1 < 20 and ct >= NT - LA: rdX(u + 1, ct - (NT - LA))
    prof_stamp(A, 2)
    if PROF: A("s_memtime s[78:79]\ns_waitcnt lgkmcnt(0)\ns_sub_u32 s82, s78, s76\ns_add_u32 s82, s82, s80")

CSR = 192
STR = 240
def epi_common(A, ntile):
    A(f"""
    v_lshrrev_b32 v249, 4, v{VL}
    v_lshlrev_b32 v249, 4, v249
    v_add_u32 v249, {L_CS}, v249
    v_and_b32 v250, 15, v{VL}
    v_lshlrev_b32 v250, 3, v250
    s_lshl_b32 s51, s3, 9
    s_add_u32 s51, s51, {L_ST}
    v_add_u32 v250, s51, v250
    s_waitcnt vmcnt(0)
    s_barrier
    """)
    for T in range(4): A(f"ds_read_b64 {v(STR+2*T,2)}, v250 offset:{T*128}")
    for ct in range(ntile): A(f"ds_read_b128 {v(CSR+4*ct,4)}, v249 offset:{ct*64}")
    A(f"v_lshlrev_b32 v249, 4, v{VL}\ns_waitcnt lgkmcnt(0)")
    prof_stamp(A, 3)
def center(A, r, T, ct):
    for h in range(2):
        A(f"v_pk_fma_f32 {v(r+2*h,2)}, {v(CSR+4*ct+2*h,2)}, {v(STR+2*T,2)}, {v(r+2*h,2)} op_sel_hi:[1,0,1] neg_lo:[1,0,0] neg_hi:[1,0,0]")

def k1_epi_gu(A):
    epi_common(A, 12)
    for T in range(4):
        A(f"v_mul_f32 v{252+T}, v{STR+2*T+1}, v{STR+2*T+1}\nv_mul_f32 v{STR+2*T+1}, {NLOG2E}, v{STR+2*T+1}\nv_rcp_f32 v{252+T}, v{252+T}")
    for T in range(4):
        G = acc(T, 0); U = acc(T, 6); sd = v(252 + (T & 2), 2); b = T & 1
        for ct in range(12): center(A, acc(T, ct), T, ct)
        for k in range(12): A(f"v_pk_mul_f32 {v(U+2*k,2)}, {v(G+2*k,2)}, {v(U+2*k,2)}")
        for k in range(12): A(f"v_pk_mul_f32 {v(G+2*k,2)}, {v(G+2*k,2)}, {v(STR+2*T,2)} op_sel:[0,1] op_sel_hi:[1,1]")
        for i in range(24): A(f"v_exp_f32 v{G+i}, v{G+i}")
        for k in range(12): A(f"v_pk_fma_f32 {v(G+2*k,2)}, {v(G+2*k,2)}, {sd}, {sd} op_sel:[0,{b},{b}] op_sel_hi:[1,{b},{b}]")
        for i in range(24): A(f"v_rcp_f32 v{G+i}, v{G+i}")
        for k in range(12): A(f"v_pk_mul_f32 {v(U+2*k,2)}, {v(U+2*k,2)}, {v(G+2*k,2)}")
        for k in range(12): A(f"v_cvt_pk_bf16_f32 v{G+k}, v{U+2*k}, v{U+2*k+1}")
        for c in range(3):
            A(f"s_add_u32 s51, s50, {c*4096}")
            A(f"buffer_store_dwordx4 {v(G+4*c,4)}, v249, s[20:23], s51 offen offset:{T*1024} {HST}")
    prof_stamp(A, 5)

WP = 192
def read_wpf(A, first):
    for tau in range(5):
        for c in range(3):
            i = first + 3 * tau + c
            base = 250 + (i >> 4)
            off = wpf_lds(i) - (i >> 4) * 2 * XWAVE
            if c < 2: A(f"ds_read_b128 {v(WP+10*tau+4*c,4)}, v{base} offset:{off}")
            else: A(f"ds_read_b64 {v(WP+10*tau+8,2)}, v{base} offset:{off}")
def normalize(A, ntile, scale_tiles):
    for T in range(4):
        for ct in range(ntile):
            center(A, acc(T, ct), T, ct)
        for ct in scale_tiles:
            for h in range(2):
                r = acc(T, ct) + 2 * h
                A(f"v_pk_mul_f32 {v(r,2)}, {v(r,2)}, {v(STR+2*T,2)} op_sel:[0,1] op_sel_hi:[1,1]")
def proj_mfma(A, D, B01, B2):
    for c in range(3):
        for tau in range(5):
            d = v(D + 4 * tau, 4)
            if c < 2: A(f"v_mfma_f32_16x16x32_bf16 {d}, {v(WP+10*tau+4*c,4)}, {v(B01+4*c,4)}, {'0' if c==0 else d}")
            else: A(f"v_mfma_f32_16x16x16_bf16 {d}, {v(WP+10*tau+8,2)}, {v(B2,2)}, {d}")

def k1_epi_kv(A):
    epi_common(A, 10)
    normalize(A, 10, range(5, 10))
    A(f"v_mov_b32 v250, v249")
    for T in range(4): A(f"v_mul_f32 v{252+T}, {LOG2E}, v{STR+2*T+1}")
    read_wpf(A, 0)
    A(f"""
    v_and_b32 v243, 15, v{VL}
    s_lshl_b32 s51, s3, 6
    v_add_u32 v243, s51, v243            ; row (T=0)
    v_lshrrev_b32 v246, 4, v{VL}         ; g
    v_mul_u32_u24 v251, {PHI_P}, v243
    v_mul_u32_u24 v247, 80, v246
    v_add_u32 v251, v251, v247
    v_mul_u32_u24 v243, {V_P}, v243
    v_add_u32 v243, {V_BASE}, v243
    v_mul_u32_u24 v247, 48, v246
    v_add_u32 v242, v243, v247
    """)
    VA = acc(3, 10)
    for c in range(5):
        A(f"""v_add_u32 v247, {4*c}, v246
        v_mul_u32_u24 v244, 205, v247
        v_lshrrev_b32 v244, 10, v244
        v_add_u32 v247, v247, v244
        v_lshl_add_u32 v{VA+c}, v247, 3, v243""")
    for T in range(4):
        for c in range(5):
            r = acc(T, 5 + c)
            A(f"v_cvt_pk_bf16_f32 v{r}, v{r}, v{r+1}\nv_cvt_pk_bf16_f32 v{r+1}, v{r+2}, v{r+3}")
    A("v_mov_b32 v244, 0x3f80\nv_mov_b32 v245, 0\ns_waitcnt lgkmcnt(0)\ns_barrier")
    for T in range(4):
        for c in range(5):
            A(f"ds_write_b64 v{VA+c}, {v(acc(T,5+c),2)} offset:{T*16*V_P}")
        A(f"ds_write_b64 v242, v[244:245] offset:{T*16*V_P + 40}")
    for T in range(4):
        for k in range(8): A(f"v_cvt_pk_bf16_f32 v{acc(T,10)+k}, v{acc(T,0)+2*k}, v{acc(T,0)+2*k+1}")
        for k in range(2): A(f"v_cvt_pk_bf16_f32 v{acc(T,0)+k}, v{acc(T,4)+2*k}, v{acc(T,4)+2*k+1}")
        proj_mfma(A, acc(T, 5), acc(T, 10), acc(T, 0))
    for T in range(4):
        A(f"v_mov_b32 v236, v{252+T}")
        dual_softmax(A, acc(T, 5), 192, acc(T, 0), 232, "v[236:237]")
        for k in range(5):
            A(f"ds_write_b128 v251, {v(acc(T,0)+4*k,4)} offset:{T*16*PHI_P + 16*k}")
    A(f"""
    v_lshrrev_b32 v241, 5, v{VL}
    v_lshlrev_b32 v241, 3, v241          ; 8*(G>>1)
    v_bfe_u32 v242, v{VL}, 2, 2
    v_add_u32 v241, v241, v242
    v_bfe_u32 v242, v{VL}, 4, 1
    v_lshlrev_b32 v242, 5, v242
    v_and_b32 v243, 3, v{VL}
    v_lshl_add_u32 v242, v243, 3, v242   ; 32*(G&1)+8c
    v_mul_u32_u24 v237, {PHI_P}, v241
    v_add_u32 v237, v237, v242
    s_mul_i32 s51, s3, 80
    v_add_u32 v237, s51, v237
    v_add_u32 v239, {128*PHI_P}, v237
    v_mul_u32_u24 v238, {V_P}, v241
    v_add_u32 v238, v238, v242
    s_mul_i32 s51, s3, 48
    s_add_u32 s51, s51, {V_BASE}
    v_add_u32 v238, s51, v238
    v_and_b32 v241, 31, v{VL}
    v_lshrrev_b32 v242, 5, v{VL}
    v_mul_u32_u24 v242, 640, v242
    v_lshl_add_u32 v242, v241, 2, v242     ; hh*4*160 + n*4
    s_waitcnt lgkmcnt(0)
    s_barrier
    """)
    prof_stamp(A, 4)
    q = Q(A, "lgkmcnt", 15)
    def rd(ks):
        b = 32 + 12 * (ks % 3)
        pa, po = (237, ks * 16 * PHI_P) if ks < 8 else (239, (ks - 8) * 16 * PHI_P)
        for h in range(2):
            A(f"ds_read_b64_tr_b16 {v(b+2*h,2)}, v238 offset:{ks*16*V_P + h*4*V_P}"); q.issue(ks)
        for nt in range(2):
            for h in range(2):
                A(f"ds_read_b64_tr_b16 {v(b+4+4*nt+2*h,2)}, v{pa} offset:{po + nt*64 + h*4*PHI_P}"); q.issue(ks)
    rd(0); rd(1)
    for ks in range(16):
        q.wait({ks})
        if ks + 2 < 16: rd(ks + 2)
        b = 32 + 12 * (ks % 3)
        for nt in range(2):
            A(f"v_mfma_f32_32x32x16_bf16 {v(16*nt,16)}, {v(b,4)}, {v(b+4+4*nt,4)}, {'0' if ks==0 else v(16*nt,16)}")
    prof_stamp(A, 5)
    for nt in range(2):
        if nt == 1: A("s_mov_b32 exec_lo, 0xff\ns_mov_b32 exec_hi, 0xff")
        for i in range(12):
            A(f"buffer_atomic_add_f32 v{16*nt+i}, v242, s[20:23], s57 offen offset:{(8*(i>>2)+(i&3))*160 + nt*128}")

def k1_epi_q(A):
    epi_common(A, 10)
    normalize(A, 10, range(10))
    A(f"v_mov_b32 v250, v249\nv_add_u32 v251, {2*XWAVE}, v249\nv_lshlrev_b32 v247, 3, v{VL}")
    for hgi in range(2):
        read_wpf(A, 15 * hgi)
        b2 = [242, 244, 252, 254]
        for T in range(4):
            src = acc(T, 5 * hgi)
            for k in range(8): A(f"v_cvt_pk_bf16_f32 v{acc(T,10)+k}, v{src+2*k}, v{src+2*k+1}")
            for k in range(2): A(f"v_cvt_pk_bf16_f32 v{b2[T]+k}, v{src+16+2*k}, v{src+17+2*k}")
        A("s_waitcnt lgkmcnt(0)")
        for T in range(4): proj_mfma(A, acc(T, 5 * hgi), acc(T, 10), b2[T])
        for T in range(4):
            src = acc(T, 5 * hgi)
            for k in range(10): A(f"v_cvt_pk_bf16_f32 v{src+k}, v{src+2*k}, v{src+2*k+1}")
            A(f"s_add_u32 s51, s58, {(hgi*4+T)*2560}")
            A(f"buffer_store_dwordx4 {v(src,4)}, v249, s[20:23], s51 offen {HST}")
            A(f"buffer_store_dwordx4 {v(src+4,4)}, v249, s[20:23], s51 offen offset:1024 {HST}")
            A(f"buffer_store_dwordx2 {v(src+8,2)}, v247, s[20:23], s51 offen offset:2048 {HST}")
    prof_stamp(A, 5)

def gen_k1():
    A = Asm()
    prof_start(A)
    A(f"""
    s_load_dwordx4 s[4:7], s[0:1], 0     ; x, wqkv
    s_load_dwordx4 s[8:11], s[0:1], 40
    s_load_dwordx4 s[12:15], s[0:1], 72
    s_cmp_ge_u32 s2, 256
    s_cbranch_scc1 K1_end
    v_lshrrev_b32 v1, 6, v0
    v_and_b32 v0, 63, v0
    v_readfirstlane_b32 s3, v1
    s_and_b32 s30, s2, 7                 ; xcd
    s_lshr_b32 s31, s2, 3                ; j
    s_lshr_b32 s32, s30, 2
    s_lshl_b32 s32, s32, 2
    s_and_b32 s33, s31, 3
    s_add_u32 s32, s32, s33              ; rb
    s_and_b32 s30, s30, 3                ; cg
    s_lshr_b32 s31, s31, 2               ; cslot
    s_sub_u32 s41, s3, 4
    s_lshl_b32 s40, s32, 8
    s_lshl_b32 s36, s41, 6
    s_add_u32 s40, s40, s36
    s_mul_i32 s40, s40, 1280
    s_mul_i32 s43, s41, {XWAVE}
    v_lshrrev_b32 v7, 3, v0              ; r
    v_and_b32 v8, 7, v0                  ; p
    v_lshrrev_b32 v9, 1, v7
    v_xor_b32 v8, v8, v9
    v_mul_u32_u24 v7, 1280, v7
    v_lshl_add_u32 v2, v8, 4, v7
    v_xor_b32 v3, 64, v2
    s_mov_b32 s18, 2621440
    s_mov_b32 s19, 0x20000
    s_mov_b32 s22, {WS_SIZE}
    s_mov_b32 s23, 0x20000
    s_lshl_b32 s28, s30, 3
    s_add_u32 s28, s28, s31
    s_cmp_ge_u32 s28, 23
    s_cselect_b32 s34, 7, 0
    s_and_b32 s34, s34, s31
    s_waitcnt lgkmcnt(0)
    s_mov_b32 s16, s4
    s_mov_b32 s17, s5
    s_mov_b32 s20, s14
    s_mov_b32 s21, s15
    s_mov_b32 s14, s12
    s_mov_b32 s15, s13
    s_cmp_eq_u32 s34, 7
    s_cbranch_scc1 K1_spare
    s_cmp_lt_u32 s3, 4
    s_cbranch_scc1 K1_nox0
    """)
    prof_stamp(A, 0)
    for e in range(8):
        A(f"s_add_u32 s48, s40, {e*8*1280}\ns_add_u32 m0, s43, {e*1024}\ns_nop 0\nbuffer_load_dwordx4 v{2+(e&1)}, s[16:19], s48 offen lds")
    A.label("K1_nox0")
    A(f"""
    s_mov_b32 s34, 1
    s_lshl_b32 s35, s30, 1
    s_add_u32 s35, s35, s31              ; hg
    s_add_u32 s29, s35, 18
    s_cmp_lt_u32 s31, 2
    s_cbranch_scc1 K1_typed
    s_mov_b32 s34, 2
    s_mov_b32 s35, s30                   ; qb
    s_add_u32 s29, s35, 26
    s_cmp_eq_u32 s31, 2
    s_cbranch_scc1 K1_typed
    s_mov_b32 s34, 0
    s_mul_i32 s35, s30, 5
    s_lshl_b32 s36, s30, 2
    s_add_u32 s36, s36, 2
    s_min_u32 s35, s35, s36
    s_add_u32 s35, s35, s31
    s_sub_u32 s35, s35, 3
    s_mov_b32 s29, s35
    """)
    A.label("K1_typed")
    A("s_cmp_lt_u32 s3, 4\ns_cbranch_scc1 K1_compute")
    A(f"""
    s_lshr_b32 s58, s41, 1               ; half
    s_and_b32 s59, s41, 1
    s_cmp_eq_u32 s34, 0
    s_cbranch_scc0 K1_lp_qkv
    s_cmp_lt_u32 s41, 2
    s_cselect_b32 s24, s8, s10
    s_cselect_b32 s25, s9, s11
    s_mov_b32 s26, {640*3456}
    s_mov_b32 s60, 3456
    s_mov_b32 s61, 12
    s_mov_b32 s38, {(1<<32)//12+1}
    s_mul_i32 s37, s35, 192
    s_mov_b32 s39, 0
    s_mul_i32 s62, s59, 3
    s_mov_b32 s63, 5
    s_mul_i32 s64, s58, 6144
    s_mov_b32 s65, 12288
    s_branch K1_lp_go
    """)
    A.label("K1_lp_qkv")
    A(f"""
    s_mov_b32 s24, s6
    s_mov_b32 s25, s7
    s_mov_b32 s26, {640*3840}
    s_mov_b32 s60, 3840
    s_mov_b32 s61, 20
    s_mov_b32 s38, {(1<<32)//20+1}
    s_mul_i32 s37, s35, 160
    s_add_u32 s37, s37, 1280
    s_mul_i32 s39, s35, 320
    s_cmp_eq_u32 s34, 2
    s_cselect_b32 s37, s39, s37
    s_cselect_b32 s39, 0, {1280-160}
    s_mul_i32 s62, s41, 3
    s_lshl_b32 s57, s41, 1
    s_add_u32 s57, s57, 2
    s_min_u32 s62, s62, s57
    s_mov_b32 s63, 9
    s_mov_b32 s64, 0
    s_mov_b32 s65, 10240
    """)
    A.label("K1_lp_go")
    A("s_mov_b32 s27, 0x20000\ns_lshl_b32 s42, s60, 5\nv_mov_b32 v10, s39")
    for e in range(3):
        A(f"""s_add_u32 s36, s62, {e}
        s_min_u32 s36, s36, s63
        s_lshl_b32 s{44+e}, s36, 10
        s_add_u32 s{44+e}, s{44+e}, s64
        s_lshl_b32 s36, s36, 6
        v_add_u32 v7, s36, v0
        v_mul_hi_u32 v8, v7, s38
        v_mul_lo_u32 v9, v8, s61
        v_sub_u32 v9, v7, v9
        v_bfe_u32 v11, v8, 3, 1
        v_lshlrev_b32 v11, 1, v11
        v_xor_b32 v9, v9, v11
        v_mul_lo_u32 v8, v8, s60
        v_lshl_add_u32 v8, v9, 4, v8
        v_cmp_le_u32 vcc, 10, v9
        v_cndmask_b32 v9, 0, v10, vcc
        v_add3_u32 v{4+e}, v8, v9, s37
        s_add_u32 m0, s{44+e}, {WBASE}
        s_nop 0
        buffer_load_dwordx4 v{4+e}, s[24:27], 0 offen lds""")
    for e in range(3):
        A(f"s_add_u32 s36, s{44+e}, s65\ns_add_u32 m0, s36, {WBASE}\ns_nop 0\nbuffer_load_dwordx4 v{4+e}, s[24:27], s42 offen lds")
    prof_stamp(A, 1)
    A(f"""
    s_lshl_b32 s66, s32, 8
    s_lshl_b32 s36, s28, 3
    s_add_u32 s66, s66, s36
    s_lshl_b32 s36, s41, 1
    s_add_u32 s66, s66, s36
    s_mul_i32 s56, s32, 80
    s_mul_i32 s57, s59, 40
    s_add_u32 s56, s56, s57
    s_lshl_b32 s52, s29, 4
    s_mul_i32 s53, s52, 768
    s_mul_i32 s57, s41, 192
    s_add_u32 s53, s53, s57
    s_add_u32 s53, s53, {WS_CSP}
    s_lshl_b32 s57, s32, 1
    s_add_u32 s52, s52, s57
    s_add_u32 s52, s52, s59
    s_mul_i32 s52, s52, 768
    s_add_u32 s52, s52, {WS_CSP}
    v_lshrrev_b32 v12, 4, v0
    v_and_b32 v13, 15, v0
    v_mov_b32 v14, 0x7ffffff0
    v_mul_lo_u32 v7, v12, s60
    v_lshl_add_u32 v7, v13, 4, v7
    s_mul_i32 s50, s56, s60
    s_add_u32 s50, s50, s37
    s_lshl_b32 s51, s60, 2
    s_cmp_eq_u32 s34, 0
    s_cbranch_scc0 K1_l_qkv
    v_cmp_gt_u32 vcc, 12, v13
    v_cndmask_b32 v7, v14, v7, vcc
    s_mul_i32 s57, s58, 384
    s_add_u32 s52, s52, s57
    """)
    k1_loader(A, True, 3, "LG")
    endpgm(A, 1)
    A.label("K1_l_qkv")
    A(f"""
    v_cmp_gt_u32 vcc, 10, v13
    v_cndmask_b32 v7, v14, v7, vcc
    s_add_u32 s39, s39, 160
    s_mul_i32 s39, s39, s58
    s_add_u32 s50, s50, s39
    s_mul_i32 s57, s58, 320
    s_add_u32 s52, s52, s57
    s_mul_i32 s54, s35, 15
    s_mov_b32 s55, 15
    s_sub_u32 s57, s34, 1
    s_lshl_b32 s54, s54, s57
    s_lshl_b32 s55, s55, s57
    s_lshl_b32 s57, s41, 3
    s_add_u32 s54, s54, s57
    s_lshl_b32 s54, s54, 10
    s_add_u32 s54, s54, {WS_WPF}
    s_max_u32 s55, s55, s57
    s_sub_u32 s55, s55, s57
    s_cmp_ge_u32 s41, 2
    s_cbranch_scc1 K1_l_qkv2
    """)
    k1_loader(A, False, 3, "LA")
    endpgm(A, 1)
    A.label("K1_l_qkv2")
    k1_loader(A, False, 2, "LB")
    endpgm(A, 1)
    A.label("K1_spare")
    k1_spare(A)
    endpgm(A, 1)
    A.label("K1_compute")
    if "nowarm" not in EXP:
        A("s_lshr_b32 s73, s2, 3\ns_and_b32 s73, s73, 1\ns_lshl_b32 s73, s73, 2\ns_add_u32 s73, s73, s3")
        code_warm(A, "K1_warm", "K1_end", "s73", 6, 255)
    A(f"""
    s_setprio 2
    v_mov_b32 v{VL}, v0
    v_and_b32 v1, 15, v0                 ; t
    v_lshrrev_b32 v2, 4, v0              ; g
    v_lshrrev_b32 v3, 1, v1              ; (t>>1)
    s_mul_i32 s36, s3, {XWAVE}
    v_lshlrev_b32 v4, 7, v1
    v_add_u32 v4, s36, v4
    v_xor_b32 v5, v2, v3
    v_lshl_add_u32 v{VX}, v5, 4, v4
    v_xor_b32 v{VX+1}, 64, v{VX}
    s_cmp_eq_u32 s34, 0
    s_mov_b32 s36, 320
    s_cselect_b32 s36, 192, s36
    v_lshlrev_b32 v4, 3, v2              ; 8g
    v_bfe_u32 v5, v0, 2, 2
    v_add_u32 v4, v4, v5
    v_mul_lo_u32 v4, v4, s36
    v_and_b32 v5, 3, v0
    v_lshl_add_u32 v4, v5, 3, v4
    v_add_u32 v4, {WBASE}, v4
    v_and_b32 v5, 1, v2
    v_lshlrev_b32 v5, 5, v5
    v_add_u32 v{VW}, v4, v5
    v_sub_u32 v{VW+1}, v4, v5
    s_lshl_b32 s37, s32, 2
    s_add_u32 s37, s37, s3               ; rb64
    s_cmp_eq_u32 s34, 0
    s_cbranch_scc0 K1_c_qkv
    s_mul_i32 s50, s37, 74
    s_mul_i32 s51, s35, 3
    s_add_u32 s50, s50, s51
    s_lshl_b32 s50, s50, 12
    s_add_u32 s50, s50, {WS_AF}
    """)
    k1_mainloop(A, True)
    k1_epi_gu(A)
    endpgm(A, 1)
    A.label("K1_c_qkv")
    k1_mainloop(A, False)
    A(f"""
    s_cmp_eq_u32 s34, 2
    s_cbranch_scc1 K1_c_q
    s_lshl_b32 s57, s35, 2
    s_add_u32 s57, s57, s3
    s_mul_i32 s57, s57, 3840
    s_add_u32 s57, s57, {WS_KVT}
    """)
    k1_epi_kv(A)
    endpgm(A, 1)
    A.label("K1_c_q")
    A(f"""
    s_lshl_b32 s58, s37, 3
    s_lshl_b32 s51, s35, 1
    s_add_u32 s58, s58, s51
    s_mul_i32 s58, s58, {4*2560}
    s_add_u32 s58, s58, {WS_PQ}
    """)
    k1_epi_q(A)
    endpgm(A, 1)
    A.label("K1_end")
    A("s_endpgm")
    return A
K1_CODE = 56 * 1024
K2_CODE = 16 * 1024

KVB = 81920
def k2_map(A):
    A("""
    s_and_b32 s30, s2, 7
    s_lshr_b32 s31, s2, 3
    s_lshr_b32 s32, s30, 1
    s_lshl_b32 s32, s32, 3
    s_and_b32 s33, s31, 7
    s_add_u32 s32, s32, s33              ; rb64
    s_and_b32 s33, s30, 1
    s_lshl_b32 s33, s33, 2
    s_lshr_b32 s31, s31, 3
    s_add_u32 s33, s33, s31
    """)

def k2_aux(A):
    WOB = 140
    A(f"""
    s_setprio 3
    s_lshl_b32 s36, s32, 3
    s_add_u32 s36, s36, s33
    s_lshl_b32 s36, s36, 2
    s_add_u32 s36, s36, s34
    s_mul_i32 s36, s36, 2560
    s_add_u32 s36, s36, {WS_PQ}
    v_lshlrev_b32 v6, 3, v0
    s_mul_i32 s37, s33, 15360
    s_lshl_b32 s38, s34, 10
    s_add_u32 s37, s37, s38
    s_add_u32 s37, s37, {WS_KVT}
    """)
    for i in range(4):
        A(f"s_add_u32 s38, s37, {i*4096}\nbuffer_load_dwordx4 {v(24+4*i,4)}, v2, s[20:23], s38 offen")
    A(f"""buffer_load_dwordx4 v[8:11], v2, s[20:23], s36 offen
    buffer_load_dwordx4 v[12:15], v2, s[20:23], s36 offen offset:1024
    buffer_load_dwordx2 v[16:17], v6, s[20:23], s36 offen offset:2048
    s_barrier""")
    for i in range(5):
        A(f"s_add_u32 s43, s41, {i*4*5120}")
        for ct in range(4): A(f"buffer_load_dwordx4 {v(WOB+20*i+4*ct,4)}, v2, s[20:23], s43 offen offset:{ct*1024}")
        A(f"buffer_load_dwordx4 {v(WOB+20*i+16,4)}, v3, s[20:23], s43 offen")
    A(f"""
    s_lshl_b32 s38, s34, 9
    s_add_u32 s38, s38, {KVB}
    v_add_u32 v5, s38, v6
    v_mov_b32 v6, 0
    v_mov_b32 v7, 0
    ds_write_b64 v5, v[6:7] offset:8192
    s_mov_b32 s52, {LOG2E}
    s_mov_b32 s53, {LOG2E}
    v_lshrrev_b32 v18, 4, v0             ; gk
    v_bfe_u32 v19, v0, 2, 2              ; m>>2
    v_and_b32 v20, 3, v0
    v_mul_u32_u24 v20, 80, v20
    v_mul_u32_u24 v21, 1920, v18
    v_add_u32 v20, v20, v21
    v_mov_b32 v21, 8192
    v_cmp_eq_u32 vcc, v18, v19
    v_cndmask_b32 v18, v21, v20, vcc
    v_add_u32 v18, {KVB}, v18
    s_waitcnt vmcnt(28)
    """)
    for i in range(4):
        b = 24 + 4 * i
        A(f"v_cvt_pk_bf16_f32 v{b}, v{b}, v{b+1}\nv_cvt_pk_bf16_f32 v{b+1}, v{b+2}, v{b+3}\nds_write_b64 v5, {v(b,2)} offset:{i*2048}")
    A("s_waitcnt vmcnt(25)")
    P = 40
    for k in range(10):
        A(f"v_lshlrev_b32 v{P+2*k}, 16, v{8+k}\nv_and_b32 v{P+2*k+1}, 0xffff0000, v{8+k}")
    A("s_waitcnt lgkmcnt(0)\ns_barrier")
    prof_stamp(A, 0)
    q = Q(A, "lgkmcnt", 15)
    FB = [120, 20, 64, 84, 120, 20]
    def rdA(t):
        for c in range(5): A(f"ds_read_b128 {v(FB[t]+4*c,4)}, v18 offset:{t*320+c*16}"); q.issue(t)
    def mm(t):
        q.wait({t})
        for c in range(5): A(f"v_mfma_f32_16x16x32_bf16 {v(40+4*t,4)}, {v(FB[t]+4*c,4)}, {v(100+4*c,4)}, {'0' if c==0 else v(40+4*t,4)}")
    rdA(0); rdA(1)
    dual_softmax(A, P, 60, 100, 8, "s[52:53]")
    FB[2], FB[3] = 60, 80
    q.wait({1})
    rdA(2); rdA(3); mm(0); mm(1); rdA(4); mm(2); rdA(5); mm(3); mm(4); mm(5)
    A(f"""v_add_f32 v60, 0x358637bd, v60
    v_rcp_f32 v60, v60
    s_lshr_b32 s36, s33, 1
    s_mul_i32 s36, s36, 5
    s_mul_i32 s37, s32, 74
    s_add_u32 s36, s36, s37
    s_add_u32 s36, s36, 54
    s_lshl_b32 s36, s36, 2
    s_add_u32 s36, s36, s34
    s_lshl_b32 s36, s36, 10
    s_add_u32 s36, s36, {WS_AF}
    s_and_b32 s37, s33, 1
    s_mul_i32 s38, s37, {3*4096}
    s_add_u32 s38, s38, s36              ; f0..7
    s_add_u32 s39, s38, 4096             ; f8..15
    s_lshl_b32 s37, s37, 3
    s_add_u32 s36, s36, s37
    s_add_u32 s36, s36, {2*4096}         ; f16..19
    """)
    for k in range(10): A(f"v_pk_mul_f32 {v(40+2*k,2)}, {v(40+2*k,2)}, v[60:61] op_sel_hi:[1,0]")
    for k in range(10): A(f"v_cvt_pk_bf16_f32 v{64+k}, v{40+2*k}, v{41+2*k}")
    A(f"""buffer_store_dwordx4 v[64:67], v2, s[20:23], s38 offen sc1
    buffer_store_dwordx4 v[68:71], v2, s[20:23], s39 offen sc1
    buffer_store_dwordx2 v[72:73], v2, s[20:23], s36 offen sc1
    """)
    prof_stamp(A, 2)
    A(f"s_mov_b32 s68, {SPIN_MAX}")
    qv = Q(A, "vmcnt", 63)
    def ld(i, model=True):
        A(f"s_add_u32 s42, s40, {i*4*4096}")
        for T in range(4):
            A(f"buffer_load_dwordx4 {v(84+16*(i%3)+4*T,4)}, v2, s[20:23], s42 offen offset:{T*1024} sc1")
            if model: qv.issue(i)
    ld(0); ld(1); ld(2)
    for i in range(5):
        qv.wait({i})
        b = 84 + 16 * (i % 3)
        A(f"s_branch K2_chk{i}")
        A.label(f"K2_rty{i}")
        A(f"s_sub_u32 s68, s68, 1\ns_cbranch_scc1 K2_ok{i}")
        ld(i, False)
        A("s_waitcnt vmcnt(0)")
        A.label(f"K2_chk{i}")
        A(f"v_max3_u32 v132, v{b}, v{b+1}, v{b+2}")
        for k in range(3, 15, 2): A(f"v_max3_u32 v132, v132, v{b+k}, v{b+k+1}")
        A(f"v_max_u32 v132, v132, v{b+15}\nv_cmp_eq_u32 vcc, -1, v132\ns_cbranch_vccnz K2_rty{i}")
        A.label(f"K2_ok{i}")
        if i == 0: prof_stamp(A, 3)
        for ct in range(5):
            for T in range(4):
                ac = 4 + 4 * (T * 5 + ct)
                A(f"v_mfma_f32_16x16x32_bf16 {v(ac,4)}, {v(WOB+20*i+4*ct,4)}, {v(b+4*T,4)}, {'0' if i==0 else v(ac,4)}")
        if i + 3 < 5: ld(i + 3)

def k2_stream(A, n):
    D = K2D
    ACC2 = 4; BUF = 84
    A("s_barrier")
    q = Q(A, "vmcnt", 63)
    def load(i):
        b = BUF + 36 * (i % D)
        A(f"s_add_u32 s42, s40, {i*4*4096}\ns_add_u32 s43, s41, {i*4*5120}")
        if i == n - 1:
            A(f"s_cmp_lt_u32 s3, 2\ns_cselect_b32 s42, s42, {OOB}\ns_cselect_b32 s43, s43, {OOB}")
        for T in range(4):
            A(f"buffer_load_dwordx4 {v(b+4*T,4)}, v2, s[20:23], s42 offen offset:{T*1024}"); q.issue(i)
        for ct in range(4):
            A(f"buffer_load_dwordx4 {v(b+16+4*ct,4)}, v2, s[20:23], s43 offen offset:{ct*1024}"); q.issue(i)
        A(f"buffer_load_dwordx4 {v(b+32,4)}, v3, s[20:23], s43 offen"); q.issue(i)
    for i in range(min(D, n)): load(i)
    A("s_barrier")
    for i in range(n):
        q.wait({i})
        if i == 0: prof_stamp(A, 0)
        b = BUF + 36 * (i % D)
        for ct in range(5):
            for T in range(4):
                ac = ACC2 + 4 * (T * 5 + ct)
                A(f"v_mfma_f32_16x16x32_bf16 {v(ac,4)}, {v(b+16+4*ct,4)}, {v(b+4*T,4)}, {'0' if i==0 else v(ac,4)}")
        if i + D < n: load(i + D)

def gen_k2():
    A = Asm()
    prof_start(A)
    A("""
    s_cmp_ge_u32 s2, 256
    s_cbranch_scc1 K2_end
    s_load_dwordx2 s[4:5], s[0:1], 0
    s_load_dwordx2 s[6:7], s[0:1], 64
    s_load_dwordx2 s[12:13], s[0:1], 80
    v_lshrrev_b32 v2, 6, v0
    v_and_b32 v0, 63, v0
    v_readfirstlane_b32 s3, v2
    """)
    k2_map(A)
    A("s_waitcnt lgkmcnt(0)")
    srd(A, 20, 12, WS_SIZE)
    srd(A, 16, 4, 2621440)
    srd(A, 24, 6, 2621440)
    A(f"""
    v_lshlrev_b32 v2, 4, v0
    v_add_u32 v3, 4096, v2
    s_cmp_ge_u32 s3, 4
    s_cselect_b32 s36, 50, 0
    s_add_u32 s36, s36, s3
    s_mul_i32 s40, s32, 74
    s_add_u32 s40, s40, s36
    s_lshl_b32 s40, s40, 12
    s_add_u32 s40, s40, {WS_AF}
    s_mul_i32 s41, s33, 74
    s_add_u32 s41, s41, s36
    s_mul_i32 s41, s41, 5120
    s_add_u32 s41, s41, {WS_WF}
    s_sub_u32 s34, s3, 4
    s_cmp_ge_u32 s3, 4
    s_cbranch_scc1 K2_wo
    """)
    k2_stream(A, 14)
    A("s_branch K2_red")
    A.label("K2_wo")
    k2_aux(A)
    A.label("K2_red")
    prof_stamp(A, 1)
    A(f"""
    s_mul_i32 s36, s3, 20480
    v_add_u32 v1, s36, v2
    """)
    for t in range(20):
        A(f"ds_write_b128 v1, {v(4+4*t,4)} offset:{t*1024}")
    A(f"""
    v_and_b32 v84, 15, v0
    v_mul_u32_u24 v84, 1280, v84
    v_lshrrev_b32 v85, 4, v0
    v_lshl_add_u32 v84, v85, 3, v84       ; t*1280 + g*8
    s_mul_i32 s44, s32, {64*1280}
    s_mul_i32 s45, s33, 160
    s_add_u32 s44, s44, s45
    """)
    for r in range(3):
        A(f"""s_add_u32 s46, s3, {8*r}
        s_mul_i32 s47, s46, 205
        s_lshr_b32 s47, s47, 10              ; T
        s_mul_i32 s48, s47, 5
        s_sub_u32 s48, s46, s48              ; ct
        s_mul_i32 s47, s47, {16*1280}
        s_lshl_b32 s48, s48, 5
        s_add_u32 s47, s47, s48
        s_add_u32 s{60+r}, s47, s44""")
        if r == 2: A(f"s_cmp_lt_u32 s3, 4\ns_cselect_b32 s62, s62, {OOB}")
        A(f"buffer_load_dwordx2 {v(86+2*r,2)}, v84, s[16:19], s{60+r} offen")
    A(f"""
    s_lshl_b32 s36, s3, 10
    v_add_u32 v1, s36, v2
    v_add_u32 v3, {3*20480}, v1
    v_add_u32 v92, {6*20480}, v1
    s_mov_b32 s52, {NLOG2E}
    s_mov_b32 s53, {NLOG2E}
    s_mov_b32 s54, 1.0
    s_mov_b32 s55, 1.0
    s_waitcnt lgkmcnt(0)
    s_barrier
    """)
    for r in range(3):
        if r == 2: A("s_cmp_ge_u32 s3, 4\ns_cbranch_scc1 K2_fin")
        for p in range(8):
            ar = [1, 3, 92][p // 3]
            A(f"ds_read_b128 {v(4+4*p,4)}, v{ar} offset:{(p%3)*20480 + r*8192}")
        A("s_waitcnt lgkmcnt(0)")
        for h in range(2):
            A(f"""v_pk_add_f32 {v(4+2*h,2)}, {v(4+2*h,2)}, {v(8+2*h,2)}
            v_pk_add_f32 {v(12+2*h,2)}, {v(12+2*h,2)}, {v(16+2*h,2)}
            v_pk_add_f32 {v(20+2*h,2)}, {v(20+2*h,2)}, {v(24+2*h,2)}
            v_pk_add_f32 {v(28+2*h,2)}, {v(28+2*h,2)}, {v(32+2*h,2)}
            v_pk_add_f32 {v(4+2*h,2)}, {v(4+2*h,2)}, {v(12+2*h,2)}
            v_pk_add_f32 {v(20+2*h,2)}, {v(20+2*h,2)}, {v(28+2*h,2)}
            v_pk_mul_f32 {v(8+2*h,2)}, {v(4+2*h,2)}, s[52:53]""")
        for i in range(4): A(f"v_exp_f32 v{8+i}, v{8+i}")
        for h in range(2): A(f"v_pk_mul_f32 {v(4+2*h,2)}, {v(4+2*h,2)}, {v(20+2*h,2)}\nv_pk_add_f32 {v(8+2*h,2)}, {v(8+2*h,2)}, s[54:55]")
        for i in range(4): A(f"v_rcp_f32 v{8+i}, v{8+i}")
        A(f"s_waitcnt vmcnt(2)")
        A(f"""v_lshlrev_b32 v12, 16, v{86+2*r}
        v_and_b32 v13, 0xffff0000, v{86+2*r}
        v_lshlrev_b32 v14, 16, v{87+2*r}
        v_and_b32 v15, 0xffff0000, v{87+2*r}""")
        for h in range(2): A(f"v_pk_fma_f32 {v(4+2*h,2)}, {v(4+2*h,2)}, {v(8+2*h,2)}, {v(12+2*h,2)}")
        A(f"v_cvt_pk_bf16_f32 v{36+2*r}, v4, v5\nv_cvt_pk_bf16_f32 v{37+2*r}, v6, v7")
        A(f"buffer_store_dwordx2 {v(36+2*r,2)}, v84, s[24:27], s{60+r} offen")
    A.label("K2_fin")
    endpgm(A, 3)
    A.label("K2_end")
    A("s_endpgm")
    return A

HEADER = open(f"cdna_kernels/{NAME}.s.ref").read().split("; Override launch")[0]

def build_all(kernels):
    t = HEADER
    for (n, A, g, b, lds, vg) in kernels:
        t += f"; @launch kernel={n} grid=({g},1,1) block=({b},1,1) lds={lds}\n"
    t += '.amdgcn_target "amdgcn-amd-amdhsa--gfx950"\n.text\n'
    seen = set()
    for (n, A, g, b, lds, vg) in kernels:
        if n in seen: continue
        seen.add(n)
        t += kernel_head(n) + A.text() + "\n"
    t += '.section .rodata,"a"\n'
    seen = set()
    for (n, A, g, b, lds, vg) in kernels:
        if n in seen: continue
        seen.add(n)
        t += ".p2align 6\n" + kernel_desc(n, vg, 100)
    return t

if __name__ == "__main__":
    if "--prof" in sys.argv: PROF = True; sys.argv.remove("--prof")
    for a_ in list(sys.argv):
        if a_.startswith("--x="): EXP |= set(a_[4:].split(",")); sys.argv.remove(a_)
        if a_.startswith("--hst="): HST = a_[6:].replace("+", " "); sys.argv.remove(a_)
    ks = [("k1_kernel", gen_k1(), 256, 512, K1_LDS, 256),
          ("k2_kernel", gen_k2(), 256, 512, 163840, 240)]
    out = sys.argv[1] if len(sys.argv) > 1 else "v3.s"
    open(out, "w").write(build_all(ks))
    print("written", out)
```

```python
import sys
from asmlib import *

NAME = "recurrent_scan__linear_kernel_hedgehog__swiglu_ffn__prompt"
USE_XN = False
WS_AF  = 0x300000
WS_WF  = 0xD00000
WS_PQ  = 0x1000000
WS_KVT = 0x1300000
WS_FLG = WS_KVT + 122880
F_CH = WS_FLG; F_CP = WS_FLG + 32 * 128; F_CK = WS_FLG + 64 * 128
F_RDY = 72 * 128
WS_WPF = 0x1340000
WS_ST  = 0x1380000
WS_CSP = 0x1390000
WS_SIZE = 0x10000000
LOG2E = 0x3fb8aa3b
NLOG2E = 0xbfb8aa3b
OOB = 0x7ff00000
SPIN_MAX = 100000
THR = 10
OSLEEP = 8
BSC = 'sc1'
PROF = False
EXP = set()
HST = 'sc1'
WS_PROF = 0x2000000

def prof_start(A):
    if PROF:
        A("s_memrealtime s[98:99]")
        for i in range(14): A(f"s_mov_b32 s{81+i}, 0")
        A("s_waitcnt lgkmcnt(0)\ns_mov_b32 s80, s98")
def prof_stamp(A, i):
    if PROF: A(f"s_memrealtime s[98:99]\ns_waitcnt lgkmcnt(0)\ns_mov_b32 s{81+i}, s98")
def endpgm(A, kid):
    if PROF:
        A(f"""s_waitcnt vmcnt(0)
        s_memrealtime s[98:99]
        s_mov_b64 exec, -1
        s_lshl_b32 s96, s2, 3
        s_add_u32 s96, s96, s3
        s_lshl_b32 s96, s96, 6
        s_add_u32 s96, s96, {WS_PROF + kid*272*8*64}
        s_waitcnt lgkmcnt(0)
        s_mov_b32 s95, s98""")
        for i in range(16): A(f"v_mov_b32 v{i}, s{80+i}")
        A("v_mov_b32 v16, 0")
        for i in range(4): A(f"buffer_store_dwordx4 {v(4*i,4)}, v16, s[20:23], s96 offen offset:{16*i}")
    A("s_endpgm")

def srd(A, d, b, nbytes, off=0):
    if off: A(f"s_add_u32 s{d}, s{b}, {off}\ns_addc_u32 s{d+1}, s{b+1}, 0")
    else: A(f"s_mov_b32 s{d}, s{b}\ns_mov_b32 s{d+1}, s{b+1}")
    A(f"s_mov_b32 s{d+2}, {nbytes}\ns_mov_b32 s{d+3}, 0x20000")

def bf16_round(A, d):
    A(f"v_cvt_pk_bf16_f32 v{d}, v{d}, v{d}\nv_lshlrev_b32 v{d}, 16, v{d}")

def row16_sum(A, r):
    for k in (8, 4, 2, 1):
        A(f"v_add_f32_dpp v{r}, v{r}, v{r} row_ror:{k} row_mask:0xf bank_mask:0xf")

class Q:
    def __init__(self, A, name, mx): self.A, self.name, self.mx, self.q, self.n = A, name, mx, [], 0
    def issue(self, tag):
        self.n += 1
        self.q.append(tag); assert len(self.q) <= self.mx + (0 if self.name == "vmcnt" else 99), (self.name, len(self.q))
    def wait(self, tags):
        idx = [i for i, t in enumerate(self.q) if t in tags]
        if not idx: return
        n = len(self.q) - 1 - max(idx)
        assert n <= self.mx
        self.A(f"s_waitcnt {self.name}({n})")
        self.q = self.q[max(idx) + 1:]

def code_warm(A, tag, endlabel, piece, vt, vd):
    A(f"s_getpc_b64 s[70:71]")
    A.label(tag)
    A(f"""s_sub_u32 s70, s70, {tag}-K1_start
    s_subb_u32 s71, s71, 0
    s_lshl_b32 s72, {piece}, 13
    v_lshlrev_b32 v{vt}, 7, v0
    v_add_u32 v{vt}, s72, v{vt}
    v_min_u32 v{vt}, {endlabel}-K1_start, v{vt}
    global_load_dword v{vd}, v{vt}, s[70:71]""")

def stats_issue(A, q, R, cs=range(5)):
    if 0 in cs:
        A(f"""v_bfe_u32 v{R+20}, v0, 4, 1
        v_mul_u32_u24 v{R+20}, 1280, v{R+20}
        v_and_b32 v{R+21}, 15, v0
        v_lshl_add_u32 v{R+20}, v{R+21}, 4, v{R+20}
        s_mul_i32 s69, s66, 1280""")
    for c in cs:
        A(f"buffer_load_dwordx4 {v(R+4*c,4)}, v{R+20}, s[16:19], s69 offen offset:{256*c}"); q.issue("ST")
def stats_part1(A, R, X):
    m = R + 20
    A(f"v_mov_b32 v{X}, 0x3f803f80")
    A(f"v_dot2_f32_bf16 v{m}, v{R}, v{X}, 0\nv_dot2_f32_bf16 v{m+1}, v{R}, v{R}, 0\nv_dot2_f32_bf16 v{X+1}, v{R+1}, v{X}, 0\nv_dot2_f32_bf16 v{X+2}, v{R+1}, v{R+1}, 0")
    for i in range(2, 20, 2):
        A(f"v_dot2_f32_bf16 v{m}, v{R+i}, v{X}, v{m}\nv_dot2_f32_bf16 v{m+1}, v{R+i}, v{R+i}, v{m+1}")
        A(f"v_dot2_f32_bf16 v{X+1}, v{R+i+1}, v{X}, v{X+1}\nv_dot2_f32_bf16 v{X+2}, v{R+i+1}, v{R+i+1}, v{X+2}")
def stats_part2(A, R, X, sidx):
    m = R + 20; s_ = R + 21
    A(f"s_nop 2\nv_add_f32 v{m}, v{m}, v{X+1}\nv_add_f32 v{s_}, v{s_}, v{X+2}")
    for k in (8, 4, 2, 1):
        A(f"v_add_f32_dpp v{m}, v{m}, v{m} row_ror:{k} row_mask:0xf bank_mask:0xf")
        A(f"v_add_f32_dpp v{s_}, v{s_}, v{s_} row_ror:{k} row_mask:0xf bank_mask:0xf")
    A(f"""v_mul_f32 v{m}, 0x3acccccd, v{m}
    v_mul_f32 v{s_}, 0x3acccccd, v{s_}
    v_fma_f32 v{s_}, -v{m}, v{m}, v{s_}
    v_max_f32 v{s_}, 0, v{s_}""")
    bf16_round(A, m); bf16_round(A, s_)
    A(f"v_add_f32 v{s_}, 0x3727c5ac, v{s_}")
    bf16_round(A, s_)
    A(f"v_sqrt_f32 v{s_}, v{s_}")
    bf16_round(A, s_)
    A(f"""v_rcp_f32 v{s_}, v{s_}
    v_bfe_u32 v{R}, v0, 4, 1
    v_lshlrev_b32 v{R}, 3, v{R}
    s_lshl_b32 s67, s{sidx}, 4
    s_add_u32 s67, s67, {L_ST}
    v_add_u32 v{R}, s67, v{R}
    ds_write_b64 v{R}, {v(m,2)}""")

def signal(A, vt, which):
    if which: A(f"v_mov_b32 v{vt}, 68")
    else: A(f"s_and_b32 s67, s2, 1\ns_lshl_b32 s67, s67, 6\nv_mov_b32 v{vt}, s67")
    A(f"""v_mov_b32 v{vt+1}, 1
    s_mov_b64 exec, 1
    global_atomic_add v{vt}, v{vt+1}, s[14:15]
    s_mov_b64 exec, -1""")

def p2_map(A, rb, cb):
    A(f"""s_and_b32 s{rb}, s2, 7
    s_lshl_b32 s{rb}, s{rb}, 2
    s_lshr_b32 s{cb}, s2, 3
    s_and_b32 s67, s{cb}, 3
    s_add_u32 s{rb}, s{rb}, s67
    s_lshr_b32 s{cb}, s{cb}, 2
    s_lshl_b32 s67, s67, 1
    s_add_u32 s{cb}, s{cb}, s67
    s_and_b32 s{cb}, s{cb}, 7""")
def o_offsets(A, rb, cb, e, o0, o1, o2):
    A(f"""s_lshr_b32 s{o2}, s{cb}, 1
    s_mul_i32 s{o2}, s{o2}, 5
    s_mul_i32 s{o1}, s{rb}, 74
    s_add_u32 s{o2}, s{o2}, s{o1}
    s_add_u32 s{o2}, s{o2}, 54
    s_lshl_b32 s{o2}, s{o2}, 2
    s_add_u32 s{o2}, s{o2}, s{e}
    s_lshl_b32 s{o2}, s{o2}, 10
    s_add_u32 s{o2}, s{o2}, {WS_AF}
    s_and_b32 s67, s{cb}, 1
    s_mul_i32 s{o0}, s67, {3*4096}
    s_add_u32 s{o0}, s{o0}, s{o2}
    s_add_u32 s{o1}, s{o0}, 4096
    s_lshl_b32 s67, s67, 3
    s_add_u32 s{o2}, s{o2}, s67
    s_add_u32 s{o2}, s{o2}, {2*4096}""")
def sentinel_fill(A, q, e, vt):
    p2_map(A, 74, 75); o_offsets(A, 74, 75, e, 76, 77, 78)
    for i in range(4): A(f"v_mov_b32 v{vt+i}, -1")
    A(f"""v_lshlrev_b32 v{vt+4}, 4, v0
    buffer_store_dwordx4 {v(vt,4)}, v{vt+4}, s[20:23], s76 offen sc1
    buffer_store_dwordx4 {v(vt,4)}, v{vt+4}, s[20:23], s77 offen sc1
    buffer_store_dwordx2 {v(vt,2)}, v{vt+4}, s[20:23], s78 offen sc1""")
    for i in range(3): q.issue("PUB")
def lds_spin(A, tag, off, expect, va, vr):
    A(f"v_mov_b32 v{va}, {L_CNT}\ns_mov_b32 s68, {SPIN_MAX*10}")
    A.label(f"{tag}_spin")
    A(f"ds_read_b32 v{vr}, v{va} offset:{off}\ns_waitcnt lgkmcnt(0)\nv_cmp_ne_u32 vcc, {expect}, v{vr}\ns_cbranch_vccz {tag}_out\ns_sub_u32 s68, s68, 1\ns_sleep 1\ns_cbranch_scc0 {tag}_spin")
    A.label(f"{tag}_out")
def lds_inc(A, off, va, vr):
    A(f"v_mov_b32 v{va}, {L_CNT}\nv_mov_b32 v{vr}, 1\ns_mov_b64 exec, 1\nds_add_u32 v{va}, v{vr} offset:{off}\ns_mov_b64 exec, -1")
def leader_wait(A, tag, lead_test, setup, load, vr, expect, off, va):
    A(f"{lead_test}\ns_cbranch_scc0 {tag}_fol")
    A(setup)
    spin(A, tag, load, vr, expect)
    lds_inc(A, off, va, vr)
    A(f"s_branch {tag}_done")
    A.label(f"{tag}_fol")
    lds_spin(A, tag + "F", off, "1", va, vr)
    A.label(f"{tag}_done")
def flag_add(A, soff, slast, vt, tag):
    A(f"""v_mov_b32 v{vt}, 1
    v_mov_b32 v{vt+1}, 0
    s_mov_b64 exec, 1
    buffer_atomic_add v{vt}, v{vt+1}, s[20:23], s{soff} offen sc0
    s_waitcnt vmcnt(0)
    v_readfirstlane_b32 s36, v{vt}
    v_mov_b32 v{vt}, 1
    s_cmp_lg_u32 s36, s{slast}
    s_cbranch_scc1 {tag}
    s_add_u32 s36, s{soff}, {F_RDY}
    buffer_store_dword v{vt}, v{vt+1}, s[20:23], s36 offen sc1""")
    A.label(tag)
    A("s_mov_b64 exec, -1")
def spin(A, tag, load, vr, expect, first=True, sleep=2):
    A(f"s_mov_b32 s68, {SPIN_MAX}")
    if not first: A(f"s_branch {tag}_chk")
    A.label(f"{tag}_spin")
    A(f"{load}\ns_waitcnt vmcnt(0)")
    A.label(f"{tag}_chk")
    A(f"v_cmp_ne_u32 vcc, {expect}, v{vr}\ns_cbranch_vccz {tag}_out\ns_sub_u32 s68, s68, 1\ns_cbranch_scc1 {tag}_out\ns_sleep {sleep}\ns_branch {tag}_spin")
    A.label(f"{tag}_out")

def relayout_issue(A, lab, D):
    A(f"""
    s_mul_i32 s45, s30, 6554
    s_lshr_b32 s45, s45, 16         ; s = U/10
    s_mul_i32 s44, s45, 10
    s_sub_u32 s44, s30, s44         ; cq
    s_cmp_lt_u32 s45, 54
    s_cselect_b32 s40, s64, s62
    s_cselect_b32 s41, s65, s63
    s_mov_b32 s42, {640*1280}
    s_cselect_b32 s42, {1728*1280}, s42
    s_mov_b32 s43, 0x20000
    s_cselect_b32 s31, 4, 20
    s_lshl_b32 s36, s45, 5
    s_mov_b32 s38, 16
    s_cmp_lt_u32 s45, 54
    s_cbranch_scc1 {lab}
    s_sub_u32 s33, s45, 54          ; s'
    s_mul_i32 s36, s33, 205
    s_lshr_b32 s36, s36, 10         ; P
    s_mul_i32 s39, s36, 5
    s_sub_u32 s33, s33, s39         ; ty
    s_mul_i32 s36, s36, 160
    s_lshl_b32 s39, s33, 3
    s_cmp_ge_u32 s33, 3
    s_cselect_b32 s47, 56, 0
    s_add_u32 s39, s39, s47
    s_add_u32 s36, s36, s39
    s_cmp_eq_u32 s33, 2
    s_cselect_b32 s38, 80, 4
    """)
    A.label(lab)
    A(f"""
    v_lshrrev_b32 v1, 5, v0
    v_mul_lo_u32 v1, v1, s38
    v_bfe_u32 v2, v0, 3, 2
    v_add_u32 v1, v1, v2
    v_mul_u32_u24 v1, 1280, v1
    v_and_b32 v2, 7, v0
    v_lshl_add_u32 v1, v2, 4, v1
    s_mul_i32 s36, s36, 1280
    s_lshl_b32 s47, s44, 7          ; cq*128
    s_add_u32 s47, s47, s36
    s_mul_i32 s31, s31, 1280
    """)
    for g in range(4):
        A(f"buffer_load_dwordx4 {v(D+4*g,4)}, v1, s[40:43], s47 offen")
        if g < 3: A("s_add_u32 s47, s47, s31")
def relayout_finish(A, D, O, ls, keep):
    for g in range(4): A(f"ds_write_b128 v5, {v(D+4*g,4)} offset:{ls+g*1024}")
    A("s_waitcnt lgkmcnt(0)")
    for tq in range(4):
        A(f"ds_read_b64_tr_b16 {v(O+4*tq,2)}, v4 offset:{ls+tq*32}\nds_read_b64_tr_b16 {v(O+2+4*tq,2)}, v4 offset:{ls+tq*32+512}")
    A(f"s_and_b32 s44, s{keep}, 0xff\ns_lshr_b32 s45, s{keep}, 8")
    for tq in range(4):
        A(f"""s_lshl_b32 s47, s44, 2
        s_add_u32 s47, s47, {tq}          ; gt
        s_mul_i32 s48, s47, 205
        s_lshr_b32 s48, s48, 10          ; cb
        s_mul_i32 s49, s48, 5
        s_sub_u32 s47, s47, s49          ; ct
        s_mul_i32 s48, s48, 74
        s_add_u32 s48, s48, s45
        s_mul_i32 s48, s48, 5
        s_add_u32 s48, s48, s47
        s_lshl_b32 s48, s48, 10
        s_add_u32 s48, s48, {WS_WF}
        s_waitcnt lgkmcnt({6-2*tq})
        buffer_store_dwordx4 {v(O+4*tq,4)}, v3, s[20:23], s48 offen sc1""")

def wpf_issue(A):
    A(f"""
    s_mul_i32 s31, s30, 4370
    s_lshr_b32 s31, s31, 16          ; hg = F/15
    s_mul_i32 s32, s31, 15
    s_sub_u32 s32, s30, s32
    s_mul_i32 s33, s32, 86
    s_lshr_b32 s33, s33, 8           ; tau
    s_mul_i32 s34, s33, 3
    s_sub_u32 s35, s32, s34          ; c
    s_lshl_b32 s33, s33, 2
    s_mul_i32 s39, s31, 1600
    s_add_u32 s39, s39, s33
    v_bfe_u32 v4, v0, 2, 2           ; head_out
    v_and_b32 v5, 3, v0
    v_mul_u32_u24 v6, 400, v4
    v_add_u32 v6, v6, v5
    v_add_u32 v6, s39, v6
    v_lshrrev_b32 v7, 4, v0
    v_lshlrev_b32 v7, 2, v7          ; 4*g
    s_lshl_b32 s35, s35, 5
    v_add_u32 v7, s35, v7            ; 32c + 4g
    v_mov_b32 v11, 0x7ffffff0
    """)
    for j in range(8):
        A(f"""v_add_u32 v8, {16*(j>>2)+(j&3)}, v7
        v_mul_u32_u24 v9, 205, v8
        v_lshrrev_b32 v9, 12, v9          ; head_in
        v_mul_u32_u24 v10, 20, v9
        v_sub_u32 v10, v8, v10            ; d
        v_mul_u32_u24 v10, 20, v10
        v_add_u32 v10, v10, v6
        v_lshlrev_b32 v10, 1, v10
        v_cmp_eq_u32 vcc, v9, v4
        v_cndmask_b32 v10, v11, v10, vcc
        buffer_load_ushort v{16+j}, v10, s[24:27], 0 offen""")

def k1_spare(A):
    q = Q(A, "vmcnt", 63)
    A(f"""
    s_load_dwordx2 s[60:61], s[0:1], 16
    s_load_dwordx2 s[62:63], s[0:1], 24
    s_load_dwordx2 s[64:65], s[0:1], 56
    s_lshl_b32 s66, s32, 8
    s_lshl_b32 s67, s28, 3
    s_add_u32 s66, s66, s67
    s_and_b32 s59, s3, 3
    s_lshl_b32 s67, s59, 1
    s_add_u32 s66, s66, s67
    """)
    if "nowarm" not in EXP:
        code_warm(A, "K1_warm", "K1_end", "s3", 100, 101)
        A(f"v_add_u32 v100, 65536, v100\nv_min_u32 v100, K1_end-K1_start, v100\nglobal_load_dword v101, v100, s[70:71]")
    stats_issue(A, q, 40)
    A("s_waitcnt lgkmcnt(0)")
    srd(A, 24, 60, 25600)
    A(f"""
    s_lshl_b32 s60, s32, 1
    s_add_u32 s60, s60, s30
    s_sub_u32 s60, s60, 2
    s_lshl_b32 s60, s60, 3
    s_add_u32 s60, s60, s3              ; SW 0..127
    s_min_u32 s30, s60, 119
    s_mov_b32 s61, s30
    """)
    wpf_issue(A)
    A(f"""
    v_mov_b32 v28, 0
    v_mov_b32 v29, 0
    v_mov_b32 v30, 0
    v_mov_b32 v31, 0
    v_lshlrev_b32 v3, 4, v0
    s_lshl_b32 s30, s60, 10
    s_add_u32 s30, s30, {WS_KVT}
    buffer_store_dwordx4 v[28:31], v3, s[20:23], s30 offen sc1
    s_and_b32 s30, s60, 15
    s_lshl_b32 s30, s30, 10
    s_add_u32 s30, s30, {WS_KVT + 128*1024}
    buffer_store_dwordx4 v[28:31], v3, s[20:23], s30 offen sc1
    v_mov_b32 v32, {L_CNT}
    ds_write_b128 v32, v[28:31]
    ds_write_b128 v32, v[28:31] offset:16
    ds_write_b128 v32, v[28:31] offset:32
    s_lshl_b32 s46, s3, 13
    """)
    sentinel_fill(A, q, 59, 32)
    A("s_waitcnt vmcnt(5)")
    for p in range(4): A(f"v_lshl_or_b32 v{24+p}, v{17+2*p}, 16, v{16+2*p}")
    A(f"""s_lshl_b32 s30, s61, 10
    s_add_u32 s30, s30, {WS_WPF}
    buffer_store_dwordx4 v[24:27], v3, s[20:23], s30 offen sc1""")
    stats_part1(A, 40, 64); stats_part2(A, 40, 64, 59)
    A(f"""
    s_waitcnt lgkmcnt(0)
    s_barrier
    v_add_u32 v32, {L_ST}, v3
    ds_read_b128 v[36:39], v32
    s_lshr_b32 s30, s66, 3
    s_lshl_b32 s30, s30, 7
    s_add_u32 s30, s30, {WS_ST}
    s_mov_b64 exec, 0xff
    s_waitcnt lgkmcnt(0)
    buffer_store_dwordx4 v[36:39], v3, s[20:23], s30 offen sc1
    s_mov_b64 exec, -1
    """)
    def issue(it):
        A(f"s_add_u32 s30, s60, {127*it - 1}\ns_min_u32 s30, s30, 739")
        relayout_issue(A, f"RL{it}", 112 + 16 * it)
        A(f"s_lshl_b32 s{50+it}, s45, 8\ns_add_u32 s{50+it}, s{50+it}, s44")
    issue(0); issue(1)
    A(f"""
    v_lshrrev_b32 v4, 4, v0
    v_lshlrev_b32 v4, 10, v4
    v_bfe_u32 v5, v0, 2, 2
    v_lshl_add_u32 v4, v5, 7, v4
    v_and_b32 v5, 3, v0
    v_lshl_add_u32 v4, v5, 3, v4
    v_add_u32 v4, s46, v4
    v_add_u32 v5, s46, v3
    s_waitcnt vmcnt(8)
    s_barrier
    s_cmp_lg_u32 s3, 0
    s_cbranch_scc1 SP_nosig""")
    signal(A, 32, 0)
    A.label("SP_nosig")
    prof_stamp(A, 0)
    A("s_cmp_eq_u32 s60, 0\ns_cbranch_scc1 SP_watch")
    for it in range(2, 6): issue(it)
    for it in range(6):
        A("s_waitcnt vmcnt(20)")
        relayout_finish(A, 112 + 16 * it, 8 + 16 * (it & 1), (it & 1) * 4096, 50 + it)
    A(f"""v_mov_b32 v32, {L_CNT}
    v_mov_b32 v33, 1
    s_cmp_lt_u32 s60, 8
    s_cselect_b32 s30, 6, 7
    s_waitcnt vmcnt(0)
    s_mov_b64 exec, 1
    ds_add_rtn_u32 v33, v32, v33 offset:{W_Q}
    s_waitcnt lgkmcnt(0)
    v_readfirstlane_b32 s31, v33
    s_mov_b64 exec, -1
    s_cmp_lg_u32 s30, s31
    s_cbranch_scc1 SP_nosig2""")
    signal(A, 32, 1)
    A.label("SP_nosig2")
    prof_stamp(A, 1)
    A("s_cmp_lt_u32 s60, 8\ns_cbranch_scc1 SP_w\ns_cmp_lg_u32 s3, 0\ns_cbranch_scc1 SP_w\ns_branch SP_fol")
    A.label("SP_watch")
    A(f"v_lshlrev_b32 v32, 6, v0\nv_mov_b32 v34, 1\nv_mov_b32 v35, 0x80\ns_mov_b32 s30, 68\nv_writelane_b32 v35, 16, 2\nv_writelane_b32 v32, s30, 2\ns_mov_b64 s[70:71], 7\ns_mov_b32 s68, {SPIN_MAX}")
    A.label("SW_spin")
    A("""s_mov_b64 exec, s[70:71]
    global_load_dword v33, v32, s[14:15] sc1
    s_waitcnt vmcnt(0)
    v_cmp_eq_u32 vcc, v35, v33
    s_andn2_b64 s[70:71], s[70:71], vcc
    s_and_b64 exec, exec, vcc
    s_cbranch_execz SW_none
    global_store_dword v32, v34, s[14:15] offset:128 sc1""")
    A.label("SW_none")
    A("""s_cmp_eq_u64 s[70:71], 0
    s_cbranch_scc1 SW_out
    s_sub_u32 s68, s68, 1
    s_cbranch_scc1 SW_out
    s_sleep 6
    s_branch SW_spin""")
    A.label("SW_out")
    A("s_mov_b64 exec, -1\ns_branch SP_w")
    A.label("SP_fol")
    A("v_and_b32 v32, 1, v0\nv_lshlrev_b32 v32, 6, v32")
    spin(A, "SPG", "global_load_dword v33, v32, s[14:15] offset:128 sc1", 33, "1", sleep=8)
    A.label("SP_w")
    A(f"s_barrier\ns_mov_b32 s34, 0\ns_mov_b32 s57, {OOB}\ns_cmp_ge_u32 s3, 4\ns_cbranch_scc1 P2_aux\ns_branch P2_stream")

def dual_softmax(A, P, E, OUT, T, SL):
    mx, mn = T, T + 2
    lo = SL.replace("[", "").split(":")[0]
    A(f"v_max3_f32 v{mx}, v{P}, v{P+1}, v{P+2}\nv_min3_f32 v{mn}, v{P}, v{P+1}, v{P+2}")
    for i in range(3, 19, 2):
        A(f"v_max3_f32 v{mx}, v{mx}, v{P+i}, v{P+i+1}\nv_min3_f32 v{mn}, v{mn}, v{P+i}, v{P+i+1}")
    A(f"v_max_f32 v{mx}, v{mx}, v{P+19}\nv_min_f32 v{mn}, v{mn}, v{P+19}")
    A(f"v_mul_f32 v{mx}, {lo}, v{mx}\nv_mul_f32 v{mn}, {lo}, v{mn}")
    for k in range(10):
        A(f"v_pk_fma_f32 {v(E+2*k,2)}, {v(P+2*k,2)}, {SL}, {v(mx,2)} op_sel_hi:[1,0,0] neg_lo:[0,0,1] neg_hi:[0,0,1]")
        A(f"v_pk_fma_f32 {v(E+20+2*k,2)}, {v(P+2*k,2)}, {SL}, {v(mn,2)} op_sel_hi:[1,0,0] neg_lo:[1,0,0] neg_hi:[1,0,0]")
    for i in range(40): A(f"v_exp_f32 v{E+i}, v{E+i}")
    sp, sm = T, T + 2
    A(f"v_pk_add_f32 {v(sp,2)}, {v(E,2)}, {v(E+2,2)}\nv_pk_add_f32 {v(sm,2)}, {v(E+20,2)}, {v(E+22,2)}")
    for k in range(2, 10):
        A(f"v_pk_add_f32 {v(sp,2)}, {v(sp,2)}, {v(E+2*k,2)}\nv_pk_add_f32 {v(sm,2)}, {v(sm,2)}, {v(E+20+2*k,2)}")
    A(f"v_add_f32 v{sp}, v{sp}, v{sp+1}\nv_add_f32 v{sm}, v{sm}, v{sm+1}")
    A(f"v_rcp_f32 v{sp}, v{sp}\nv_rcp_f32 v{sm}, v{sm}")
    for k in range(10):
        A(f"v_pk_mul_f32 {v(E+2*k,2)}, {v(E+2*k,2)}, {v(sp,2)} op_sel_hi:[1,0]")
        A(f"v_pk_mul_f32 {v(E+20+2*k,2)}, {v(E+20+2*k,2)}, {v(sm,2)} op_sel_hi:[1,0]")
    for k in range(20):
        A(f"v_cvt_pk_bf16_f32 v{OUT+k}, v{E+2*k}, v{E+2*k+1}")

XSLOT = 8192; XWAVE = 3 * XSLOT; WBASE = 4 * XWAVE
NWS = 5
PHI_P = 336; V_P = 208; PHI_BASE = 0; V_BASE = 256 * PHI_P
L_ST = 159744; L_CS = L_ST + 2048; L_CNT = L_CS + 1024
K1_LDS = 160 * 1024
NL = 7
KVB = 4 * NL * 5120
W_KVS, W_BL, W_CK, W_CH, W_CW, W_CP, W_SD, W_SX, W_AP, W_K1, W_K2, W_Q = [4 * k for k in range(12)]
XCH = 0; APART = 12 * 5120
def wpf_lds(i): return (i >> 3) * XWAVE + XSLOT + (i & 7) * 1024

def k1_loader(A, gu, nW, tag):
    WU = 12288 if gu else 10240
    NCH = 12 if gu else 10
    q = Q(A, "vmcnt", 63)
    def X(j, half=None):
        for e in (range(8) if half is None else range(4 * half, 4 * half + 4)):
            A(f"s_add_u32 s48, s40, {e*8*1280 + j*128}\ns_add_u32 m0, s43, {(j%3)*XSLOT + e*1024}\ns_nop 0")
            A(f"buffer_load_dwordx4 v{2+(e&1)}, s[16:19], s48 offen lds"); q.issue(("X", j))
    def W(u):
        A(f"s_mul_i32 s49, s42, {u}")
        for e in range(nW):
            A(f"s_add_u32 m0, s{44+e}, {WBASE + (u%NWS)*WU}\ns_nop 0")
            A(f"buffer_load_dwordx4 v{4+e}, s[24:27], s49 offen lds"); q.issue(("W", u))
    R, XU, C, CA = 16, 40, 80, 120
    def aux_issue(p):
        stats_issue(A, q, R, [p])
        for i in range(2):
            A(f"s_mul_i32 s48, s51, {32*p + i}\ns_add_u32 s48, s48, s50")
            A(f"buffer_load_dwordx4 {v(C+4*(2*p+i),4)}, v7, s[24:27], s48 offen"); q.issue("CS")
    def cs_sel():
        A(f"v_and_b32 v{CA+8}, 15, v0")
        for k in range(4):
            A(f"""v_cmp_eq_u32 vcc, {2*k}, v{CA+8}
            v_cndmask_b32 v{CA+4+k}, 0, v{CA+9}, vcc
            v_cmp_eq_u32 vcc, {2*k+1}, v{CA+8}
            v_cndmask_b32 v{CA+4+k}, v{CA+4+k}, v{CA+10}, vcc""".replace("v_cmp_eq_u32 vcc, 0,", f"v_mov_b32 v{CA+9}, 0x3f80\nv_mov_b32 v{CA+10}, 0x3f800000\nv_cmp_eq_u32 vcc, 0,"))
    def cs_acc():
        for i in range(10): A(f"v_mfma_f32_16x16x32_bf16 {v(CA,4)}, {v(CA+4,4)}, {v(C+4*i,4)}, {'0' if i==0 else v(CA,4)}")
    def cs_fin():
        msk = (1 << NCH) - 1
        A(f"""v_and_b32 v{C}, 15, v0
        v_lshlrev_b32 v{C}, 5, v{C}
        v_lshrrev_b32 v{C+1}, 4, v0
        v_lshl_add_u32 v{C}, v{C+1}, 4, v{C}
        s_mul_i32 s48, s41, 384
        s_add_u32 s48, s48, {L_ST+128}
        v_add_u32 v{C}, s48, v{C}
        s_mov_b64 exec, {msk | (msk << 16)}
        ds_write_b128 v{C}, {v(CA,4)}
        s_mov_b64 exec, -1
        s_waitcnt lgkmcnt(0)""")
    def only0(name, f):
        A(f"s_cmp_lg_u32 s41, 0\ns_cbranch_scc1 {tag}_{name}")
        f()
        A.label(f"{tag}_{name}")
    def cw_poll():
        A(f"v_mov_b32 v{R}, 196\nglobal_load_dword v{R+1}, v{R}, s[14:15] sc1")
    def wf_prefetch(i):
        if i == 0:
            A(f"""v_readfirstlane_b32 s48, v{R+1}
            s_lshr_b32 s49, s2, 3
            s_mul_i32 s49, s49, {740*128}
            s_add_u32 s49, s49, {WS_WF}
            s_cmp_eq_u32 s48, 1
            s_cselect_b32 s69, s49, {OOB}
            v_lshlrev_b32 v{R}, 7, v0""")
        for k in range(3):
            A(f"buffer_load_dword v{R+2}, v{R}, s[20:23], s69 offen\nv_add_u32 v{R}, {64*128 if 3*i+k != 10 else 36*128}, v{R}")
    def poll_issue():
        A(f"v_and_b32 v{R+4}, 1, v0\nv_lshlrev_b32 v{R+4}, 6, v{R+4}\nglobal_load_dword v{R+5}, v{R+4}, s[14:15] offset:128 sc1")
        q.mark = q.n
    def poll_check():
        A(f"s_waitcnt vmcnt({q.n - q.mark})")
        spin(A, tag + "G", f"global_load_dword v{R+5}, v{R+4}, s[14:15] offset:128 sc1", R + 5, "1", first=False)
        prof_stamp(A, 5)
    def cons_issue():
        A(f"""v_lshrrev_b32 v{R}, 3, v0
        v_and_b32 v{R+1}, 7, v0
        v_lshlrev_b32 v{R+1}, 3, v{R+1}
        v_lshl_add_u32 v{R+1}, v{R}, 7, v{R+1}
        s_lshl_b32 s48, s32, 5
        s_lshl_b32 s49, s41, 3
        s_add_u32 s48, s48, s49
        s_lshl_b32 s48, s48, 7
        s_add_u32 s48, s48, {WS_ST}
        buffer_load_dwordx2 {v(R+2,2)}, v{R+1}, s[20:23], s48 offen sc1
        v_lshlrev_b32 v{R}, 3, v0
        v_lshlrev_b32 v{R+1}, 2, v0""")
        q.issue("C1")
        for i in range(16):
            if i and i % 5 == 0: A(f"s_add_u32 s53, s53, {5*768}")
            A(f"buffer_load_dword v{XU+i}, v{R+1}, s[20:23], s53 offen offset:{(i%5)*768} sc1"); q.issue("C1")
        if not gu:
            A(f"v_lshlrev_b32 v{R+4}, 4, v0")
            for e in range(8):
                A(f"s_add_u32 s48, s54, {e*1024}\ns_cmp_lt_u32 {e}, s55\ns_cselect_b32 s48, s48, {OOB}")
                A(f"buffer_load_dwordx4 {v(C+4*e,4)}, v{R+4}, s[20:23], s48 offen sc1"); q.issue("C2")
    def cons_fin():
        q.wait({"C1"})
        A(f"s_lshl_b32 s48, s41, 9\ns_add_u32 s48, s48, {L_ST}\nv_add_u32 v{R}, s48, v{R}\nds_write_b64 v{R}, {v(R+2,2)}")
        for st in (8, 4, 2, 1):
            for i in range(st): A(f"v_add_f32 v{XU+i}, v{XU+i}, v{XU+i+st}")
        A(f"""s_mul_i32 s48, s41, 192
        s_add_u32 s48, s48, {L_CS}
        v_add_u32 v{R+1}, s48, v{R+1}
        s_mov_b32 exec_hi, 0xffff
        ds_write_b32 v{R+1}, v{XU}
        s_mov_b64 exec, -1""")
        if not gu:
            q.wait({"C2"})
            A(f"v_add_u32 v{R+4}, s43, v{R+4}")
            for e in range(8): A(f"ds_write_b128 v{R+4}, {v(C+4*e,4)} offset:{XSLOT + e*1024}")
        A(f"v_mov_b32 v{R}, {L_CNT}\nv_mov_b32 v{R+2}, 0\nv_mov_b32 v{R+3}, 0\n" + "".join(f"ds_write_b64 v{R}, {v(R+2,2)} offset:{8*k}\n" for k in range(6)) + "s_waitcnt lgkmcnt(0)")
    q.q = [("X", 0)] * 8 + [("W", 0)] * 3 + [("W", 1)] * 3
    sched = {u: [] for u in range(20)}
    aux_issue(0)
    sched[0] += [lambda: X(1), lambda: W(2), lambda: aux_issue(1), cs_sel]
    sched[1] += [lambda: W(3), lambda: aux_issue(2), lambda: X(2, 0)]
    sched[2] += [lambda: aux_issue(3), lambda: X(2, 1), lambda: W(4), lambda: aux_issue(4)]
    sched[3] += [lambda: W(5), lambda: X(3, 0), lambda: W(6)]
    sched[4] += [lambda: X(3, 1), lambda: W(7), lambda: q.wait({"CS"}), cs_acc, lambda: stats_part1(A, R, XU)]
    sched[5] += [lambda: X(4), lambda: W(8), lambda: stats_part2(A, R, XU, 41), cs_fin]
    sched[6] += [lambda: X(5, 0), lambda: W(9)]
    sched[7] += [lambda: X(5, 1), lambda: W(10)]
    for u in range(8, 17):
        j = u // 2 + 2
        if j < 10: sched[u].append(lambda j=j, h=u % 2: X(j, h))
        sched[u].append(lambda u=u: W(u + 3))
    if "pf" in EXP:
        sched[8] = [lambda: only0("cw", cw_poll)] + sched[8]
        for i in range(4): sched[11 + i].append(lambda i=i: only0(f"pf{i}", lambda: wf_prefetch(i)))
    sched[15] = [lambda: only0("pi", poll_issue)] + sched[15]
    sched[16] += [lambda: only0("pc", poll_check)]
    sched[17] += [cons_issue]
    sched[19] += [cons_fin]
    for u in range(20):
        q.wait({("W", u), ("X", u // 2)})
        if u == 0: prof_stamp(A, 3)
        if u == 8: prof_stamp(A, 4)
        A("s_barrier")
        for f in sched[u]: f()
    A(f"s_barrier\ns_mov_b32 s57, {OOB}")
    if not gu: A("s_cmp_eq_u32 s34, 1\ns_cbranch_scc1 P2_stream")
    A("s_branch P2_aux")

ACC = 0
XF = 192
WFR = 224
NWF = 5
VX = 244
VW = 246
VL = 248
def acc(T, ct): return ACC + (T * 12 + ct) * 4

def k1_mainloop(A, gu):
    NT = 12 if gu else 10
    WU = 12288 if gu else 10240
    pitch = 192 if gu else 320
    LA = NWF - 1
    q = Q(A, "lgkmcnt", 15)
    def woff(n):
        u, ct = divmod(n, NT)
        o = (u % NWS) * WU
        o += (ct % 6) * 32 + (ct // 6) * 6144 if gu else ct * 32
        return o
    def rdW(n, halves=(0, 1)):
        r = WFR + 4 * (n % NWF); ad = VW + (n % NT) % 2
        for h in halves:
            A(f"ds_read_b64_tr_b16 {v(r+2*h,2)}, v{ad} offset:{woff(n)+4*pitch*h}"); q.issue(("W", n))
    def rdX(u, T):
        j, kh = divmod(u, 2)
        A(f"ds_read_b128 {v(XF+16*(u&1)+4*T,4)}, v{VX+kh} offset:{(j%3)*XSLOT + T*2048}"); q.issue(("X", u, T))
    NTOT = 20 * NT
    PUBU, SIGU = 6, 8
    def pub_read():
        A(f"ds_read_b128 v[252:255], v249"); q.issue("P0")
    def pub_store0():
        q.wait({"P0"})
        A(f"buffer_store_dwordx4 v[252:255], v250, s[20:23], s52 offen sc1\nv_lshlrev_b32 v250, 4, v{VL}\nv_add_u32 v249, {L_ST}, v250")
    def pub_read1():
        A(f"ds_read_b128 v[252:255], v249"); q.issue("P1")
    def pub_store1():
        q.wait({"P1"})
        A(f"s_mov_b64 exec, 0xff\nbuffer_store_dwordx4 v[252:255], v250, s[20:23], s53 offen sc1\ns_mov_b64 exec, -1")
    def sig(line):
        A(f"s_cmp_lg_u32 s3, 0\ns_cbranch_scc1 SG{int(gu)}{line}")
        signal(A, 252, line)
        A.label(f"SG{int(gu)}{line}")
    n0 = PUBU * NT - LA
    hooks = {n0: pub_read, n0 + 3: pub_store0, n0 + 4: pub_read1, n0 + 7: pub_store1, SIGU * NT - LA: lambda: sig(0)}
    A("s_barrier")
    prof_stamp(A, 1)
    if PROF: A("s_memtime s[76:77]\ns_waitcnt lgkmcnt(0)")
    rdX(0, 0); rdW(0); rdX(0, 1); rdX(0, 2); rdX(0, 3)
    for n in range(1, LA): rdW(n)
    for n in range(NTOT):
        u, ct = divmod(n, NT)
        for T in range(4):
            q.wait({("W", n), ("X", u, T)})
            c = "0" if u == 0 else v(acc(T, ct), 4)
            A(f"v_mfma_f32_16x16x32_bf16 {v(acc(T,ct),4)}, {v(WFR+4*(n%NWF),4)}, {v(XF+16*(u&1)+4*T,4)}, {c}")
            m = n + LA
            if T == 0 and m < NTOT:
                if m == SIGU * NT: A("s_waitcnt vmcnt(0)")
                if m % NT == 0: A("s_barrier")
                rdW(m, (0,))
            if T == 1 and m < NTOT: rdW(m, (1,))
            if T == 2 and u + 1 < 20 and ct >= NT - LA: rdX(u + 1, ct - (NT - LA))
            if T == 3 and n in hooks: hooks[n]()
    prof_stamp(A, 2)
    if PROF: A("s_memtime s[78:79]\ns_waitcnt lgkmcnt(0)\ns_sub_u32 s81, s78, s76\ns_add_u32 s81, s81, s80")

CSR = 192
STR = 240
def epi_common(A, ntile):
    A(f"""
    v_lshrrev_b32 v249, 4, v{VL}
    v_lshlrev_b32 v249, 4, v249
    v_add_u32 v249, {L_CS}, v249
    v_and_b32 v250, 15, v{VL}
    v_lshlrev_b32 v250, 3, v250
    s_lshl_b32 s51, s3, 9
    s_add_u32 s51, s51, {L_ST}
    v_add_u32 v250, s51, v250
    s_waitcnt vmcnt(0)
    s_barrier
    """)
    for T in range(4): A(f"ds_read_b64 {v(STR+2*T,2)}, v250 offset:{T*128}")
    for ct in range(ntile): A(f"ds_read_b128 {v(CSR+4*ct,4)}, v249 offset:{ct*64}")
    A(f"v_lshlrev_b32 v249, 4, v{VL}\ns_waitcnt lgkmcnt(0)")
    prof_stamp(A, 3)
def dry_exit(A, ret):
    if "nodry" not in EXP: A(f"s_cmp_eq_u32 s79, 1\ns_cbranch_scc1 {ret}")
def dry_run(A, labels, ret):
    if "nodry" in EXP: return
    A("s_mov_b32 s79, 1\ns_mov_b64 exec, 0")
    for w in range(3): A(f"s_cmp_eq_u32 s3, {w}\ns_cbranch_scc1 {labels[w]}")
    A(f"s_branch {labels[3]}")
    A.label(ret)
    A("s_mov_b32 s79, 0\ns_mov_b64 exec, -1")
def center(A, r, T, ct):
    for h in range(2):
        A(f"v_pk_fma_f32 {v(r+2*h,2)}, {v(CSR+4*ct+2*h,2)}, {v(STR+2*T,2)}, {v(r+2*h,2)} op_sel_hi:[1,0,1] neg_lo:[1,0,0] neg_hi:[1,0,0]")

def k1_epi_gu(A):
    epi_common(A, 12)
    for T in range(4):
        A(f"v_mul_f32 v{252+T}, v{STR+2*T+1}, v{STR+2*T+1}\nv_mul_f32 v{STR+2*T+1}, {NLOG2E}, v{STR+2*T+1}\nv_rcp_f32 v{252+T}, v{252+T}")
    for T in range(4):
        G = acc(T, 0); U = acc(T, 6); sd = v(252 + (T & 2), 2); b = T & 1
        A.label(f"DG{T}")
        for ct in range(12): center(A, acc(T, ct), T, ct)
        for k in range(12): A(f"v_pk_mul_f32 {v(U+2*k,2)}, {v(G+2*k,2)}, {v(U+2*k,2)}")
        for k in range(12): A(f"v_pk_mul_f32 {v(G+2*k,2)}, {v(G+2*k,2)}, {v(STR+2*T,2)} op_sel:[0,1] op_sel_hi:[1,1]")
        for i in range(24): A(f"v_exp_f32 v{G+i}, v{G+i}")
        for k in range(12): A(f"v_pk_fma_f32 {v(G+2*k,2)}, {v(G+2*k,2)}, {sd}, {sd} op_sel:[0,{b},{b}] op_sel_hi:[1,{b},{b}]")
        for i in range(24): A(f"v_rcp_f32 v{G+i}, v{G+i}")
        for k in range(12): A(f"v_pk_mul_f32 {v(U+2*k,2)}, {v(U+2*k,2)}, {v(G+2*k,2)}")
        for k in range(12): A(f"v_cvt_pk_bf16_f32 v{G+k}, v{U+2*k}, v{U+2*k+1}")
        dry_exit(A, "DG_ret")
        for c in range(3):
            A(f"s_add_u32 s51, s50, {c*4096}")
            A(f"buffer_store_dwordx4 {v(G+4*c,4)}, v249, s[20:23], s51 offen offset:{T*1024} {HST}")
    prof_stamp(A, 5)

WP = 192
def read_wpf(A, first):
    for tau in range(5):
        for c in range(3):
            i = first + 3 * tau + c
            base = 250 + (i >> 4)
            off = wpf_lds(i) - (i >> 4) * 2 * XWAVE
            if c < 2: A(f"ds_read_b128 {v(WP+10*tau+4*c,4)}, v{base} offset:{off}")
            else: A(f"ds_read_b64 {v(WP+10*tau+8,2)}, v{base} offset:{off}")
def normalize(A, ntile, scale_tiles):
    for T in range(4):
        for ct in range(ntile):
            center(A, acc(T, ct), T, ct)
        for ct in scale_tiles:
            for h in range(2):
                r = acc(T, ct) + 2 * h
                A(f"v_pk_mul_f32 {v(r,2)}, {v(r,2)}, {v(STR+2*T,2)} op_sel:[0,1] op_sel_hi:[1,1]")
def proj_mfma(A, D, B01, B2):
    for c in range(3):
        for tau in range(5):
            d = v(D + 4 * tau, 4)
            if c < 2: A(f"v_mfma_f32_16x16x32_bf16 {d}, {v(WP+10*tau+4*c,4)}, {v(B01+4*c,4)}, {'0' if c==0 else d}")
            else: A(f"v_mfma_f32_16x16x16_bf16 {d}, {v(WP+10*tau+8,2)}, {v(B2,2)}, {d}")

def k1_epi_kv(A):
    epi_common(A, 10)
    normalize(A, 10, range(5, 10))
    A(f"v_mov_b32 v250, v249")
    for T in range(4): A(f"v_mul_f32 v{252+T}, {LOG2E}, v{STR+2*T+1}")
    read_wpf(A, 0)
    A(f"""
    v_and_b32 v243, 15, v{VL}
    s_lshl_b32 s51, s3, 6
    v_add_u32 v243, s51, v243            ; row (T=0)
    v_lshrrev_b32 v246, 4, v{VL}         ; g
    v_mul_u32_u24 v251, {PHI_P}, v243
    v_mul_u32_u24 v247, 80, v246
    v_add_u32 v251, v251, v247
    v_mul_u32_u24 v243, {V_P}, v243
    v_add_u32 v243, {V_BASE}, v243
    v_mul_u32_u24 v247, 48, v246
    v_add_u32 v242, v243, v247
    """)
    VA = acc(3, 10)
    for c in range(5):
        A(f"""v_add_u32 v247, {4*c}, v246
        v_mul_u32_u24 v244, 205, v247
        v_lshrrev_b32 v244, 10, v244
        v_add_u32 v247, v247, v244
        v_lshl_add_u32 v{VA+c}, v247, 3, v243""")
    for T in range(4):
        for c in range(5):
            r = acc(T, 5 + c)
            A(f"v_cvt_pk_bf16_f32 v{r}, v{r}, v{r+1}\nv_cvt_pk_bf16_f32 v{r+1}, v{r+2}, v{r+3}")
    A("v_mov_b32 v244, 0x3f80\nv_mov_b32 v245, 0\ns_waitcnt lgkmcnt(0)")
    lds_inc(A, W_K1, 246, 247); lds_spin(A, "K1S", W_K1, "4", 246, 247)
    for T in range(4):
        for c in range(5):
            A(f"ds_write_b64 v{VA+c}, {v(acc(T,5+c),2)} offset:{T*16*V_P}")
        A(f"ds_write_b64 v242, v[244:245] offset:{T*16*V_P + 40}")
    for T in range(4):
        for k in range(8): A(f"v_cvt_pk_bf16_f32 v{acc(T,10)+k}, v{acc(T,0)+2*k}, v{acc(T,0)+2*k+1}")
        for k in range(2): A(f"v_cvt_pk_bf16_f32 v{acc(T,0)+k}, v{acc(T,4)+2*k}, v{acc(T,4)+2*k+1}")
        proj_mfma(A, acc(T, 5), acc(T, 10), acc(T, 0))
    for T in range(4):
        A.label(f"DK{T}")
        A(f"v_mov_b32 v236, v{252+T}")
        dual_softmax(A, acc(T, 5), 192, acc(T, 0), 232, "v[236:237]")
        dry_exit(A, "DK_ret")
        for k in range(5):
            A(f"ds_write_b128 v251, {v(acc(T,0)+4*k,4)} offset:{T*16*PHI_P + 16*k}")
    A(f"""
    v_lshrrev_b32 v241, 5, v{VL}
    v_lshlrev_b32 v241, 3, v241          ; 8*(G>>1)
    v_bfe_u32 v242, v{VL}, 2, 2
    v_add_u32 v241, v241, v242
    v_bfe_u32 v242, v{VL}, 4, 1
    v_lshlrev_b32 v242, 5, v242
    v_and_b32 v243, 3, v{VL}
    v_lshl_add_u32 v242, v243, 3, v242   ; 32*(G&1)+8c
    v_mul_u32_u24 v237, {PHI_P}, v241
    v_add_u32 v237, v237, v242
    s_mul_i32 s51, s3, 80
    v_add_u32 v237, s51, v237
    v_add_u32 v239, {128*PHI_P}, v237
    v_mul_u32_u24 v238, {V_P}, v241
    v_add_u32 v238, v238, v242
    s_mul_i32 s51, s3, 48
    s_add_u32 s51, s51, {V_BASE}
    v_add_u32 v238, s51, v238
    v_and_b32 v241, 31, v{VL}
    v_lshrrev_b32 v242, 5, v{VL}
    v_mul_u32_u24 v242, 640, v242
    v_lshl_add_u32 v242, v241, 2, v242     ; hh*4*160 + n*4
    s_waitcnt lgkmcnt(0)
    """)
    lds_inc(A, W_K2, 246, 247); lds_spin(A, "K2S", W_K2, "4", 246, 247)
    prof_stamp(A, 4)
    q = Q(A, "lgkmcnt", 15)
    def rd(ks):
        b = 32 + 12 * (ks % 3)
        pa, po = (237, ks * 16 * PHI_P) if ks < 8 else (239, (ks - 8) * 16 * PHI_P)
        for h in range(2):
            A(f"ds_read_b64_tr_b16 {v(b+2*h,2)}, v238 offset:{ks*16*V_P + h*4*V_P}"); q.issue(ks)
        for nt in range(2):
            for h in range(2):
                A(f"ds_read_b64_tr_b16 {v(b+4+4*nt+2*h,2)}, v{pa} offset:{po + nt*64 + h*4*PHI_P}"); q.issue(ks)
    rd(0); rd(1)
    for ks in range(16):
        q.wait({ks})
        if ks + 2 < 16: rd(ks + 2)
        b = 32 + 12 * (ks % 3)
        for nt in range(2):
            A(f"v_mfma_f32_32x32x16_bf16 {v(16*nt,16)}, {v(b,4)}, {v(b+4+4*nt,4)}, {'0' if ks==0 else v(16*nt,16)}")
    prof_stamp(A, 5)
    for nt in range(2):
        if nt == 1: A("s_mov_b32 exec_lo, 0xff\ns_mov_b32 exec_hi, 0xff")
        for i in range(12):
            A(f"buffer_atomic_add_f32 v{16*nt+i}, v242, s[20:23], s57 offen offset:{(8*(i>>2)+(i&3))*160 + nt*128}")

def k1_epi_q(A):
    epi_common(A, 10)
    normalize(A, 10, range(10))
    A(f"v_mov_b32 v250, v249\nv_add_u32 v251, {2*XWAVE}, v249\nv_lshlrev_b32 v247, 3, v{VL}")
    for hgi in range(2):
        read_wpf(A, 15 * hgi)
        b2 = [242, 244, 252, 254]
        for T in range(4):
            src = acc(T, 5 * hgi)
            for k in range(8): A(f"v_cvt_pk_bf16_f32 v{acc(T,10)+k}, v{src+2*k}, v{src+2*k+1}")
            for k in range(2): A(f"v_cvt_pk_bf16_f32 v{b2[T]+k}, v{src+16+2*k}, v{src+17+2*k}")
        A("s_waitcnt lgkmcnt(0)")
        if hgi == 1: lds_inc(A, W_Q, 250, 251)
        for T in range(4): proj_mfma(A, acc(T, 5 * hgi), acc(T, 10), b2[T])
        for T in range(4):
            src = acc(T, 5 * hgi)
            for k in range(10): A(f"v_cvt_pk_bf16_f32 v{src+k}, v{src+2*k}, v{src+2*k+1}")
            A(f"s_add_u32 s51, s58, {(hgi*4+T)*2560}")
            A(f"buffer_store_dwordx4 {v(src,4)}, v249, s[20:23], s51 offen {HST}")
            A(f"buffer_store_dwordx4 {v(src+4,4)}, v249, s[20:23], s51 offen offset:1024 {HST}")
            A(f"buffer_store_dwordx2 {v(src+8,2)}, v247, s[20:23], s51 offen offset:2048 {HST}")
    prof_stamp(A, 5)

def gen_k1():
    A = Asm()
    A.label("K1_start")
    prof_start(A)
    A(f"""
    s_load_dwordx4 s[4:7], s[0:1], 0     ; x, wqkv
    s_load_dwordx4 s[8:11], s[0:1], 40
    s_load_dwordx4 s[12:15], s[0:1], 72
    s_cmp_ge_u32 s2, 256
    s_cbranch_scc1 K1_end
    v_lshrrev_b32 v1, 6, v0
    v_and_b32 v0, 63, v0
    v_readfirstlane_b32 s3, v1
    s_and_b32 s30, s2, 7                 ; xcd
    s_lshr_b32 s31, s2, 3                ; j
    s_lshr_b32 s32, s30, 2
    s_lshl_b32 s32, s32, 2
    s_and_b32 s33, s31, 3
    s_add_u32 s32, s32, s33              ; rb
    s_and_b32 s30, s30, 3                ; cg
    s_lshr_b32 s31, s31, 2               ; cslot
    s_sub_u32 s41, s3, 4
    s_lshl_b32 s40, s32, 8
    s_lshl_b32 s36, s41, 6
    s_add_u32 s40, s40, s36
    s_mul_i32 s40, s40, 1280
    s_mul_i32 s43, s41, {XWAVE}
    v_lshrrev_b32 v7, 3, v0              ; r
    v_and_b32 v8, 7, v0                  ; p
    v_lshrrev_b32 v9, 1, v7
    v_xor_b32 v8, v8, v9
    v_mul_u32_u24 v7, 1280, v7
    v_lshl_add_u32 v2, v8, 4, v7
    v_xor_b32 v3, 64, v2
    s_mov_b32 s18, 2621440
    s_mov_b32 s19, 0x20000
    s_mov_b32 s22, {WS_SIZE}
    s_mov_b32 s23, 0x20000
    s_lshl_b32 s28, s30, 3
    s_add_u32 s28, s28, s31
    s_cmp_ge_u32 s28, 23
    s_cselect_b32 s34, 7, 0
    s_and_b32 s34, s34, s31
    s_waitcnt lgkmcnt(0)
    s_mov_b32 s16, s4
    s_mov_b32 s17, s5
    s_mov_b32 s20, s14
    s_mov_b32 s21, s15
    s_mov_b32 s14, s12
    s_mov_b32 s15, s13
    s_cmp_eq_u32 s34, 7
    s_cbranch_scc1 K1_spare
    s_cmp_lt_u32 s3, 4
    s_cbranch_scc1 K1_nox0
    """)
    prof_stamp(A, 0)
    for e in range(8):
        A(f"s_add_u32 s48, s40, {e*8*1280}\ns_add_u32 m0, s43, {e*1024}\ns_nop 0\nbuffer_load_dwordx4 v{2+(e&1)}, s[16:19], s48 offen lds")
    A.label("K1_nox0")
    A(f"""
    s_mov_b32 s34, 1
    s_lshl_b32 s35, s30, 1
    s_add_u32 s35, s35, s31              ; hg
    s_add_u32 s29, s35, 18
    s_cmp_lt_u32 s31, 2
    s_cbranch_scc1 K1_typed
    s_mov_b32 s34, 2
    s_mov_b32 s35, s30                   ; qb
    s_add_u32 s29, s35, 26
    s_cmp_eq_u32 s31, 2
    s_cbranch_scc1 K1_typed
    s_mov_b32 s34, 0
    s_mul_i32 s35, s30, 5
    s_lshl_b32 s36, s30, 2
    s_add_u32 s36, s36, 2
    s_min_u32 s35, s35, s36
    s_add_u32 s35, s35, s31
    s_sub_u32 s35, s35, 3
    s_mov_b32 s29, s35
    """)
    A.label("K1_typed")
    A("s_cmp_lt_u32 s3, 4\ns_cbranch_scc1 K1_compute")
    A(f"""
    s_lshr_b32 s58, s41, 1               ; half
    s_and_b32 s59, s41, 1
    s_cmp_eq_u32 s34, 0
    s_cbranch_scc0 K1_lp_qkv
    s_cmp_lt_u32 s41, 2
    s_cselect_b32 s24, s8, s10
    s_cselect_b32 s25, s9, s11
    s_mov_b32 s26, {640*3456}
    s_mov_b32 s60, 3456
    s_mov_b32 s61, 12
    s_mov_b32 s38, {(1<<32)//12+1}
    s_mul_i32 s37, s35, 192
    s_mov_b32 s39, 0
    s_mul_i32 s62, s59, 3
    s_mov_b32 s63, 5
    s_mul_i32 s64, s58, 6144
    s_mov_b32 s65, 12288
    s_branch K1_lp_go
    """)
    A.label("K1_lp_qkv")
    A(f"""
    s_mov_b32 s24, s6
    s_mov_b32 s25, s7
    s_mov_b32 s26, {640*3840}
    s_mov_b32 s60, 3840
    s_mov_b32 s61, 20
    s_mov_b32 s38, {(1<<32)//20+1}
    s_mul_i32 s37, s35, 160
    s_add_u32 s37, s37, 1280
    s_mul_i32 s39, s35, 320
    s_cmp_eq_u32 s34, 2
    s_cselect_b32 s37, s39, s37
    s_cselect_b32 s39, 0, {1280-160}
    s_mul_i32 s62, s41, 3
    s_lshl_b32 s57, s41, 1
    s_add_u32 s57, s57, 2
    s_min_u32 s62, s62, s57
    s_mov_b32 s63, 9
    s_mov_b32 s64, 0
    s_mov_b32 s65, 10240
    """)
    A.label("K1_lp_go")
    A("s_mov_b32 s27, 0x20000\ns_lshl_b32 s42, s60, 5\nv_mov_b32 v10, s39")
    for e in range(3):
        A(f"""s_add_u32 s36, s62, {e}
        s_min_u32 s36, s36, s63
        s_lshl_b32 s{44+e}, s36, 10
        s_add_u32 s{44+e}, s{44+e}, s64
        s_lshl_b32 s36, s36, 6
        v_add_u32 v7, s36, v0
        v_mul_hi_u32 v8, v7, s38
        v_mul_lo_u32 v9, v8, s61
        v_sub_u32 v9, v7, v9
        v_bfe_u32 v11, v8, 3, 1
        v_lshlrev_b32 v11, 1, v11
        v_xor_b32 v9, v9, v11
        v_mul_lo_u32 v8, v8, s60
        v_lshl_add_u32 v8, v9, 4, v8
        v_cmp_le_u32 vcc, 10, v9
        v_cndmask_b32 v9, 0, v10, vcc
        v_add3_u32 v{4+e}, v8, v9, s37
        s_add_u32 m0, s{44+e}, {WBASE}
        s_nop 0
        buffer_load_dwordx4 v{4+e}, s[24:27], 0 offen lds""")
    for e in range(3):
        A(f"s_add_u32 s36, s{44+e}, s65\ns_add_u32 m0, s36, {WBASE}\ns_nop 0\nbuffer_load_dwordx4 v{4+e}, s[24:27], s42 offen lds")
    prof_stamp(A, 1)
    A(f"""
    s_lshl_b32 s66, s32, 8
    s_lshl_b32 s36, s28, 3
    s_add_u32 s66, s66, s36
    s_lshl_b32 s36, s41, 1
    s_add_u32 s66, s66, s36
    s_lshl_b32 s56, s32, 4
    s_lshl_b32 s57, s59, 3
    s_add_u32 s56, s56, s57
    s_lshl_b32 s52, s29, 4
    s_mul_i32 s53, s52, 768
    s_mul_i32 s57, s41, 192
    s_add_u32 s53, s53, s57
    s_add_u32 s53, s53, {WS_CSP}
    s_lshl_b32 s57, s32, 1
    s_add_u32 s52, s52, s57
    s_add_u32 s52, s52, s59
    s_mul_i32 s52, s52, 768
    s_add_u32 s52, s52, {WS_CSP}
    v_lshrrev_b32 v12, 4, v0
    v_and_b32 v13, 15, v0
    v_mov_b32 v14, 0x7ffffff0
    v_mul_lo_u32 v7, v12, s60
    v_lshl_add_u32 v7, v13, 4, v7
    s_mul_i32 s50, s56, s60
    s_add_u32 s50, s50, s37
    s_lshl_b32 s51, s60, 2
    s_cmp_eq_u32 s34, 0
    s_cbranch_scc0 K1_l_qkv
    v_cmp_gt_u32 vcc, 12, v13
    v_cndmask_b32 v7, v14, v7, vcc
    s_mul_i32 s57, s58, 384
    s_add_u32 s52, s52, s57
    """)
    k1_loader(A, True, 3, "LG")
    A.label("K1_l_qkv")
    A(f"""
    v_cmp_gt_u32 vcc, 10, v13
    v_cndmask_b32 v7, v14, v7, vcc
    s_add_u32 s39, s39, 160
    s_mul_i32 s39, s39, s58
    s_add_u32 s50, s50, s39
    s_mul_i32 s57, s58, 320
    s_add_u32 s52, s52, s57
    s_mul_i32 s54, s35, 15
    s_mov_b32 s55, 15
    s_sub_u32 s57, s34, 1
    s_lshl_b32 s54, s54, s57
    s_lshl_b32 s55, s55, s57
    s_lshl_b32 s57, s41, 3
    s_add_u32 s54, s54, s57
    s_lshl_b32 s54, s54, 10
    s_add_u32 s54, s54, {WS_WPF}
    s_max_u32 s55, s55, s57
    s_sub_u32 s55, s55, s57
    s_cmp_ge_u32 s41, 2
    s_cbranch_scc1 K1_l_qkv2
    """)
    k1_loader(A, False, 3, "LA")
    A.label("K1_l_qkv2")
    k1_loader(A, False, 2, "LB")
    A.label("K1_spare")
    k1_spare(A)
    A.label("K1_compute")
    A("s_mov_b32 s79, 0")
    A(f"""
    s_setprio 2
    v_mov_b32 v{VL}, v0
    v_and_b32 v1, 15, v0                 ; t
    v_lshrrev_b32 v2, 4, v0              ; g
    v_lshrrev_b32 v3, 1, v1              ; (t>>1)
    s_mul_i32 s36, s3, {XWAVE}
    v_lshlrev_b32 v4, 7, v1
    v_add_u32 v4, s36, v4
    v_xor_b32 v5, v2, v3
    v_lshl_add_u32 v{VX}, v5, 4, v4
    v_xor_b32 v{VX+1}, 64, v{VX}
    s_cmp_eq_u32 s34, 0
    s_mov_b32 s36, 320
    s_cselect_b32 s36, 192, s36
    v_lshlrev_b32 v4, 3, v2              ; 8g
    v_bfe_u32 v5, v0, 2, 2
    v_add_u32 v4, v4, v5
    v_mul_lo_u32 v4, v4, s36
    v_and_b32 v5, 3, v0
    v_lshl_add_u32 v4, v5, 3, v4
    v_add_u32 v4, {WBASE}, v4
    v_and_b32 v5, 1, v2
    v_lshlrev_b32 v5, 5, v5
    v_add_u32 v{VW}, v4, v5
    v_sub_u32 v{VW+1}, v4, v5
    s_lshl_b32 s37, s32, 2
    s_add_u32 s37, s37, s3               ; rb64
    s_lshl_b32 s52, s29, 4
    s_lshl_b32 s53, s32, 1
    s_add_u32 s52, s52, s53
    s_and_b32 s53, s3, 1
    s_add_u32 s52, s52, s53
    s_mul_i32 s52, s52, 768
    s_lshr_b32 s53, s3, 1
    s_cmp_eq_u32 s34, 0
    s_mov_b32 s54, 320
    s_cselect_b32 s54, 384, s54
    s_mul_i32 s53, s53, s54
    s_add_u32 s52, s52, s53
    s_add_u32 s52, s52, {WS_CSP}
    s_lshl_b32 s53, s32, 5
    s_add_u32 s53, s53, s28
    s_lshl_b32 s53, s53, 7
    s_add_u32 s53, s53, {WS_ST}
    s_cmp_lg_u32 s3, 0
    s_cselect_b32 s53, {OOB}, s53
    v_lshlrev_b32 v250, 4, v0
    s_mul_i32 s55, s3, 384
    s_add_u32 s55, s55, {L_ST+128}
    v_add_u32 v249, s55, v250
    v_mov_b32 v6, 0x7ffffff0
    v_cmp_gt_u32 vcc, s54, v250
    v_cndmask_b32 v250, v6, v250, vcc
    """)
    if "nosent" in EXP: A("s_nop 0\nbuffer_load_dword v8, v0, s[16:19], 0 offen\nbuffer_load_dword v8, v0, s[16:19], 0 offen\nbuffer_load_dword v8, v0, s[16:19], 0 offen")
    else: sentinel_fill(A, Q(A, "vmcnt", 63), 3, 8)
    A(f"""
    s_cmp_eq_u32 s34, 0
    s_cbranch_scc0 K1_c_qkv
    s_mul_i32 s50, s37, 74
    s_mul_i32 s51, s35, 3
    s_add_u32 s50, s50, s51
    s_lshl_b32 s50, s50, 12
    s_add_u32 s50, s50, {WS_AF}
    """)
    dry_run(A, ["DG0", "DG1", "DG2", "DG3"], "DG_ret")
    k1_mainloop(A, True)
    k1_epi_gu(A)
    A(f"s_lshl_b32 s57, s37, 7\ns_add_u32 s57, s57, {F_CH}\ns_mov_b32 s56, 17\nv_mov_b32 v0, v{VL}")
    A("s_branch P2_stream")
    A.label("K1_c_qkv")
    if "nodry" not in EXP:
        A("s_cmp_eq_u32 s34, 2\ns_cbranch_scc1 DK_skip")
        dry_run(A, ["DK0", "DK1", "DK2", "DK3"], "DK_ret")
        A.label("DK_skip")
    k1_mainloop(A, False)
    A(f"""
    s_cmp_eq_u32 s34, 2
    s_cbranch_scc1 K1_c_q
    s_lshl_b32 s57, s35, 2
    s_add_u32 s57, s57, s3
    s_mul_i32 s57, s57, 3840
    s_add_u32 s57, s57, {WS_KVT}
    """)
    k1_epi_kv(A)
    A(f"s_mov_b64 exec, -1\ns_lshl_b32 s57, s35, 7\ns_add_u32 s57, s57, {F_CK}\ns_mov_b32 s56, 31\nv_mov_b32 v0, v{VL}")
    A("s_branch P2_aux")
    A.label("K1_c_q")
    A(f"""
    s_lshl_b32 s58, s37, 3
    s_lshl_b32 s51, s35, 1
    s_add_u32 s58, s58, s51
    s_mul_i32 s58, s58, {4*2560}
    s_add_u32 s58, s58, {WS_PQ}
    """)
    k1_epi_q(A)
    A(f"s_lshl_b32 s57, s37, 7\ns_add_u32 s57, s57, {F_CP}\ns_mov_b32 s56, 3\nv_mov_b32 v0, v{VL}")
    phase2(A)
    A.label("K1_end")
    A("s_endpgm")
    return A

def p2_setup(A, first, tag):
    A(f"s_cmp_eq_u32 s57, {OOB}\ns_cbranch_scc1 {tag}_noflag\ns_waitcnt vmcnt(0)")
    flag_add(A, 57, 56, 4, tag + "_notlast")
    A.label(f"{tag}_noflag")
    prof_stamp(A, 6)
    p2_map(A, 32, 33)
    A(f"""
    s_and_b32 s35, s3, 3
    s_add_u32 s36, s35, {first}
    v_lshlrev_b32 v2, 4, v0
    v_add_u32 v3, 4096, v2
    s_mul_i32 s40, s32, 74
    s_add_u32 s40, s40, s36
    s_lshl_b32 s40, s40, 12
    s_add_u32 s40, s40, {WS_AF}
    s_mul_i32 s41, s33, 74
    s_add_u32 s41, s41, s36
    s_mul_i32 s41, s41, 5120
    s_add_u32 s41, s41, {WS_WF}
    s_mul_i32 s58, s33, 7
    s_lshr_b32 s58, s58, 2
    """)
    leader_wait(A, tag + "W", "s_cmp_eq_u32 s3, 4", "v_mov_b32 v4, 196", "global_load_dword v5, v4, s[14:15] sc1", 5, "1", W_CW, 4)

def rot_off(A, dst, base, i, stride):
    A(f"""s_add_u32 s59, s58, {i}
    s_sub_u32 s{dst}, s59, 14
    s_cselect_b32 s59, s59, s{dst}
    s_mul_i32 s{dst}, s59, {stride}
    s_add_u32 s{dst}, s{dst}, s{base}
    s_lshl_b32 s59, s59, 2
    s_add_u32 s59, s59, s35
    s_cmp_lt_u32 s59, 54
    s_cselect_b32 s{dst}, s{dst}, {OOB}""")

def p2_aux(A):
    WOB = 140
    p2_setup(A, 54, "PA")
    for i in range(5):
        A(f"s_add_u32 s43, s41, {i*4*5120}")
        for ct in range(4): A(f"buffer_load_dwordx4 {v(WOB+20*i+4*ct,4)}, v2, s[20:23], s43 offen offset:{ct*1024} {BSC}")
        A(f"buffer_load_dwordx4 {v(WOB+20*i+16,4)}, v3, s[20:23], s43 offen {BSC}")
        if i < 4: A(f"s_waitcnt vmcnt({THR})")
    A("s_cmp_eq_u32 s34, 1\ns_cbranch_scc1 P2_a_2\ns_cmp_eq_u32 s34, 2\ns_cbranch_scc0 P2_a_noq")
    lds_spin(A, "AQ", W_Q, "4", 4, 5)
    A.label("P2_a_noq")
    A(f"s_sub_u32 s45, s41, {54*5120}\ns_mul_i32 s44, s35, 5120")
    for i in range(NL):
        rot_off(A, 43, 45, i, 4 * 5120)
        A(f"s_waitcnt vmcnt({THR})\ns_add_u32 m0, s44, {i*20480}\ns_nop 0")
        for ct in range(4): A(f"buffer_load_dwordx4 v2, s[20:23], s43 offen offset:{ct*1024} {BSC} lds")
        A(f"s_add_u32 m0, s44, {i*20480+4096}\ns_nop 0\nbuffer_load_dwordx4 v3, s[20:23], s43 offen {BSC} lds")
    A("s_waitcnt vmcnt(0)")
    lds_inc(A, W_BL, 4, 5)
    A.label("P2_a_2")
    A("s_setprio 3")
    prof_stamp(A, 7)
    A(f"""s_cmp_eq_u32 s34, 1
    s_cbranch_scc1 P2_a_3
    s_lshr_b32 s36, s2, 5
    s_cmp_ge_u32 s36, 6
    s_cselect_b32 s65, 1, 0
    s_sub_u32 s64, s32, 1
    s_and_b32 s64, s64, 3
    s_and_b32 s36, s32, 28
    s_or_b32 s64, s64, s36
    s_cmp_eq_u32 s65, 1
    s_cselect_b32 s64, s64, s32""")
    leader_wait(A, "AP", "s_cmp_eq_u32 s35, 0", f"""s_lshl_b32 s37, s32, 7
    s_lshl_b32 s38, s64, 7
    v_mov_b32 v4, s37
    v_writelane_b32 v4, s38, 0
    s_mov_b32 s37, {F_CP+F_RDY}""", "buffer_load_dword v5, v4, s[20:23], s37 offen sc1", 5, "1", W_CP, 4)
    def pq_load(rb, R):
        A(f"""s_lshl_b32 s36, s{rb}, 3
        s_add_u32 s36, s36, s33
        s_lshl_b32 s36, s36, 2
        s_add_u32 s36, s36, s35
        s_mul_i32 s36, s36, 2560
        s_add_u32 s36, s36, {WS_PQ}
        buffer_load_dwordx4 {v(R,4)}, v2, s[20:23], s36 offen sc1
        buffer_load_dwordx4 {v(R+4,4)}, v2, s[20:23], s36 offen offset:1024 sc1
        buffer_load_dwordx2 {v(R+8,2)}, v6, s[20:23], s36 offen offset:2048 sc1""")
    def phi(R, OUT):
        for k in range(10): A(f"v_lshlrev_b32 v{40+2*k}, 16, v{R+k}\nv_and_b32 v{41+2*k}, 0xffff0000, v{R+k}")
        dual_softmax(A, 40, 60, OUT, 240, "s[52:53]")
    A("v_lshlrev_b32 v6, 3, v0")
    pq_load(32, 8); pq_load(64, 24)
    A(f"""
    s_mul_i32 s47, s33, 15360
    s_lshl_b32 s38, s35, 10
    s_add_u32 s47, s47, s38
    s_add_u32 s47, s47, {WS_KVT}
    s_lshl_b32 s38, s35, 9
    s_add_u32 s38, s38, {KVB}
    v_add_u32 v19, s38, v6
    v_mov_b32 v6, 0
    v_mov_b32 v7, 0
    ds_write_b64 v19, v[6:7] offset:8192
    s_mov_b32 s52, {LOG2E}
    s_mov_b32 s53, {LOG2E}
    v_lshrrev_b32 v18, 4, v0             ; gk
    v_bfe_u32 v22, v0, 2, 2              ; m>>2
    v_and_b32 v20, 3, v0
    v_mul_u32_u24 v20, 80, v20
    v_mul_u32_u24 v21, 1920, v18
    v_add_u32 v20, v20, v21
    v_mov_b32 v21, 8192
    v_cmp_eq_u32 vcc, v18, v22
    v_cndmask_b32 v18, v21, v20, vcc
    v_add_u32 v18, {KVB}, v18
    """)
    o_offsets(A, 32, 33, 35, 44, 45, 46)
    o_offsets(A, 64, 33, 35, 60, 61, 62)
    A("s_waitcnt vmcnt(0)")
    phi(8, 100)
    A("s_cmp_eq_u32 s65, 0\ns_cbranch_scc1 P2_a_p1")
    phi(24, 120)
    A.label("P2_a_p1")
    prof_stamp(A, 8)
    leader_wait(A, "AK", "s_cmp_eq_u32 s35, 0", f"s_lshl_b32 s37, s33, 7\ns_add_u32 s37, s37, {F_CK+F_RDY}\nv_mov_b32 v4, 0", "buffer_load_dword v5, v4, s[20:23], s37 offen sc1", 5, "1", W_CK, 4)
    prof_stamp(A, 9)
    for i in range(4):
        A(f"s_add_u32 s38, s47, {i*4096}\nbuffer_load_dwordx4 {v(24+4*i,4)}, v2, s[20:23], s38 offen sc1")
    for i in range(4):
        b = 24 + 4 * i
        A(f"s_waitcnt vmcnt({3-i})\nv_cvt_pk_bf16_f32 v{b}, v{b}, v{b+1}\nv_cvt_pk_bf16_f32 v{b+1}, v{b+2}, v{b+3}\nds_write_b64 v19, {v(b,2)} offset:{i*2048}")
    A("s_waitcnt lgkmcnt(0)")
    lds_inc(A, W_KVS, 4, 5)
    lds_spin(A, "AL", W_KVS, "4", 4, 5)
    def slices(dual):
        q = Q(A, "lgkmcnt", 15)
        order = [5, 0, 1, 2, 3, 4]
        bufs = [20, 64] if dual else [20, 64, 120]
        slot = {t: bufs[k % len(bufs)] for k, t in enumerate(order)}
        acc2 = [84, 88, 92, 96, 8, 12]
        def rdA(t):
            for c in range(5): A(f"ds_read_b128 {v(slot[t]+4*c,4)}, v18 offset:{t*320+c*16}"); q.issue(t)
        def mm(t):
            q.wait({t})
            for c in range(5):
                A(f"v_mfma_f32_16x16x32_bf16 {v(40+4*t,4)}, {v(slot[t]+4*c,4)}, {v(100+4*c,4)}, {'0' if c==0 else v(40+4*t,4)}")
                if dual: A(f"v_mfma_f32_16x16x32_bf16 {v(acc2[t],4)}, {v(slot[t]+4*c,4)}, {v(120+4*c,4)}, {'0' if c==0 else v(acc2[t],4)}")
        for k in range(len(bufs)): rdA(order[k])
        for k, t in enumerate(order):
            mm(t)
            if k + len(bufs) < 6: rdA(order[k + len(bufs)])
            if k == 2:
                A("v_add_f32 v60, 0x358637bd, v60\nv_rcp_f32 v60, v60")
                if dual: A("v_add_f32 v12, 0x358637bd, v12\nv_rcp_f32 v12, v12")
        for (ac, den, O, so) in [([40 + 4 * t for t in range(5)], 60, 64, 44)] + ([(acc2[:5], 12, 74, 60)] if dual else []):
            for k in range(10):
                r = ac[k // 2] + 2 * (k % 2)
                A(f"v_pk_mul_f32 {v(r,2)}, {v(r,2)}, {v(den,2)} op_sel_hi:[1,0]\nv_cvt_pk_bf16_f32 v{O+k}, v{r}, v{r+1}")
            A(f"""buffer_store_dwordx4 {v(O,4)}, v2, s[20:23], s{so} offen sc1
            buffer_store_dwordx4 {v(O+4,4)}, v2, s[20:23], s{so+1} offen sc1
            buffer_store_dwordx2 {v(O+8,2)}, v2, s[20:23], s{so+2} offen sc1""")
    A("s_cmp_eq_u32 s65, 0\ns_cbranch_scc1 P2_a_s1")
    slices(True)
    A("s_branch P2_a_4")
    A.label("P2_a_s1")
    slices(False)
    A("s_branch P2_a_4")
    A.label("P2_a_3")
    lds_inc(A, W_KVS, 4, 5)
    leader_wait(A, "AK2", "s_cmp_eq_u32 s35, 0", f"s_lshl_b32 s37, s33, 7\ns_add_u32 s37, s37, {F_CK+F_RDY}\nv_mov_b32 v4, 0", "buffer_load_dword v5, v4, s[20:23], s37 offen sc1", 5, "1", W_CK, 4)
    A("s_sleep 24")
    A.label("P2_a_4")
    prof_stamp(A, 10)
    A(f"s_mov_b32 s68, {SPIN_MAX}\ns_sleep {OSLEEP}")
    qv = Q(A, "vmcnt", 63)
    def ld(i, model=True):
        A(f"s_add_u32 s42, s40, {i*4*4096}")
        for T in range(4):
            A(f"buffer_load_dwordx4 {v(84+16*(i%3)+4*T,4)}, v2, s[20:23], s42 offen offset:{T*1024} sc1")
            if model: qv.issue(i)
    ld(0); ld(1); ld(2)
    for i in range(5):
        qv.wait({i})
        b = 84 + 16 * (i % 3)
        A(f"s_branch P2_chk{i}")
        A.label(f"P2_rty{i}")
        A(f"s_sub_u32 s68, s68, 1\ns_cbranch_scc1 P2_ok{i}\ns_sleep 2")
        ld(i, False)
        A("s_waitcnt vmcnt(0)")
        A.label(f"P2_chk{i}")
        A(f"v_max3_u32 v132, v{b}, v{b+1}, v{b+2}")
        for k in range(3, 15, 2): A(f"v_max3_u32 v132, v132, v{b+k}, v{b+k+1}")
        A(f"v_max_u32 v132, v132, v{b+15}\nv_cmp_eq_u32 vcc, -1, v132\ns_cbranch_vccnz P2_rty{i}")
        A.label(f"P2_ok{i}")
        if i == 0: prof_stamp(A, 11)
        for ct in range(5):
            for T in range(4):
                ac = 4 + 4 * (T * 5 + ct)
                A(f"v_mfma_f32_16x16x32_bf16 {v(ac,4)}, {v(WOB+20*i+4*ct,4)}, {v(b+4*T,4)}, {'0' if i==0 else v(ac,4)}")
        if i + 3 < 5: ld(i + 3)
    lds_spin(A, "AS", W_SD, "4", 132, 133)
    prof_stamp(A, 12)
    A(f"s_mul_i32 s36, s35, 20480\ns_add_u32 s36, s36, {APART}\nv_add_u32 v1, s36, v2")
    for t in range(20): A(f"ds_write_b128 v1, {v(4+4*t,4)} offset:{t*1024}")
    A("s_waitcnt lgkmcnt(0)")
    lds_inc(A, W_AP, 132, 133)
    endpgm(A, 1)

def p2_stream(A, nl, tag):
    AP, BP, NA = 84, 148, 4
    order = list(range(14)) if nl == 0 else [7, 8, 9, 10] + list(range(7)) + [11, 12, 13]
    bslot = {}
    if nl == 0:
        for k, i in enumerate(order): bslot[i] = k % 5
    else:
        for k, i in enumerate([7, 8, 9, 10]): bslot[i] = k
        for i in range(7): bslot[i] = 4 - (i % 2)
        for k, i in enumerate([11, 12, 13]): bslot[i] = k
    q = Q(A, "vmcnt", 63); ql = Q(A, "lgkmcnt", 15)
    def ldB(i):
        b = BP + 20 * bslot[i]
        rot_off(A, 43, 41, i, 4 * 5120)
        for ct in range(4): A(f"buffer_load_dwordx4 {v(b+4*ct,4)}, v2, s[20:23], s43 offen offset:{ct*1024} {BSC}"); q.issue(("B", i))
        A(f"buffer_load_dwordx4 {v(b+16,4)}, v3, s[20:23], s43 offen {BSC}"); q.issue(("B", i))
    def rdB(i):
        b = BP + 20 * bslot[i]
        for ct in range(5): A(f"ds_read_b128 {v(b+4*ct,4)}, v{248+i//3} offset:{(i%3)*20480+ct*1024}"); ql.issue(i)
    def ldA(k):
        rot_off(A, 42, 40, order[k], 4 * 4096)
        for T in range(4): A(f"buffer_load_dwordx4 {v(AP+16*(k%NA)+4*T,4)}, v2, s[20:23], s42 offen offset:{T*1024} {BSC}"); q.issue(("A", k))
    npre = 5 if nl == 0 else 4
    for k in range(npre): ldB(order[k])
    prof_stamp(A, 8)
    leader_wait(A, tag + "H", "s_cmp_eq_u32 s35, 0", f"s_lshl_b32 s36, s32, 7\ns_add_u32 s36, s36, {F_CH+F_RDY}\nv_mov_b32 v4, 0", "buffer_load_dword v5, v4, s[20:23], s36 offen sc1", 5, "1", W_CH, 4)
    prof_stamp(A, 9)
    for k in range(NA): ldA(k)
    if nl:
        A(f"s_mul_i32 s36, s35, 5120\nv_add_u32 v248, s36, v2\nv_add_u32 v249, {3*20480}, v248\nv_add_u32 v250, {6*20480}, v248")
    for k, i in enumerate(order):
        if nl and k == 3:
            lds_spin(A, tag + "L", W_BL, "4", 251, 252)
            rdB(0)
        q.wait({("A", k), ("B", i)})
        if k == 0: prof_stamp(A, 10)
        if i < nl: ql.wait({i})
        if nl and 4 <= k < 10: rdB(order[k + 1])
        b = BP + 20 * bslot[i]
        for ct in range(5):
            for T in range(4):
                ac = 4 + 4 * (T * 5 + ct)
                A(f"v_mfma_f32_16x16x32_bf16 {v(ac,4)}, {v(b+4*ct,4)}, {v(AP+16*(k%NA)+4*T,4)}, {'0' if k==0 else v(ac,4)}")
        if k + NA < 14: ldA(k + NA)
        if nl == 0 and k + 5 < 14: ldB(order[k + 5])
        if nl and k < 3: ldB(11 + k)

def phase2(A):
    A.label("P2_stream")
    A("s_load_dwordx2 s[6:7], s[0:1], 64\ns_setprio 0")
    p2_setup(A, 0, "PS")
    A("s_waitcnt lgkmcnt(0)")
    srd(A, 24, 6, 2621440)
    prof_stamp(A, 7)
    A("s_cmp_eq_u32 s34, 1\ns_cbranch_scc1 P2_stream0")
    p2_stream(A, NL, "SA")
    A("s_branch P2_red")
    A.label("P2_stream0")
    p2_stream(A, 0, "SB")
    lds_spin(A, "SK", W_KVS, "4", 251, 252)
    A.label("P2_red")
    prof_stamp(A, 11)
    A(f"""
    v_and_b32 v84, 15, v0
    v_mul_u32_u24 v84, 1280, v84
    v_lshrrev_b32 v85, 4, v0
    v_lshl_add_u32 v84, v85, 3, v84       ; t*1280 + g*8
    s_lshl_b32 s44, s32, 2
    s_add_u32 s44, s44, s35
    s_mul_i32 s44, s44, {16*1280}
    s_mul_i32 s45, s33, 160
    s_add_u32 s44, s44, s45
    """)
    for ct in range(5): A(f"buffer_load_dwordx2 {v(86+2*ct,2)}, v84, s[16:19], s44 offen offset:{ct*32}")
    lds_inc(A, W_SD, 96, 97); lds_spin(A, "R1", W_SD, "4", 96, 97)
    for T in range(4):
        A(f"""s_sub_u32 s36, s35, {T+1}
        s_and_b32 s36, s36, 3
        s_cmp_eq_u32 s36, 3
        s_cbranch_scc1 R_own{T}
        s_add_u32 s36, s36, {3*T}
        s_mul_i32 s36, s36, 5120
        v_add_u32 v1, s36, v2""")
        for ct in range(5): A(f"ds_write_b128 v1, {v(4+4*(T*5+ct),4)} offset:{XCH+ct*1024}")
        A(f"s_branch R_nxt{T}")
        A.label(f"R_own{T}")
        for k in range(10): A(f"v_pk_mul_f32 {v(100+2*k,2)}, {v(4+20*T+2*k,2)}, 1.0 op_sel_hi:[1,0]")
        A.label(f"R_nxt{T}")
    A(f"""s_mul_i32 s36, s35, {3*5120}
    v_add_u32 v1, s36, v2
    s_mul_i32 s36, s35, 5120
    s_add_u32 s36, s36, {APART}
    v_add_u32 v3, s36, v2
    v_add_u32 v98, {2*20480}, v3
    s_mov_b32 s52, {NLOG2E}
    s_mov_b32 s53, {NLOG2E}
    s_mov_b32 s54, 1.0
    s_mov_b32 s55, 1.0
    s_waitcnt lgkmcnt(0)""")
    lds_inc(A, W_SX, 96, 97); lds_spin(A, "R2", W_SX, "4", 96, 97)
    for p in range(3):
        for ct in range(5): A(f"ds_read_b128 {v(4+20*p+4*ct,4)}, v1 offset:{XCH+p*5120+ct*1024}")
    A("s_waitcnt lgkmcnt(5)")
    for k in range(10): A(f"v_pk_add_f32 {v(4+2*k,2)}, {v(4+2*k,2)}, {v(24+2*k,2)}")
    A("s_waitcnt lgkmcnt(0)")
    for k in range(10): A(f"v_pk_add_f32 {v(100+2*k,2)}, {v(100+2*k,2)}, {v(44+2*k,2)}")
    for k in range(10): A(f"v_pk_add_f32 {v(100+2*k,2)}, {v(100+2*k,2)}, {v(4+2*k,2)}")
    for k in range(10): A(f"v_pk_mul_f32 {v(120+2*k,2)}, {v(100+2*k,2)}, s[52:53]")
    for i in range(20): A(f"v_exp_f32 v{120+i}, v{120+i}")
    for k in range(10): A(f"v_pk_add_f32 {v(120+2*k,2)}, {v(120+2*k,2)}, s[54:55]")
    for i in range(20): A(f"v_rcp_f32 v{120+i}, v{120+i}")
    for k in range(10): A(f"v_pk_mul_f32 {v(100+2*k,2)}, {v(100+2*k,2)}, {v(120+2*k,2)}")
    A("s_waitcnt vmcnt(0)")
    for k in range(10): A(f"v_lshlrev_b32 v{120+2*k}, 16, v{86+k}\nv_and_b32 v{121+2*k}, 0xffff0000, v{86+k}")
    prof_stamp(A, 12)
    A("s_setprio 3")
    lds_spin(A, "R3", W_AP, "4", 96, 97)
    prof_stamp(A, 13)
    for p in range(4):
        for ct in range(5): A(f"ds_read_b128 {v(4+20*p+4*ct,4)}, v{3 if p < 2 else 98} offset:{(p%2)*20480+ct*1024}")
        if p == 2:
            A("s_waitcnt lgkmcnt(5)")
            for k in range(10): A(f"v_pk_add_f32 {v(4+2*k,2)}, {v(4+2*k,2)}, {v(24+2*k,2)}")
    A("s_waitcnt lgkmcnt(0)")
    for k in range(10): A(f"v_pk_add_f32 {v(44+2*k,2)}, {v(44+2*k,2)}, {v(64+2*k,2)}")
    for ct in range(5):
        for k in (2 * ct, 2 * ct + 1):
            A(f"v_pk_add_f32 {v(4+2*k,2)}, {v(4+2*k,2)}, {v(44+2*k,2)}\nv_pk_fma_f32 {v(4+2*k,2)}, {v(4+2*k,2)}, {v(100+2*k,2)}, {v(120+2*k,2)}")
        A(f"v_cvt_pk_bf16_f32 v{86+2*ct}, v{4+4*ct}, v{5+4*ct}\nv_cvt_pk_bf16_f32 v{87+2*ct}, v{6+4*ct}, v{7+4*ct}")
        A(f"buffer_store_dwordx2 {v(86+2*ct,2)}, v84, s[24:27], s44 offen offset:{ct*32}")
    endpgm(A, 1)
    A.label("P2_aux")
    p2_aux(A)

HEADER = open(f"cdna_kernels/{NAME}.s.ref").read().split("; Override launch")[0]

def build_single(A, aslist):
    n = NAME + "_kernel"
    t = HEADER
    t += f"; @launch kernel={n} grid=(256,1,1) block=(512,1,1) lds={K1_LDS}\n" if aslist else f"; @launch grid=(256,1,1) block=(512,1,1) lds={K1_LDS}\n"
    t += '.amdgcn_target "amdgcn-amd-amdhsa--gfx950"\n.text\n' + kernel_head(n) + A.text() + "\n"
    t += '.section .rodata,"a"\n.p2align 6\n' + kernel_desc(n, 256, 100)
    return t

if __name__ == "__main__":
    if "--prof" in sys.argv: PROF = True; sys.argv.remove("--prof")
    aslist = "--list" in sys.argv or PROF
    if "--list" in sys.argv: sys.argv.remove("--list")
    for a_ in list(sys.argv):
        if a_.startswith("--thr="): THR = int(a_[6:]); sys.argv.remove(a_)
        if a_.startswith("--bsc="): BSC = a_[6:]; sys.argv.remove(a_)
        if a_.startswith("--x="): EXP |= set(a_[4:].split(",")); sys.argv.remove(a_)
    out = sys.argv[1] if len(sys.argv) > 1 else "v5.s"
    open(out, "w").write(build_single(gen_k1(), aslist))
    print("written", out)
```

```python
import re

def v(i, n=1): return f"v{i}" if n == 1 else f"v[{i}:{i+n-1}]"
def a(i, n=1): return f"a{i}" if n == 1 else f"a[{i}:{i+n-1}]"
def s(i, n=1): return f"s{i}" if n == 1 else f"s[{i}:{i+n-1}]"

_REG = re.compile(r"\b([vas])(?:(\d+)|\[(\d+):(\d+)\])")
TRANS = ("v_exp_f32", "v_log_f32", "v_rcp_f32", "v_rsq_f32", "v_sqrt_f32", "v_sin_f32", "v_cos_f32", "v_rcp_iflag_f32")

def regs_of(tok):
    out = []
    for m in _REG.finditer(tok):
        k = m.group(1)
        if m.group(2) is not None: out.append((k, int(m.group(2))))
        else: out += [(k, i) for i in range(int(m.group(3)), int(m.group(4)) + 1)]
    if re.search(r"\bvcc\b", tok): out += [("s", 106), ("s", 107)]
    if re.search(r"\bexec\b", tok): out += [("s", 126), ("s", 127)]
    if re.search(r"\bm0\b", tok): out += [("s", 124)]
    return out

def split_ops(rest):
    ops, depth, cur = [], 0, ""
    for ch in rest:
        if ch == "[": depth += 1
        if ch == "]": depth -= 1
        if ch == "," and depth == 0: ops.append(cur.strip()); cur = ""
        else: cur += ch
    if cur.strip(): ops.append(cur.strip())
    return ops

class Ins:
    __slots__ = ("text", "op", "kind", "w", "r", "passes", "srcc", "ab", "states", "dpp", "lds")
    def __init__(self, text):
        self.text = text
        t = text.split(";")[0].strip()
        parts = t.split(None, 1)
        op = parts[0]; rest = parts[1] if len(parts) > 1 else ""
        for suf in ("_e32", "_e64", "_dpp", "_sdwa"):
            if op.endswith(suf): op = op[: -len(suf)]
        self.op = op
        ops = split_ops(rest)
        self.w, self.r, self.passes, self.srcc, self.ab = [], [], 0, [], []
        self.states = 1
        self.dpp = ("row_" in rest) or ("quad_perm" in rest) or ("wave_" in rest)
        self.lds = bool(re.search(r"\blds\b", rest))
        if op == "s_nop":
            self.kind = "nop"; self.states = int(ops[0], 0) + 1
        elif op.startswith("v_mfma"):
            self.kind = "mfma"
            self.passes = 8 if "32x32x16" in op else 4 if ("16x16x32" in op or "16x16x16" in op) else 16
            self.w = regs_of(ops[0]); self.ab = regs_of(ops[1]) + regs_of(ops[2])
            self.srcc = regs_of(ops[3].split()[0]); self.r = self.ab + self.srcc
        elif op.startswith("v_cmp"):
            self.kind = "valu"; self.w = regs_of(ops[0]); self.r = sum((regs_of(o) for o in ops[1:]), [])
        elif op in ("v_readfirstlane_b32", "v_readlane_b32"):
            self.kind = "valu"; self.w = regs_of(ops[0]); self.r = sum((regs_of(o) for o in ops[1:]), [])
        elif op.startswith("v_permlane") and "swap" in op:
            self.kind = "valu"; self.w = regs_of(ops[0]) + regs_of(ops[1]); self.r = list(self.w)
        elif op.startswith("v_"):
            self.kind = "valu"; self.w = regs_of(ops[0]); k = 1
            if op in ("v_add_co_u32", "v_sub_co_u32", "v_addc_co_u32", "v_subb_co_u32", "v_div_scale_f32", "v_mad_u64_u32"):
                self.w += regs_of(ops[1]); k = 2
            self.r = sum((regs_of(o) for o in ops[k:]), [])
            if op.startswith(("v_fmac", "v_pk_fmac", "v_dot2c", "v_writelane")) or self.dpp: self.r += regs_of(ops[0])
            if op in ("v_cndmask_b32",) and len(ops) == 3: self.r += [("s", 106), ("s", 107)]
        elif op.startswith(("buffer_", "global_", "flat_")):
            self.kind = "vmem"
            allr = [regs_of(o) for o in ops]
            if "load" in op and not self.lds:
                self.w = allr[0]; self.r = sum(allr[1:], [])
            elif "atomic" in op:
                self.r = sum(allr, [])
                if re.search(r"\bsc0\b", rest): self.w = allr[0]
            else:
                self.r = sum(allr, [])
            if self.lds: self.r += [("s", 124)]
        elif op.startswith("ds_"):
            self.kind = "ds"
            allr = [regs_of(o) for o in ops]
            if op.startswith(("ds_read", "ds_bpermute", "ds_permute", "ds_swizzle")) or "rtn" in op:
                self.w = allr[0]; self.r = sum(allr[1:], [])
            else:
                self.r = sum(allr, [])
        elif op.startswith("s_"):
            self.kind = "salu"
            allr = [regs_of(o) for o in ops]
            if op.startswith(("s_cmp", "s_cbranch", "s_branch", "s_waitcnt", "s_barrier", "s_endpgm", "s_setprio", "s_sleep", "s_sethalt")):
                self.r = sum(allr, [])
            else:
                self.w = allr[0] if allr else []; self.r = sum(allr[1:], [])
                if "saveexec" in op: self.w = self.w + [("s", 126), ("s", 127)]
        else:
            raise ValueError("unknown instruction: " + text)

def wide_store_data(i):
    if i.kind == "vmem" and ("store_dwordx4" in i.op or "store_dwordx3" in i.op):
        ops = split_ops(i.text.split(";")[0].strip().split(None, 1)[1])
        return regs_of(ops[0]) if i.op.startswith("buffer") else regs_of(ops[1])
    return []

def need(p, c):
    n = 0
    pw = set(p.w)
    if p.kind == "valu":
        vw = {x for x in pw if x[0] in "va"}; sw = {x for x in pw if x[0] == "s"}
        if c.kind == "mfma" and vw & set(c.r): n = max(n, 2)
        if c.kind == "mfma" and ("s", 126) in sw: n = max(n, 4)
        if c.kind == "valu":
            if p.op in TRANS and vw & set(c.r) : n = max(n, 1)
            if c.op in ("v_readfirstlane_b32", "v_readlane_b32") and vw & set(c.r): n = max(n, 1)
            if (c.dpp or c.op.startswith("v_permlane")) and vw & set(c.r): n = max(n, 2)
            if sw & set(c.r): n = max(n, 4 if c.op in ("v_readlane_b32", "v_writelane_b32", "v_div_fmas_f32") else 2)
            if ("s", 126) in sw and (c.dpp): n = max(n, 5)
            if ("s", 126) in sw and (c.op.startswith(("v_readlane", "v_readfirstlane", "v_writelane", "v_permlane"))): n = max(n, 4)
            if "op_sel" in p.text or "sdwa" in p.text or "dst_sel" in p.text:
                if vw & (set(c.r) | set(c.w)): n = max(n, 1)
        if c.kind == "vmem" and sw & set(c.r): n = max(n, 5)
        if c.kind == "salu" and sw & set(c.r): n = max(n, 1)
    if p.kind == "mfma":
        P = {2: 0, 4: 1, 8: 2, 16: 3}[p.passes]
        if c.kind == "mfma":
            if pw & set(c.ab): n = max(n, [5, 8, 12, 20][P])
            if pw & set(c.srcc):
                if c.srcc == p.w and c.passes == p.passes: n = max(n, [2, 0, 0, 0][P])
                else: n = max(n, [4, 6, 10, 18][P])
            elif pw & set(c.w): n = max(n, [4, 6, 10, 18][P])
        elif c.kind in ("valu", "vmem", "ds"):
            if pw & (set(c.r) | set(c.w)): n = max(n, [5, 8, 12, 20][P])
        if c.kind in ("valu", "vmem", "ds") and set(p.srcc) & set(c.w): n = max(n, [1, 3, 7, 15][P])
    if p.kind == "salu" and ("s", 124) in pw and (c.kind == "vmem" and c.lds or "addtid" in c.op): n = max(n, 1)
    wsd = wide_store_data(p)
    if wsd and set(wsd) & set(c.w): n = max(n, 2)
    return n

class Asm:
    def __init__(self):
        self.lines = []
    def __call__(self, text):
        for l in text.strip("\n").split("\n"):
            l = l.strip()
            if l: self.lines.append(l)
    def label(self, l): self.lines.append(l + ":")
    def comment(self, c): self.lines.append("; " + c)
    def text(self, pad=True):
        return pad_hazards(self.lines) if pad else "\n".join(self.lines)

def is_ins(l):
    t = l.split(";")[0].strip()
    return bool(t) and not t.endswith(":") and not t.startswith(".")

def pad_hazards(lines, verbose=False):
    items = [Ins(l) if is_ins(l) else l for l in lines]
    W = 22
    def lab(it):
        t = it.split(";")[0].strip()
        return t[:-1] if t.endswith(":") else None
    preds = {}
    for it in items:
        if isinstance(it, Ins) and it.op.startswith(("s_cbranch", "s_branch")):
            preds.setdefault(it.text.split(";")[0].split()[-1], []).append(it)
    pos = {}
    def reindex():
        pos.clear()
        for i, it in enumerate(items):
            if isinstance(it, Ins) and it.op.startswith(("s_cbranch", "s_branch")): pos[id(it)] = i
    def back(i, dist, c, seen, entered=False):
        worst = 0
        while i >= 0 and dist < W:
            it = items[i]
            if isinstance(it, str):
                l = lab(it)
                if l in preds:
                    for br in preds[l]:
                        k = (id(br), dist)
                        if k not in seen:
                            seen.add(k); worst = max(worst, back(pos[id(br)], dist, c, seen, True))
                i -= 1; continue
            if it.op == "s_endpgm": break
            if it.op == "s_branch" and not entered: break
            entered = False
            n = need(it, c)
            if n - dist > worst: worst = n - dist
            dist += it.states
            i -= 1
        return worst
    npad = 0
    changed = True
    while changed:
        changed = False
        reindex()
        i = 0
        while i < len(items):
            c = items[i]
            if isinstance(c, Ins) and c.kind != "nop":
                d = back(i - 1, 0, c, set())
                if d > 0:
                    ins = []
                    while d > 0:
                        t = min(d, 16); ins.append(Ins(f"s_nop {t-1}")); d -= t
                    items[i:i] = ins
                    i += len(ins); npad += 1; changed = True
                    reindex()
            i += 1
    if verbose: print("hazard pads inserted:", npad)
    return "\n".join(("    " + it.text) if isinstance(it, Ins) else it for it in items)

def kernel_desc(name, vgpr, sgpr=100, accum=None, wg_y=False):
    accum = accum if accum is not None else ((vgpr + 3) // 4) * 4
    t = f""".amdhsa_kernel {name}
  .amdhsa_next_free_vgpr {vgpr}
  .amdhsa_next_free_sgpr {sgpr}
  .amdhsa_accum_offset {accum}
  .amdhsa_group_segment_fixed_size 0
  .amdhsa_kernarg_size 88
  .amdhsa_user_sgpr_count 2
  .amdhsa_user_sgpr_kernarg_segment_ptr 1
  .amdhsa_system_sgpr_workgroup_id_x 1
"""
    if wg_y: t += "  .amdhsa_system_sgpr_workgroup_id_y 1\n"
    t += ".end_amdhsa_kernel\n"
    return t

def kernel_head(name):
    return f""".globl {name}
.p2align 8
.type {name},@function
{name}:
"""

import subprocess, tempfile, os
def ins_sizes(body):
    with tempfile.TemporaryDirectory() as d:
        p = os.path.join(d, "a.s")
        open(p, "w").write('.amdgcn_target "amdgcn-amd-amdhsa--gfx950"\n.text\n.p2align 8\nKK:\n' + body + "\n")
        r = subprocess.run(["clang", "-x", "assembler", "-target", "amdgcn-amd-amdhsa", "-mcpu=gfx950", "-c", p, "-o", p + ".o"], capture_output=True, text=True)
        assert r.returncode == 0, r.stderr[:2000]
        out = subprocess.run(["llvm-objdump", "-d", "--mcpu=gfx950", p + ".o"], capture_output=True, text=True).stdout
    sizes = []
    for l in out.splitlines():
        m = re.search(r"//\s*[0-9A-Fa-f]+:\s*((?:[0-9A-Fa-f]{8}\s*)+)", l)
        if m: sizes.append(4 * len(m.group(1).split()))
    return sizes

_PROMO = ("v_exp_f32", "v_rcp_f32", "v_sqrt_f32", "v_add_f32", "v_sub_f32", "v_mul_f32", "v_max_f32", "v_min_f32", "v_mov_b32",
          "v_lshlrev_b32", "v_lshrrev_b32", "v_and_b32", "v_or_b32", "v_xor_b32", "v_add_u32", "v_sub_u32", "v_max_u32", "v_min_u32", "v_mul_u32_u24")
def align_pass(body, run=5):
    lines = body.split("\n")
    idx = [i for i, l in enumerate(lines) if is_ins(l)]
    sz = ins_sizes(body)
    assert len(sz) == len(idx), (len(sz), len(idx))
    ops = [lines[i].split()[0] for i in idx]
    off = 0; out_prefix = {}; last4 = None; npromo = nnop = 0
    def valu8(k): return k < len(idx) and sz[k] == 8 and ops[k].startswith("v_") and not ops[k].startswith("v_mfma")
    for k in range(len(idx)):
        if sz[k] == 8 and off % 8 == 4 and valu8(k):
            if last4 is not None:
                j = idx[last4]; lines[j] = lines[j].replace(ops[last4], ops[last4] + "_e64", 1); sz[last4] = 8; off += 4; npromo += 1
            elif all(valu8(k + t) for t in range(run)):
                lines[idx[k]] = "    s_nop 0\n" + lines[idx[k]]; off += 4; nnop += 1
            last4 = None
        if sz[k] == 4 and ops[k] in _PROMO and "dpp" not in lines[idx[k]]: last4 = k
        elif sz[k] == 8: last4 = None
        off += sz[k]
    return "\n".join(lines), npromo, nnop
```

```python
import sys
from asmlib import *

NAME = "recurrent_scan__linear_kernel_hedgehog__swiglu_ffn__prompt"
USE_XN = False
WS_AF  = 0x300000
WS_WF  = 0xD00000
WS_PQ  = 0x1000000
WS_KVT = 0x1300000
WS_FLG = WS_KVT + 122880
F_CH = WS_FLG; F_CP = WS_FLG + 32 * 128; F_CK = WS_FLG + 64 * 128
F_RDY = 72 * 128
WS_KVP = 0x1400000
WS_WPF = 0x1340000
WS_ST  = 0x1380000
WS_CSP = 0x1390000
WS_SIZE = 0x10000000
LOG2E = 0x3fb8aa3b
NLOG2E = 0xbfb8aa3b
OOB = 0x7ff00000
SPIN_MAX = 100000
THR = 6
PUBU = 6
RLU = 8
CX1_AFTER = [5, 3]
CXSLEEP = 6
ROTR, ROTC = 0, 0
KROT = False
NAD = 4
NSLOW = 7
AUXS = 'B'
WSLEEP = 0
OSLEEP = 8
BSC = 'sc1'
PROF = False
EXP = {"nodry", "stage", "cx1"}
HST = 'sc1'
WS_PROF = 0x2000000

def prof_start(A):
    if PROF:
        A("s_memrealtime s[98:99]")
        for i in range(14): A(f"s_mov_b32 s{81+i}, 0")
        A("s_waitcnt lgkmcnt(0)\ns_mov_b32 s80, s98")
SLOTS = [0, 1, 2, 3, 4, 5, 6, 7, 8, 10, 12, 14, 17, 19]
def prof_stamp(A, i, cyc=False, force=False):
    if "slots" in EXP and not force: return
    if PROF: A(f"s_memrealtime s[98:99]\ns_waitcnt lgkmcnt(0)\ns_mov_b32 s{81+i}, s98")
    if PROF and cyc and "cyc" in EXP: A("s_memtime s[98:99]\ns_waitcnt lgkmcnt(0)\ns_sub_u32 s81, s98, s76\ns_add_u32 s81, s81, s80")
def tick(A, slot):
    if PROF and "sacc" in EXP:
        A(f"s_memtime s[98:99]\ns_waitcnt lgkmcnt(0)")
        if slot is not None: A(f"s_sub_u32 s97, s98, s96\ns_add_u32 s{81+slot}, s{81+slot}, s97")
        else: A("s_mov_b32 s81, 0\ns_mov_b32 s82, 0\ns_mov_b32 s83, 0\ns_mov_b32 s84, 0")
        A("s_mov_b32 s96, s98")
def endpgm(A, kid):
    if PROF:
        A(f"""s_waitcnt vmcnt(0)
        s_memrealtime s[98:99]
        s_mov_b64 exec, -1
        s_lshl_b32 s96, s2, 3
        s_add_u32 s96, s96, s3
        s_lshl_b32 s96, s96, 6
        s_add_u32 s96, s96, {WS_PROF + kid*272*8*64}
        s_waitcnt lgkmcnt(0)
        s_mov_b32 s95, s98""")
        for i in range(16): A(f"v_mov_b32 v{i}, s{80+i}")
        A("v_mov_b32 v16, 0")
        for i in range(4): A(f"buffer_store_dwordx4 {v(4*i,4)}, v16, s[20:23], s96 offen offset:{16*i}")
    A("s_endpgm")

def srd(A, d, b, nbytes, off=0):
    if off: A(f"s_add_u32 s{d}, s{b}, {off}\ns_addc_u32 s{d+1}, s{b+1}, 0")
    else: A(f"s_mov_b32 s{d}, s{b}\ns_mov_b32 s{d+1}, s{b+1}")
    A(f"s_mov_b32 s{d+2}, {nbytes}\ns_mov_b32 s{d+3}, 0x20000")

def bf16_round(A, d):
    A(f"v_cvt_pk_bf16_f32 v{d}, v{d}, v{d}\nv_lshlrev_b32 v{d}, 16, v{d}")

def row16_sum(A, r):
    for k in (8, 4, 2, 1):
        A(f"v_add_f32_dpp v{r}, v{r}, v{r} row_ror:{k} row_mask:0xf bank_mask:0xf")

class Q:
    def __init__(self, A, name, mx): self.A, self.name, self.mx, self.q, self.n = A, name, mx, [], 0
    def issue(self, tag):
        self.n += 1
        self.q.append(tag); assert len(self.q) <= self.mx + (0 if self.name == "vmcnt" else 99), (self.name, len(self.q))
    def wait(self, tags):
        idx = [i for i, t in enumerate(self.q) if t in tags]
        if not idx: return
        n = len(self.q) - 1 - max(idx)
        assert n <= self.mx
        self.A(f"s_waitcnt {self.name}({n})")
        self.q = self.q[max(idx) + 1:]

def code_warm(A, tag, endlabel, piece, vt, vd, start='K1_start'):
    A(f"s_getpc_b64 s[70:71]")
    A.label(tag)
    A(f"""s_add_u32 s70, s70, {start}-{tag}
    s_addc_u32 s71, s71, {0 if start != 'K1_start' else -1}
    s_lshl_b32 s72, {piece}, 13
    v_lshlrev_b32 v{vt}, 7, v0
    v_add_u32 v{vt}, s72, v{vt}
    v_min_u32 v{vt}, {endlabel}-{start}, v{vt}
    global_load_dword v{vd}, v{vt}, s[70:71]""")

def stats_issue(A, q, R, cs=range(5), rb=1):
    if 0 in cs:
        A(f"""v_bfe_u32 v{R+20}, v0, 4, {rb}
        v_mul_u32_u24 v{R+20}, 1280, v{R+20}
        v_and_b32 v{R+21}, 15, v0
        v_lshl_add_u32 v{R+20}, v{R+21}, 4, v{R+20}
        s_mul_i32 s69, s66, 1280""")
    for c in cs:
        A(f"buffer_load_dwordx4 {v(R+4*c,4)}, v{R+20}, s[16:19], s69 offen offset:{256*c}"); q.issue("ST")
def stats_part1(A, R, X):
    m = R + 20
    A(f"v_mov_b32 v{X}, 0x3f803f80")
    A(f"v_dot2_f32_bf16 v{m}, v{R}, v{X}, 0\nv_dot2_f32_bf16 v{m+1}, v{R}, v{R}, 0\nv_dot2_f32_bf16 v{X+1}, v{R+1}, v{X}, 0\nv_dot2_f32_bf16 v{X+2}, v{R+1}, v{R+1}, 0")
    for i in range(2, 20, 2):
        A(f"v_dot2_f32_bf16 v{m}, v{R+i}, v{X}, v{m}\nv_dot2_f32_bf16 v{m+1}, v{R+i}, v{R+i}, v{m+1}")
        A(f"v_dot2_f32_bf16 v{X+1}, v{R+i+1}, v{X}, v{X+1}\nv_dot2_f32_bf16 v{X+2}, v{R+i+1}, v{R+i+1}, v{X+2}")
def stats_part2(A, R, X, sidx, rb=1):
    m = R + 20; s_ = R + 21
    A(f"s_nop 2\nv_add_f32 v{m}, v{m}, v{X+1}\nv_add_f32 v{s_}, v{s_}, v{X+2}")
    for k in (8, 4, 2, 1):
        A(f"v_add_f32_dpp v{m}, v{m}, v{m} row_ror:{k} row_mask:0xf bank_mask:0xf")
        A(f"v_add_f32_dpp v{s_}, v{s_}, v{s_} row_ror:{k} row_mask:0xf bank_mask:0xf")
    A(f"""v_mul_f32 v{m}, 0x3acccccd, v{m}
    v_mul_f32 v{s_}, 0x3acccccd, v{s_}
    v_fma_f32 v{s_}, -v{m}, v{m}, v{s_}
    v_max_f32 v{s_}, 0, v{s_}""")
    bf16_round(A, m); bf16_round(A, s_)
    A(f"v_add_f32 v{s_}, 0x3727c5ac, v{s_}")
    bf16_round(A, s_)
    A(f"v_sqrt_f32 v{s_}, v{s_}")
    bf16_round(A, s_)
    A(f"""v_rcp_f32 v{s_}, v{s_}
    v_bfe_u32 v{R}, v0, 4, {rb}
    v_lshlrev_b32 v{R}, 3, v{R}
    s_lshl_b32 s67, s{sidx}, {3+rb}
    s_add_u32 s67, s67, {L_ST}
    v_add_u32 v{R}, s67, v{R}
    ds_write_b64 v{R}, {v(m,2)}""")

def signal(A, vt, which):
    A(f"s_and_b32 s67, s2, 1\ns_lshl_b32 s67, s67, 6\ns_add_u32 s67, s67, {4*which}\nv_mov_b32 v{vt}, s67")
    A(f"""v_mov_b32 v{vt+1}, 1
    s_mov_b64 exec, 1
    global_atomic_add v{vt}, v{vt+1}, s[14:15]
    s_mov_b64 exec, -1""")

def p2_map(A, rb, cb):
    A(f"""s_and_b32 s{rb}, s2, 7
    s_lshl_b32 s{rb}, s{rb}, 2
    s_lshr_b32 s{cb}, s2, 3
    s_and_b32 s67, s{cb}, 3
    s_add_u32 s{rb}, s{rb}, s67
    s_lshr_b32 s{cb}, s{cb}, 2
    s_lshl_b32 s67, s67, 1
    s_add_u32 s{cb}, s{cb}, s67
    s_and_b32 s{cb}, s{cb}, 7""")
def o_offsets(A, rb, cb, e, o0, o1, o2):
    A(f"""s_lshr_b32 s{o2}, s{cb}, 1
    s_mul_i32 s{o2}, s{o2}, 5
    s_mul_i32 s{o1}, s{rb}, 74
    s_add_u32 s{o2}, s{o2}, s{o1}
    s_add_u32 s{o2}, s{o2}, 54
    s_lshl_b32 s{o2}, s{o2}, 4
    s_add_u32 s{o2}, s{o2}, s{e}
    s_lshl_b32 s{o2}, s{o2}, 8
    s_add_u32 s{o2}, s{o2}, {WS_AF}
    s_and_b32 s67, s{cb}, 1
    s_mul_i32 s{o0}, s67, {3*4096}
    s_add_u32 s{o0}, s{o0}, s{o2}
    s_add_u32 s{o1}, s{o0}, 4096
    s_lshl_b32 s67, s67, 3
    s_add_u32 s{o2}, s{o2}, s67
    s_add_u32 s{o2}, s{o2}, {2*4096}""")
def o_lane(A, d, t):
    A(f"v_lshrrev_b32 v{d}, 4, v0\nv_lshlrev_b32 v{d}, 10, v{d}\nv_and_b32 v{t}, 15, v0\nv_lshl_add_u32 v{d}, v{t}, 4, v{d}")
def sentinel_fill(A, q, e, vt):
    p2_map(A, 74, 75); o_offsets(A, 74, 75, e, 76, 77, 78)
    for i in range(4): A(f"v_mov_b32 v{vt+i}, -1")
    o_lane(A, vt + 5, vt + 4)
    A(f"""v_lshlrev_b32 v{vt+4}, 4, v0
    buffer_store_dwordx4 {v(vt,4)}, v{vt+5}, s[20:23], s76 offen sc1
    buffer_store_dwordx4 {v(vt,4)}, v{vt+5}, s[20:23], s77 offen sc1
    buffer_store_dwordx2 {v(vt,2)}, v{vt+5}, s[20:23], s78 offen sc1""")
    for i in range(3): q.issue("PUB")
def lds_spin(A, tag, off, expect, va, vr):
    A(f"v_mov_b32 v{va}, {L_CNT}\ns_mov_b32 s68, {SPIN_MAX*10}")
    A.label(f"{tag}_spin")
    A(f"ds_read_b32 v{vr}, v{va} offset:{off}\ns_waitcnt lgkmcnt(0)\nv_cmp_ne_u32 vcc, {expect}, v{vr}\ns_cbranch_vccz {tag}_out\ns_sub_u32 s68, s68, 1\ns_sleep 1\ns_cbranch_scc0 {tag}_spin")
    A.label(f"{tag}_out")
def lds_inc(A, off, va, vr):
    A(f"v_mov_b32 v{va}, {L_CNT}\nv_mov_b32 v{vr}, 1\ns_mov_b64 exec, 1\nds_add_u32 v{va}, v{vr} offset:{off}\ns_mov_b64 exec, -1")
def leader_wait(A, tag, lead_test, setup, load, vr, expect, off, va):
    A(f"{lead_test}\ns_cbranch_scc0 {tag}_fol")
    A(setup)
    spin(A, tag, load, vr, expect)
    lds_inc(A, off, va, vr)
    A(f"s_branch {tag}_done")
    A.label(f"{tag}_fol")
    lds_spin(A, tag + "F", off, "1", va, vr)
    A.label(f"{tag}_done")
def flag_add(A, soff, slast, vt, tag):
    A(f"""v_mov_b32 v{vt}, 1
    v_mov_b32 v{vt+1}, 0
    s_mov_b64 exec, 1
    buffer_atomic_add v{vt}, v{vt+1}, s[20:23], s{soff} offen sc0
    s_waitcnt vmcnt(0)
    v_readfirstlane_b32 s36, v{vt}
    v_mov_b32 v{vt}, 1
    s_cmp_lg_u32 s36, s{slast}
    s_cbranch_scc1 {tag}
    s_add_u32 s36, s{soff}, {F_RDY}
    buffer_store_dword v{vt}, v{vt+1}, s[20:23], s36 offen sc1""")
    A.label(tag)
    A("s_mov_b64 exec, -1")
def spin(A, tag, load, vr, expect, first=True, sleep=2):
    A(f"s_mov_b32 s68, {SPIN_MAX}")
    if not first: A(f"s_branch {tag}_chk")
    A.label(f"{tag}_spin")
    A(f"{load}\ns_waitcnt vmcnt(0)")
    A.label(f"{tag}_chk")
    cmp = f"v_cmp_eq_u32 vcc, -1, v{vr}" if expect == "data" else f"v_cmp_ne_u32 vcc, {expect}, v{vr}"
    A(f"{cmp}\ns_cbranch_vccz {tag}_out\ns_sub_u32 s68, s68, 1\ns_cbranch_scc1 {tag}_out\ns_sleep {sleep}\ns_branch {tag}_spin")
    A.label(f"{tag}_out")

def relayout_issue(A, q, lab, D):
    A(f"""
    s_cmp_lt_u32 s30, 740
    s_cselect_b32 s76, {WS_WF}, {OOB}
    s_cselect_b32 s77, 0, {OOB}
    s_mul_i32 s74, s30, 6554
    s_lshr_b32 s74, s74, 16         ; s = U/10
    s_mul_i32 s75, s74, 10
    s_sub_u32 s75, s30, s75         ; cq
    s_cmp_lt_u32 s74, 54
    s_cselect_b32 s4, s72, s70
    s_cselect_b32 s5, s73, s71
    s_mov_b32 s6, {640*1280}
    s_cselect_b32 s6, {1728*1280}, s6
    s_mov_b32 s7, 0x20000
    s_cselect_b32 s31, 4, 20        ; row step per lane group
    s_lshl_b32 s36, s74, 5          ; base (w_down)
    s_mov_b32 s38, 16               ; half step
    s_cmp_lt_u32 s74, 54
    s_cbranch_scc1 {lab}
    s_sub_u32 s33, s74, 54          ; s'
    s_mul_i32 s36, s33, 205
    s_lshr_b32 s36, s36, 10         ; P
    s_mul_i32 s48, s36, 5
    s_sub_u32 s33, s33, s48         ; ty
    s_mul_i32 s36, s36, 160
    s_lshl_b32 s48, s33, 3
    s_cmp_ge_u32 s33, 3
    s_cselect_b32 s47, 56, 0
    s_add_u32 s48, s48, s47
    s_add_u32 s36, s36, s48
    s_cmp_eq_u32 s33, 2
    s_cselect_b32 s38, 80, 4
    """.replace(f"s_cselect_b32 s76, {WS_WF}, {OOB}", f"s_mov_b32 s76, {OOB}\n    s_cselect_b32 s76, {WS_WF}, s76"))
    A.label(lab)
    A(f"""
    v_lshrrev_b32 v8, 5, v0
    v_mul_lo_u32 v8, v8, s38
    v_bfe_u32 v9, v0, 3, 2
    v_add_u32 v8, v8, v9
    v_mul_u32_u24 v8, 1280, v8
    v_and_b32 v9, 7, v0
    v_lshl_add_u32 v8, v9, 4, v8
    s_mul_i32 s36, s36, 1280
    s_lshl_b32 s47, s75, 7          ; cq*128
    s_add_u32 s47, s47, s36
    s_add_u32 s47, s47, s77
    s_mul_i32 s31, s31, 1280
    """)
    for g in range(4):
        A(f"buffer_load_dwordx4 {v(D+4*g,4)}, v8, s[4:7], s47 offen"); q.issue("RL")
        if g < 3: A("s_add_u32 s47, s47, s31")
def relayout_finish(A, q, D, O, part):
    if part == 0: relayout_fin0(A, q, D)
    else: relayout_fin1(A, q, O)
def relayout_fin0(A, q, D):
    A(f"""
    s_add_u32 s47, s43, {((RLU // 2 + 2) % 3) * XSLOT + 4096}
    v_lshlrev_b32 v10, 4, v0
    v_add_u32 v8, s47, v10
    v_lshrrev_b32 v9, 4, v0
    v_lshlrev_b32 v9, 10, v9
    v_bfe_u32 v11, v0, 2, 2
    v_lshl_add_u32 v9, v11, 7, v9
    v_and_b32 v11, 3, v0
    v_lshl_add_u32 v9, v11, 3, v9
    v_add_u32 v9, s47, v9""")
    q.wait({"RL"})
    for g in range(4): A(f"ds_write_b128 v8, {v(D+4*g,4)} offset:{g*1024}")
def relayout_fin1(A, q, O):
    A("s_waitcnt lgkmcnt(0)")
    for tq in range(4):
        A(f"ds_read_b64_tr_b16 {v(O+4*tq,2)}, v9 offset:{tq*32}\nds_read_b64_tr_b16 {v(O+2+4*tq,2)}, v9 offset:{tq*32+512}")
    for tq in range(4):
        A(f"""s_lshl_b32 s47, s75, 2
        s_add_u32 s47, s47, {tq}          ; gt
        s_mul_i32 s48, s47, 205
        s_lshr_b32 s48, s48, 10          ; cb
        s_mul_i32 s49, s48, 5
        s_sub_u32 s47, s47, s49          ; ct
        s_mul_i32 s48, s48, 74
        s_add_u32 s48, s48, s74
        s_mul_i32 s48, s48, 5
        s_add_u32 s48, s48, s47
        s_lshl_b32 s48, s48, 10
        s_add_u32 s48, s48, s76
        s_waitcnt lgkmcnt({6-2*tq})
        buffer_store_dwordx4 {v(O+4*tq,4)}, v10, s[20:23], s48 offen sc1""")
        q.issue("RS")

def wpf_issue(A, D=16):
    A(f"""
    s_mul_i32 s31, s30, 4370
    s_lshr_b32 s31, s31, 16          ; hg = F/15
    s_mul_i32 s32, s31, 15
    s_sub_u32 s32, s30, s32
    s_mul_i32 s33, s32, 86
    s_lshr_b32 s33, s33, 8           ; tau
    s_mul_i32 s34, s33, 3
    s_sub_u32 s35, s32, s34          ; c
    s_lshl_b32 s33, s33, 2
    s_mul_i32 s39, s31, 1600
    s_add_u32 s39, s39, s33
    v_bfe_u32 v4, v0, 2, 2           ; head_out
    v_and_b32 v5, 3, v0
    v_mul_u32_u24 v6, 400, v4
    v_add_u32 v6, v6, v5
    v_add_u32 v6, s39, v6
    v_lshrrev_b32 v7, 4, v0
    v_lshlrev_b32 v7, 2, v7          ; 4*g
    s_lshl_b32 s35, s35, 5
    v_add_u32 v7, s35, v7            ; 32c + 4g
    v_mov_b32 v11, 0x7ffffff0
    """)
    for j in range(8):
        A(f"""v_add_u32 v8, {16*(j>>2)+(j&3)}, v7
        v_mul_u32_u24 v9, 205, v8
        v_lshrrev_b32 v9, 12, v9          ; head_in
        v_mul_u32_u24 v10, 20, v9
        v_sub_u32 v10, v8, v10            ; d
        v_mul_u32_u24 v10, 20, v10
        v_add_u32 v10, v10, v6
        v_lshlrev_b32 v10, 1, v10
        v_cmp_eq_u32 vcc, v9, v4
        v_cndmask_b32 v10, v11, v10, vcc
        buffer_load_ushort v{D+j}, v10, s[24:27], 0 offen""")

def k1_spare(A):
    q = Q(A, "vmcnt", 63)
    A(f"""
    s_load_dwordx2 s[60:61], s[0:1], 16
    s_load_dwordx2 s[62:63], s[0:1], 24
    s_load_dwordx2 s[64:65], s[0:1], 56
    s_lshl_b32 s58, s32, 1
    s_add_u32 s58, s58, s30
    s_sub_u32 s58, s58, 2
    s_lshl_b32 s66, s32, 8
    s_lshl_b32 s67, s28, 3
    s_add_u32 s66, s66, s67
    s_and_b32 s59, s3, 3
    s_lshl_b32 s67, s59, 1
    s_add_u32 s66, s66, s67
    """)
    if "nowarm" not in EXP:
        code_warm(A, "K1_warm", "K1_end", "s3", 100, 101)
        A(f"v_add_u32 v100, 65536, v100\nv_min_u32 v100, K1_end-K1_start, v100\nglobal_load_dword v101, v100, s[70:71]")
    stats_issue(A, q, 40)
    A("s_waitcnt lgkmcnt(0)")
    srd(A, 24, 60, 25600)
    A(f"""
    s_lshl_b32 s60, s58, 3
    s_add_u32 s60, s60, s3              ; SW 0..127
    s_min_u32 s30, s60, 119
    s_mov_b32 s61, s30
    """)
    wpf_issue(A)
    A(f"""
    v_mov_b32 v28, 0
    v_mov_b32 v29, 0
    v_mov_b32 v30, 0
    v_mov_b32 v31, 0
    v_lshlrev_b32 v3, 4, v0
    s_lshl_b32 s30, s60, 10
    s_add_u32 s30, s30, {WS_FLG}
    s_cmp_lt_u32 s60, 18
    s_cselect_b32 s30, s30, {OOB}
    buffer_store_dwordx4 v[28:31], v3, s[20:23], s30 offen sc1
    v_mov_b32 v32, {L_CNT}
    ds_write_b128 v32, v[28:31]
    ds_write_b128 v32, v[28:31] offset:16
    ds_write_b128 v32, v[28:31] offset:32
    ds_write_b128 v32, v[28:31] offset:48
    """)
    sentinel_fill(A, q, 59, 32)
    A("s_waitcnt vmcnt(4)")
    for p in range(4): A(f"v_lshl_or_b32 v{24+p}, v{17+2*p}, 16, v{16+2*p}")
    A(f"""s_lshl_b32 s30, s61, 10
    s_add_u32 s30, s30, {WS_WPF}
    buffer_store_dwordx4 v[24:27], v3, s[20:23], s30 offen sc1""")
    stats_part1(A, 40, 64); stats_part2(A, 40, 64, 59)
    A(f"""
    s_waitcnt lgkmcnt(0)
    s_barrier
    v_add_u32 v32, {L_ST}, v3
    ds_read_b128 v[36:39], v32
    s_lshr_b32 s30, s66, 3
    s_lshl_b32 s30, s30, 7
    s_add_u32 s30, s30, {WS_ST}
    s_mov_b64 exec, 0xff
    s_waitcnt lgkmcnt(0)
    buffer_store_dwordx4 v[36:39], v3, s[20:23], s30 offen sc1
    s_mov_b64 exec, -1
    s_waitcnt vmcnt(0)
    s_barrier
    s_cmp_lg_u32 s3, 0
    s_cbranch_scc0 SP_w0""")
    if WSLEEP: A(f"s_sleep {WSLEEP}")
    srd(A, 4, 62, 640 * 1280); srd(A, 8, 64, 1728 * 1280)
    A("s_mul_i32 s63, s58, 7\ns_add_u32 s63, s63, s3\ns_sub_u32 s63, s63, 1")
    A("v_lshlrev_b32 v102, 7, v0\ns_lshl_b32 s30, s63, 13")
    for k in range(3): A(f"buffer_load_dword v103, v102, s[8:11], s30 offen\ns_add_u32 s30, s30, {112*8192}")
    A("s_lshl_b32 s30, s63, 13\nbuffer_load_dword v103, v102, s[4:7], s30 offen")
    A("s_branch SP_w")
    A.label("SP_w0")
    signal(A, 32, 0)
    prof_stamp(A, 1)
    A("s_cmp_lg_u32 s58, 0\ns_cbranch_scc1 SP_fol")
    ready_addr(A, 32)
    A(f"v_mov_b32 v34, 1\nv_mov_b32 v35, 0x80\ns_mov_b32 s30, 120\nv_writelane_b32 v35, s30, 2\nv_writelane_b32 v35, s30, 3\ns_mov_b64 s[70:71], 15\ns_mov_b32 s68, {SPIN_MAX}")
    A.label("SW_spin")
    A("""s_mov_b64 exec, s[70:71]
    global_load_dword v33, v32, s[14:15] sc1
    s_waitcnt vmcnt(0)
    v_cmp_eq_u32 vcc, v35, v33
    s_andn2_b64 s[70:71], s[70:71], vcc
    s_and_b64 exec, exec, vcc
    s_cbranch_execz SW_none
    global_store_dword v32, v34, s[14:15] offset:128 sc1""")
    A.label("SW_none")
    A("""s_cmp_eq_u64 s[70:71], 0
    s_cbranch_scc1 SW_out
    s_sub_u32 s68, s68, 1
    s_cbranch_scc1 SW_out
    s_sleep 6
    s_branch SW_spin""")
    A.label("SW_out")
    A("s_mov_b64 exec, -1\ns_branch SP_w")
    A.label("SP_fol")
    ready_addr(A, 32)
    spin(A, "SPG", "global_load_dword v33, v32, s[14:15] offset:128 sc1", 33, "1", sleep=8)
    A.label("SP_w")
    A(f"s_barrier\ns_mov_b32 s34, 0\ns_mov_b32 s57, {OOB+4}\ns_cmp_lt_u32 s3, 4\ns_cbranch_scc1 P2_stream")
    A("s_branch P2_aux")

def ready_addr(A, vr):
    A(f"v_and_b32 v{vr}, 1, v0\nv_lshlrev_b32 v{vr}, 6, v{vr}\nv_and_b32 v{vr+1}, 2, v0\nv_lshl_add_u32 v{vr}, v{vr+1}, 1, v{vr}")

def dual_softmax(A, P, E, OUT, T, SL):
    mx, mn = T, T + 2
    lo = SL.replace("[", "").split(":")[0]
    A(f"v_max3_f32 v{mx}, v{P}, v{P+1}, v{P+2}\nv_min3_f32 v{mn}, v{P}, v{P+1}, v{P+2}")
    for i in range(3, 19, 2):
        A(f"v_max3_f32 v{mx}, v{mx}, v{P+i}, v{P+i+1}\nv_min3_f32 v{mn}, v{mn}, v{P+i}, v{P+i+1}")
    A(f"v_max_f32 v{mx}, v{mx}, v{P+19}\nv_min_f32 v{mn}, v{mn}, v{P+19}")
    A(f"v_mul_f32 v{mx}, {lo}, v{mx}\nv_mul_f32 v{mn}, {lo}, v{mn}")
    for k in range(10):
        A(f"v_pk_fma_f32 {v(E+2*k,2)}, {v(P+2*k,2)}, {SL}, {v(mx,2)} op_sel_hi:[1,0,0] neg_lo:[0,0,1] neg_hi:[0,0,1]")
        A(f"v_pk_fma_f32 {v(E+20+2*k,2)}, {v(P+2*k,2)}, {SL}, {v(mn,2)} op_sel_hi:[1,0,0] neg_lo:[1,0,0] neg_hi:[1,0,0]")
    for i in range(40): A(f"v_exp_f32 v{E+i}, v{E+i}")
    sp, sm = T, T + 2
    A(f"v_pk_add_f32 {v(sp,2)}, {v(E,2)}, {v(E+2,2)}\nv_pk_add_f32 {v(sm,2)}, {v(E+20,2)}, {v(E+22,2)}")
    for k in range(2, 10):
        A(f"v_pk_add_f32 {v(sp,2)}, {v(sp,2)}, {v(E+2*k,2)}\nv_pk_add_f32 {v(sm,2)}, {v(sm,2)}, {v(E+20+2*k,2)}")
    A(f"v_add_f32 v{sp}, v{sp}, v{sp+1}\nv_add_f32 v{sm}, v{sm}, v{sm+1}")
    A(f"v_rcp_f32 v{sp}, v{sp}\nv_rcp_f32 v{sm}, v{sm}")
    for k in range(10):
        A(f"v_pk_mul_f32 {v(E+2*k,2)}, {v(E+2*k,2)}, {v(sp,2)} op_sel_hi:[1,0]")
        A(f"v_pk_mul_f32 {v(E+20+2*k,2)}, {v(E+20+2*k,2)}, {v(sm,2)} op_sel_hi:[1,0]")
    for k in range(20):
        A(f"v_cvt_pk_bf16_f32 v{OUT+k}, v{E+2*k}, v{E+2*k+1}")

class Buf:
    def __init__(self): self.l = []
    def __call__(self, t): self.l += [x.strip() for x in t.strip("\n").split("\n") if x.strip()]
def weave(A, main, side, first, step):
    side = list(side)
    for i, m in enumerate(main):
        A(m)
        if side and i >= first and (i - first) % step == 0: A(side.pop(0))
    for x in side: A(x)
def softmax_inplace(B, P, E, T, SL):
    mx, mn = T, T + 2
    lo = SL.replace("[", "").split(":")[0]
    B(f"v_max3_f32 v{mx}, v{P}, v{P+1}, v{P+2}\nv_min3_f32 v{mn}, v{P}, v{P+1}, v{P+2}")
    for i in range(3, 19, 2):
        B(f"v_max3_f32 v{mx}, v{mx}, v{P+i}, v{P+i+1}\nv_min3_f32 v{mn}, v{mn}, v{P+i}, v{P+i+1}")
    B(f"v_max_f32 v{mx}, v{mx}, v{P+19}\nv_min_f32 v{mn}, v{mn}, v{P+19}")
    B(f"v_mul_f32 v{mx}, {lo}, v{mx}\nv_mul_f32 v{mn}, {lo}, v{mn}")
    for k in range(10):
        B(f"v_pk_fma_f32 {v(E+2*k,2)}, {v(P+2*k,2)}, {SL}, {v(mn,2)} op_sel_hi:[1,0,0] neg_lo:[1,0,0] neg_hi:[1,0,0]")
        B(f"v_pk_fma_f32 {v(P+2*k,2)}, {v(P+2*k,2)}, {SL}, {v(mx,2)} op_sel_hi:[1,0,0] neg_lo:[0,0,1] neg_hi:[0,0,1]")
    for i in range(20): B(f"v_exp_f32 v{P+i}, v{P+i}\nv_exp_f32 v{E+i}, v{E+i}")
    B(f"v_pk_add_f32 {v(mx,2)}, {v(P,2)}, {v(P+2,2)}\nv_pk_add_f32 {v(mn,2)}, {v(E,2)}, {v(E+2,2)}")
    for k in range(2, 10):
        B(f"v_pk_add_f32 {v(mx,2)}, {v(mx,2)}, {v(P+2*k,2)}\nv_pk_add_f32 {v(mn,2)}, {v(mn,2)}, {v(E+2*k,2)}")
    B(f"v_add_f32 v{mx}, v{mx}, v{mx+1}\nv_add_f32 v{mn}, v{mn}, v{mn+1}\nv_rcp_f32 v{mx}, v{mx}\nv_rcp_f32 v{mn}, v{mn}")
    for k in range(10):
        B(f"v_pk_mul_f32 {v(P+2*k,2)}, {v(P+2*k,2)}, {v(mx,2)} op_sel_hi:[1,0]")
        B(f"v_pk_mul_f32 {v(E+2*k,2)}, {v(E+2*k,2)}, {v(mn,2)} op_sel_hi:[1,0]")
    for k in range(10): B(f"v_cvt_pk_bf16_f32 v{P+k}, v{P+2*k}, v{P+2*k+1}")
    for k in range(10): B(f"v_cvt_pk_bf16_f32 v{P+10+k}, v{E+2*k}, v{E+2*k+1}")

XSLOT = 8192; XWAVE = 3 * XSLOT; WBASE = 4 * XWAVE
NWS = 5
PHI_P = 336; V_P = 208; PHI_BASE = 0; V_BASE = 256 * PHI_P
L_ST = 159744; L_CS = L_ST + 2048; L_CNT = L_CS + 1024
K1_LDS = 160 * 1024
NL = 7
KVB = 4 * NL * 5120
W_KVS, W_BL, W_CK, W_CH, W_CW, W_CP, W_SD, W_SX, W_AP, W_K1, W_K2, W_Q, W_ED, W_O = [4 * k for k in range(14)]
XCH = 0; APART = 12 * 5120
def wpf_lds(i): return (i >> 3) * XWAVE + XSLOT + (i & 7) * 1024

def k1_loader(A, gu, nW, tag):
    WU = 12288 if gu else 10240
    NCH = 12 if gu else 10
    q = Q(A, "vmcnt", 63)
    def X(j, half=None):
        for e in (range(8) if half is None else range(4 * half, 4 * half + 4)):
            if e % 4 == 0: A(f"s_add_u32 s47, s78, {j}\ns_sub_u32 s48, s47, 10\ns_cselect_b32 s47, s47, s48\ns_lshl_b32 s47, s47, 7\ns_add_u32 s47, s47, s40")
            A(f"s_add_u32 s48, s47, {e*8*1280}\ns_add_u32 m0, s43, {(j%3)*XSLOT + e*1024}\ns_nop 0")
            A(f"buffer_load_dwordx4 v{2+(e&1)}, s[16:19], s48 offen lds"); q.issue(("X", j))
    def W(u):
        A(f"s_lshl_b32 s49, s78, 1\ns_add_u32 s49, s49, {u}\ns_sub_u32 s48, s49, 20\ns_cselect_b32 s49, s49, s48\ns_mul_i32 s49, s49, s42")
        for e in range(nW):
            A(f"s_add_u32 m0, s{44+e}, {WBASE + (u%NWS)*WU}\ns_nop 0")
            A(f"buffer_load_dwordx4 v{4+e}, s[24:27], s49 offen lds"); q.issue(("W", u))
    R, XU, C, CA = 16, 40, 80, 120
    def aux_issue(p):
        if 'noaux' in EXP: return
        stats_issue(A, q, R, [p])
        for i in range(2):
            A(f"s_mul_i32 s48, s51, {32*p + i}\ns_add_u32 s48, s48, s50")
            A(f"buffer_load_dwordx4 {v(C+4*(2*p+i),4)}, v7, s[24:27], s48 offen"); q.issue("CS")
    def cs_sel():
        A(f"v_and_b32 v{CA+8}, 15, v0")
        for k in range(4):
            A(f"""v_cmp_eq_u32 vcc, {2*k}, v{CA+8}
            v_cndmask_b32 v{CA+4+k}, 0, v{CA+9}, vcc
            v_cmp_eq_u32 vcc, {2*k+1}, v{CA+8}
            v_cndmask_b32 v{CA+4+k}, v{CA+4+k}, v{CA+10}, vcc""".replace("v_cmp_eq_u32 vcc, 0,", f"v_mov_b32 v{CA+9}, 0x3f80\nv_mov_b32 v{CA+10}, 0x3f800000\nv_cmp_eq_u32 vcc, 0,"))
    def cs_acc():
        for i in range(10): A(f"v_mfma_f32_16x16x32_bf16 {v(CA,4)}, {v(CA+4,4)}, {v(C+4*i,4)}, {'0' if i==0 else v(CA,4)}")
    def cs_fin():
        msk = (1 << NCH) - 1
        A(f"""v_and_b32 v{C}, 15, v0
        v_lshlrev_b32 v{C}, 5, v{C}
        v_lshrrev_b32 v{C+1}, 4, v0
        v_lshl_add_u32 v{C}, v{C+1}, 4, v{C}
        s_mul_i32 s48, s41, 384
        s_add_u32 s48, s48, {L_ST+128}
        v_add_u32 v{C}, s48, v{C}
        s_mov_b64 exec, {msk | (msk << 16)}
        ds_write_b128 v{C}, {v(CA,4)}
        s_mov_b64 exec, -1
        s_waitcnt lgkmcnt(0)""")
    def only0(name, f):
        A(f"s_cmp_lg_u32 s41, 0\ns_cbranch_scc1 {tag}_{name}")
        f()
        A.label(f"{tag}_{name}")
    def cw_poll():
        A(f"v_and_b32 v{R}, 1, v0\nv_lshlrev_b32 v{R}, 6, v{R}\nglobal_load_dword v{R+1}, v{R}, s[14:15] offset:132 sc1")
    def wf_prefetch(i):
        if i == 0:
            A(f"""v_readlane_b32 s48, v{R+1}, 0
            v_readlane_b32 s49, v{R+1}, 1
            s_and_b32 s48, s48, s49
            s_lshr_b32 s49, s2, 3
            s_mul_i32 s49, s49, {740*128}
            s_add_u32 s49, s49, {WS_WF}
            s_cmp_eq_u32 s48, 1
            s_cselect_b32 s69, s49, {OOB}
            v_lshlrev_b32 v{R}, 7, v0""")
        for k in range(3):
            A(f"buffer_load_dword v{R+2}, v{R}, s[20:23], s69 offen\nv_add_u32 v{R}, {64*128 if 3*i+k != 10 else 36*128}, v{R}")
    def pfx(i):
        A(f"""s_cmp_lg_u32 s41, {i & 3}
        s_cbranch_scc1 {tag}_pfx{i}
        s_lshr_b32 s49, s2, 3
        s_mul_i32 s49, s49, {740*128}
        s_add_u32 s49, s49, {WS_WF + min(i*64, 740-64)*128}
        v_lshlrev_b32 v136, 7, v0
        buffer_load_dword v137, v136, s[20:23], s49 offen""")
        A.label(f"{tag}_pfx{i}")
    def poll_issue():
        A(f"v_and_b32 v{R+4}, 1, v0\nv_lshlrev_b32 v{R+4}, 6, v{R+4}\nglobal_load_dword v{R+5}, v{R+4}, s[14:15] offset:128 sc1")
        q.mark = q.n
    def poll_check():
        A(f"s_waitcnt vmcnt({q.n - q.mark})")
        spin(A, tag + "G", f"global_load_dword v{R+5}, v{R+4}, s[14:15] offset:128 sc1", R + 5, "1", first=False)
        prof_stamp(A, 5)
    def cons_issue():
        A(f"""v_lshrrev_b32 v{R}, 3, v0
        v_and_b32 v{R+1}, 7, v0
        v_lshlrev_b32 v{R+1}, 3, v{R+1}
        v_lshl_add_u32 v{R+1}, v{R}, 7, v{R+1}
        s_lshl_b32 s48, s32, 5
        s_lshl_b32 s49, s41, 3
        s_add_u32 s48, s48, s49
        s_lshl_b32 s48, s48, 7
        s_add_u32 s48, s48, {WS_ST}
        buffer_load_dwordx2 {v(R+2,2)}, v{R+1}, s[20:23], s48 offen sc1
        v_lshlrev_b32 v{R}, 3, v0
        v_lshlrev_b32 v{R+1}, 2, v0""")
        q.issue("C1")
        for i in range(16):
            if i and i % 5 == 0: A(f"s_add_u32 s53, s53, {5*768}")
            A(f"buffer_load_dword v{XU+i}, v{R+1}, s[20:23], s53 offen offset:{(i%5)*768} sc1"); q.issue("C1")
        if not gu:
            A(f"v_lshlrev_b32 v{R+4}, 4, v0")
            for e in range(8):
                A(f"s_add_u32 s48, s54, {e*1024}\ns_cmp_lt_u32 {e}, s55\ns_cselect_b32 s48, s48, {OOB}")
                A(f"buffer_load_dwordx4 {v(C+4*e,4)}, v{R+4}, s[20:23], s48 offen sc1"); q.issue("C2")
    def cons_fin():
        q.wait({"C1"})
        A(f"s_lshl_b32 s48, s41, 9\ns_add_u32 s48, s48, {L_ST}\nv_add_u32 v{R}, s48, v{R}\nds_write_b64 v{R}, {v(R+2,2)}")
        for st in (8, 4, 2, 1):
            for i in range(st): A(f"v_add_f32 v{XU+i}, v{XU+i}, v{XU+i+st}")
        A(f"""s_mul_i32 s48, s41, 192
        s_add_u32 s48, s48, {L_CS}
        v_add_u32 v{R+1}, s48, v{R+1}
        s_mov_b32 exec_hi, 0xffff
        ds_write_b32 v{R+1}, v{XU}
        s_mov_b64 exec, -1""")
        if not gu:
            q.wait({"C2"})
            A(f"v_add_u32 v{R+4}, s43, v{R+4}")
            for e in range(8): A(f"ds_write_b128 v{R+4}, {v(C+4*e,4)} offset:{XSLOT + e*1024}")
        A(f"v_mov_b32 v{R}, {L_CNT}\nv_mov_b32 v{R+2}, 0\nv_mov_b32 v{R+3}, 0\n" + "".join(f"ds_write_b64 v{R}, {v(R+2,2)} offset:{8*k}\n" for k in range(7)) + "s_waitcnt lgkmcnt(0)")
    q.q = [("X", 0)] * 8 + [("W", 0)] * 3 + [("W", 1)] * 3
    sched = {u: [] for u in range(20)}
    def rl_issue():
        A("s_mul_i32 s30, s32, 30\ns_add_u32 s30, s30, s29\ns_lshl_b32 s30, s30, 2\ns_add_u32 s30, s30, s41\ns_waitcnt lgkmcnt(0)")
        relayout_issue(A, q, f"{tag}_rl", 140)
    AX = {"A": [-1, 0, 1, 2, 2], "B": [-1, -1, 0, 1, 2], "G": [-1, 1, 2, 3, 4], "H": [-1, 1, 3, 5, 6], "I": [0, 2, 3, 4, 5], "J": [1, 2, 3, 4, 4]}[AUXS]
    def ax(u):
        for p in range(5):
            if AX[p] == u: aux_issue(p)
    ax(-1)
    sched[0] += [lambda: W(2), lambda: W(3), lambda: X(2, 0), cs_sel]
    sched[1] += [lambda: X(2, 1), lambda: W(4)]
    for u in range(2, 8): sched[u] += [lambda u=u: X(u // 2 + 2, u % 2), lambda u=u: W(u + 3)]
    for u in range(8): sched[u].append(lambda u=u: ax(u))
    P0 = PUBU - 2
    post = {P0: [lambda: q.wait({"CS"}), lambda: A("s_setprio 3"), cs_acc, lambda: stats_part1(A, R, XU), lambda: A("s_setprio 0")],
            P0 + 1: [lambda: A("s_setprio 3"), lambda: stats_part2(A, R, XU, 41), cs_fin, lambda: A("s_setprio 0")]}
    for u in range(8, 17):
        j = u // 2 + 2
        if j < 10: sched[u].append(lambda j=j, h=u % 2: X(j, h))
        sched[u].append(lambda u=u: W(u + 3))
    if 'norl' not in EXP:
        sched[RLU - 2].append(rl_issue)
        sched[RLU] += [lambda: relayout_finish(A, q, 140, 156, 0)]
        sched[RLU + 1] = [sched[RLU + 1][1], lambda: relayout_finish(A, q, 140, 156, 1), sched[RLU + 1][0]] + sched[RLU + 1][2:]
    if 'noaux' not in EXP:
        for u in post: sched[u] += post[u]
    sched[RLU + 4] = [lambda: only0("cs", lambda: signal(A, 130, 1))] + sched[RLU + 4]
    if "pf" in EXP:
        sched[8] = [lambda: only0("cw", cw_poll)] + sched[8]
        for i in range(4): sched[11 + i].append(lambda i=i: only0(f"pf{i}", lambda: wf_prefetch(i)))
    def code_touch(k):
        A(f"s_lshr_b32 s73, s2, 3\ns_lshl_b32 s73, s73, 2\ns_add_u32 s73, s73, s41\ns_add_u32 s73, s73, {k}\ns_and_b32 s73, s73, 7")
        code_warm(A, f"{tag}_ct{k}", "K1_end", "s73", 132, 133, "K1_compute_end"); q.issue("CT")
    if "notouch" not in EXP:
        sched[13].append(lambda: code_touch(0))
        sched[18].append(lambda: code_touch(3))
    if "pfx" in EXP:
        for i in range(12): sched[7 + i].append(lambda i=i: pfx(i))
    sched[15] = [lambda: only0("pi", poll_issue)] + sched[15]
    sched[16] += [lambda: only0("pc", poll_check)]
    if 'nocons' not in EXP: sched[17] += [cons_issue]
    sched[19] += [cons_fin]
    for u in range(20):
        if u == 1 and "b1" not in EXP:
            for f in sched[u]: f()
            continue
        q.wait({("W", u), ("X", u // 2)} | ({("W", 1)} if u == 0 and "b1" not in EXP else set()))
        if u == 0: prof_stamp(A, 3)
        if u == 8: prof_stamp(A, 4)
        A("s_barrier")
        if "slots" in EXP and u in SLOTS: prof_stamp(A, SLOTS.index(u), force=True)
        for f in sched[u]: f()
    A(f"s_barrier\ns_mov_b32 s57, {OOB}")
    if not gu: A("s_cmp_eq_u32 s34, 1\ns_cbranch_scc1 P2_stream")
    A("s_branch P2_aux")

ACC = 0
XF = 192
WFR = 224
NWF = 5
VX = 244
VW = 246
VL = 248
def acc(T, ct): return ACC + (T * 12 + ct) * 4

def k1_mainloop(A, gu):
    NT = 12 if gu else 10
    WU = 12288 if gu else 10240
    pitch = 192 if gu else 320
    LA = NWF - 1
    q = Q(A, "lgkmcnt", 15)
    def woff(n):
        u, ct = divmod(n, NT)
        o = (u % NWS) * WU
        o += (ct % 6) * 32 + (ct // 6) * 6144 if gu else ct * 32
        return o
    def rdW(n, halves=(0, 1)):
        r = WFR + 4 * (n % NWF); ad = VW + (n % NT) % 2
        for h in halves:
            A(f"ds_read_b64_tr_b16 {v(r+2*h,2)}, v{ad} offset:{woff(n)+4*pitch*h}"); q.issue(("W", n))
    def rdX(u, T):
        j, kh = divmod(u, 2)
        A(f"ds_read_b128 {v(XF+16*(u&1)+4*T,4)}, v{VX+kh} offset:{(j%3)*XSLOT + T*2048}"); q.issue(("X", u, T))
    NTOT = 20 * NT
    SIGU, HSU = PUBU + 2, 2
    def pub_read():
        A(f"ds_read_b128 v[252:255], v249"); q.issue("P0")
    def pub_store0():
        q.wait({"P0"})
        A(f"buffer_store_dwordx4 v[252:255], v250, s[20:23], s52 offen sc1\nv_lshlrev_b32 v250, 4, v{VL}\nv_add_u32 v249, {L_ST}, v250")
    def pub_read1():
        A(f"ds_read_b128 v[252:255], v249"); q.issue("P1")
    def pub_store1():
        q.wait({"P1"})
        A(f"s_mov_b64 exec, 0xff\nbuffer_store_dwordx4 v[252:255], v250, s[20:23], s53 offen sc1\ns_mov_b64 exec, -1")
    def sig(line):
        A(f"s_cmp_lg_u32 s3, 0\ns_cbranch_scc1 SG{int(gu)}{line}")
        signal(A, 252, line)
        A.label(f"SG{int(gu)}{line}")
    def hs(i):
        if i == 0: A(f"v_mov_b32 v252, -1\nv_mov_b32 v253, -1\nv_mov_b32 v254, -1\nv_mov_b32 v255, -1\nv_lshlrev_b32 v251, 4, v{VL}")
        if i % 4 == 0: A(f"s_add_u32 s51, s50, {(i//4)*4096}")
        A(f"buffer_store_dwordx4 v[252:255], v251, s[20:23], s51 offen offset:{(i%4)*1024} sc1")
    n0 = PUBU * NT - LA
    hooks = {n0: pub_read, n0 + 3: pub_store0, n0 + 4: pub_read1, n0 + 7: pub_store1, SIGU * NT - LA: lambda: sig(0)}
    if gu and "hsent" in EXP:
        for i in range(12): hooks[HSU * NT + 3 * i] = (lambda i=i: hs(i))
    if 'nopub' in EXP: hooks = {SIGU * NT - LA: lambda: sig(0)}
    A("s_barrier")
    prof_stamp(A, 1)
    if PROF: A("s_memtime s[76:77]\ns_waitcnt lgkmcnt(0)")
    rdX(0, 0); rdW(0); rdX(0, 1); rdX(0, 2); rdX(0, 3)
    for n in range(1, LA): rdW(n)
    for n in range(NTOT):
        u, ct = divmod(n, NT)
        for T in range(4):
            q.wait({("W", n), ("X", u, T)})
            c = "0" if u == 0 else v(acc(T, ct), 4)
            A(f"v_mfma_f32_16x16x32_bf16 {v(acc(T,ct),4)}, {v(WFR+4*(n%NWF),4)}, {v(XF+16*(u&1)+4*T,4)}, {c}")
            m = n + LA
            if T == 0 and m < NTOT:
                if m == SIGU * NT: A("s_waitcnt vmcnt(0)")
                if m == 2 * NT and "cx1" in EXP: A(f"s_waitcnt vmcnt({CX1_AFTER[int(gu)]})")
                if m % NT == 0 and (m != NT or "b1" in EXP): A("s_barrier")
                rdW(m, (0,))
            if T == 1 and m < NTOT: rdW(m, (1,))
            if T == 2 and u + 1 < 20 and ct >= NT - LA: rdX(u + 1, ct - (NT - LA))
            if T == 3 and n in hooks: hooks[n]()
    prof_stamp(A, 2)
    if PROF: A("s_memtime s[78:79]\ns_waitcnt lgkmcnt(0)\ns_sub_u32 s81, s78, s76\ns_add_u32 s81, s81, s80")

CSR = 192
STR = 240
def epi_common(A, ntile, csr=None, st=(240, 242, 244, 246)):
    A(f"""
    v_lshrrev_b32 v249, 4, v{VL}
    v_lshlrev_b32 v249, 4, v249
    v_add_u32 v249, {L_CS}, v249
    v_and_b32 v250, 15, v{VL}
    v_lshlrev_b32 v250, 3, v250
    s_lshl_b32 s51, s3, 9
    s_add_u32 s51, s51, {L_ST}
    v_add_u32 v250, s51, v250
    s_waitcnt vmcnt(0)
    s_barrier
    """)
    for T in range(4): A(f"ds_read_b64 {v(st[T],2)}, v250 offset:{T*128}")
    for ct in range(ntile): A(f"ds_read_b128 {v(csr[ct] if csr else CSR+4*ct,4)}, v249 offset:{ct*64}")
    A(f"v_lshlrev_b32 v249, 4, v{VL}\ns_waitcnt lgkmcnt(0)")
    prof_stamp(A, 3)
    if PROF: A("s_memtime s[76:77]\ns_waitcnt lgkmcnt(0)")
def dry_exit(A, ret):
    if "nodry" not in EXP: A(f"s_cmp_eq_u32 s79, 1\ns_cbranch_scc1 {ret}")
def dry_run(A, labels, ret):
    if "nodry" in EXP: return
    A("s_mov_b32 s79, 1\ns_mov_b64 exec, 0")
    for w in range(3): A(f"s_cmp_eq_u32 s3, {w}\ns_cbranch_scc1 {labels[w]}")
    A(f"s_branch {labels[3]}")
    A.label(ret)
    A("s_mov_b32 s79, 0\ns_mov_b64 exec, -1")
def center(A, r, T, ct):
    for h in range(2):
        A(f"v_pk_fma_f32 {v(r+2*h,2)}, {v(CSR+4*ct+2*h,2)}, {v(STR+2*T,2)}, {v(r+2*h,2)} op_sel_hi:[1,0,1] neg_lo:[1,0,0] neg_hi:[1,0,0]")

def k1_epi_gu(A):
    epi_common(A, 12)
    for T in range(4):
        A(f"v_mul_f32 v{252+T}, v{STR+2*T+1}, v{STR+2*T+1}\nv_mul_f32 v{STR+2*T+1}, {NLOG2E}, v{STR+2*T+1}\nv_rcp_f32 v{252+T}, v{252+T}")
    for c in range(3):
        A(f"s_add_u32 s51, s50, {c*4096}")
        for T0 in (0, 2):
            grp = [(T, acc(T, 2 * c), acc(T, 6 + 2 * c)) for T in (T0, T0 + 1)]
            sd = v(252 + T0, 2)
            for T, G, U in grp:
                for h in range(2): center(A, G + 4 * h, T, 2 * c + h); center(A, U + 4 * h, T, 6 + 2 * c + h)
            for T, G, U in grp:
                for k in range(4): A(f"v_pk_mul_f32 {v(U+2*k,2)}, {v(G+2*k,2)}, {v(U+2*k,2)}")
                for k in range(4): A(f"v_pk_mul_f32 {v(G+2*k,2)}, {v(G+2*k,2)}, {v(STR+2*T,2)} op_sel:[0,1] op_sel_hi:[1,1]")
            for T, G, U in grp:
                for i in range(8): A(f"v_exp_f32 v{G+i}, v{G+i}")
            for T, G, U in grp:
                b = T & 1
                for k in range(4): A(f"v_pk_fma_f32 {v(G+2*k,2)}, {v(G+2*k,2)}, {sd}, {sd} op_sel:[0,{b},{b}] op_sel_hi:[1,{b},{b}]")
            for T, G, U in grp:
                for i in range(8): A(f"v_rcp_f32 v{G+i}, v{G+i}")
            for T, G, U in grp:
                for k in range(4): A(f"v_pk_mul_f32 {v(U+2*k,2)}, {v(U+2*k,2)}, {v(G+2*k,2)}")
            for T, G, U in grp:
                for k in range(4): A(f"v_cvt_pk_bf16_f32 v{G+k}, v{U+2*k}, v{U+2*k+1}")
                A(f"buffer_store_dwordx4 {v(G,4)}, v249, s[20:23], s51 offen offset:{T*1024} {HST}")
    prof_stamp(A, 5, True)

WP = 192
def read_wpf(A, first):
    for tau in range(5):
        for c in range(3):
            i = first + 3 * tau + c
            base = 250 + (i >> 4)
            off = wpf_lds(i) - (i >> 4) * 2 * XWAVE
            if c < 2: A(f"ds_read_b128 {v(WP+10*tau+4*c,4)}, v{base} offset:{off}")
            else: A(f"ds_read_b64 {v(WP+10*tau+8,2)}, v{base} offset:{off}")
def normalize(A, ntile, scale_tiles):
    for T in range(4):
        for ct in range(ntile):
            center(A, acc(T, ct), T, ct)
        for ct in scale_tiles:
            for h in range(2):
                r = acc(T, ct) + 2 * h
                A(f"v_pk_mul_f32 {v(r,2)}, {v(r,2)}, {v(STR+2*T,2)} op_sel:[0,1] op_sel_hi:[1,1]")
def proj_mfma(A, D, B01, B2):
    for c in range(3):
        for tau in range(5):
            d = v(D + 4 * tau, 4)
            if c < 2: A(f"v_mfma_f32_16x16x32_bf16 {d}, {v(WP+10*tau+4*c,4)}, {v(B01+4*c,4)}, {'0' if c==0 else d}")
            else: A(f"v_mfma_f32_16x16x16_bf16 {d}, {v(WP+10*tau+8,2)}, {v(B2,2)}, {d}")

def k1_epi_kv(A):
    csr = [192, 196, 200, 204, 208, acc(0, 10), acc(0, 11), acc(1, 10), acc(1, 11), acc(2, 10)]
    ST = [acc(2, 11), acc(2, 11) + 2, acc(3, 11), acc(3, 11) + 2]
    epi_common(A, 10, csr, ST)
    def ctr(B, T, ct, scale):
        for h in range(2):
            r = acc(T, ct) + 2 * h
            B(f"v_pk_fma_f32 {v(r,2)}, {v(csr[ct]+2*h,2)}, {v(ST[T],2)}, {v(r,2)} op_sel_hi:[1,0,1] neg_lo:[1,0,0] neg_hi:[1,0,0]")
            if scale: B(f"v_pk_mul_f32 {v(r,2)}, {v(r,2)}, {v(ST[T],2)} op_sel:[0,1] op_sel_hi:[1,1]")
    A.label("DK0")
    for T in range(4):
        for ct in range(5): ctr(A, T, ct, False)
    dry_exit(A, "DK_ret")
    A(f"v_lshlrev_b32 v250, 4, v{VL}")
    read_wpf(A, 0)
    for T in range(4):
        for ct in range(5, 10):
            ctr(A, T, ct, True)
            r = acc(T, ct)
            A(f"v_cvt_pk_bf16_f32 v{r}, v{r}, v{r+1}\nv_cvt_pk_bf16_f32 v{r+1}, v{r+2}, v{r+3}")
    for T in range(4): A(f"v_mul_f32 v{252+T}, {LOG2E}, v{ST[T]+1}")
    VA = acc(3, 10)
    A(f"""
    v_and_b32 v243, 15, v{VL}
    s_lshl_b32 s51, s3, 6
    v_add_u32 v243, s51, v243            ; row (T=0)
    v_lshrrev_b32 v246, 4, v{VL}         ; g
    v_mul_u32_u24 v251, {PHI_P}, v243
    v_mul_u32_u24 v247, 80, v246
    v_add_u32 v251, v251, v247
    v_mul_u32_u24 v243, {V_P}, v243
    v_add_u32 v243, {V_BASE}, v243
    v_mul_u32_u24 v247, 48, v246
    v_add_u32 v242, v243, v247
    """)
    for c in range(5):
        A(f"""v_add_u32 v247, {4*c}, v246
        v_mul_u32_u24 v244, 205, v247
        v_lshrrev_b32 v244, 10, v244
        v_add_u32 v247, v247, v244
        v_lshl_add_u32 v{VA+c}, v247, 3, v243""")
    A("v_mov_b32 v244, 0x3f80\nv_mov_b32 v245, 0\ns_waitcnt lgkmcnt(0)")
    prof_stamp(A, 8)
    lds_inc(A, W_K1, 246, 247); lds_spin(A, "K1S", W_K1, "4", 246, 247)
    prof_stamp(A, 9)
    def kcvt(T):
        B = Buf()
        for k in range(8): B(f"v_cvt_pk_bf16_f32 v{acc(T,10)+k}, v{acc(T,0)+2*k}, v{acc(T,0)+2*k+1}")
        for k in range(2): B(f"v_cvt_pk_bf16_f32 v{acc(T,4)+k}, v{acc(T,4)+2*k}, v{acc(T,4)+2*k+1}")
        return B.l
    def proj(T):
        B = Buf(); proj_mfma(B, acc(T, 5), acc(T, 10), acc(T, 4)); return B.l
    vw = []
    for T in range(4):
        vw += [f"ds_write_b64 v{VA+c}, {v(acc(T,5+c),2)} offset:{T*16*V_P}" for c in range(5)] + [f"ds_write_b64 v242, v[244:245] offset:{T*16*V_P + 40}"]
    weave(A, kcvt(0) + kcvt(1) + kcvt(2), vw, 0, 1)
    for x in proj(0) + kcvt(3): A(x)
    for T in range(4):
        B = Buf()
        B(f"v_mov_b32 v{acc(T,11)}, v{252+T}")
        softmax_inplace(B, acc(T, 5), acc(T, 0), acc(T, 10), v(acc(T, 11), 2))
        side = (proj(T + 1) if T < 3 else []) + ([f"ds_write_b128 v251, {v(acc(T-1,5)+4*k,4)} offset:{(T-1)*16*PHI_P + 16*k}" for k in range(5)] if T else [])
        if T in (1, 2, 3) and "nodry" not in EXP:
            pass
        if T == 0: prof_stamp(A, 1)
        weave(A, B.l, [] if "noside" in EXP else side, 4, 6)
        if T == 1: prof_stamp(A, 13)
        if T == 3: prof_stamp(A, 2)
    for k in range(5): A(f"ds_write_b128 v251, {v(acc(3,5)+4*k,4)} offset:{3*16*PHI_P + 16*k}")
    A(f"""
    v_lshrrev_b32 v241, 5, v{VL}
    v_lshlrev_b32 v241, 3, v241          ; 8*(G>>1)
    v_bfe_u32 v242, v{VL}, 2, 2
    v_add_u32 v241, v241, v242
    v_bfe_u32 v242, v{VL}, 4, 1
    v_lshlrev_b32 v242, 5, v242
    v_and_b32 v243, 3, v{VL}
    v_lshl_add_u32 v242, v243, 3, v242   ; 32*(G&1)+8c
    v_mul_u32_u24 v237, {PHI_P}, v241
    v_add_u32 v237, v237, v242
    s_mul_i32 s51, s3, 80
    v_add_u32 v237, s51, v237
    v_add_u32 v239, {128*PHI_P}, v237
    v_mul_u32_u24 v238, {V_P}, v241
    v_add_u32 v238, v238, v242
    s_mul_i32 s51, s3, 48
    s_add_u32 s51, s51, {V_BASE}
    v_add_u32 v238, s51, v238
    v_and_b32 v241, 31, v{VL}
    v_lshrrev_b32 v242, 5, v{VL}
    v_lshlrev_b32 v242, 3, v242
    v_mul_u32_u24 v241, 80, v241
    s_lshl_b32 s51, s3, 11
    s_add_u32 s51, s51, {KVB}
    v_add3_u32 v242, v241, v242, s51
    v_add_u32 v241, s51, v249
    s_waitcnt lgkmcnt(0)
    """)
    lds_inc(A, W_K2, 246, 247); lds_spin(A, "K2S", W_K2, "4", 246, 247)
    prof_stamp(A, 4, True)
    q = Q(A, "lgkmcnt", 15)
    def rd(ks):
        b = 32 + 12 * (ks % 3)
        pa, po = (237, ks * 16 * PHI_P) if ks < 8 else (239, (ks - 8) * 16 * PHI_P)
        for h in range(2):
            A(f"ds_read_b64_tr_b16 {v(b+2*h,2)}, v238 offset:{ks*16*V_P + h*4*V_P}"); q.issue(ks)
        for nt in range(2):
            for h in range(2):
                A(f"ds_read_b64_tr_b16 {v(b+4+4*nt+2*h,2)}, v{pa} offset:{po + nt*64 + h*4*PHI_P}"); q.issue(ks)
    rd(0); rd(1)
    for ks in range(16):
        q.wait({ks})
        if ks + 2 < 16: rd(ks + 2)
        b = 32 + 12 * (ks % 3)
        for nt in range(2):
            A(f"v_mfma_f32_32x32x16_bf16 {v(16*nt,16)}, {v(b+4+4*nt,4)}, {v(b,4)}, {'0' if ks==0 else v(16*nt,16)}")
    prof_stamp(A, 5)
    A("s_mov_b32 exec_lo, 0xffffff\ns_mov_b32 exec_hi, 0xffffff")
    for gi in range(5):
        r = 4 * gi
        A(f"v_cvt_pk_bf16_f32 v{r}, v{r}, v{r+1}\nv_cvt_pk_bf16_f32 v{r+1}, v{r+2}, v{r+3}\nds_write_b64 v242, {v(r,2)} offset:{16*gi}")
    A(f"""s_mov_b64 exec, -1
    s_waitcnt lgkmcnt(0)
    ds_read_b128 v[24:27], v241
    ds_read_b128 v[28:31], v241 offset:1024
    s_waitcnt lgkmcnt(1)
    buffer_store_dwordx4 v[24:27], v249, s[20:23], s57 offen sc1
    s_waitcnt lgkmcnt(0)
    buffer_store_dwordx4 v[28:31], v249, s[20:23], s57 offen offset:1024 sc1""")

def k1_epi_q(A):
    epi_common(A, 10)
    normalize(A, 10, range(10))
    A(f"v_mov_b32 v250, v249\nv_add_u32 v251, {2*XWAVE}, v249\nv_lshlrev_b32 v247, 3, v{VL}")
    for hgi in range(2):
        read_wpf(A, 15 * hgi)
        b2 = [242, 244, 252, 254]
        for T in range(4):
            src = acc(T, 5 * hgi)
            for k in range(8): A(f"v_cvt_pk_bf16_f32 v{acc(T,10)+k}, v{src+2*k}, v{src+2*k+1}")
            for k in range(2): A(f"v_cvt_pk_bf16_f32 v{b2[T]+k}, v{src+16+2*k}, v{src+17+2*k}")
        A("s_waitcnt lgkmcnt(0)")
        if hgi == 1: lds_inc(A, W_Q, 250, 251)
        for T in range(4): proj_mfma(A, acc(T, 5 * hgi), acc(T, 10), b2[T])
        for T in range(4):
            src = acc(T, 5 * hgi)
            for k in range(10): A(f"v_cvt_pk_bf16_f32 v{src+k}, v{src+2*k}, v{src+2*k+1}")
            A(f"s_add_u32 s51, s58, {(hgi*4+T)*2560}")
            A(f"buffer_store_dwordx4 {v(src,4)}, v249, s[20:23], s51 offen {HST}")
            A(f"buffer_store_dwordx4 {v(src+4,4)}, v249, s[20:23], s51 offen offset:1024 {HST}")
            A(f"buffer_store_dwordx2 {v(src+8,2)}, v247, s[20:23], s51 offen offset:2048 {HST}")
    prof_stamp(A, 5, True)

def gen_k1():
    A = Asm()
    A.label("K1_start")
    prof_start(A)
    A(f"""
    s_load_dwordx4 s[4:7], s[0:1], 0     ; x, wqkv
    s_load_dwordx4 s[8:11], s[0:1], 40
    s_load_dwordx4 s[12:15], s[0:1], 72
    s_cmp_ge_u32 s2, 256
    s_cbranch_scc1 K1_end
    v_lshrrev_b32 v1, 6, v0
    v_and_b32 v0, 63, v0
    v_readfirstlane_b32 s3, v1
    s_and_b32 s30, s2, 7                 ; xcd
    s_lshr_b32 s31, s2, 3                ; j
    s_lshr_b32 s32, s30, 2
    s_lshl_b32 s32, s32, 2
    s_and_b32 s33, s31, 3
    s_add_u32 s32, s32, s33              ; rb
    s_and_b32 s30, s30, 3                ; cg
    s_lshr_b32 s31, s31, 2               ; cslot
    s_sub_u32 s41, s3, 4
    s_lshl_b32 s40, s32, 8
    s_lshl_b32 s36, s41, 6
    s_add_u32 s40, s40, s36
    s_mul_i32 s40, s40, 1280
    s_mul_i32 s43, s41, {XWAVE}
    s_mul_i32 s78, s33, {10 if KROT else 0}
    s_mul_i32 s36, s31, {5 if KROT else 0}
    s_add_u32 s78, s78, s36
    s_lshr_b32 s78, s78, 2
    s_sub_u32 s36, s78, 10
    s_cselect_b32 s78, s78, s36          ; first k stage of this workgroup
    s_lshl_b32 s47, s78, 7
    s_add_u32 s47, s47, s40
    v_lshrrev_b32 v7, 3, v0              ; r
    v_and_b32 v8, 7, v0                  ; p
    v_lshrrev_b32 v9, 1, v7
    v_xor_b32 v8, v8, v9
    v_mul_u32_u24 v7, 1280, v7
    v_lshl_add_u32 v2, v8, 4, v7
    v_xor_b32 v3, 64, v2
    s_mov_b32 s18, 2621440
    s_mov_b32 s19, 0x20000
    s_mov_b32 s22, {WS_SIZE}
    s_mov_b32 s23, 0x20000
    s_lshl_b32 s28, s30, 3
    s_add_u32 s28, s28, s31
    s_cmp_ge_u32 s28, 23
    s_cselect_b32 s34, 7, 0
    s_and_b32 s34, s34, s31
    s_waitcnt lgkmcnt(0)
    s_mov_b32 s16, s4
    s_mov_b32 s17, s5
    s_mov_b32 s20, s14
    s_mov_b32 s21, s15
    s_mov_b32 s14, s12
    s_mov_b32 s15, s13
    s_cmp_eq_u32 s34, 7
    s_cbranch_scc1 K1_spare
    s_cmp_lt_u32 s3, 4
    s_cbranch_scc1 K1_nox0
    """)
    prof_stamp(A, 0)
    for e in range(8):
        A(f"s_add_u32 s48, s47, {e*8*1280}\ns_add_u32 m0, s43, {e*1024}\ns_nop 0\nbuffer_load_dwordx4 v{2+(e&1)}, s[16:19], s48 offen lds")
    A.label("K1_nox0")
    A(f"""
    s_mov_b32 s34, 1
    s_lshl_b32 s35, s30, 1
    s_add_u32 s35, s35, s31              ; hg
    s_add_u32 s29, s35, 18
    s_cmp_lt_u32 s31, 2
    s_cbranch_scc1 K1_typed
    s_mov_b32 s34, 2
    s_mov_b32 s35, s30                   ; qb
    s_add_u32 s29, s35, 26
    s_cmp_eq_u32 s31, 2
    s_cbranch_scc1 K1_typed
    s_mov_b32 s34, 0
    s_mul_i32 s35, s30, 5
    s_lshl_b32 s36, s30, 2
    s_add_u32 s36, s36, 2
    s_min_u32 s35, s35, s36
    s_add_u32 s35, s35, s31
    s_sub_u32 s35, s35, 3
    s_mov_b32 s29, s35
    """)
    A.label("K1_typed")
    A("s_cmp_lt_u32 s3, 4\ns_cbranch_scc1 K1_compute\ns_load_dwordx2 s[70:71], s[0:1], 24\ns_load_dwordx2 s[72:73], s[0:1], 56")
    A(f"""
    s_lshr_b32 s58, s41, 1               ; half
    s_and_b32 s59, s41, 1
    s_cmp_eq_u32 s34, 0
    s_cbranch_scc0 K1_lp_qkv
    s_cmp_lt_u32 s41, 2
    s_cselect_b32 s24, s8, s10
    s_cselect_b32 s25, s9, s11
    s_mov_b32 s26, {640*3456}
    s_mov_b32 s60, 3456
    s_mov_b32 s61, 12
    s_mov_b32 s38, {(1<<32)//12+1}
    s_mul_i32 s37, s35, 192
    s_mov_b32 s39, 0
    s_mul_i32 s62, s59, 3
    s_mov_b32 s63, 5
    s_mul_i32 s64, s58, 6144
    s_mov_b32 s65, 12288
    s_branch K1_lp_go
    """)
    A.label("K1_lp_qkv")
    A(f"""
    s_mov_b32 s24, s6
    s_mov_b32 s25, s7
    s_mov_b32 s26, {640*3840}
    s_mov_b32 s60, 3840
    s_mov_b32 s61, 20
    s_mov_b32 s38, {(1<<32)//20+1}
    s_mul_i32 s37, s35, 160
    s_add_u32 s37, s37, 1280
    s_mul_i32 s39, s35, 320
    s_cmp_eq_u32 s34, 2
    s_cselect_b32 s37, s39, s37
    s_cselect_b32 s39, 0, {1280-160}
    s_mul_i32 s62, s41, 3
    s_lshl_b32 s57, s41, 1
    s_add_u32 s57, s57, 2
    s_min_u32 s62, s62, s57
    s_mov_b32 s63, 9
    s_mov_b32 s64, 0
    s_mov_b32 s65, 10240
    """)
    A.label("K1_lp_go")
    A("s_mov_b32 s27, 0x20000\ns_lshl_b32 s42, s60, 5\nv_mov_b32 v10, s39\ns_lshl_b32 s49, s78, 1\ns_mul_i32 s49, s49, s42\ns_add_u32 s47, s49, s42")
    for e in range(3):
        A(f"""s_add_u32 s36, s62, {e}
        s_min_u32 s36, s36, s63
        s_lshl_b32 s{44+e}, s36, 10
        s_add_u32 s{44+e}, s{44+e}, s64
        s_lshl_b32 s36, s36, 6
        v_add_u32 v7, s36, v0
        v_mul_hi_u32 v8, v7, s38
        v_mul_lo_u32 v9, v8, s61
        v_sub_u32 v9, v7, v9
        v_bfe_u32 v11, v8, 3, 1
        v_lshlrev_b32 v11, 1, v11
        v_xor_b32 v9, v9, v11
        v_mul_lo_u32 v8, v8, s60
        v_lshl_add_u32 v8, v9, 4, v8
        v_cmp_le_u32 vcc, 10, v9
        v_cndmask_b32 v9, 0, v10, vcc
        v_add3_u32 v{4+e}, v8, v9, s37
        s_add_u32 m0, s{44+e}, {WBASE}
        s_nop 0
        buffer_load_dwordx4 v{4+e}, s[24:27], s49 offen lds""")
    for e in range(3):
        A(f"s_add_u32 s36, s{44+e}, s65\ns_add_u32 m0, s36, {WBASE}\ns_nop 0\nbuffer_load_dwordx4 v{4+e}, s[24:27], s47 offen lds")
    prof_stamp(A, 1)
    A(f"""
    s_lshl_b32 s66, s32, 8
    s_lshl_b32 s36, s28, 3
    s_add_u32 s66, s66, s36
    s_lshl_b32 s36, s41, 1
    s_add_u32 s66, s66, s36
    s_lshl_b32 s56, s32, 4
    s_lshl_b32 s57, s59, 3
    s_add_u32 s56, s56, s57
    s_lshl_b32 s52, s29, 4
    s_mul_i32 s53, s52, 768
    s_mul_i32 s57, s41, 192
    s_add_u32 s53, s53, s57
    s_add_u32 s53, s53, {WS_CSP}
    s_lshl_b32 s57, s32, 1
    s_add_u32 s52, s52, s57
    s_add_u32 s52, s52, s59
    s_mul_i32 s52, s52, 768
    s_add_u32 s52, s52, {WS_CSP}
    v_lshrrev_b32 v12, 4, v0
    v_and_b32 v13, 15, v0
    v_mov_b32 v14, 0x7ffffff0
    v_mul_lo_u32 v7, v12, s60
    v_lshl_add_u32 v7, v13, 4, v7
    s_mul_i32 s50, s56, s60
    s_add_u32 s50, s50, s37
    s_lshl_b32 s51, s60, 2
    s_cmp_eq_u32 s34, 0
    s_cbranch_scc0 K1_l_qkv
    v_cmp_gt_u32 vcc, 12, v13
    v_cndmask_b32 v7, v14, v7, vcc
    s_mul_i32 s57, s58, 384
    s_add_u32 s52, s52, s57
    """)
    k1_loader(A, True, 3, "LG")
    A.label("K1_l_qkv")
    A(f"""
    v_cmp_gt_u32 vcc, 10, v13
    v_cndmask_b32 v7, v14, v7, vcc
    s_add_u32 s39, s39, 160
    s_mul_i32 s39, s39, s58
    s_add_u32 s50, s50, s39
    s_mul_i32 s57, s58, 320
    s_add_u32 s52, s52, s57
    s_mul_i32 s54, s35, 15
    s_mov_b32 s55, 15
    s_sub_u32 s57, s34, 1
    s_lshl_b32 s54, s54, s57
    s_lshl_b32 s55, s55, s57
    s_lshl_b32 s57, s41, 3
    s_add_u32 s54, s54, s57
    s_lshl_b32 s54, s54, 10
    s_add_u32 s54, s54, {WS_WPF}
    s_max_u32 s55, s55, s57
    s_sub_u32 s55, s55, s57
    s_cmp_ge_u32 s41, 2
    s_cbranch_scc1 K1_l_qkv2
    """)
    k1_loader(A, False, 3, "LA")
    A.label("K1_l_qkv2")
    k1_loader(A, False, 2, "LB")
    A.label("K1_spare")
    k1_spare(A)
    A.label("K1_compute")
    A("s_mov_b32 s79, 0")
    if "cx1" in EXP:
        A(f"""s_lshl_b32 s40, s32, 8
        s_lshl_b32 s36, s3, 6
        s_add_u32 s40, s40, s36
        s_mul_i32 s40, s40, 1280
        s_add_u32 s47, s78, 1
        s_sub_u32 s48, s47, 10
        s_cselect_b32 s47, s47, s48
        s_lshl_b32 s47, s47, 7
        s_add_u32 s47, s47, s40
        s_mul_i32 s43, s3, {XWAVE}
        s_sleep {CXSLEEP}""")
        for e in range(8):
            A(f"s_add_u32 s48, s47, {e*8*1280}\ns_add_u32 m0, s43, {XSLOT + e*1024}\ns_nop 0\nbuffer_load_dwordx4 v{2+(e&1)}, s[16:19], s48 offen lds")
    A(f"""
    s_setprio 2
    v_mov_b32 v{VL}, v0
    v_and_b32 v1, 15, v0                 ; t
    v_lshrrev_b32 v2, 4, v0              ; g
    v_lshrrev_b32 v3, 1, v1              ; (t>>1)
    s_mul_i32 s36, s3, {XWAVE}
    v_lshlrev_b32 v4, 7, v1
    v_add_u32 v4, s36, v4
    v_xor_b32 v5, v2, v3
    v_lshl_add_u32 v{VX}, v5, 4, v4
    v_xor_b32 v{VX+1}, 64, v{VX}
    s_cmp_eq_u32 s34, 0
    s_mov_b32 s36, 320
    s_cselect_b32 s36, 192, s36
    v_lshlrev_b32 v4, 3, v2              ; 8g
    v_bfe_u32 v5, v0, 2, 2
    v_add_u32 v4, v4, v5
    v_mul_lo_u32 v4, v4, s36
    v_and_b32 v5, 3, v0
    v_lshl_add_u32 v4, v5, 3, v4
    v_add_u32 v4, {WBASE}, v4
    v_and_b32 v5, 1, v2
    v_lshlrev_b32 v5, 5, v5
    v_add_u32 v{VW}, v4, v5
    v_sub_u32 v{VW+1}, v4, v5
    s_lshl_b32 s37, s32, 2
    s_add_u32 s37, s37, s3               ; rb64
    s_lshl_b32 s52, s29, 4
    s_lshl_b32 s53, s32, 1
    s_add_u32 s52, s52, s53
    s_and_b32 s53, s3, 1
    s_add_u32 s52, s52, s53
    s_mul_i32 s52, s52, 768
    s_lshr_b32 s53, s3, 1
    s_cmp_eq_u32 s34, 0
    s_mov_b32 s54, 320
    s_cselect_b32 s54, 384, s54
    s_mul_i32 s53, s53, s54
    s_add_u32 s52, s52, s53
    s_add_u32 s52, s52, {WS_CSP}
    s_lshl_b32 s53, s32, 5
    s_add_u32 s53, s53, s28
    s_lshl_b32 s53, s53, 7
    s_add_u32 s53, s53, {WS_ST}
    s_cmp_lg_u32 s3, 0
    s_cselect_b32 s53, {OOB}, s53
    v_lshlrev_b32 v250, 4, v0
    s_mul_i32 s55, s3, 384
    s_add_u32 s55, s55, {L_ST+128}
    v_add_u32 v249, s55, v250
    v_mov_b32 v6, 0x7ffffff0
    v_cmp_gt_u32 vcc, s54, v250
    v_cndmask_b32 v250, v6, v250, vcc
    """)
    if "nosent" in EXP: A("s_nop 0\nbuffer_load_dword v8, v0, s[16:19], 0 offen\nbuffer_load_dword v8, v0, s[16:19], 0 offen\nbuffer_load_dword v8, v0, s[16:19], 0 offen")
    else: sentinel_fill(A, Q(A, "vmcnt", 63), 3, 8)
    A(f"""
    s_cmp_eq_u32 s34, 0
    s_cbranch_scc0 K1_c_qkv
    s_mul_i32 s50, s37, 74
    s_mul_i32 s51, s35, 3
    s_add_u32 s50, s50, s51
    s_lshl_b32 s50, s50, 12
    s_add_u32 s50, s50, {WS_AF}
    """)
    k1_mainloop(A, True)
    A.label("K1_compute_end")
    k1_epi_gu(A)
    if "hsent" in EXP: A(f"s_mov_b32 s57, {OOB}\nv_mov_b32 v0, v{VL}")
    else: A(f"s_lshl_b32 s57, s37, 7\ns_add_u32 s57, s57, {F_CH}\ns_mov_b32 s56, 17\nv_mov_b32 v0, v{VL}")
    A("s_branch P2_stream")
    A.label("K1_c_qkv")
    A(f"""s_lshl_b32 s57, s35, 3
    s_add_u32 s57, s57, s32
    s_lshl_b32 s57, s57, 2
    s_add_u32 s57, s57, s3
    s_lshl_b32 s57, s57, 11
    s_add_u32 s57, s57, {WS_KVP}
    s_cmp_eq_u32 s34, 1
    s_cselect_b32 s51, s57, {OOB}
    buffer_store_dwordx4 v[8:11], v12, s[20:23], s51 offen sc1
    buffer_store_dwordx4 v[8:11], v12, s[20:23], s51 offen offset:1024 sc1""")
    if "nodry" not in EXP:
        A("s_cmp_eq_u32 s34, 2\ns_cbranch_scc1 DK_skip")
        dry_run(A, ["DK0", "DK0", "DK0", "DK0"], "DK_ret")
        A.label("DK_skip")
    k1_mainloop(A, False)
    A(f"""
    s_cmp_eq_u32 s34, 2
    s_cbranch_scc1 K1_c_q
    """)
    k1_epi_kv(A)
    A(f"v_mov_b32 v0, v{VL}\ns_branch P2_aux")
    A.label("K1_c_q")
    A(f"""
    s_lshl_b32 s58, s37, 3
    s_lshl_b32 s51, s35, 1
    s_add_u32 s58, s58, s51
    s_mul_i32 s58, s58, {4*2560}
    s_add_u32 s58, s58, {WS_PQ}
    """)
    k1_epi_q(A)
    A(f"s_lshl_b32 s57, s37, 7\ns_add_u32 s57, s57, {F_CP}\ns_mov_b32 s56, 3\nv_mov_b32 v0, v{VL}")
    phase2(A)
    A.label("K1_end")
    A("s_endpgm")
    return A

def p2_flag(A, tag):
    A(f"s_cmp_ge_u32 s57, {OOB}\ns_cbranch_scc1 {tag}_noflag\ns_waitcnt vmcnt(0)")
    flag_add(A, 57, 56, 4, tag + "_notlast")
    A.label(f"{tag}_noflag")
    prof_stamp(A, 6)
def p2_pre(A, first):
    p2_map(A, 74, 75)
    A(f"""
    s_and_b32 s76, s3, 3
    {f"s_add_u32 s67, s76, {first}" if first else "s_mov_b32 s67, 0"}
    s_mul_i32 s77, s74, 74
    s_add_u32 s77, s77, s67
    s_lshl_b32 s77, s77, 12
    s_add_u32 s77, s77, {WS_AF}
    s_mul_i32 s78, s75, 74
    s_add_u32 s78, s78, s67
    s_mul_i32 s78, s78, 5120
    s_add_u32 s78, s78, {WS_WF}
    """)
    if "hsent" in EXP: A("s_mul_i32 s79, s75, 9\ns_lshr_b32 s79, s79, 2")
    else:
        A(f"""s_and_b32 s67, s74, 3
        s_mul_i32 s67, s67, {ROTR}
        s_mul_i32 s79, s75, {ROTC}
        s_add_u32 s79, s79, s67
        s_lshr_b32 s79, s79, 2
        s_sub_u32 s67, s79, 54
        s_cselect_b32 s79, s79, s67
        s_add_u32 s79, s79, s76
        s_sub_u32 s67, s79, 54
        s_cselect_b32 s79, s79, s67""")
def p2_regs(A):
    A("s_mov_b32 s32, s74\ns_mov_b32 s33, s75\ns_mov_b32 s35, s76\ns_mov_b32 s40, s77\ns_mov_b32 s41, s78\ns_mov_b32 s58, s79\nv_lshlrev_b32 v2, 4, v0\nv_add_u32 v3, 4096, v2")
def cw_wait(A, tag):
    leader_wait(A, tag, "s_cmp_eq_u32 s3, 4", "v_and_b32 v4, 1, v0\nv_lshlrev_b32 v4, 6, v4", "global_load_dword v5, v4, s[14:15] offset:132 sc1", 5, "1", W_CW, 4)
WOB = 140
def wo_loads(A, rng, q=None):
    for i in rng:
        A(f"s_add_u32 s67, s78, {i*4*5120}")
        for ct in range(4): A(f"buffer_load_dwordx4 {v(WOB+20*i+4*ct,4)}, v2, s[20:23], s67 offen offset:{ct*1024} {BSC}")
        A(f"buffer_load_dwordx4 {v(WOB+20*i+16,4)}, v3, s[20:23], s67 offen {BSC}")
        if q:
            for _ in range(5): q.issue("WO")
def rot_off(A, dst, base, k, stride):
    if "hsent" not in EXP:
        A(f"""s_add_u32 s59, s58, {4*k}
        s_sub_u32 s{dst}, s59, 54
        s_cselect_b32 s59, s59, s{dst}
        s_mul_i32 s{dst}, s59, {stride}
        s_add_u32 s{dst}, s{dst}, s{base}""")
        if k == 13: A(f"s_cmp_lt_u32 s35, 2\ns_cselect_b32 s{dst}, s{dst}, {OOB}")
        return
    A(f"""s_add_u32 s59, s35, {4*k}
    s_mul_i32 s63, s59, 57
    s_lshr_b32 s63, s63, 10
    s_mul_i32 s{dst}, s63, 18
    s_sub_u32 s59, s59, s{dst}
    s_add_u32 s59, s59, s58
    s_sub_u32 s{dst}, s59, 18
    s_cselect_b32 s59, s59, s{dst}
    s_mul_i32 s59, s59, 3
    s_add_u32 s59, s59, s63
    s_mul_i32 s{dst}, s59, {stride}
    s_add_u32 s{dst}, s{dst}, s{base}""")
    if k == 13: A(f"s_cmp_lt_u32 s63, 3\ns_cselect_b32 s{dst}, s{dst}, {OOB}")

def skew_addr(A, d, t0, t1, base):
    A(f"v_lshrrev_b32 v{t0}, 5, v0\nv_add_u32 v{t0}, v{t0}, v0\nv_lshrrev_b32 v{t1}, 4, v0\nv_lshlrev_b32 v{t1}, 8, v{t1}\nv_add_u32 v{t1}, {base}, v{t1}")
    for ct in range(5): A(f"v_add_u32 v{d+ct}, {2*ct}, v{t0}\nv_and_b32 v{d+ct}, 15, v{d+ct}\nv_lshl_add_u32 v{d+ct}, v{d+ct}, 4, v{t1}")

def p2_aux(A):
    A.label("P2_aux")
    p2_pre(A, 54); p2_regs(A); cw_wait(A, "PAW")
    A("s_cmp_eq_u32 s34, 1\ns_cbranch_scc1 P2_a_2\ns_cmp_eq_u32 s34, 2\ns_cbranch_scc0 P2_a_noq")
    lds_spin(A, "AQ", W_Q, "4", 4, 5)
    A.label("P2_a_noq")
    A(f"s_mul_i32 s45, s33, {74*5120}\ns_add_u32 s45, s45, {WS_WF}\ns_mul_i32 s44, s35, 5120")
    for i in range(NL):
        rot_off(A, 43, 45, 4 + i, 5120)
        if "stage" in EXP and i == NSLOW: lds_spin(A, "AE", W_ED, "4", 4, 5)
        A(f"s_waitcnt vmcnt({(THR if i < NSLOW else 30) if 'stage' in EXP else THR})\ns_add_u32 m0, s44, {i*20480}\ns_nop 0")
        for ct in range(4): A(f"buffer_load_dwordx4 v2, s[20:23], s43 offen offset:{ct*1024} {BSC} lds")
        A(f"s_add_u32 m0, s44, {i*20480+4096}\ns_nop 0\nbuffer_load_dwordx4 v3, s[20:23], s43 offen {BSC} lds")
    wo_loads(A, range(1, 5))
    A.label("P2_a_2")
    A("s_setprio 3")
    prof_stamp(A, 7)
    A(f"""s_cmp_eq_u32 s34, 1
    s_cbranch_scc1 P2_a_3
    s_lshr_b32 s36, s2, 5
    s_cmp_ge_u32 s36, 6
    s_cselect_b32 s65, 1, 0
    s_sub_u32 s64, s32, 1
    s_and_b32 s64, s64, 3
    s_and_b32 s36, s32, 28
    s_or_b32 s64, s64, s36
    s_cmp_eq_u32 s65, 1
    s_cselect_b32 s64, s64, s32""")
    leader_wait(A, "AP", "s_cmp_eq_u32 s35, 0", f"""s_lshl_b32 s37, s32, 7
    s_lshl_b32 s38, s64, 7
    v_mov_b32 v4, s37
    v_writelane_b32 v4, s38, 0
    s_mov_b32 s37, {F_CP+F_RDY}""", "buffer_load_dword v5, v4, s[20:23], s37 offen sc1", 5, "1", W_CP, 4)
    def pq_load(rb, R):
        A(f"""s_lshl_b32 s36, s{rb}, 3
        s_add_u32 s36, s36, s33
        s_mul_i32 s36, s36, {4*2560}
        s_add_u32 s36, s36, {WS_PQ}
        buffer_load_dwordx4 {v(R,4)}, v6, s[20:23], s36 offen sc1
        buffer_load_dwordx4 {v(R+4,4)}, v6, s[20:23], s36 offen offset:1024 sc1
        buffer_load_dwordx2 {v(R+8,2)}, v7, s[20:23], s36 offen offset:2048 sc1""")
    def phi(R, OUT):
        for k in range(10): A(f"v_lshlrev_b32 v{40+2*k}, 16, v{R+k}\nv_and_b32 v{41+2*k}, 0xffff0000, v{R+k}")
        dual_softmax(A, 40, 60, OUT, 240, "s[52:53]")
    A("""v_lshrrev_b32 v20, 4, v0
    v_mul_u32_u24 v20, 2560, v20
    v_and_b32 v21, 15, v0
    s_lshl_b32 s36, s35, 4
    v_add_u32 v21, s36, v21
    v_lshl_add_u32 v6, v21, 4, v20
    v_lshl_add_u32 v7, v21, 3, v20""")
    pq_load(32, 8); pq_load(64, 24)
    A(f"""
    s_lshl_b32 s47, s33, 16
    s_lshl_b32 s38, s35, 11
    s_add_u32 s47, s47, s38
    s_add_u32 s47, s47, {WS_KVP}
    s_add_u32 s48, s47, 32768
    s_add_u32 s38, s38, {KVB}
    v_and_b32 v20, 15, v0
    v_lshrrev_b32 v21, 4, v0
    v_lshlrev_b32 v19, 4, v20
    v_lshl_add_u32 v19, v21, 3, v19
    v_add_u32 v19, s38, v19
    v_and_b32 v18, 3, v0
    v_mul_u32_u24 v18, 80, v18
    v_add_u32 v18, s38, v18
    s_mov_b32 s52, {LOG2E}
    s_mov_b32 s53, {LOG2E}
    """)
    o_offsets(A, 32, 33, 35, 44, 45, 46)
    o_offsets(A, 64, 33, 35, 60, 61, 62)
    A("s_waitcnt vmcnt(0)")
    lds_inc(A, W_BL, 4, 5)
    phi(8, 100)
    A("s_cmp_eq_u32 s65, 0\ns_cbranch_scc1 P2_a_p1")
    phi(24, 120)
    A.label("P2_a_p1")
    A("""v_and_b32 v20, 15, v0
    v_lshrrev_b32 v21, 4, v0
    v_lshlrev_b32 v16, 4, v20
    v_lshl_add_u32 v16, v21, 13, v16
    v_mov_b32 v21, 0x7ffffff0
    v_cmp_gt_u32 vcc, 8, v20
    v_cndmask_b32 v17, v21, v16, vcc
    v_mov_b32 v21, 0x3f80
    v_mov_b32 v22, 0x3f800000""")
    for k in range(4):
        A(f"v_cmp_eq_u32 vcc, {2*k}, v20\nv_cndmask_b32 v{84+k}, 0, v21, vcc\nv_cmp_eq_u32 vcc, {2*k+1}, v20\nv_cndmask_b32 v{84+k}, v{84+k}, v22, vcc")
    o_lane(A, 6, 7)
    FBUF = [140, 144, 148, 152, 156, 240, 244, 248, 252, 8, 12]
    for b in FBUF:
        for i in range(4): A(f"v_mov_b32 v{b+i}, 0")
    prof_stamp(A, 8)
    leader_wait(A, "AK", "s_cmp_eq_u32 s35, 0", f"s_lshl_b32 s37, s33, 16\ns_add_u32 s37, s37, {WS_KVP + 1916}\nv_and_b32 v4, 31, v0\nv_lshlrev_b32 v4, 11, v4", "buffer_load_dword v5, v4, s[20:23], s37 offen sc1", 5, "data", W_CK, 4)
    prof_stamp(A, 9)
    A(f"s_mov_b32 s68, {SPIN_MAX}")
    A.label("KV_rty")
    for g in range(8):
        for q_ in range(2):
            r = 20 + 8 * g + 4 * q_
            A(f"buffer_load_dwordx4 {v(r,4)}, v{16 if g < 7 else 17}, s[20:23], s{47+q_} offen offset:{g*256} sc1")
    for g in range(8):
        r = 20 + 8 * g
        A(f"s_waitcnt vmcnt({14-2*g})")
        A(f"v_max3_u32 v96, v{r}, v{r+1}, {'v96' if g else f'v{r+7}'}")
        for k in (2, 4) + ((6,) if g else ()): A(f"v_max3_u32 v96, v{r+k}, v{r+k+1}, v96")
        if not g: A(f"v_max_u32 v96, v{r+6}, v96")
        A(f"v_mfma_f32_16x16x32_bf16 {v(88+4*(g%2),4)}, v[84:87], {v(r,4)}, 0")
        A(f"v_mfma_f32_16x16x32_bf16 {v(88+4*(g%2),4)}, v[84:87], {v(r+4,4)}, {v(88+4*(g%2),4)}")
        def put(gg):
            p = 88 + 4 * (gg % 2); d = 20 + 8 * gg
            A(f"v_cvt_pk_bf16_f32 v{d}, v{p}, v{p+1}\nv_cvt_pk_bf16_f32 v{d+1}, v{p+2}, v{p+3}\ns_mov_b64 exec, 0xffffffff\nds_write_b64 v19, {v(d,2)} offset:{gg*256}\ns_mov_b64 exec, -1")
        if g: put(g - 1)
    put(7)
    A("v_cmp_eq_u32 vcc, -1, v96\ns_cbranch_vccz KV_ok\ns_sub_u32 s68, s68, 1\ns_cbranch_scc0 KV_rty")
    A.label("KV_ok")
    A("s_mov_b32 s50, 0x00f0000f\ns_mov_b32 s51, 0xf0000f00\ns_waitcnt lgkmcnt(0)")
    def slices(dual):
        q = Q(A, "lgkmcnt", 15)
        order = [5, 0, 1, 2, 3, 4]
        acc2 = [64, 68, 72, 76, 80, 84]
        seq = [(t, c) for t in order for c in range(5)]
        NB = len(FBUF)
        def rdA(lo, hi):
            A("s_mov_b64 exec, s[50:51]")
            for n in range(lo, min(hi, 30)):
                t, c = seq[n]
                A(f"ds_read_b128 {v(FBUF[n % NB],4)}, v18 offset:{t*320+c*16}"); q.issue(n)
            A("s_mov_b64 exec, -1")
        rdA(0, 10)
        for k, t in enumerate(order):
            for c in range(5):
                n = 5 * k + c
                q.wait({n})
                A(f"v_mfma_f32_16x16x32_bf16 {v(40+4*t,4)}, {v(FBUF[n % NB],4)}, {v(100+4*c,4)}, {'0' if c==0 else v(40+4*t,4)}")
                if dual: A(f"v_mfma_f32_16x16x32_bf16 {v(acc2[t],4)}, {v(FBUF[n % NB],4)}, {v(120+4*c,4)}, {'0' if c==0 else v(acc2[t],4)}")
            if 5 * k + 10 < 30: rdA(5 * k + 10, 5 * k + 15)
            if k == 2:
                A("v_add_f32 v60, 0x358637bd, v60\nv_rcp_f32 v60, v60")
                if dual: A("v_add_f32 v84, 0x358637bd, v84\nv_rcp_f32 v84, v84")
        for (ac, den, O, so) in [(40, 60, 20, 44)] + ([(64, 84, 30, 60)] if dual else []):
            for k in range(10):
                r = ac + 2 * k
                A(f"v_pk_mul_f32 {v(r,2)}, {v(r,2)}, {v(den,2)} op_sel_hi:[1,0]\nv_cvt_pk_bf16_f32 v{O+k}, v{r}, v{r+1}")
            A(f"""buffer_store_dwordx4 {v(O,4)}, v6, s[20:23], s{so} offen sc1
            buffer_store_dwordx4 {v(O+4,4)}, v6, s[20:23], s{so+1} offen sc1
            buffer_store_dwordx2 {v(O+8,2)}, v6, s[20:23], s{so+2} offen sc1""")
    A("s_cmp_eq_u32 s65, 0\ns_cbranch_scc1 P2_a_s1")
    slices(True)
    A("s_branch P2_a_4")
    A.label("P2_a_s1")
    slices(False)
    A("s_branch P2_a_4")
    A.label("P2_a_3")
    wo_loads(A, range(1, 5))
    lds_inc(A, W_KVS, 4, 5)
    A.label("P2_a_4")
    prof_stamp(A, 10)
    wo_loads(A, [0])
    leader_wait(A, "AO", "s_cmp_eq_u32 s35, 0", f"""s_mul_i32 s37, s32, {74*4096}
    s_add_u32 s37, s37, {WS_AF + 56*4096 + 3*1024 + 244}
    v_bfe_u32 v4, v0, 3, 2
    v_mul_u32_u24 v4, {5*4096}, v4
    v_bfe_u32 v5, v0, 2, 1
    v_lshl_add_u32 v4, v5, 3, v4
    v_and_b32 v5, 3, v0
    v_lshl_add_u32 v4, v5, 8, v4""", "buffer_load_dword v5, v4, s[20:23], s37 offen sc1", 5, "data", W_O, 4)
    prof_stamp(A, 6)
    A(f"s_mov_b32 s68, {SPIN_MAX}")
    qv = Q(A, "vmcnt", 63)
    def ld(i, model=True, E=A):
        E(f"s_add_u32 s42, s40, {((i+1)%5)*4*4096}")
        for T in range(4):
            E(f"buffer_load_dwordx4 {v(84+16*(i%3)+4*T,4)}, v2, s[20:23], s42 offen offset:{T*1024} sc1")
            if model: qv.issue(i)
    oo = [1, 2, 3, 4, 0]
    ld(0); ld(1); ld(2)
    A(f"s_mul_i32 s36, s35, 20480\ns_add_u32 s36, s36, {APART}")
    skew_addr(A, 134, 132, 133, "s36")
    for i in range(5):
        qv.wait({i})
        b = 84 + 16 * (i % 3)
        A(f"s_branch P2_chk{i}")
        A.label(f"P2_rty{i}")
        A(f"s_sub_u32 s68, s68, 1\ns_cbranch_scc1 P2_ok{i}\ns_sleep 2")
        ld(i, False)
        A("s_waitcnt vmcnt(0)")
        A.label(f"P2_chk{i}")
        A(f"v_max3_u32 v132, v{b}, v{b+1}, v{b+2}")
        for k in range(3, 15, 2): A(f"v_max3_u32 v132, v132, v{b+k}, v{b+k+1}")
        A(f"v_max_u32 v132, v132, v{b+15}\nv_cmp_eq_u32 vcc, -1, v132\ns_cbranch_vccnz P2_rty{i}")
        A.label(f"P2_ok{i}")
        if i == 0: prof_stamp(A, 11)
        S = Buf()
        if 1 <= i <= 2: ld(i + 2, True, S)
        M = [f"v_mfma_f32_16x16x32_bf16 {v(4+4*(T*5+ct),4)}, {v(WOB+20*oo[i]+4*ct,4)}, {v(b+4*T,4)}, {'0' if i==0 else v(4+4*(T*5+ct),4)}" for ct in range(5) for T in range(4)]
        weave(A, M, S.l, 0, 2)
    lds_spin(A, "AS", W_SD, "4", 132, 133)
    prof_stamp(A, 12)
    for t in range(20): A(f"ds_write_b128 v{134+t%5}, {v(4+4*t,4)} offset:{t*1024}")
    A("s_waitcnt lgkmcnt(0)")
    lds_inc(A, W_AP, 132, 133)
    endpgm(A, 1)

def p2_stream(A, nl, tag):
    AP, BP, NA = 84, 148, NAD
    isL = lambda k: 4 <= k < 4 + nl
    if nl == 0: bslot = {k: k % 5 for k in range(14)}
    else:
        bslot = {0: 0, 1: 1, 2: 2, 3: 3, 11: 0, 12: 1, 13: 2}
        for k in range(4, 11): bslot[k] = 4 - (k % 2)
    q = Q(A, "vmcnt", 63); ql = Q(A, "lgkmcnt", 15)
    def ldB(k, E=A):
        b = BP + 20 * bslot[k]
        rot_off(E, 43, 41, k, 5120)
        for ct in range(4): E(f"buffer_load_dwordx4 {v(b+4*ct,4)}, v2, s[20:23], s43 offen offset:{ct*1024} {BSC}"); q.issue(("B", k))
        E(f"buffer_load_dwordx4 {v(b+16,4)}, v3, s[20:23], s43 offen {BSC}"); q.issue(("B", k))
    def rdB(k, E=A):
        b = BP + 20 * bslot[k]; i = k - 4
        for ct in range(5): E(f"ds_read_b128 {v(b+4*ct,4)}, v{248+i//3} offset:{(i%3)*20480+ct*1024}"); ql.issue(k)
    def ldA(k, model=True, E=A):
        rot_off(E, 42, 40, k, 4096)
        for T in range(4):
            E(f"buffer_load_dwordx4 {v(AP+16*(k%4)+4*T,4)}, v2, s[20:23], s42 offen offset:{T*1024} sc1")
            if model: q.issue(("A", k))
    hsent = "hsent" in EXP
    early = nl == 0 or not hsent
    if early:
        for k in range(5 if nl == 0 else 4): ldB(k)
    else:
        A(f"s_cmp_eq_u32 s57, {OOB+4}\ns_cbranch_scc0 {tag}_nopp")
    prof_stamp(A, 8)
    if hsent:
        leader_wait(A, tag + "H", "s_cmp_eq_u32 s35, 0", f"v_min_u32 v4, 17, v0\nv_mul_u32_u24 v4, {3*4096}, v4\ns_add_u32 s36, s40, 4092", "buffer_load_dword v5, v4, s[20:23], s36 offen sc1", 5, "data", W_CH, 4)
    else:
        leader_wait(A, tag + "H", "s_cmp_eq_u32 s35, 0", f"s_lshl_b32 s36, s32, 7\ns_add_u32 s36, s36, {F_CH+F_RDY}\nv_mov_b32 v4, 0", "buffer_load_dword v5, v4, s[20:23], s36 offen sc1", 5, "1", W_CH, 4)
    if not early: A.label(f"{tag}_nopp")
    prof_stamp(A, 9)
    tick(A, None)
    for k in range(4):
        ldA(k)
        if not early: ldB(k)
    A(f"s_mov_b32 s68, {SPIN_MAX}")
    if nl:
        A(f"s_mul_i32 s36, s35, 5120\nv_add_u32 v248, s36, v2\nv_add_u32 v249, {3*20480}, v248\nv_add_u32 v250, {6*20480}, v248")
    for k in range(14):
        if nl and k == 3:
            lds_spin(A, tag + "L", W_BL, "4", 251, 252)
            A(f"s_mov_b32 s68, {SPIN_MAX}")
            rdB(4)
        tick(A, 0)
        q.wait({("A", k), ("B", k)})
        tick(A, 1)
        a_ = AP + 16 * (k % 4)
        if hsent:
            A(f"s_branch {tag}_chk{k}")
            A.label(f"{tag}_rty{k}")
            A(f"s_sub_u32 s68, s68, 1\ns_cbranch_scc1 {tag}_ok{k}\ns_sleep 3")
            ldA(k, False)
            A("s_waitcnt vmcnt(0)")
            A.label(f"{tag}_chk{k}")
            A(f"v_max3_u32 v253, v{a_}, v{a_+1}, v{a_+2}")
            for j in range(3, 15, 2): A(f"v_max3_u32 v253, v253, v{a_+j}, v{a_+j+1}")
            A(f"v_max_u32 v253, v253, v{a_+15}\nv_cmp_eq_u32 vcc, -1, v253\ns_cbranch_vccnz {tag}_rty{k}")
            A.label(f"{tag}_ok{k}")
        if k == 0: prof_stamp(A, 10)
        if isL(k): ql.wait({k})
        tick(A, 3)
        S = Buf()
        if isL(k + 1) and k >= 4: rdB(k + 1, S)
        if k >= 1 and k + 3 < 14: ldA(k + 3, True, S)
        if nl == 0 and k >= 1 and k + 4 < 14: ldB(k + 4, S)
        if nl and 1 <= k <= 3: ldB(10 + k, S)
        side, cur = [], []
        for x in S.l:
            cur.append(x)
            if x.startswith(("buffer_", "ds_")): side.append("\n".join(cur)); cur = []
        b = BP + 20 * bslot[k]
        M = [f"v_mfma_f32_16x16x32_bf16 {v(4+4*(T*5+ct),4)}, {v(b+4*ct,4)}, {v(a_+4*T,4)}, {'0' if k==0 else v(4+4*(T*5+ct),4)}" for ct in range(5) for T in range(4)]
        weave(A, M, side, 0, 2 if len(side) > 5 else 4)
        tick(A, 2)

def phase2(A):
    A.label("P2_stream")
    A("s_load_dwordx2 s[6:7], s[0:1], 64\ns_setprio 0")
    lds_inc(A, W_ED, 4, 5)
    p2_flag(A, "PS")
    p2_pre(A, 0); p2_regs(A); cw_wait(A, "PSW")
    A("s_waitcnt lgkmcnt(0)")
    srd(A, 24, 6, 2621440)
    prof_stamp(A, 7)
    A("s_cmp_eq_u32 s34, 1\ns_cbranch_scc1 P2_stream0")
    p2_stream(A, NL, "SA")
    A("s_branch P2_red")
    A.label("P2_stream0")
    if "nokvs" in EXP: A(f"s_mov_b32 s40, {OOB}\ns_mov_b32 s41, {OOB}")
    p2_stream(A, 0, "SB")
    lds_spin(A, "SK", W_KVS, "4", 251, 252)
    A.label("P2_red")
    prof_stamp(A, 11)
    A(f"""
    s_lshl_b32 s44, s32, 2
    s_add_u32 s44, s44, s35
    s_mul_i32 s44, s44, {16*1280}
    s_mul_i32 s45, s33, 160
    s_add_u32 s44, s44, s45
    v_mov_b32 v93, 0x7ffffff0
    """)
    for r in range(3):
        A(f"""v_add_u32 v90, {64*r}, v0
        v_mul_u32_u24 v91, 205, v90
        v_lshrrev_b32 v91, 11, v91           ; t
        v_mul_u32_u24 v92, 10, v91
        v_sub_u32 v92, v90, v92              ; c
        v_mul_u32_u24 v{84+r}, 1280, v91
        v_lshl_add_u32 v{84+r}, v92, 4, v{84+r}
        v_lshlrev_b32 v{87+r}, 9, v92
        v_add_u32 v91, v91, v92
        v_and_b32 v91, 15, v91
        v_lshl_add_u32 v{87+r}, v91, 4, v{87+r}""")
        if r == 2: A("v_cmp_gt_u32 vcc, 32, v0\nv_cndmask_b32 v86, v93, v86, vcc\nv_cndmask_b32 v89, 0, v89, vcc")
        A(f"buffer_load_dwordx4 {v(140+4*r,4)}, v{84+r}, s[16:19], s44 offen")
    lds_inc(A, W_SD, 96, 97); lds_spin(A, "R1", W_SD, "4", 96, 97)
    prof_stamp(A, 4)
    for T in range(4):
        A(f"""s_sub_u32 s36, s35, {T+1}
        s_and_b32 s36, s36, 3
        s_cmp_eq_u32 s36, 3
        s_cbranch_scc1 R_own{T}
        s_add_u32 s36, s36, {3*T}
        s_mul_i32 s36, s36, 5120
        v_add_u32 v1, s36, v2""")
        for ct in range(5): A(f"ds_write_b128 v1, {v(4+4*(T*5+ct),4)} offset:{XCH+ct*1024}")
        A(f"s_branch R_nxt{T}")
        A.label(f"R_own{T}")
        for k in range(10): A(f"v_pk_mul_f32 {v(100+2*k,2)}, {v(4+20*T+2*k,2)}, 1.0 op_sel_hi:[1,0]")
        A.label(f"R_nxt{T}")
    A(f"""s_mul_i32 s36, s35, {3*5120}
    v_add_u32 v1, s36, v2
    s_mov_b32 s52, {NLOG2E}
    s_mov_b32 s53, {NLOG2E}
    s_mov_b32 s54, 1.0
    s_mov_b32 s55, 1.0
    s_waitcnt lgkmcnt(0)""")
    lds_inc(A, W_SX, 96, 97); lds_spin(A, "R2", W_SX, "4", 96, 97)
    prof_stamp(A, 7)
    for p in range(3):
        for ct in range(5): A(f"ds_read_b128 {v(4+20*p+4*ct,4)}, v1 offset:{XCH+p*5120+ct*1024}")
    A("s_waitcnt lgkmcnt(5)")
    for k in range(10): A(f"v_pk_add_f32 {v(4+2*k,2)}, {v(4+2*k,2)}, {v(24+2*k,2)}")
    A("s_waitcnt lgkmcnt(0)")
    for k in range(10): A(f"v_pk_add_f32 {v(100+2*k,2)}, {v(100+2*k,2)}, {v(44+2*k,2)}")
    for k in range(10): A(f"v_pk_add_f32 {v(100+2*k,2)}, {v(100+2*k,2)}, {v(4+2*k,2)}")
    for k in range(10): A(f"v_pk_mul_f32 {v(120+2*k,2)}, {v(100+2*k,2)}, s[52:53]")
    for i in range(20): A(f"v_exp_f32 v{120+i}, v{120+i}")
    for k in range(10): A(f"v_pk_add_f32 {v(120+2*k,2)}, {v(120+2*k,2)}, s[54:55]")
    for i in range(20): A(f"v_rcp_f32 v{120+i}, v{120+i}")
    for k in range(10): A(f"v_pk_mul_f32 {v(100+2*k,2)}, {v(100+2*k,2)}, {v(120+2*k,2)}")
    skew_addr(A, 124, 130, 131, "s36")
    for ct in range(5): A(f"ds_write_b128 v{124+ct}, {v(100+4*ct,4)} offset:{XCH+ct*1024}")
    A("s_waitcnt lgkmcnt(0)")
    for r in range(3):
        A(f"v_add_u32 v90, s36, v{87+r}\nds_read_b128 {v(100+8*r,4)}, v90 offset:{XCH}\nds_read_b128 {v(104+8*r,4)}, v90 offset:{XCH+256}")
    A(f"s_mul_i32 s36, s35, 5120\ns_add_u32 s36, s36, {APART}")
    for r in range(3): A(f"v_add_u32 v{87+r}, s36, v{87+r}\nv_add_u32 v{90+r}, {2*20480}, v{87+r}")
    prof_stamp(A, 8)
    A("s_waitcnt vmcnt(0)")
    for k in range(12): A(f"v_lshlrev_b32 v{152+2*k}, 16, v{140+k}\nv_and_b32 v{153+2*k}, 0xffff0000, v{140+k}")
    prof_stamp(A, 12)
    A("s_setprio 3")
    lds_spin(A, "R3", W_AP, "4", 96, 97)
    prof_stamp(A, 13)
    q = Q(A, "lgkmcnt", 15)
    def rds(r):
        for p in range(4):
            for h in range(2):
                A(f"ds_read_b128 {v([4,36,180][r]+8*p+4*h,4)}, v{(87 if p < 2 else 90)+r} offset:{(p%2)*20480+h*256}"); q.issue(r)
    rds(0)
    for r in range(3):
        q.wait({r})
        if r < 2: rds(r + 1)
        b = [4, 36, 180][r]
        for k in range(4):
            A(f"v_pk_add_f32 {v(b+2*k,2)}, {v(b+2*k,2)}, {v(b+8+2*k,2)}\nv_pk_add_f32 {v(b+16+2*k,2)}, {v(b+16+2*k,2)}, {v(b+24+2*k,2)}")
        for k in range(4): A(f"v_pk_add_f32 {v(b+2*k,2)}, {v(b+2*k,2)}, {v(b+16+2*k,2)}")
        for k in range(4): A(f"v_pk_fma_f32 {v(b+2*k,2)}, {v(b+2*k,2)}, {v(100+8*r+2*k,2)}, {v(152+8*r+2*k,2)}")
        for k in range(4): A(f"v_cvt_pk_bf16_f32 v{b+8+k}, v{b+2*k}, v{b+2*k+1}")
        A(f"buffer_store_dwordx4 {v(b+8,4)}, v{84+r}, s[24:27], s44 offen")
    endpgm(A, 1)
    p2_aux(A)

HEADER = open(f"cdna_kernels/{NAME}.s.ref").read().split("; Override launch")[0]

def build_single(A, aslist):
    n = NAME + "_kernel"
    t = HEADER
    t += f"; @launch kernel={n} grid=(256,1,1) block=(512,1,1) lds={K1_LDS}\n" if aslist else f"; @launch grid=(256,1,1) block=(512,1,1) lds={K1_LDS}\n"
    body = A.text()
    if "noalign" not in EXP:
        body, a_, b_ = align_pass(body); print("align: promoted", a_, "nops", b_)
    t += '.amdgcn_target "amdgcn-amd-amdhsa--gfx950"\n.text\n' + kernel_head(n) + body + "\n"
    t += '.section .rodata,"a"\n.p2align 6\n' + kernel_desc(n, 256, 100)
    return t

if __name__ == "__main__":
    if "--prof" in sys.argv: PROF = True; sys.argv.remove("--prof")
    aslist = "--list" in sys.argv or PROF
    if "--list" in sys.argv: sys.argv.remove("--list")
    for a_ in list(sys.argv):
        if a_.startswith("--thr="): THR = int(a_[6:]); sys.argv.remove(a_)
        if a_.startswith("--bsc="): BSC = a_[6:]; sys.argv.remove(a_)
        if a_.startswith("--aux="): AUXS = a_[6:]; sys.argv.remove(a_)
        if a_.startswith("--wsleep="): WSLEEP = int(a_[9:]); sys.argv.remove(a_)
        if a_.startswith("--na="): NAD = int(a_[5:]); sys.argv.remove(a_)
        if a_.startswith("--nslow="): NSLOW = int(a_[8:]); sys.argv.remove(a_)
        if a_.startswith("--rot="): ROTR, ROTC = map(int, a_[6:].split(",")); sys.argv.remove(a_)
        if a_ == "--nokrot": KROT = False; sys.argv.remove(a_)
        if a_.startswith("--pub="): PUBU = int(a_[6:]); sys.argv.remove(a_)
        if a_.startswith("--rlu="): RLU = int(a_[6:]); sys.argv.remove(a_)
        if a_.startswith("--x="): EXP |= set(a_[4:].split(",")); sys.argv.remove(a_)
    out = sys.argv[1] if len(sys.argv) > 1 else "v5.s"
    open(out, "w").write(build_single(gen_k1(), aslist))
    print("written", out)
```

```python
import sys
from asmlib import *

NAME = "recurrent_scan__linear_kernel_hedgehog__swiglu_ffn__prompt"
USE_XN = False
WS_AF  = 0x300000
WS_WF  = 0xD00000
WS_PQ  = 0x1000000
WS_KVT = 0x1300000
WS_FLG = WS_KVT + 122880
F_CH = WS_FLG; F_CP = WS_FLG + 32 * 128; F_CK = WS_FLG + 64 * 128
F_RDY = 72 * 128
WS_KVP = 0x1400000
WS_WPF = 0x1340000
WS_ST  = 0x1380000
WS_CSP = 0x1390000
WS_SIZE = 0x10000000
LOG2E = 0x3fb8aa3b
NLOG2E = 0xbfb8aa3b
OOB = 0x7ff00000
SPIN_MAX = 100000
THR = 6
OST = ''
CPFS = 10
NTU = 20
NTX = NTW = NTA = NTR = ''
SSLEEP = 40
PUBU = 6
RLU = 8
CX1_AFTER = [0, 0]
CXSLEEP = 6
ROTR, ROTC = 0, 0
KROT = False
NAD = 4
NSLOW = 7
AUXS = 'B'
WSLEEP = 0
OSLEEP = 8
BSC = 'sc1'
PROF = False
EXP = {"nodry", "stage", "b1"}
HST = 'sc1'
WS_PROF = 0x2000000

def prof_start(A):
    if PROF:
        A("s_memrealtime s[98:99]")
        for i in range(14): A(f"s_mov_b32 s{81+i}, 0")
        A("s_waitcnt lgkmcnt(0)\ns_mov_b32 s80, s98")
SLOTS = [0, 1, 2, 3, 4, 5, 6, 7, 8, 10, 12, 14, 17, 19]
def prof_stamp(A, i, cyc=False, force=False):
    if "slots" in EXP and not force: return
    if PROF: A(f"s_memrealtime s[98:99]\ns_waitcnt lgkmcnt(0)\ns_mov_b32 s{81+i}, s98")
    if PROF and cyc and "cyc" in EXP: A("s_memtime s[98:99]\ns_waitcnt lgkmcnt(0)\ns_sub_u32 s81, s98, s76\ns_add_u32 s81, s81, s80")
def tick(A, slot):
    if PROF and "sacc" in EXP:
        A(f"s_memtime s[98:99]\ns_waitcnt lgkmcnt(0)")
        if slot is not None: A(f"s_sub_u32 s97, s98, s96\ns_add_u32 s{81+slot}, s{81+slot}, s97")
        else: A("s_mov_b32 s81, 0\ns_mov_b32 s82, 0\ns_mov_b32 s83, 0\ns_mov_b32 s84, 0")
        A("s_mov_b32 s96, s98")
def endpgm(A, kid):
    if PROF:
        A(f"""s_waitcnt vmcnt(0)
        s_memrealtime s[98:99]
        s_mov_b64 exec, -1
        s_lshl_b32 s96, s2, 3
        s_add_u32 s96, s96, s3
        s_lshl_b32 s96, s96, 6
        s_add_u32 s96, s96, {WS_PROF + kid*272*8*64}
        s_waitcnt lgkmcnt(0)
        s_mov_b32 s95, s98""")
        for i in range(16): A(f"v_mov_b32 v{i}, s{80+i}")
        A("v_mov_b32 v16, 0")
        for i in range(4): A(f"buffer_store_dwordx4 {v(4*i,4)}, v16, s[20:23], s96 offen offset:{16*i}")
    A("s_endpgm")

def srd(A, d, b, nbytes, off=0):
    if off: A(f"s_add_u32 s{d}, s{b}, {off}\ns_addc_u32 s{d+1}, s{b+1}, 0")
    else: A(f"s_mov_b32 s{d}, s{b}\ns_mov_b32 s{d+1}, s{b+1}")
    A(f"s_mov_b32 s{d+2}, {nbytes}\ns_mov_b32 s{d+3}, 0x20000")

def bf16_round(A, d):
    A(f"v_cvt_pk_bf16_f32 v{d}, v{d}, v{d}\nv_lshlrev_b32 v{d}, 16, v{d}")

def row16_sum(A, r):
    for k in (8, 4, 2, 1):
        A(f"v_add_f32_dpp v{r}, v{r}, v{r} row_ror:{k} row_mask:0xf bank_mask:0xf")

class Q:
    def __init__(self, A, name, mx): self.A, self.name, self.mx, self.q, self.n = A, name, mx, [], 0
    def issue(self, tag):
        self.n += 1
        self.q.append(tag); assert len(self.q) <= self.mx + (0 if self.name == "vmcnt" else 99), (self.name, len(self.q))
    def wait(self, tags):
        idx = [i for i, t in enumerate(self.q) if t in tags]
        if not idx: return
        n = len(self.q) - 1 - max(idx)
        assert n <= self.mx
        self.A(f"s_waitcnt {self.name}({n})")
        self.q = self.q[max(idx) + 1:]

def code_warm(A, tag, endlabel, piece, vt, vd, start='K1_start', back=False):
    A(f"s_getpc_b64 s[70:71]")
    A.label(tag)
    A(f"""s_add_u32 s70, s70, {start}-{tag}
    s_addc_u32 s71, s71, {-1 if start == 'K1_start' or back else 0}
    s_lshl_b32 s72, {piece}, 13
    v_lshlrev_b32 v{vt}, 7, v0
    v_add_u32 v{vt}, s72, v{vt}
    v_min_u32 v{vt}, {endlabel}-{start}, v{vt}
    global_load_dword v{vd}, v{vt}, s[70:71]""")

def stats_issue(A, q, R, cs=range(5), rb=1):
    if 0 in cs:
        A(f"""v_bfe_u32 v{R+20}, v0, 4, {rb}
        v_mul_u32_u24 v{R+20}, 1280, v{R+20}
        v_and_b32 v{R+21}, 15, v0
        v_lshl_add_u32 v{R+20}, v{R+21}, 4, v{R+20}
        s_mul_i32 s69, s66, 1280""")
    for c in cs:
        A(f"buffer_load_dwordx4 {v(R+4*c,4)}, v{R+20}, s[16:19], s69 offen offset:{256*c} {NTA if 4*c < NTU else ''}"); q.issue("ST")
def stats_part1(A, R, X):
    m = R + 20
    A(f"v_mov_b32 v{X}, 0x3f803f80")
    A(f"v_dot2_f32_bf16 v{m}, v{R}, v{X}, 0\nv_dot2_f32_bf16 v{m+1}, v{R}, v{R}, 0\nv_dot2_f32_bf16 v{X+1}, v{R+1}, v{X}, 0\nv_dot2_f32_bf16 v{X+2}, v{R+1}, v{R+1}, 0")
    for i in range(2, 20, 2):
        A(f"v_dot2_f32_bf16 v{m}, v{R+i}, v{X}, v{m}\nv_dot2_f32_bf16 v{m+1}, v{R+i}, v{R+i}, v{m+1}")
        A(f"v_dot2_f32_bf16 v{X+1}, v{R+i+1}, v{X}, v{X+1}\nv_dot2_f32_bf16 v{X+2}, v{R+i+1}, v{R+i+1}, v{X+2}")
def stats_part2(A, R, X, sidx, rb=1):
    m = R + 20; s_ = R + 21
    A(f"s_nop 2\nv_add_f32 v{m}, v{m}, v{X+1}\nv_add_f32 v{s_}, v{s_}, v{X+2}")
    for k in (8, 4, 2, 1):
        A(f"v_add_f32_dpp v{m}, v{m}, v{m} row_ror:{k} row_mask:0xf bank_mask:0xf")
        A(f"v_add_f32_dpp v{s_}, v{s_}, v{s_} row_ror:{k} row_mask:0xf bank_mask:0xf")
    A(f"""v_mul_f32 v{m}, 0x3acccccd, v{m}
    v_mul_f32 v{s_}, 0x3acccccd, v{s_}
    v_fma_f32 v{s_}, -v{m}, v{m}, v{s_}
    v_max_f32 v{s_}, 0, v{s_}""")
    bf16_round(A, m); bf16_round(A, s_)
    A(f"v_add_f32 v{s_}, 0x3727c5ac, v{s_}")
    bf16_round(A, s_)
    A(f"v_sqrt_f32 v{s_}, v{s_}")
    bf16_round(A, s_)
    A(f"""v_rcp_f32 v{s_}, v{s_}
    v_bfe_u32 v{R}, v0, 4, {rb}
    v_lshlrev_b32 v{R}, 3, v{R}
    s_lshl_b32 s67, s{sidx}, {3+rb}
    s_add_u32 s67, s67, {L_ST}
    v_add_u32 v{R}, s67, v{R}
    ds_write_b64 v{R}, {v(m,2)}""")

def signal(A, vt, which):
    A(f"s_and_b32 s67, s2, 1\ns_lshl_b32 s67, s67, 6\ns_add_u32 s67, s67, {4*which}\nv_mov_b32 v{vt}, s67")
    A(f"""v_mov_b32 v{vt+1}, 1
    s_mov_b64 exec, 1
    global_atomic_add v{vt}, v{vt+1}, s[14:15]
    s_mov_b64 exec, -1""")

def p2_map(A, rb, cb):
    A(f"""s_and_b32 s{rb}, s2, 7
    s_lshl_b32 s{rb}, s{rb}, 2
    s_lshr_b32 s{cb}, s2, 3
    s_and_b32 s67, s{cb}, 3
    s_add_u32 s{rb}, s{rb}, s67
    s_lshr_b32 s{cb}, s{cb}, 2
    s_lshl_b32 s67, s67, 1
    s_add_u32 s{cb}, s{cb}, s67
    s_and_b32 s{cb}, s{cb}, 7""")
def o_offsets(A, rb, cb, e, o0, o1, o2):
    A(f"""s_lshr_b32 s{o2}, s{cb}, 1
    s_mul_i32 s{o2}, s{o2}, 5
    s_mul_i32 s{o1}, s{rb}, 74
    s_add_u32 s{o2}, s{o2}, s{o1}
    s_add_u32 s{o2}, s{o2}, 54
    s_lshl_b32 s{o2}, s{o2}, 4
    s_add_u32 s{o2}, s{o2}, s{e}
    s_lshl_b32 s{o2}, s{o2}, 8
    s_add_u32 s{o2}, s{o2}, {WS_AF}
    s_and_b32 s67, s{cb}, 1
    s_mul_i32 s{o0}, s67, {3*4096}
    s_add_u32 s{o0}, s{o0}, s{o2}
    s_add_u32 s{o1}, s{o0}, 4096
    s_lshl_b32 s67, s67, 3
    s_add_u32 s{o2}, s{o2}, s67
    s_add_u32 s{o2}, s{o2}, {2*4096}""")
def o_lane(A, d, t):
    A(f"v_lshrrev_b32 v{d}, 4, v0\nv_lshlrev_b32 v{d}, 10, v{d}\nv_and_b32 v{t}, 15, v0\nv_lshl_add_u32 v{d}, v{t}, 4, v{d}")
def sentinel_fill(A, q, e, vt):
    p2_map(A, 74, 75); o_offsets(A, 74, 75, e, 76, 77, 78)
    for i in range(4): A(f"v_mov_b32 v{vt+i}, -1")
    o_lane(A, vt + 5, vt + 4)
    A(f"""v_lshlrev_b32 v{vt+4}, 4, v0
    buffer_store_dwordx4 {v(vt,4)}, v{vt+5}, s[20:23], s76 offen sc1
    buffer_store_dwordx4 {v(vt,4)}, v{vt+5}, s[20:23], s77 offen sc1
    buffer_store_dwordx2 {v(vt,2)}, v{vt+5}, s[20:23], s78 offen sc1""")
    for i in range(3): q.issue("PUB")
def lds_spin(A, tag, off, expect, va, vr):
    A(f"v_mov_b32 v{va}, {L_CNT}\ns_mov_b32 s68, {SPIN_MAX*10}")
    A.label(f"{tag}_spin")
    A(f"ds_read_b32 v{vr}, v{va} offset:{off}\ns_waitcnt lgkmcnt(0)\nv_cmp_ne_u32 vcc, {expect}, v{vr}\ns_cbranch_vccz {tag}_out\ns_sub_u32 s68, s68, 1\ns_sleep 1\ns_cbranch_scc0 {tag}_spin")
    A.label(f"{tag}_out")
def lds_inc(A, off, va, vr):
    A(f"v_mov_b32 v{va}, {L_CNT}\nv_mov_b32 v{vr}, 1\ns_mov_b64 exec, 1\nds_add_u32 v{va}, v{vr} offset:{off}\ns_mov_b64 exec, -1")
def leader_wait(A, tag, lead_test, setup, load, vr, expect, off, va):
    A(f"{lead_test}\ns_cbranch_scc0 {tag}_fol")
    A(setup)
    spin(A, tag, load, vr, expect)
    lds_inc(A, off, va, vr)
    A(f"s_branch {tag}_done")
    A.label(f"{tag}_fol")
    lds_spin(A, tag + "F", off, "1", va, vr)
    A.label(f"{tag}_done")
def flag_add(A, soff, slast, vt, tag):
    A(f"""v_mov_b32 v{vt}, 1
    v_mov_b32 v{vt+1}, 0
    s_mov_b64 exec, 1
    buffer_atomic_add v{vt}, v{vt+1}, s[20:23], s{soff} offen sc0
    s_waitcnt vmcnt(0)
    v_readfirstlane_b32 s36, v{vt}
    v_mov_b32 v{vt}, 1
    s_cmp_lg_u32 s36, s{slast}
    s_cbranch_scc1 {tag}
    s_add_u32 s36, s{soff}, {F_RDY}
    buffer_store_dword v{vt}, v{vt+1}, s[20:23], s36 offen sc1""")
    A.label(tag)
    A("s_mov_b64 exec, -1")
def spin(A, tag, load, vr, expect, first=True, sleep=2):
    A(f"s_mov_b32 s68, {SPIN_MAX}")
    if not first: A(f"s_branch {tag}_chk")
    A.label(f"{tag}_spin")
    A(f"{load}\ns_waitcnt vmcnt(0)")
    A.label(f"{tag}_chk")
    cmp = f"v_cmp_eq_u32 vcc, -1, v{vr}" if expect == "data" else f"v_cmp_ne_u32 vcc, {expect}, v{vr}"
    A(f"{cmp}\ns_cbranch_vccz {tag}_out\ns_sub_u32 s68, s68, 1\ns_cbranch_scc1 {tag}_out\ns_sleep {sleep}\ns_branch {tag}_spin")
    A.label(f"{tag}_out")

def relayout_issue(A, q, lab, D):
    A(f"""
    s_cmp_lt_u32 s30, 740
    s_cselect_b32 s76, {WS_WF}, {OOB}
    s_cselect_b32 s77, 0, {OOB}
    s_mul_i32 s74, s30, 6554
    s_lshr_b32 s74, s74, 16         ; s = U/10
    s_mul_i32 s75, s74, 10
    s_sub_u32 s75, s30, s75         ; cq
    s_cmp_lt_u32 s74, 54
    s_cselect_b32 s4, s72, s70
    s_cselect_b32 s5, s73, s71
    s_mov_b32 s6, {640*1280}
    s_cselect_b32 s6, {1728*1280}, s6
    s_mov_b32 s7, 0x20000
    s_cselect_b32 s31, 4, 20        ; row step per lane group
    s_lshl_b32 s36, s74, 5          ; base (w_down)
    s_mov_b32 s38, 16               ; half step
    s_cmp_lt_u32 s74, 54
    s_cbranch_scc1 {lab}
    s_sub_u32 s33, s74, 54          ; s'
    s_mul_i32 s36, s33, 205
    s_lshr_b32 s36, s36, 10         ; P
    s_mul_i32 s48, s36, 5
    s_sub_u32 s33, s33, s48         ; ty
    s_mul_i32 s36, s36, 160
    s_lshl_b32 s48, s33, 3
    s_cmp_ge_u32 s33, 3
    s_cselect_b32 s47, 56, 0
    s_add_u32 s48, s48, s47
    s_add_u32 s36, s36, s48
    s_cmp_eq_u32 s33, 2
    s_cselect_b32 s38, 80, 4
    """.replace(f"s_cselect_b32 s76, {WS_WF}, {OOB}", f"s_mov_b32 s76, {OOB}\n    s_cselect_b32 s76, {WS_WF}, s76"))
    A.label(lab)
    A(f"""
    v_lshrrev_b32 v8, 5, v0
    v_mul_lo_u32 v8, v8, s38
    v_bfe_u32 v9, v0, 3, 2
    v_add_u32 v8, v8, v9
    v_mul_u32_u24 v8, 1280, v8
    v_and_b32 v9, 7, v0
    v_lshl_add_u32 v8, v9, 4, v8
    s_mul_i32 s36, s36, 1280
    s_lshl_b32 s47, s75, 7          ; cq*128
    s_add_u32 s47, s47, s36
    s_add_u32 s47, s47, s77
    s_mul_i32 s31, s31, 1280
    """)
    for g in range(4):
        A(f"buffer_load_dwordx4 {v(D+4*g,4)}, v8, s[4:7], s47 offen {NTR}"); q.issue("RL")
        if g < 3: A("s_add_u32 s47, s47, s31")
def relayout_finish(A, q, D, O, part):
    if part == 0: relayout_fin0(A, q, D)
    else: relayout_fin1(A, q, O)
def relayout_fin0(A, q, D):
    A(f"""
    s_add_u32 s47, s43, {((RLU // 2 + 2) % 3) * XSLOT + 4096}
    v_lshlrev_b32 v10, 4, v0
    v_add_u32 v8, s47, v10
    v_lshrrev_b32 v9, 4, v0
    v_lshlrev_b32 v9, 10, v9
    v_bfe_u32 v11, v0, 2, 2
    v_lshl_add_u32 v9, v11, 7, v9
    v_and_b32 v11, 3, v0
    v_lshl_add_u32 v9, v11, 3, v9
    v_add_u32 v9, s47, v9""")
    q.wait({"RL"})
    for g in range(4): A(f"ds_write_b128 v8, {v(D+4*g,4)} offset:{g*1024}")
def relayout_fin1(A, q, O):
    A("s_waitcnt lgkmcnt(0)")
    for tq in range(4):
        A(f"ds_read_b64_tr_b16 {v(O+4*tq,2)}, v9 offset:{tq*32}\nds_read_b64_tr_b16 {v(O+2+4*tq,2)}, v9 offset:{tq*32+512}")
    for tq in range(4):
        A(f"""s_lshl_b32 s47, s75, 2
        s_add_u32 s47, s47, {tq}          ; gt
        s_mul_i32 s48, s47, 205
        s_lshr_b32 s48, s48, 10          ; cb
        s_mul_i32 s49, s48, 5
        s_sub_u32 s47, s47, s49          ; ct
        s_mul_i32 s48, s48, 74
        s_add_u32 s48, s48, s74
        s_mul_i32 s48, s48, 5
        s_add_u32 s48, s48, s47
        s_lshl_b32 s48, s48, 10
        s_add_u32 s48, s48, s76
        s_waitcnt lgkmcnt({6-2*tq})
        buffer_store_dwordx4 {v(O+4*tq,4)}, v10, s[20:23], s48 offen sc1""")
        q.issue("RS")

def wpf_issue(A, D=16):
    A(f"""
    s_mul_i32 s31, s30, 4370
    s_lshr_b32 s31, s31, 16          ; hg = F/15
    s_mul_i32 s32, s31, 15
    s_sub_u32 s32, s30, s32
    s_mul_i32 s33, s32, 86
    s_lshr_b32 s33, s33, 8           ; tau
    s_mul_i32 s34, s33, 3
    s_sub_u32 s35, s32, s34          ; c
    s_lshl_b32 s33, s33, 2
    s_mul_i32 s39, s31, 1600
    s_add_u32 s39, s39, s33
    v_bfe_u32 v4, v0, 2, 2           ; head_out
    v_and_b32 v5, 3, v0
    v_mul_u32_u24 v6, 400, v4
    v_add_u32 v6, v6, v5
    v_add_u32 v6, s39, v6
    v_lshrrev_b32 v7, 4, v0
    v_lshlrev_b32 v7, 2, v7          ; 4*g
    s_lshl_b32 s35, s35, 5
    v_add_u32 v7, s35, v7            ; 32c + 4g
    v_mov_b32 v11, 0x7ffffff0
    """)
    for j in range(8):
        A(f"""v_add_u32 v8, {16*(j>>2)+(j&3)}, v7
        v_mul_u32_u24 v9, 205, v8
        v_lshrrev_b32 v9, 12, v9          ; head_in
        v_mul_u32_u24 v10, 20, v9
        v_sub_u32 v10, v8, v10            ; d
        v_mul_u32_u24 v10, 20, v10
        v_add_u32 v10, v10, v6
        v_lshlrev_b32 v10, 1, v10
        v_cmp_eq_u32 vcc, v9, v4
        v_cndmask_b32 v10, v11, v10, vcc
        buffer_load_ushort v{D+j}, v10, s[24:27], 0 offen""")

def k1_spare(A):
    q = Q(A, "vmcnt", 63)
    A(f"""
    s_load_dwordx2 s[60:61], s[0:1], 16
    s_load_dwordx2 s[62:63], s[0:1], 24
    s_load_dwordx2 s[64:65], s[0:1], 56
    s_lshl_b32 s58, s32, 1
    s_add_u32 s58, s58, s30
    s_sub_u32 s58, s58, 2
    s_lshl_b32 s66, s32, 8
    s_lshl_b32 s67, s28, 3
    s_add_u32 s66, s66, s67
    s_and_b32 s59, s3, 3
    s_lshl_b32 s67, s59, 1
    s_add_u32 s66, s66, s67
    """)
    if "nowarm" not in EXP:
        code_warm(A, "K1_warm", "K1_end", "s3", 100, 101)
        A(f"v_add_u32 v100, 65536, v100\nv_min_u32 v100, K1_end-K1_start, v100\nglobal_load_dword v101, v100, s[70:71]")
    stats_issue(A, q, 40)
    A("s_waitcnt lgkmcnt(0)")
    srd(A, 24, 60, 25600)
    A(f"""
    s_lshl_b32 s60, s58, 3
    s_add_u32 s60, s60, s3              ; SW 0..127
    s_min_u32 s30, s60, 119
    s_mov_b32 s61, s30
    """)
    wpf_issue(A)
    A(f"""
    v_mov_b32 v28, 0
    v_mov_b32 v29, 0
    v_mov_b32 v30, 0
    v_mov_b32 v31, 0
    v_lshlrev_b32 v3, 4, v0
    s_lshl_b32 s30, s60, 10
    s_add_u32 s30, s30, {WS_FLG}
    s_cmp_lt_u32 s60, 18
    s_cselect_b32 s30, s30, {OOB}
    buffer_store_dwordx4 v[28:31], v3, s[20:23], s30 offen sc1
    v_mov_b32 v32, {L_CNT}
    ds_write_b128 v32, v[28:31]
    ds_write_b128 v32, v[28:31] offset:16
    ds_write_b128 v32, v[28:31] offset:32
    ds_write_b128 v32, v[28:31] offset:48
    """)
    A("s_waitcnt vmcnt(1)")
    for p in range(4): A(f"v_lshl_or_b32 v{24+p}, v{17+2*p}, 16, v{16+2*p}")
    A(f"""s_lshl_b32 s30, s61, 10
    s_add_u32 s30, s30, {WS_WPF}
    buffer_store_dwordx4 v[24:27], v3, s[20:23], s30 offen sc1""")
    stats_part1(A, 40, 64); stats_part2(A, 40, 64, 59)
    A(f"""
    s_waitcnt lgkmcnt(0)
    s_barrier
    v_add_u32 v32, {L_ST}, v3
    ds_read_b128 v[36:39], v32
    s_lshr_b32 s30, s66, 3
    s_lshl_b32 s30, s30, 7
    s_add_u32 s30, s30, {WS_ST}
    s_mov_b64 exec, 0xff
    s_waitcnt lgkmcnt(0)
    buffer_store_dwordx4 v[36:39], v3, s[20:23], s30 offen sc1
    s_mov_b64 exec, -1
    s_sleep {SSLEEP}
    v_mov_b32 v28, -1
    v_mov_b32 v29, -1
    v_mov_b32 v30, -1
    v_mov_b32 v31, -1
    s_lshr_b32 s30, s60, 2
    s_mul_i32 s30, s30, 74
    s_and_b32 s31, s60, 3
    s_mul_i32 s31, s31, 5
    s_add_u32 s30, s30, s31
    s_add_u32 s30, s30, 54
    s_lshl_b32 s30, s30, 12
    s_add_u32 s30, s30, {WS_AF}
    s_lshl_b32 s31, s60, 12
    s_add_u32 s31, s31, {WS_KVP}""")
    for T in range(4): A(f"buffer_store_dwordx4 v[28:31], v3, s[20:23], s31 offen offset:{T*1024} sc1")
    for i in range(5):
        for T in range(4): A(f"buffer_store_dwordx4 v[28:31], v3, s[20:23], s30 offen offset:{T*1024} sc1")
        if i < 4: A("s_add_u32 s30, s30, 4096")
    A(f"""s_waitcnt vmcnt(0)
    s_barrier
    s_cmp_lg_u32 s3, 0
    s_cbranch_scc0 SP_w0""")
    if NTR: A("s_branch SP_w")
    if WSLEEP: A(f"s_sleep {WSLEEP}")
    srd(A, 4, 62, 640 * 1280); srd(A, 8, 64, 1728 * 1280)
    A("s_mul_i32 s63, s58, 7\ns_add_u32 s63, s63, s3\ns_sub_u32 s63, s63, 1")
    A("v_lshlrev_b32 v102, 7, v0\ns_lshl_b32 s30, s63, 13")
    for k in range(3): A(f"buffer_load_dword v103, v102, s[8:11], s30 offen\ns_add_u32 s30, s30, {112*8192}")
    A("s_lshl_b32 s30, s63, 13\nbuffer_load_dword v103, v102, s[4:7], s30 offen")
    A("s_branch SP_w")
    A.label("SP_w0")
    signal(A, 32, 0)
    prof_stamp(A, 1)
    A("s_cmp_lg_u32 s58, 0\ns_cbranch_scc1 SP_fol")
    ready_addr(A, 32)
    A(f"v_mov_b32 v34, 1\nv_mov_b32 v35, 0x80\ns_mov_b32 s30, 120\nv_writelane_b32 v35, s30, 2\nv_writelane_b32 v35, s30, 3\ns_mov_b64 s[70:71], 15\ns_mov_b32 s68, {SPIN_MAX}")
    A.label("SW_spin")
    A("""s_mov_b64 exec, s[70:71]
    global_load_dword v33, v32, s[14:15] sc1
    s_waitcnt vmcnt(0)
    v_cmp_eq_u32 vcc, v35, v33
    s_andn2_b64 s[70:71], s[70:71], vcc
    s_and_b64 exec, exec, vcc
    s_cbranch_execz SW_none
    global_store_dword v32, v34, s[14:15] offset:128 sc1""")
    A.label("SW_none")
    A("""s_cmp_eq_u64 s[70:71], 0
    s_cbranch_scc1 SW_out
    s_sub_u32 s68, s68, 1
    s_cbranch_scc1 SW_out
    s_sleep 6
    s_branch SW_spin""")
    A.label("SW_out")
    A("s_mov_b64 exec, -1\ns_branch SP_w")
    A.label("SP_fol")
    ready_addr(A, 32)
    spin(A, "SPG", "global_load_dword v33, v32, s[14:15] offset:128 sc1", 33, "1", sleep=8)
    A.label("SP_w")
    A(f"s_barrier\ns_mov_b32 s34, 0\ns_mov_b32 s57, {OOB+4}\ns_cmp_lt_u32 s3, 4\ns_cbranch_scc1 P2_stream")
    A("s_branch P2_aux")

def ready_addr(A, vr):
    A(f"v_and_b32 v{vr}, 1, v0\nv_lshlrev_b32 v{vr}, 6, v{vr}\nv_and_b32 v{vr+1}, 2, v0\nv_lshl_add_u32 v{vr}, v{vr+1}, 1, v{vr}")

def dual_softmax(A, P, E, OUT, T, SL):
    mx, mn = T, T + 2
    lo = SL.replace("[", "").split(":")[0]
    A(f"v_max3_f32 v{mx}, v{P}, v{P+1}, v{P+2}\nv_min3_f32 v{mn}, v{P}, v{P+1}, v{P+2}")
    for i in range(3, 19, 2):
        A(f"v_max3_f32 v{mx}, v{mx}, v{P+i}, v{P+i+1}\nv_min3_f32 v{mn}, v{mn}, v{P+i}, v{P+i+1}")
    A(f"v_max_f32 v{mx}, v{mx}, v{P+19}\nv_min_f32 v{mn}, v{mn}, v{P+19}")
    A(f"v_mul_f32 v{mx}, {lo}, v{mx}\nv_mul_f32 v{mn}, {lo}, v{mn}")
    for k in range(10):
        A(f"v_pk_fma_f32 {v(E+2*k,2)}, {v(P+2*k,2)}, {SL}, {v(mx,2)} op_sel_hi:[1,0,0] neg_lo:[0,0,1] neg_hi:[0,0,1]")
        A(f"v_pk_fma_f32 {v(E+20+2*k,2)}, {v(P+2*k,2)}, {SL}, {v(mn,2)} op_sel_hi:[1,0,0] neg_lo:[1,0,0] neg_hi:[1,0,0]")
    for i in range(40): A(f"v_exp_f32 v{E+i}, v{E+i}")
    sp, sm = T, T + 2
    A(f"v_pk_add_f32 {v(sp,2)}, {v(E,2)}, {v(E+2,2)}\nv_pk_add_f32 {v(sm,2)}, {v(E+20,2)}, {v(E+22,2)}")
    for k in range(2, 10):
        A(f"v_pk_add_f32 {v(sp,2)}, {v(sp,2)}, {v(E+2*k,2)}\nv_pk_add_f32 {v(sm,2)}, {v(sm,2)}, {v(E+20+2*k,2)}")
    A(f"v_add_f32 v{sp}, v{sp}, v{sp+1}\nv_add_f32 v{sm}, v{sm}, v{sm+1}")
    A(f"v_rcp_f32 v{sp}, v{sp}\nv_rcp_f32 v{sm}, v{sm}")
    for k in range(10):
        A(f"v_pk_mul_f32 {v(E+2*k,2)}, {v(E+2*k,2)}, {v(sp,2)} op_sel_hi:[1,0]")
        A(f"v_pk_mul_f32 {v(E+20+2*k,2)}, {v(E+20+2*k,2)}, {v(sm,2)} op_sel_hi:[1,0]")
    for k in range(20):
        A(f"v_cvt_pk_bf16_f32 v{OUT+k}, v{E+2*k}, v{E+2*k+1}")

class Buf:
    def __init__(self): self.l = []
    def __call__(self, t): self.l += [x.strip() for x in t.strip("\n").split("\n") if x.strip()]
def weave(A, main, side, first, step):
    side = list(side)
    for i, m in enumerate(main):
        A(m)
        if side and i >= first and (i - first) % step == 0: A(side.pop(0))
    for x in side: A(x)
def softmax_inplace(B, P, E, T, SL):
    mx, mn = T, T + 2
    lo = SL.replace("[", "").split(":")[0]
    B(f"v_max3_f32 v{mx}, v{P}, v{P+1}, v{P+2}\nv_min3_f32 v{mn}, v{P}, v{P+1}, v{P+2}")
    for i in range(3, 19, 2):
        B(f"v_max3_f32 v{mx}, v{mx}, v{P+i}, v{P+i+1}\nv_min3_f32 v{mn}, v{mn}, v{P+i}, v{P+i+1}")
    B(f"v_max_f32 v{mx}, v{mx}, v{P+19}\nv_min_f32 v{mn}, v{mn}, v{P+19}")
    B(f"v_mul_f32 v{mx}, {lo}, v{mx}\nv_mul_f32 v{mn}, {lo}, v{mn}")
    for k in range(10):
        B(f"v_pk_fma_f32 {v(E+2*k,2)}, {v(P+2*k,2)}, {SL}, {v(mn,2)} op_sel_hi:[1,0,0] neg_lo:[1,0,0] neg_hi:[1,0,0]")
        B(f"v_pk_fma_f32 {v(P+2*k,2)}, {v(P+2*k,2)}, {SL}, {v(mx,2)} op_sel_hi:[1,0,0] neg_lo:[0,0,1] neg_hi:[0,0,1]")
    for i in range(20): B(f"v_exp_f32 v{P+i}, v{P+i}\nv_exp_f32 v{E+i}, v{E+i}")
    B(f"v_pk_add_f32 {v(mx,2)}, {v(P,2)}, {v(P+2,2)}\nv_pk_add_f32 {v(mn,2)}, {v(E,2)}, {v(E+2,2)}")
    for k in range(2, 10):
        B(f"v_pk_add_f32 {v(mx,2)}, {v(mx,2)}, {v(P+2*k,2)}\nv_pk_add_f32 {v(mn,2)}, {v(mn,2)}, {v(E+2*k,2)}")
    B(f"v_add_f32 v{mx}, v{mx}, v{mx+1}\nv_add_f32 v{mn}, v{mn}, v{mn+1}\nv_rcp_f32 v{mx}, v{mx}\nv_rcp_f32 v{mn}, v{mn}")
    for k in range(10):
        B(f"v_pk_mul_f32 {v(P+2*k,2)}, {v(P+2*k,2)}, {v(mx,2)} op_sel_hi:[1,0]")
        B(f"v_pk_mul_f32 {v(E+2*k,2)}, {v(E+2*k,2)}, {v(mn,2)} op_sel_hi:[1,0]")
    for k in range(10): B(f"v_cvt_pk_bf16_f32 v{P+k}, v{P+2*k}, v{P+2*k+1}")
    for k in range(10): B(f"v_cvt_pk_bf16_f32 v{P+10+k}, v{E+2*k}, v{E+2*k+1}")

XSLOT = 8192; XWAVE = 3 * XSLOT; WBASE = 4 * XWAVE
NWS = 5
PHI_P = 336; V_P = 208; PHI_BASE = 0; V_BASE = 256 * PHI_P
L_ST = 159744; L_CS = L_ST + 2048; L_CNT = L_CS + 1024
K1_LDS = 160 * 1024
NL = 7
KVB = 4 * NL * 5120
W_KVS, W_BL, W_CK, W_CH, W_CW, W_CP, W_SD, W_SX, W_AP, W_K1, W_K2, W_Q, W_ED, W_O, W_KVL = [4 * k for k in range(15)]
XCH = 0; APART = 12 * 5120
def wpf_lds(i): return (i >> 3) * XWAVE + XSLOT + (i & 7) * 1024

def k1_loader(A, gu, nW, tag, light=False):
    WU = 12288 if gu else 10240
    NCH = 12 if gu else 10
    q = Q(A, "vmcnt", 63)
    def X(j, half=None):
        for e in (range(8) if half is None else range(4 * half, 4 * half + 4)):
            if e % 4 == 0: A(f"s_add_u32 s47, s78, {j}\ns_sub_u32 s48, s47, 10\ns_cselect_b32 s47, s47, s48\ns_lshl_b32 s47, s47, 7\ns_add_u32 s47, s47, s40")
            A(f"s_add_u32 s48, s47, {e*8*1280}\ns_add_u32 m0, s43, {(j%3)*XSLOT + e*1024}\ns_nop 0")
            A(f"buffer_load_dwordx4 v{2+(e&1)}, s[16:19], s48 offen {NTX if 2*j < NTU else ''} lds"); q.issue(("X", j))
    def W(u):
        A(f"s_lshl_b32 s49, s78, 1\ns_add_u32 s49, s49, {u}\ns_sub_u32 s48, s49, 20\ns_cselect_b32 s49, s49, s48\ns_mul_i32 s49, s49, s42")
        for e in range(nW):
            A(f"s_add_u32 m0, s{44+e}, {WBASE + (u%NWS)*WU}\ns_nop 0")
            A(f"buffer_load_dwordx4 v{4+e}, s[24:27], s49 offen {NTW if u < NTU else ''} lds"); q.issue(("W", u))
    R, XU, C, CA = 16, 40, 80, 120
    def aux_issue(p):
        if 'noaux' in EXP or light: return
        stats_issue(A, q, R, [p])
        for i in range(2):
            A(f"s_mul_i32 s48, s51, {32*p + i}\ns_add_u32 s48, s48, s50")
            A(f"buffer_load_dwordx4 {v(C+4*(2*p+i),4)}, v7, s[24:27], s48 offen {NTA if 4*p < NTU else ''}"); q.issue("CS")
    def cs_sel():
        A(f"v_and_b32 v{CA+8}, 15, v0")
        for k in range(4):
            A(f"""v_cmp_eq_u32 vcc, {2*k}, v{CA+8}
            v_cndmask_b32 v{CA+4+k}, 0, v{CA+9}, vcc
            v_cmp_eq_u32 vcc, {2*k+1}, v{CA+8}
            v_cndmask_b32 v{CA+4+k}, v{CA+4+k}, v{CA+10}, vcc""".replace("v_cmp_eq_u32 vcc, 0,", f"v_mov_b32 v{CA+9}, 0x3f80\nv_mov_b32 v{CA+10}, 0x3f800000\nv_cmp_eq_u32 vcc, 0,"))
    def cs_acc():
        for i in range(10): A(f"v_mfma_f32_16x16x32_bf16 {v(CA,4)}, {v(CA+4,4)}, {v(C+4*i,4)}, {'0' if i==0 else v(CA,4)}")
    def cs_fin():
        msk = (1 << NCH) - 1
        A(f"""v_and_b32 v{C}, 15, v0
        v_lshlrev_b32 v{C}, 5, v{C}
        v_lshrrev_b32 v{C+1}, 4, v0
        v_lshl_add_u32 v{C}, v{C+1}, 4, v{C}
        s_mul_i32 s48, s41, 384
        s_add_u32 s48, s48, {L_ST+128}
        v_add_u32 v{C}, s48, v{C}
        s_mov_b64 exec, {msk | (msk << 16)}
        ds_write_b128 v{C}, {v(CA,4)}
        s_mov_b64 exec, -1
        s_waitcnt lgkmcnt(0)""")
    def only0(name, f):
        A(f"s_cmp_lg_u32 s41, 0\ns_cbranch_scc1 {tag}_{name}")
        f()
        A.label(f"{tag}_{name}")
    def cw_poll():
        A(f"v_and_b32 v{R}, 1, v0\nv_lshlrev_b32 v{R}, 6, v{R}\nglobal_load_dword v{R+1}, v{R}, s[14:15] offset:132 sc1")
    def wf_prefetch(i):
        if i == 0:
            A(f"""v_readlane_b32 s48, v{R+1}, 0
            v_readlane_b32 s49, v{R+1}, 1
            s_and_b32 s48, s48, s49
            s_lshr_b32 s49, s2, 3
            s_mul_i32 s49, s49, {740*128}
            s_add_u32 s49, s49, {WS_WF}
            s_cmp_eq_u32 s48, 1
            s_cselect_b32 s69, s49, {OOB}
            v_lshlrev_b32 v{R}, 7, v0""")
        for k in range(3):
            A(f"buffer_load_dword v{R+2}, v{R}, s[20:23], s69 offen\nv_add_u32 v{R}, {64*128 if 3*i+k != 10 else 36*128}, v{R}")
    def pfx(i):
        A(f"""s_cmp_lg_u32 s41, {i & 3}
        s_cbranch_scc1 {tag}_pfx{i}
        s_lshr_b32 s49, s2, 3
        s_mul_i32 s49, s49, {740*128}
        s_add_u32 s49, s49, {WS_WF + min(i*64, 740-64)*128}
        v_lshlrev_b32 v136, 7, v0
        buffer_load_dword v137, v136, s[20:23], s49 offen""")
        A.label(f"{tag}_pfx{i}")
    def poll_issue():
        A(f"v_and_b32 v{R+4}, 1, v0\nv_lshlrev_b32 v{R+4}, 6, v{R+4}\nglobal_load_dword v{R+5}, v{R+4}, s[14:15] offset:128 sc1")
        q.mark = q.n
    def poll_check():
        A(f"s_waitcnt vmcnt({q.n - q.mark})")
        spin(A, tag + "G", f"global_load_dword v{R+5}, v{R+4}, s[14:15] offset:128 sc1", R + 5, "1", first=False)
        prof_stamp(A, 5)
    def cons_issue():
        A(f"""v_lshrrev_b32 v{R}, 3, v0
        v_and_b32 v{R+1}, 7, v0
        v_lshlrev_b32 v{R+1}, 3, v{R+1}
        v_lshl_add_u32 v{R+1}, v{R}, 7, v{R+1}
        s_lshl_b32 s48, s32, 5
        s_lshl_b32 s49, s41, 3
        s_add_u32 s48, s48, s49
        s_lshl_b32 s48, s48, 7
        s_add_u32 s48, s48, {WS_ST}
        buffer_load_dwordx2 {v(R+2,2)}, v{R+1}, s[20:23], s48 offen sc1
        v_lshlrev_b32 v{R}, 3, v0
        v_lshlrev_b32 v{R+1}, 2, v0""")
        q.issue("C1")
        for i in range(16):
            if i and i % 5 == 0: A(f"s_add_u32 s53, s53, {5*768}")
            A(f"buffer_load_dword v{XU+i}, v{R+1}, s[20:23], s53 offen offset:{(i%5)*768} sc1"); q.issue("C1")
        if not gu:
            A(f"v_lshlrev_b32 v{R+4}, 4, v0")
            for e in range(8):
                A(f"s_add_u32 s48, s54, {e*1024}\ns_cmp_lt_u32 {e}, s55\ns_cselect_b32 s48, s48, {OOB}")
                A(f"buffer_load_dwordx4 {v(C+4*e,4)}, v{R+4}, s[20:23], s48 offen sc1"); q.issue("C2")
    def cons_fin():
        q.wait({"C1"})
        A(f"s_lshl_b32 s48, s41, 9\ns_add_u32 s48, s48, {L_ST}\nv_add_u32 v{R}, s48, v{R}\nds_write_b64 v{R}, {v(R+2,2)}")
        for st in (8, 4, 2, 1):
            for i in range(st): A(f"v_add_f32 v{XU+i}, v{XU+i}, v{XU+i+st}")
        A(f"""s_mul_i32 s48, s41, 192
        s_add_u32 s48, s48, {L_CS}
        v_add_u32 v{R+1}, s48, v{R+1}
        s_mov_b32 exec_hi, 0xffff
        ds_write_b32 v{R+1}, v{XU}
        s_mov_b64 exec, -1""")
        if not gu:
            q.wait({"C2"})
            A(f"v_add_u32 v{R+4}, s43, v{R+4}")
            for e in range(8): A(f"ds_write_b128 v{R+4}, {v(C+4*e,4)} offset:{XSLOT + e*1024}")
        A(f"v_mov_b32 v{R}, {L_CNT}\nv_mov_b32 v{R+2}, 0\nv_mov_b32 v{R+3}, 0\n" + "".join(f"ds_write_b64 v{R}, {v(R+2,2)} offset:{8*k}\n" for k in range(8)) + "s_waitcnt lgkmcnt(0)")
    q.q = [("X", 0)] * 8 + [("W", 0)] * 3 + [("W", 1)] * 3
    sched = {u: [] for u in range(20)}
    def rl_issue():
        A("s_mul_i32 s30, s32, 30\ns_add_u32 s30, s30, s29\ns_lshl_b32 s30, s30, 2\ns_add_u32 s30, s30, s41\ns_waitcnt lgkmcnt(0)")
        relayout_issue(A, q, f"{tag}_rl", 140)
    AX = {"A": [-1, 0, 1, 2, 2], "B": [-1, -1, 0, 1, 2], "G": [-1, 1, 2, 3, 4], "H": [-1, 1, 3, 5, 6], "I": [0, 2, 3, 4, 5], "J": [1, 2, 3, 4, 4], "K": [2, 2, 3, 3, 4], "L": [1, 1, 2, 2, 3], "M": [3, 4, 4, 5, 5]}[AUXS]
    def ax(u):
        for p in range(5):
            if AX[p] == u: aux_issue(p)
    ax(-1)
    sched[0] += ([] if 'cx1' in EXP else [lambda: X(1)]) + [lambda: W(2), lambda: W(3), lambda: X(2, 0), cs_sel]
    sched[1] += [lambda: X(2, 1), lambda: W(4)]
    for u in range(2, 8): sched[u] += [lambda u=u: X(u // 2 + 2, u % 2), lambda u=u: W(u + 3)]
    for u in range(8): sched[u].append(lambda u=u: ax(u))
    P0 = PUBU - 2
    post = {P0: [lambda: q.wait({"CS"}), lambda: A("s_setprio 3"), cs_acc, lambda: stats_part1(A, R, XU), lambda: A("s_setprio 0")],
            P0 + 1: [lambda: A("s_setprio 3"), lambda: stats_part2(A, R, XU, 41), cs_fin, lambda: A("s_setprio 0")]}
    for u in range(8, 17):
        j = u // 2 + 2
        if j < 10: sched[u].append(lambda j=j, h=u % 2: X(j, h))
        sched[u].append(lambda u=u: W(u + 3))
    if 'norl' not in EXP and not light:
        sched[RLU - 2].append(rl_issue)
        sched[RLU] += [lambda: relayout_finish(A, q, 140, 156, 0)]
        sched[RLU + 1] = [sched[RLU + 1][1], lambda: relayout_finish(A, q, 140, 156, 1), sched[RLU + 1][0]] + sched[RLU + 1][2:]
    if 'noaux' not in EXP and not light:
        for u in post: sched[u] += post[u]
    sched[RLU + 4] = [lambda: only0("cs", lambda: signal(A, 130, 1))] + sched[RLU + 4]
    if "pf" in EXP:
        sched[8] = [lambda: only0("cw", cw_poll)] + sched[8]
        for i in range(4): sched[11 + i].append(lambda i=i: only0(f"pf{i}", lambda: wf_prefetch(i)))
    def code_touch(k):
        A(f"s_lshr_b32 s73, s2, 3\ns_lshl_b32 s73, s73, 2\ns_add_u32 s73, s73, s41\ns_add_u32 s73, s73, {k}\ns_and_b32 s73, s73, 7")
        code_warm(A, f"{tag}_ct{k}", "K1_end", "s73", 132, 133, "K1_compute_end"); q.issue("CT")
    if "notouch" not in EXP and not light:
        sched[13].append(lambda: code_touch(0))
        sched[18].append(lambda: code_touch(3))
    if "pfx" in EXP:
        for i in range(12): sched[7 + i].append(lambda i=i: pfx(i))
    sched[15] = [lambda: only0("pi", poll_issue)] + sched[15]
    sched[16] += [lambda: only0("pc", poll_check)]
    if 'nocons' not in EXP: sched[17] += [cons_issue]
    sched[19] += [cons_fin]
    for u in range(20):
        if u == 1 and "b1" not in EXP:
            for f in sched[u]: f()
            continue
        q.wait({("W", u), ("X", u // 2)} | ({("W", 1)} if u == 0 and "b1" not in EXP else set()))
        if u == 0: prof_stamp(A, 3)
        if u == 8: prof_stamp(A, 4)
        A("s_barrier")
        if "slots" in EXP and u in SLOTS: prof_stamp(A, SLOTS.index(u), force=True)
        for f in sched[u]: f()
    A(f"s_barrier\ns_mov_b32 s57, {OOB}")
    if not gu: A("s_cmp_eq_u32 s34, 1\ns_cbranch_scc1 P2_stream")
    A("s_branch P2_aux")

ACC = 0
XF = 192
WFR = 224
NWF = 5
VX = 244
VW = 246
VL = 248
def acc(T, ct): return ACC + (T * 12 + ct) * 4

def k1_mainloop(A, gu):
    NT = 12 if gu else 10
    WU = 12288 if gu else 10240
    pitch = 192 if gu else 320
    LA = NWF - 1
    q = Q(A, "lgkmcnt", 15)
    def woff(n):
        u, ct = divmod(n, NT)
        o = (u % NWS) * WU
        o += (ct % 6) * 32 + (ct // 6) * 6144 if gu else ct * 32
        return o
    def rdW(n, halves=(0, 1)):
        r = WFR + 4 * (n % NWF); ad = VW + (n % NT) % 2
        for h in halves:
            A(f"ds_read_b64_tr_b16 {v(r+2*h,2)}, v{ad} offset:{woff(n)+4*pitch*h}"); q.issue(("W", n))
    def rdX(u, T):
        j, kh = divmod(u, 2)
        A(f"ds_read_b128 {v(XF+16*(u&1)+4*T,4)}, v{VX+kh} offset:{(j%3)*XSLOT + T*2048}"); q.issue(("X", u, T))
    NTOT = 20 * NT
    SIGU, HSU = PUBU + 2, 2
    def pub_read():
        A(f"ds_read_b128 v[252:255], v249"); q.issue("P0")
    def pub_store0():
        q.wait({"P0"})
        A(f"buffer_store_dwordx4 v[252:255], v250, s[20:23], s52 offen sc1\nv_lshlrev_b32 v250, 4, v{VL}\nv_add_u32 v249, {L_ST}, v250")
    def pub_read1():
        A(f"ds_read_b128 v[252:255], v249"); q.issue("P1")
    def pub_store1():
        q.wait({"P1"})
        A(f"s_mov_b64 exec, 0xff\nbuffer_store_dwordx4 v[252:255], v250, s[20:23], s53 offen sc1\ns_mov_b64 exec, -1")
    def sig(line):
        A(f"s_cmp_lg_u32 s3, 0\ns_cbranch_scc1 SG{int(gu)}{line}")
        signal(A, 252, line)
        A.label(f"SG{int(gu)}{line}")
    def hs(i):
        if i == 0: A(f"v_mov_b32 v252, -1\nv_mov_b32 v253, -1\nv_mov_b32 v254, -1\nv_mov_b32 v255, -1\nv_lshlrev_b32 v251, 4, v{VL}")
        if i % 4 == 0: A(f"s_add_u32 s51, s50, {(i//4)*4096}")
        A(f"buffer_store_dwordx4 v[252:255], v251, s[20:23], s51 offen offset:{(i%4)*1024} sc1")
    n0 = PUBU * NT - LA
    hooks = {n0: pub_read, n0 + 3: pub_store0, n0 + 4: pub_read1, n0 + 7: pub_store1, SIGU * NT - LA: lambda: sig(0)}
    if "cpf" in EXP: hooks[CPFS * NT // 10] = lambda: A("buffer_load_dword v254, v253, s[40:43], s44 offen")
    if gu and "hsent" in EXP:
        for i in range(12): hooks[HSU * NT + 3 * i] = (lambda i=i: hs(i))
    if 'nopub' in EXP: hooks = {SIGU * NT - LA: lambda: sig(0)}
    A("s_barrier")
    prof_stamp(A, 1)
    if PROF: A("s_memtime s[76:77]\ns_waitcnt lgkmcnt(0)")
    rdX(0, 0); rdW(0); rdX(0, 1); rdX(0, 2); rdX(0, 3)
    for n in range(1, LA): rdW(n)
    for n in range(NTOT):
        u, ct = divmod(n, NT)
        for T in range(4):
            q.wait({("W", n), ("X", u, T)})
            c = "0" if u == 0 else v(acc(T, ct), 4)
            A(f"v_mfma_f32_16x16x32_bf16 {v(acc(T,ct),4)}, {v(WFR+4*(n%NWF),4)}, {v(XF+16*(u&1)+4*T,4)}, {c}")
            m = n + LA
            if T == 0 and m < NTOT:
                if m == SIGU * NT: A("s_waitcnt vmcnt(0)")
                if m == 2 * NT and "cx1" in EXP: A(f"s_waitcnt vmcnt({CX1_AFTER[int(gu)]})")
                if m % NT == 0 and (m != NT or "b1" in EXP): A("s_barrier")
                rdW(m, (0,))
            if T == 1 and m < NTOT: rdW(m, (1,))
            if T == 2 and u + 1 < 20 and ct >= NT - LA: rdX(u + 1, ct - (NT - LA))
            if T == 3 and n in hooks: hooks[n]()
    prof_stamp(A, 2)
    if PROF: A("s_memtime s[78:79]\ns_waitcnt lgkmcnt(0)\ns_sub_u32 s81, s78, s76\ns_add_u32 s81, s81, s80")

CSR = 192
STR = 240
def epi_common(A, ntile, csr=None, st=(240, 242, 244, 246)):
    A(f"""
    v_lshrrev_b32 v249, 4, v{VL}
    v_lshlrev_b32 v249, 4, v249
    v_add_u32 v249, {L_CS}, v249
    v_and_b32 v250, 15, v{VL}
    v_lshlrev_b32 v250, 3, v250
    s_lshl_b32 s51, s3, 9
    s_add_u32 s51, s51, {L_ST}
    v_add_u32 v250, s51, v250
    s_waitcnt vmcnt(0)
    s_barrier
    """)
    for T in range(4): A(f"ds_read_b64 {v(st[T],2)}, v250 offset:{T*128}")
    for ct in range(ntile): A(f"ds_read_b128 {v(csr[ct] if csr else CSR+4*ct,4)}, v249 offset:{ct*64}")
    A(f"v_lshlrev_b32 v249, 4, v{VL}\ns_waitcnt lgkmcnt(0)")
    prof_stamp(A, 3)
    if PROF: A("s_memtime s[76:77]\ns_waitcnt lgkmcnt(0)")
def dry_exit(A, ret):
    if "nodry" not in EXP: A(f"s_cmp_eq_u32 s79, 1\ns_cbranch_scc1 {ret}")
def dry_run(A, labels, ret):
    if "nodry" in EXP: return
    A("s_mov_b32 s79, 1\ns_mov_b64 exec, 0")
    for w in range(3): A(f"s_cmp_eq_u32 s3, {w}\ns_cbranch_scc1 {labels[w]}")
    A(f"s_branch {labels[3]}")
    A.label(ret)
    A("s_mov_b32 s79, 0\ns_mov_b64 exec, -1")
def center(A, r, T, ct):
    for h in range(2):
        A(f"v_pk_fma_f32 {v(r+2*h,2)}, {v(CSR+4*ct+2*h,2)}, {v(STR+2*T,2)}, {v(r+2*h,2)} op_sel_hi:[1,0,1] neg_lo:[1,0,0] neg_hi:[1,0,0]")

def k1_epi_gu(A):
    epi_common(A, 12)
    for T in range(4):
        A(f"v_mul_f32 v{252+T}, v{STR+2*T+1}, v{STR+2*T+1}\nv_mul_f32 v{STR+2*T+1}, {NLOG2E}, v{STR+2*T+1}\nv_rcp_f32 v{252+T}, v{252+T}")
    for c in range(3):
        A(f"s_add_u32 s51, s50, {c*4096}")
        for T0 in (0, 2):
            grp = [(T, acc(T, 2 * c), acc(T, 6 + 2 * c)) for T in (T0, T0 + 1)]
            sd = v(252 + T0, 2)
            for T, G, U in grp:
                for h in range(2): center(A, G + 4 * h, T, 2 * c + h); center(A, U + 4 * h, T, 6 + 2 * c + h)
            for T, G, U in grp:
                for k in range(4): A(f"v_pk_mul_f32 {v(U+2*k,2)}, {v(G+2*k,2)}, {v(U+2*k,2)}")
                for k in range(4): A(f"v_pk_mul_f32 {v(G+2*k,2)}, {v(G+2*k,2)}, {v(STR+2*T,2)} op_sel:[0,1] op_sel_hi:[1,1]")
            for T, G, U in grp:
                for i in range(8): A(f"v_exp_f32 v{G+i}, v{G+i}")
            for T, G, U in grp:
                b = T & 1
                for k in range(4): A(f"v_pk_fma_f32 {v(G+2*k,2)}, {v(G+2*k,2)}, {sd}, {sd} op_sel:[0,{b},{b}] op_sel_hi:[1,{b},{b}]")
            for T, G, U in grp:
                for i in range(8): A(f"v_rcp_f32 v{G+i}, v{G+i}")
            for T, G, U in grp:
                for k in range(4): A(f"v_pk_mul_f32 {v(U+2*k,2)}, {v(U+2*k,2)}, {v(G+2*k,2)}")
            for T, G, U in grp:
                for k in range(4): A(f"v_cvt_pk_bf16_f32 v{G+k}, v{U+2*k}, v{U+2*k+1}")
                A(f"buffer_store_dwordx4 {v(G,4)}, v249, s[20:23], s51 offen offset:{T*1024} {HST}")
    prof_stamp(A, 5, True)

WP = 192
def read_wpf(A, first):
    for tau in range(5):
        for c in range(3):
            i = first + 3 * tau + c
            base = 250 + (i >> 4)
            off = wpf_lds(i) - (i >> 4) * 2 * XWAVE
            if c < 2: A(f"ds_read_b128 {v(WP+10*tau+4*c,4)}, v{base} offset:{off}")
            else: A(f"ds_read_b64 {v(WP+10*tau+8,2)}, v{base} offset:{off}")
def normalize(A, ntile, scale_tiles):
    for T in range(4):
        for ct in range(ntile):
            center(A, acc(T, ct), T, ct)
        for ct in scale_tiles:
            for h in range(2):
                r = acc(T, ct) + 2 * h
                A(f"v_pk_mul_f32 {v(r,2)}, {v(r,2)}, {v(STR+2*T,2)} op_sel:[0,1] op_sel_hi:[1,1]")
def proj_mfma(A, D, B01, B2):
    for c in range(3):
        for tau in range(5):
            d = v(D + 4 * tau, 4)
            if c < 2: A(f"v_mfma_f32_16x16x32_bf16 {d}, {v(WP+10*tau+4*c,4)}, {v(B01+4*c,4)}, {'0' if c==0 else d}")
            else: A(f"v_mfma_f32_16x16x16_bf16 {d}, {v(WP+10*tau+8,2)}, {v(B2,2)}, {d}")

def k1_epi_kv(A):
    csr = [192, 196, 200, 204, 208, acc(0, 10), acc(0, 11), acc(1, 10), acc(1, 11), acc(2, 10)]
    ST = [acc(2, 11), acc(2, 11) + 2, acc(3, 11), acc(3, 11) + 2]
    epi_common(A, 10, csr, ST)
    def ctr(B, T, ct, scale):
        for h in range(2):
            r = acc(T, ct) + 2 * h
            B(f"v_pk_fma_f32 {v(r,2)}, {v(csr[ct]+2*h,2)}, {v(ST[T],2)}, {v(r,2)} op_sel_hi:[1,0,1] neg_lo:[1,0,0] neg_hi:[1,0,0]")
            if scale: B(f"v_pk_mul_f32 {v(r,2)}, {v(r,2)}, {v(ST[T],2)} op_sel:[0,1] op_sel_hi:[1,1]")
    A.label("DK0")
    for T in range(4):
        for ct in range(5): ctr(A, T, ct, False)
    dry_exit(A, "DK_ret")
    A(f"v_lshlrev_b32 v250, 4, v{VL}")
    read_wpf(A, 0)
    for T in range(4):
        for ct in range(5, 10):
            ctr(A, T, ct, True)
            r = acc(T, ct)
            A(f"v_cvt_pk_bf16_f32 v{r}, v{r}, v{r+1}\nv_cvt_pk_bf16_f32 v{r+1}, v{r+2}, v{r+3}")
    for T in range(4): A(f"v_mul_f32 v{252+T}, {LOG2E}, v{ST[T]+1}")
    VA = acc(3, 10)
    A(f"""
    v_and_b32 v243, 15, v{VL}
    s_lshl_b32 s51, s3, 6
    v_add_u32 v243, s51, v243            ; row (T=0)
    v_lshrrev_b32 v246, 4, v{VL}         ; g
    v_mul_u32_u24 v251, {PHI_P}, v243
    v_mul_u32_u24 v247, 80, v246
    v_add_u32 v251, v251, v247
    v_mul_u32_u24 v243, {V_P}, v243
    v_add_u32 v243, {V_BASE}, v243
    v_mul_u32_u24 v247, 48, v246
    v_add_u32 v242, v243, v247
    """)
    for c in range(5):
        A(f"""v_add_u32 v247, {4*c}, v246
        v_mul_u32_u24 v244, 205, v247
        v_lshrrev_b32 v244, 10, v244
        v_add_u32 v247, v247, v244
        v_lshl_add_u32 v{VA+c}, v247, 3, v243""")
    A("v_mov_b32 v244, 0x3f80\nv_mov_b32 v245, 0\ns_waitcnt lgkmcnt(0)")
    prof_stamp(A, 8)
    lds_inc(A, W_K1, 246, 247); lds_spin(A, "K1S", W_K1, "4", 246, 247)
    prof_stamp(A, 9)
    def kcvt(T):
        B = Buf()
        for k in range(8): B(f"v_cvt_pk_bf16_f32 v{acc(T,10)+k}, v{acc(T,0)+2*k}, v{acc(T,0)+2*k+1}")
        for k in range(2): B(f"v_cvt_pk_bf16_f32 v{acc(T,4)+k}, v{acc(T,4)+2*k}, v{acc(T,4)+2*k+1}")
        return B.l
    def proj(T):
        B = Buf(); proj_mfma(B, acc(T, 5), acc(T, 10), acc(T, 4)); return B.l
    vw = []
    for T in range(4):
        vw += [f"ds_write_b64 v{VA+c}, {v(acc(T,5+c),2)} offset:{T*16*V_P}" for c in range(5)] + [f"ds_write_b64 v242, v[244:245] offset:{T*16*V_P + 40}"]
    weave(A, kcvt(0) + kcvt(1) + kcvt(2), vw, 0, 1)
    for x in proj(0) + kcvt(3): A(x)
    for T in range(4):
        B = Buf()
        B(f"v_mov_b32 v{acc(T,11)}, v{252+T}")
        softmax_inplace(B, acc(T, 5), acc(T, 0), acc(T, 10), v(acc(T, 11), 2))
        side = (proj(T + 1) if T < 3 else []) + ([f"ds_write_b128 v251, {v(acc(T-1,5)+4*k,4)} offset:{(T-1)*16*PHI_P + 16*k}" for k in range(5)] if T else [])
        if T in (1, 2, 3) and "nodry" not in EXP:
            pass
        if T == 0: prof_stamp(A, 1)
        weave(A, B.l, [] if "noside" in EXP else side, 4, 6)
        if T == 1: prof_stamp(A, 13)
        if T == 3: prof_stamp(A, 2)
    for k in range(5): A(f"ds_write_b128 v251, {v(acc(3,5)+4*k,4)} offset:{3*16*PHI_P + 16*k}")
    A(f"""
    v_lshrrev_b32 v241, 5, v{VL}
    v_lshlrev_b32 v241, 3, v241          ; 8*(G>>1)
    v_bfe_u32 v242, v{VL}, 2, 2
    v_add_u32 v241, v241, v242
    v_bfe_u32 v242, v{VL}, 4, 1
    v_lshlrev_b32 v242, 5, v242
    v_and_b32 v243, 3, v{VL}
    v_lshl_add_u32 v242, v243, 3, v242   ; 32*(G&1)+8c
    v_mul_u32_u24 v237, {PHI_P}, v241
    v_add_u32 v237, v237, v242
    s_mul_i32 s51, s3, 80
    v_add_u32 v237, s51, v237
    v_add_u32 v239, {128*PHI_P}, v237
    v_mul_u32_u24 v238, {V_P}, v241
    v_add_u32 v238, v238, v242
    s_mul_i32 s51, s3, 48
    s_add_u32 s51, s51, {V_BASE}
    v_add_u32 v238, s51, v238
    v_and_b32 v241, 31, v{VL}
    v_lshrrev_b32 v242, 5, v{VL}
    v_lshlrev_b32 v242, 3, v242
    v_mul_u32_u24 v241, 80, v241
    s_lshl_b32 s51, s3, 11
    s_add_u32 s51, s51, {KVB}
    v_add3_u32 v242, v241, v242, s51
    v_add_u32 v241, s51, v249
    s_waitcnt lgkmcnt(0)
    """)
    lds_inc(A, W_K2, 246, 247); lds_spin(A, "K2S", W_K2, "4", 246, 247)
    prof_stamp(A, 4, True)
    q = Q(A, "lgkmcnt", 15)
    def rd(ks):
        b = 32 + 12 * (ks % 3)
        pa, po = (237, ks * 16 * PHI_P) if ks < 8 else (239, (ks - 8) * 16 * PHI_P)
        for h in range(2):
            A(f"ds_read_b64_tr_b16 {v(b+2*h,2)}, v238 offset:{ks*16*V_P + h*4*V_P}"); q.issue(ks)
        for nt in range(2):
            for h in range(2):
                A(f"ds_read_b64_tr_b16 {v(b+4+4*nt+2*h,2)}, v{pa} offset:{po + nt*64 + h*4*PHI_P}"); q.issue(ks)
    rd(0); rd(1)
    for ks in range(16):
        q.wait({ks})
        if ks + 2 < 16: rd(ks + 2)
        b = 32 + 12 * (ks % 3)
        for nt in range(2):
            A(f"v_mfma_f32_32x32x16_bf16 {v(16*nt,16)}, {v(b+4+4*nt,4)}, {v(b,4)}, {'0' if ks==0 else v(16*nt,16)}")
    prof_stamp(A, 5)
    A("s_mov_b32 exec_lo, 0xffffff\ns_mov_b32 exec_hi, 0xffffff")
    for gi in range(5):
        r = 4 * gi
        A(f"v_cvt_pk_bf16_f32 v{r}, v{r}, v{r+1}\nv_cvt_pk_bf16_f32 v{r+1}, v{r+2}, v{r+3}\nds_write_b64 v242, {v(r,2)} offset:{16*gi}")
    A(f"""s_mov_b64 exec, -1
    s_waitcnt lgkmcnt(0)
    ds_read_b128 v[24:27], v241
    ds_read_b128 v[28:31], v241 offset:1024
    s_waitcnt lgkmcnt(1)
    buffer_store_dwordx4 v[24:27], v249, s[20:23], s57 offen sc1
    s_waitcnt lgkmcnt(0)
    buffer_store_dwordx4 v[28:31], v249, s[20:23], s57 offen offset:1024 sc1""")

def k1_epi_q(A):
    epi_common(A, 10)
    normalize(A, 10, range(10))
    A(f"v_mov_b32 v250, v249\nv_add_u32 v251, {2*XWAVE}, v249\nv_lshlrev_b32 v247, 3, v{VL}")
    for hgi in range(2):
        read_wpf(A, 15 * hgi)
        b2 = [242, 244, 252, 254]
        for T in range(4):
            src = acc(T, 5 * hgi)
            for k in range(8): A(f"v_cvt_pk_bf16_f32 v{acc(T,10)+k}, v{src+2*k}, v{src+2*k+1}")
            for k in range(2): A(f"v_cvt_pk_bf16_f32 v{b2[T]+k}, v{src+16+2*k}, v{src+17+2*k}")
        A("s_waitcnt lgkmcnt(0)")
        if hgi == 1: lds_inc(A, W_Q, 250, 251)
        def outp(T):
            src = acc(T, 5 * hgi); B = Buf()
            for k in range(10): B(f"v_cvt_pk_bf16_f32 v{src+k}, v{src+2*k}, v{src+2*k+1}")
            B(f"s_add_u32 s51, s58, {(hgi*4+T)*2560}")
            B(f"buffer_store_dwordx4 {v(src,4)}, v249, s[20:23], s51 offen {HST}")
            B(f"buffer_store_dwordx4 {v(src+4,4)}, v249, s[20:23], s51 offen offset:1024 {HST}")
            B(f"buffer_store_dwordx2 {v(src+8,2)}, v247, s[20:23], s51 offen offset:2048 {HST}")
            return B.l
        for T in range(4):
            M = Buf(); proj_mfma(M, acc(T, 5 * hgi), acc(T, 10), b2[T])
            weave(A, M.l, ["\n".join(outp(T - 1)[i:i+2]) for i in range(0, 14, 2)] if T else [], 7, 1)
        for x in outp(3): A(x)
    prof_stamp(A, 5, True)

def type_decode(A):
    A("""s_lshl_b32 s35, s30, 1
    s_add_u32 s35, s35, s31
    s_add_u32 s29, s35, 18
    s_add_u32 s36, s30, 26
    s_cmp_eq_u32 s31, 2
    s_cselect_b32 s34, 2, 1
    s_cselect_b32 s35, s30, s35
    s_cselect_b32 s29, s36, s29
    s_mul_i32 s36, s30, 5
    s_lshl_b32 s37, s30, 2
    s_add_u32 s37, s37, 2
    s_min_u32 s36, s36, s37
    s_add_u32 s36, s36, s31
    s_sub_u32 s36, s36, 3
    s_cmp_ge_u32 s31, 3
    s_cselect_b32 s34, 0, s34
    s_cselect_b32 s35, s36, s35
    s_cselect_b32 s29, s36, s29""")

def ptr_setup(A):
    A("""s_waitcnt lgkmcnt(0)
    s_mov_b32 s16, s4
    s_mov_b32 s17, s5
    s_mov_b32 s20, s14
    s_mov_b32 s21, s15
    s_mov_b32 s14, s12
    s_mov_b32 s15, s13""")

def gen_k1():
    A = Asm()
    A.label("K1_start")
    prof_start(A)
    A(f"""
    s_load_dwordx4 s[4:7], s[0:1], 0     ; x, wqkv
    s_load_dwordx4 s[8:11], s[0:1], 40
    s_load_dwordx4 s[12:15], s[0:1], 72
    s_cmp_ge_u32 s2, 256
    s_cbranch_scc1 K1_end
    v_lshrrev_b32 v1, 6, v0
    v_and_b32 v0, 63, v0
    v_readfirstlane_b32 s3, v1
    s_and_b32 s30, s2, 7                 ; xcd
    s_lshr_b32 s31, s2, 3                ; j
    s_lshr_b32 s32, s30, 2
    s_lshl_b32 s32, s32, 2
    s_and_b32 s33, s31, 3
    s_add_u32 s32, s32, s33              ; rb
    s_and_b32 s30, s30, 3                ; cg
    s_lshr_b32 s31, s31, 2               ; cslot
    s_mov_b32 s78, 0                     ; first k stage
    v_lshrrev_b32 v7, 3, v0              ; r
    v_and_b32 v8, 7, v0                  ; p
    v_lshrrev_b32 v9, 1, v7
    v_xor_b32 v8, v8, v9
    v_mul_u32_u24 v7, 1280, v7
    v_lshl_add_u32 v2, v8, 4, v7
    v_xor_b32 v3, 64, v2
    s_mov_b32 s18, 2621440
    s_mov_b32 s19, 0x20000
    s_mov_b32 s22, {WS_SIZE}
    s_mov_b32 s23, 0x20000
    s_lshl_b32 s28, s30, 3
    s_add_u32 s28, s28, s31
    s_cmp_ge_u32 s28, 23
    s_cselect_b32 s34, 7, 0
    s_and_b32 s34, s34, s31
    s_cmp_eq_u32 s34, 7
    s_cbranch_scc1 K1_spare
    s_cmp_lt_u32 s3, 4
    s_cbranch_scc1 K1_compute
    s_sub_u32 s41, s3, 4
    s_lshl_b32 s40, s32, 8
    s_lshl_b32 s36, s41, 6
    s_add_u32 s40, s40, s36
    s_mul_i32 s40, s40, 1280
    s_mul_i32 s43, s41, {XWAVE}
    """)
    ptr_setup(A)
    prof_stamp(A, 0)
    for e in range(8):
        A(f"s_add_u32 s48, s40, {e*8*1280}\ns_add_u32 m0, s43, {e*1024}\ns_nop 0\nbuffer_load_dwordx4 v{2+(e&1)}, s[16:19], s48 offen {NTX} lds")
    type_decode(A)
    A(f"""
    s_lshr_b32 s58, s41, 1               ; half
    s_and_b32 s59, s41, 1
    s_mov_b32 s26, {640*3840}
    s_mov_b32 s60, 3840
    s_mov_b32 s61, 20
    s_mov_b32 s38, {(1<<16)//20+1}
    s_mul_i32 s37, s35, 160
    s_add_u32 s37, s37, 1280
    s_mul_i32 s39, s35, 320
    s_cmp_eq_u32 s34, 2
    s_cselect_b32 s37, s39, s37
    s_cselect_b32 s39, 0, {1280-160}
    s_mul_i32 s62, s41, 3
    s_lshl_b32 s57, s41, 1
    s_add_u32 s57, s57, 2
    s_min_u32 s62, s62, s57
    s_mov_b32 s63, 9
    s_mov_b32 s64, 0
    s_mov_b32 s65, 10240
    s_cmp_eq_u32 s34, 0
    s_cbranch_scc0 K1_lp_go
    s_mov_b32 s26, {640*3456}
    s_mov_b32 s60, 3456
    s_mov_b32 s61, 12
    s_mov_b32 s38, {(1<<16)//12+1}
    s_mul_i32 s37, s35, 192
    s_mov_b32 s39, 0
    s_mul_i32 s62, s59, 3
    s_mov_b32 s63, 5
    s_mul_i32 s64, s58, 6144
    s_mov_b32 s65, 12288
    """)
    A.label("K1_lp_go")
    A("""s_mov_b32 s27, 0x20000
    s_lshl_b32 s42, s60, 5
    v_mov_b32 v10, s39
    s_cmp_lt_u32 s41, 2
    s_cselect_b32 s24, s8, s10
    s_cselect_b32 s25, s9, s11
    s_cmp_eq_u32 s34, 0
    s_cselect_b32 s24, s24, s6
    s_cselect_b32 s25, s25, s7""")
    for e in range(3):
        A(f"""s_add_u32 s36, s62, {e}
        s_min_u32 s36, s36, s63
        s_lshl_b32 s{44+e}, s36, 10
        s_add_u32 s{44+e}, s{44+e}, s64
        s_lshl_b32 s36, s36, 6
        v_add_u32 v7, s36, v0
        v_mul_u32_u24 v8, s38, v7
        v_lshrrev_b32 v8, 16, v8
        v_mul_u32_u24 v9, s61, v8
        v_sub_u32 v9, v7, v9
        v_bfe_u32 v11, v8, 3, 1
        v_lshlrev_b32 v11, 1, v11
        v_xor_b32 v9, v9, v11
        v_mul_u32_u24 v8, s60, v8
        v_lshl_add_u32 v8, v9, 4, v8
        v_cmp_le_u32 vcc, 10, v9
        v_cndmask_b32 v9, 0, v10, vcc
        v_add3_u32 v{4+e}, v8, v9, s37
        s_add_u32 m0, s{44+e}, {WBASE}
        s_nop 0
        buffer_load_dwordx4 v{4+e}, s[24:27], 0 offen {NTW} lds""")
    for e in range(3):
        A(f"s_add_u32 s36, s{44+e}, s65\ns_add_u32 m0, s36, {WBASE}\ns_nop 0\nbuffer_load_dwordx4 v{4+e}, s[24:27], s42 offen {NTW} lds")
    if "cpf" in EXP: A("s_barrier")
    A("s_load_dwordx2 s[70:71], s[0:1], 24\ns_load_dwordx2 s[72:73], s[0:1], 56")
    prof_stamp(A, 1)
    A(f"""
    s_lshl_b32 s66, s32, 8
    s_lshl_b32 s36, s28, 3
    s_add_u32 s66, s66, s36
    s_lshl_b32 s36, s41, 1
    s_add_u32 s66, s66, s36
    s_lshl_b32 s56, s32, 4
    s_lshl_b32 s57, s59, 3
    s_add_u32 s56, s56, s57
    s_lshl_b32 s52, s29, 4
    s_mul_i32 s53, s52, 768
    s_mul_i32 s57, s41, 192
    s_add_u32 s53, s53, s57
    s_add_u32 s53, s53, {WS_CSP}
    s_lshl_b32 s57, s32, 1
    s_add_u32 s52, s52, s57
    s_add_u32 s52, s52, s59
    s_mul_i32 s52, s52, 768
    s_add_u32 s52, s52, {WS_CSP}
    v_lshrrev_b32 v12, 4, v0
    v_and_b32 v13, 15, v0
    v_mov_b32 v14, 0x7ffffff0
    v_mul_lo_u32 v7, v12, s60
    v_lshl_add_u32 v7, v13, 4, v7
    s_mul_i32 s50, s56, s60
    s_add_u32 s50, s50, s37
    s_lshl_b32 s51, s60, 2
    s_cmp_eq_u32 s34, 0
    s_cbranch_scc0 K1_l_qkv
    v_cmp_gt_u32 vcc, 12, v13
    v_cndmask_b32 v7, v14, v7, vcc
    s_mul_i32 s57, s58, 384
    s_add_u32 s52, s52, s57
    """)
    k1_loader(A, True, 3, "LG")
    A.label("K1_l_qkv")
    A(f"""
    v_cmp_gt_u32 vcc, 10, v13
    v_cndmask_b32 v7, v14, v7, vcc
    s_add_u32 s39, s39, 160
    s_mul_i32 s39, s39, s58
    s_add_u32 s50, s50, s39
    s_mul_i32 s57, s58, 320
    s_add_u32 s52, s52, s57
    s_mul_i32 s54, s35, 15
    s_mov_b32 s55, 15
    s_sub_u32 s57, s34, 1
    s_lshl_b32 s54, s54, s57
    s_lshl_b32 s55, s55, s57
    s_lshl_b32 s57, s41, 3
    s_add_u32 s54, s54, s57
    s_lshl_b32 s54, s54, 10
    s_add_u32 s54, s54, {WS_WPF}
    s_max_u32 s55, s55, s57
    s_sub_u32 s55, s55, s57
    s_cmp_ge_u32 s41, 2
    s_cbranch_scc1 K1_l_qkv2
    """)
    if "kvlight" in EXP:
        A("s_cmp_eq_u32 s34, 1\ns_cbranch_scc1 K1_l_kv")
    k1_loader(A, False, 3, "LA")
    A.label("K1_l_qkv2")
    if "kvlight" in EXP:
        A("s_cmp_eq_u32 s34, 1\ns_cbranch_scc1 K1_l_kv2")
    k1_loader(A, False, 2, "LB")
    if "kvlight" in EXP:
        A.label("K1_l_kv"); k1_loader(A, False, 3, "LC", True)
        A.label("K1_l_kv2"); k1_loader(A, False, 2, "LD", True)
    A.label("K1_spare")
    ptr_setup(A)
    k1_spare(A)
    A.label("K1_compute")
    type_decode(A)
    ptr_setup(A)
    A("s_mov_b32 s79, 0")
    if "cpf" in EXP:
        A(f"""s_mul_i32 s36, s32, 30
        s_add_u32 s36, s36, s29              ; rank 0..239
        s_cmp_eq_u32 s3, 0
        s_cselect_b32 s40, s4, s6
        s_cselect_b32 s41, s5, s7
        s_mov_b32 s42, {640*3840}
        s_cselect_b32 s42, 2621440, s42
        s_cselect_b32 s44, 4, 30             ; lines per row in the first batch
        s_cselect_b32 s45, {(1<<20)//4+1}, {(1<<20)//30+1}
        s_cselect_b32 s46, 1280, 3840
        s_cselect_b32 s47, 128, {64*3840}    ; start of stage 1
        s_cselect_b32 s48, 35, 32            ; lanes used
        s_cmp_lt_u32 s3, 2
        s_cbranch_scc1 CPF_a
        s_cmp_eq_u32 s3, 2
        s_cselect_b32 s40, s8, s10
        s_cselect_b32 s41, s9, s11
        s_mov_b32 s42, {640*3456}
        s_mov_b32 s44, 27
        s_mov_b32 s45, {(1<<20)//27+1}
        s_mov_b32 s46, 3456
        s_mov_b32 s47, {64*3456}
        s_mov_b32 s48, 29""".replace(f"s_cselect_b32 s45, {(1<<20)//4+1}, {(1<<20)//30+1}", f"s_mov_b32 s45, {(1<<20)//30+1}\n        s_cselect_b32 s45, {(1<<20)//4+1}, s45").replace("s_cselect_b32 s46, 1280, 3840", "s_mov_b32 s46, 3840\n        s_cselect_b32 s46, 1280, s46").replace(f"s_cselect_b32 s47, 128, {64*3840}", f"s_mov_b32 s47, {64*3840}\n        s_cselect_b32 s47, 128, s47"))
        A.label("CPF_a")
        def batch(vd):
            A(f"""s_mul_i32 s49, s36, s48
            v_min_u32 v{vd}, s48, v0
            v_add_u32 v{vd}, s49, v{vd}
            v_mul_hi_u32 v20, v{vd}, s50
            v_mul_lo_u32 v21, v20, s44
            v_sub_u32 v21, v{vd}, v21
            v_mul_lo_u32 v20, v20, s46
            v_lshl_add_u32 v{vd}, v21, 7, v20""")
        A("s_mov_b32 s43, 0x20000\ns_lshl_b32 s50, s45, 12")
        batch(16)
        A(f"""s_cmp_eq_u32 s3, 0
        s_cselect_b32 s44, 5, s44
        s_mov_b32 s51, {((1<<20)//5+1)<<12}
        s_cselect_b32 s50, s51, s50
        s_mul_i32 s51, s47, 5
        s_mul_i32 s48, s48, 5
        s_add_u32 s48, s48, 3
        s_lshr_b32 s48, s48, 2""")
        batch(253)
        A(f"""s_mov_b32 s44, s51
        s_barrier
        buffer_load_dword v251, v16, s[40:43], s47 offen""")
    if "cx1" in EXP:
        A(f"""s_lshl_b32 s40, s32, 8
        s_lshl_b32 s36, s3, 6
        s_add_u32 s40, s40, s36
        s_mul_i32 s40, s40, 1280
        s_add_u32 s47, s78, 1
        s_sub_u32 s48, s47, 10
        s_cselect_b32 s47, s47, s48
        s_lshl_b32 s47, s47, 7
        s_add_u32 s47, s47, s40
        s_mul_i32 s43, s3, {XWAVE}
        s_sleep {CXSLEEP}""")
        for e in range(8):
            A(f"s_add_u32 s48, s47, {e*8*1280}\ns_add_u32 m0, s43, {XSLOT + e*1024}\ns_nop 0\nbuffer_load_dwordx4 v{2+(e&1)}, s[16:19], s48 offen {NTX} lds")
    A(f"""
    s_setprio 2
    v_mov_b32 v{VL}, v0
    v_and_b32 v1, 15, v0                 ; t
    v_lshrrev_b32 v2, 4, v0              ; g
    v_lshrrev_b32 v3, 1, v1              ; (t>>1)
    s_mul_i32 s36, s3, {XWAVE}
    v_lshlrev_b32 v4, 7, v1
    v_add_u32 v4, s36, v4
    v_xor_b32 v5, v2, v3
    v_lshl_add_u32 v{VX}, v5, 4, v4
    v_xor_b32 v{VX+1}, 64, v{VX}
    s_cmp_eq_u32 s34, 0
    s_mov_b32 s36, 320
    s_cselect_b32 s36, 192, s36
    v_lshlrev_b32 v4, 3, v2              ; 8g
    v_bfe_u32 v5, v0, 2, 2
    v_add_u32 v4, v4, v5
    v_mul_lo_u32 v4, v4, s36
    v_and_b32 v5, 3, v0
    v_lshl_add_u32 v4, v5, 3, v4
    v_add_u32 v4, {WBASE}, v4
    v_and_b32 v5, 1, v2
    v_lshlrev_b32 v5, 5, v5
    v_add_u32 v{VW}, v4, v5
    v_sub_u32 v{VW+1}, v4, v5
    s_lshl_b32 s37, s32, 2
    s_add_u32 s37, s37, s3               ; rb64
    s_lshl_b32 s52, s29, 4
    s_lshl_b32 s53, s32, 1
    s_add_u32 s52, s52, s53
    s_and_b32 s53, s3, 1
    s_add_u32 s52, s52, s53
    s_mul_i32 s52, s52, 768
    s_lshr_b32 s53, s3, 1
    s_cmp_eq_u32 s34, 0
    s_mov_b32 s54, 320
    s_cselect_b32 s54, 384, s54
    s_mul_i32 s53, s53, s54
    s_add_u32 s52, s52, s53
    s_add_u32 s52, s52, {WS_CSP}
    s_lshl_b32 s53, s32, 5
    s_add_u32 s53, s53, s28
    s_lshl_b32 s53, s53, 7
    s_add_u32 s53, s53, {WS_ST}
    s_cmp_lg_u32 s3, 0
    s_cselect_b32 s53, {OOB}, s53
    v_lshlrev_b32 v250, 4, v0
    s_mul_i32 s55, s3, 384
    s_add_u32 s55, s55, {L_ST+128}
    v_add_u32 v249, s55, v250
    v_mov_b32 v6, 0x7ffffff0
    v_cmp_gt_u32 vcc, s54, v250
    v_cndmask_b32 v250, v6, v250, vcc
    """)
    A(f"""
    s_cmp_eq_u32 s34, 0
    s_cbranch_scc0 K1_c_qkv
    s_mul_i32 s50, s37, 74
    s_mul_i32 s51, s35, 3
    s_add_u32 s50, s50, s51
    s_lshl_b32 s50, s50, 12
    s_add_u32 s50, s50, {WS_AF}
    """)
    k1_mainloop(A, True)
    A.label("K1_compute_end")
    k1_epi_gu(A)
    if "hsent" in EXP: A(f"s_mov_b32 s57, {OOB}\nv_mov_b32 v0, v{VL}")
    else: A(f"s_lshl_b32 s57, s37, 7\ns_add_u32 s57, s57, {F_CH}\ns_mov_b32 s56, 17\nv_mov_b32 v0, v{VL}")
    A("s_branch P2_stream")
    A.label("K1_c_qkv")
    A(f"""s_lshl_b32 s57, s35, 3
    s_add_u32 s57, s57, s32
    s_lshl_b32 s57, s57, 2
    s_add_u32 s57, s57, s3
    s_lshl_b32 s57, s57, 11
    s_add_u32 s57, s57, {WS_KVP}""")
    if "nodry" not in EXP:
        A("s_cmp_eq_u32 s34, 2\ns_cbranch_scc1 DK_skip")
        dry_run(A, ["DK0", "DK0", "DK0", "DK0"], "DK_ret")
        A.label("DK_skip")
    k1_mainloop(A, False)
    A(f"""
    s_cmp_eq_u32 s34, 2
    s_cbranch_scc1 K1_c_q
    """)
    k1_epi_kv(A)
    A(f"v_mov_b32 v0, v{VL}\ns_branch P2_aux")
    A.label("K1_c_q")
    A(f"""
    s_lshl_b32 s58, s37, 3
    s_lshl_b32 s51, s35, 1
    s_add_u32 s58, s58, s51
    s_mul_i32 s58, s58, {4*2560}
    s_add_u32 s58, s58, {WS_PQ}
    """)
    k1_epi_q(A)
    A(f"s_lshl_b32 s57, s37, 7\ns_add_u32 s57, s57, {F_CP}\ns_mov_b32 s56, 3\nv_mov_b32 v0, v{VL}")
    phase2(A)
    A.label("K1_end")
    A("s_endpgm")
    return A

def p2_flag(A, tag):
    A(f"s_cmp_ge_u32 s57, {OOB}\ns_cbranch_scc1 {tag}_noflag\ns_waitcnt vmcnt(0)")
    flag_add(A, 57, 56, 4, tag + "_notlast")
    A.label(f"{tag}_noflag")
    prof_stamp(A, 6)
def p2_pre(A, first):
    p2_map(A, 74, 75)
    A(f"""
    s_and_b32 s76, s3, 3
    {f"s_add_u32 s67, s76, {first}" if first else "s_mov_b32 s67, 0"}
    s_mul_i32 s77, s74, 74
    s_add_u32 s77, s77, s67
    s_lshl_b32 s77, s77, 12
    s_add_u32 s77, s77, {WS_AF}
    s_mul_i32 s78, s75, 74
    s_add_u32 s78, s78, s67
    s_mul_i32 s78, s78, 5120
    s_add_u32 s78, s78, {WS_WF}
    """)
    if "hsent" in EXP: A("s_mul_i32 s79, s75, 9\ns_lshr_b32 s79, s79, 2")
    else:
        A(f"""s_and_b32 s67, s74, 3
        s_mul_i32 s67, s67, {ROTR}
        s_mul_i32 s79, s75, {ROTC}
        s_add_u32 s79, s79, s67
        s_lshr_b32 s79, s79, 2
        s_sub_u32 s67, s79, 54
        s_cselect_b32 s79, s79, s67
        s_add_u32 s79, s79, s76
        s_sub_u32 s67, s79, 54
        s_cselect_b32 s79, s79, s67""")
def p2_regs(A):
    A("s_mov_b32 s32, s74\ns_mov_b32 s33, s75\ns_mov_b32 s35, s76\ns_mov_b32 s40, s77\ns_mov_b32 s41, s78\ns_mov_b32 s58, s79\nv_lshlrev_b32 v2, 4, v0\nv_add_u32 v3, 4096, v2")
def cw_wait(A, tag):
    leader_wait(A, tag, "s_cmp_eq_u32 s3, 4", "v_and_b32 v4, 1, v0\nv_lshlrev_b32 v4, 6, v4", "global_load_dword v5, v4, s[14:15] offset:132 sc1", 5, "1", W_CW, 4)
WOB = 140
def wo_loads(A, rng, q=None):
    for i in rng:
        A(f"s_add_u32 s67, s78, {i*4*5120}")
        for ct in range(4): A(f"buffer_load_dwordx4 {v(WOB+20*i+4*ct,4)}, v2, s[20:23], s67 offen offset:{ct*1024} {BSC}")
        A(f"buffer_load_dwordx4 {v(WOB+20*i+16,4)}, v3, s[20:23], s67 offen {BSC}")
        if q:
            for _ in range(5): q.issue("WO")
def rot_off(A, dst, base, k, stride):
    if "hsent" not in EXP:
        A(f"""s_add_u32 s59, s58, {4*k}
        s_sub_u32 s{dst}, s59, 54
        s_cselect_b32 s59, s59, s{dst}
        s_mul_i32 s{dst}, s59, {stride}
        s_add_u32 s{dst}, s{dst}, s{base}""")
        if k == 13: A(f"s_cmp_lt_u32 s35, 2\ns_cselect_b32 s{dst}, s{dst}, {OOB}")
        return
    A(f"""s_add_u32 s59, s35, {4*k}
    s_mul_i32 s63, s59, 57
    s_lshr_b32 s63, s63, 10
    s_mul_i32 s{dst}, s63, 18
    s_sub_u32 s59, s59, s{dst}
    s_add_u32 s59, s59, s58
    s_sub_u32 s{dst}, s59, 18
    s_cselect_b32 s59, s59, s{dst}
    s_mul_i32 s59, s59, 3
    s_add_u32 s59, s59, s63
    s_mul_i32 s{dst}, s59, {stride}
    s_add_u32 s{dst}, s{dst}, s{base}""")
    if k == 13: A(f"s_cmp_lt_u32 s63, 3\ns_cselect_b32 s{dst}, s{dst}, {OOB}")

def skew_addr(A, d, t0, t1, base):
    A(f"v_lshrrev_b32 v{t0}, 5, v0\nv_add_u32 v{t0}, v{t0}, v0\nv_lshrrev_b32 v{t1}, 4, v0\nv_lshlrev_b32 v{t1}, 8, v{t1}\nv_add_u32 v{t1}, {base}, v{t1}")
    for ct in range(5): A(f"v_add_u32 v{d+ct}, {2*ct}, v{t0}\nv_and_b32 v{d+ct}, 15, v{d+ct}\nv_lshl_add_u32 v{d+ct}, v{d+ct}, 4, v{t1}")

def p2_aux(A):
    A.label("P2_aux")
    p2_pre(A, 54); p2_regs(A); cw_wait(A, "PAW")
    A("s_cmp_eq_u32 s34, 1\ns_cbranch_scc1 P2_a_2\ns_cmp_eq_u32 s34, 2\ns_cbranch_scc0 P2_a_noq")
    lds_spin(A, "AQ", W_Q, "4", 4, 5)
    A.label("P2_a_noq")
    A(f"s_mul_i32 s45, s33, {74*5120}\ns_add_u32 s45, s45, {WS_WF}\ns_mul_i32 s44, s35, 5120")
    for i in range(NL):
        rot_off(A, 43, 45, 4 + i, 5120)
        if "stage" in EXP and i == NSLOW: lds_spin(A, "AE", W_ED, "4", 4, 5)
        A(f"s_waitcnt vmcnt({(THR if i < NSLOW else 30) if 'stage' in EXP else THR})\ns_add_u32 m0, s44, {i*20480}\ns_nop 0")
        for ct in range(4): A(f"buffer_load_dwordx4 v2, s[20:23], s43 offen offset:{ct*1024} {BSC} lds")
        A(f"s_add_u32 m0, s44, {i*20480+4096}\ns_nop 0\nbuffer_load_dwordx4 v3, s[20:23], s43 offen {BSC} lds")
    wo_loads(A, range(1, 3))
    A.label("P2_a_2")
    A(f"s_setprio {0 if 'auxlo' in EXP else 3}")
    prof_stamp(A, 7)
    A(f"""s_cmp_eq_u32 s34, 1
    s_cbranch_scc1 P2_a_3
    s_lshr_b32 s36, s2, 5
    s_cmp_ge_u32 s36, 6
    s_cselect_b32 s65, 1, 0
    s_sub_u32 s64, s32, 1
    s_and_b32 s64, s64, 3
    s_and_b32 s36, s32, 28
    s_or_b32 s64, s64, s36
    s_cmp_eq_u32 s65, 1
    s_cselect_b32 s64, s64, s32""")
    leader_wait(A, "AP", "s_cmp_eq_u32 s35, 0", f"""s_lshl_b32 s37, s32, 7
    s_lshl_b32 s38, s64, 7
    v_mov_b32 v4, s37
    v_writelane_b32 v4, s38, 0
    s_mov_b32 s37, {F_CP+F_RDY}""", "buffer_load_dword v5, v4, s[20:23], s37 offen sc1", 5, "1", W_CP, 4)
    def pq_load(rb, R):
        A(f"""s_lshl_b32 s36, s{rb}, 3
        s_add_u32 s36, s36, s33
        s_mul_i32 s36, s36, {4*2560}
        s_add_u32 s36, s36, {WS_PQ}
        buffer_load_dwordx4 {v(R,4)}, v6, s[20:23], s36 offen sc1
        buffer_load_dwordx4 {v(R+4,4)}, v6, s[20:23], s36 offen offset:1024 sc1
        buffer_load_dwordx2 {v(R+8,2)}, v7, s[20:23], s36 offen offset:2048 sc1""")
    def phi(R, OUT):
        for k in range(10): A(f"v_lshlrev_b32 v{40+2*k}, 16, v{R+k}\nv_and_b32 v{41+2*k}, 0xffff0000, v{R+k}")
        dual_softmax(A, 40, 60, OUT, 240, "s[52:53]")
    A("""v_lshrrev_b32 v20, 4, v0
    v_mul_u32_u24 v20, 2560, v20
    v_and_b32 v21, 15, v0
    s_lshl_b32 s36, s35, 4
    v_add_u32 v21, s36, v21
    v_lshl_add_u32 v6, v21, 4, v20
    v_lshl_add_u32 v7, v21, 3, v20""")
    pq_load(32, 8); pq_load(64, 24)
    A(f"""
    s_lshl_b32 s47, s33, 16
    s_lshl_b32 s38, s35, 11
    s_add_u32 s47, s47, s38
    s_add_u32 s47, s47, {WS_KVP}
    s_add_u32 s48, s47, 32768
    s_add_u32 s38, s38, {KVB}
    v_and_b32 v20, 15, v0
    v_lshrrev_b32 v21, 4, v0
    v_lshlrev_b32 v19, 4, v20
    v_lshl_add_u32 v19, v21, 3, v19
    v_add_u32 v19, s38, v19
    v_and_b32 v18, 3, v0
    v_mul_u32_u24 v18, 80, v18
    v_add_u32 v18, s38, v18
    s_mov_b32 s52, {LOG2E}
    s_mov_b32 s53, {LOG2E}
    """)
    o_offsets(A, 32, 33, 35, 44, 45, 46)
    o_offsets(A, 64, 33, 35, 60, 61, 62)
    wo_loads(A, range(3, 5))
    A("s_waitcnt vmcnt(10)")
    lds_inc(A, W_BL, 4, 5)
    phi(8, 100)
    A("s_cmp_eq_u32 s65, 0\ns_cbranch_scc1 P2_a_p1")
    phi(24, 120)
    A.label("P2_a_p1")
    A("""v_and_b32 v20, 15, v0
    v_lshrrev_b32 v21, 4, v0
    v_lshlrev_b32 v16, 4, v20
    v_lshl_add_u32 v16, v21, 13, v16
    v_mov_b32 v21, 0x7ffffff0
    v_cmp_gt_u32 vcc, 8, v20
    v_cndmask_b32 v17, v21, v16, vcc
    v_mov_b32 v21, 0x3f80
    v_mov_b32 v22, 0x3f800000""")
    for k in range(4):
        A(f"v_cmp_eq_u32 vcc, {2*k}, v20\nv_cndmask_b32 v{84+k}, 0, v21, vcc\nv_cmp_eq_u32 vcc, {2*k+1}, v20\nv_cndmask_b32 v{84+k}, v{84+k}, v22, vcc")
    o_lane(A, 6, 7)
    FBUF = [140, 144, 148, 152, 156, 240, 244, 248, 252, 8, 12]
    for b in FBUF:
        for i in range(4): A(f"v_mov_b32 v{b+i}, 0")
    if "p2touch" in EXP: code_warm(A, "AK_ct", "K1_end", "s35", 98, 99, "P2_stream", back=True)
    prof_stamp(A, 8)
    leader_wait(A, "AK", "s_cmp_eq_u32 s35, 0", f"s_lshl_b32 s37, s33, 16\ns_add_u32 s37, s37, {WS_KVP + 1916}\nv_and_b32 v4, 31, v0\nv_lshlrev_b32 v4, 11, v4", "buffer_load_dword v5, v4, s[20:23], s37 offen sc1", 5, "data", W_CK, 4)
    prof_stamp(A, 9)
    A(f"s_mov_b32 s68, {SPIN_MAX}")
    A.label("KV_rty")
    for g in range(8):
        for q_ in range(2):
            r = 20 + 8 * g + 4 * q_
            A(f"buffer_load_dwordx4 {v(r,4)}, v{16 if g < 7 else 17}, s[20:23], s{47+q_} offen offset:{g*256} sc1")
    for g in range(8):
        r = 20 + 8 * g
        A(f"s_waitcnt vmcnt({14-2*g})")
        A(f"v_max3_u32 v96, v{r}, v{r+1}, {'v96' if g else f'v{r+7}'}")
        for k in (2, 4) + ((6,) if g else ()): A(f"v_max3_u32 v96, v{r+k}, v{r+k+1}, v96")
        if not g: A(f"v_max_u32 v96, v{r+6}, v96")
        A(f"v_mfma_f32_16x16x32_bf16 {v(88+4*(g%2),4)}, v[84:87], {v(r,4)}, 0")
        A(f"v_mfma_f32_16x16x32_bf16 {v(88+4*(g%2),4)}, v[84:87], {v(r+4,4)}, {v(88+4*(g%2),4)}")
        def put(gg):
            p = 88 + 4 * (gg % 2); d = 20 + 8 * gg
            A(f"v_cvt_pk_bf16_f32 v{d}, v{p}, v{p+1}\nv_cvt_pk_bf16_f32 v{d+1}, v{p+2}, v{p+3}\ns_mov_b64 exec, 0xffffffff\nds_write_b64 v19, {v(d,2)} offset:{gg*256}\ns_mov_b64 exec, -1")
        if g: put(g - 1)
    put(7)
    A("v_cmp_eq_u32 vcc, -1, v96\ns_cbranch_vccz KV_ok\ns_sub_u32 s68, s68, 1\ns_cbranch_scc0 KV_rty")
    A.label("KV_ok")
    lds_inc(A, W_KVL, 4, 5)
    A("s_mov_b32 s50, 0x00f0000f\ns_mov_b32 s51, 0xf0000f00\ns_waitcnt lgkmcnt(0)")
    def slices(dual):
        q = Q(A, "lgkmcnt", 15)
        order = [5, 0, 1, 2, 3, 4]
        acc2 = [64, 68, 72, 76, 80, 84]
        seq = [(t, c) for t in order for c in range(5)]
        NB = len(FBUF)
        def rdA(lo, hi):
            A("s_mov_b64 exec, s[50:51]")
            for n in range(lo, min(hi, 30)):
                t, c = seq[n]
                A(f"ds_read_b128 {v(FBUF[n % NB],4)}, v18 offset:{t*320+c*16}"); q.issue(n)
            A("s_mov_b64 exec, -1")
        rdA(0, 10)
        for k, t in enumerate(order):
            for c in range(5):
                n = 5 * k + c
                q.wait({n})
                A(f"v_mfma_f32_16x16x32_bf16 {v(40+4*t,4)}, {v(FBUF[n % NB],4)}, {v(100+4*c,4)}, {'0' if c==0 else v(40+4*t,4)}")
                if dual: A(f"v_mfma_f32_16x16x32_bf16 {v(acc2[t],4)}, {v(FBUF[n % NB],4)}, {v(120+4*c,4)}, {'0' if c==0 else v(acc2[t],4)}")
            if 5 * k + 10 < 30: rdA(5 * k + 10, 5 * k + 15)
            if k == 2:
                A("v_add_f32 v60, 0x358637bd, v60\nv_rcp_f32 v60, v60")
                if dual: A("v_add_f32 v84, 0x358637bd, v84\nv_rcp_f32 v84, v84")
        for (ac, den, O, so) in [(40, 60, 20, 44)] + ([(64, 84, 30, 60)] if dual else []):
            for k in range(10):
                r = ac + 2 * k
                A(f"v_pk_mul_f32 {v(r,2)}, {v(r,2)}, {v(den,2)} op_sel_hi:[1,0]\nv_cvt_pk_bf16_f32 v{O+k}, v{r}, v{r+1}")
            A(f"""buffer_store_dwordx4 {v(O,4)}, v6, s[20:23], s{so} offen sc1
            buffer_store_dwordx4 {v(O+4,4)}, v6, s[20:23], s{so+1} offen sc1
            buffer_store_dwordx2 {v(O+8,2)}, v6, s[20:23], s{so+2} offen sc1""")
    A("s_cmp_eq_u32 s65, 0\ns_cbranch_scc1 P2_a_s1")
    slices(True)
    A("s_branch P2_a_4")
    A.label("P2_a_s1")
    slices(False)
    A("s_branch P2_a_4")
    A.label("P2_a_3")
    wo_loads(A, range(1, 5))
    lds_inc(A, W_KVS, 4, 5)
    A.label("P2_a_4")
    prof_stamp(A, 10)
    wo_loads(A, [0])
    leader_wait(A, "AO", "s_cmp_eq_u32 s35, 0", f"""s_mul_i32 s37, s32, {74*4096}
    s_add_u32 s37, s37, {WS_AF + 56*4096 + 3*1024 + 244}
    v_bfe_u32 v4, v0, 3, 2
    v_mul_u32_u24 v4, {5*4096}, v4
    v_bfe_u32 v5, v0, 2, 1
    v_lshl_add_u32 v4, v5, 3, v4
    v_and_b32 v5, 3, v0
    v_lshl_add_u32 v4, v5, 8, v4""", "buffer_load_dword v5, v4, s[20:23], s37 offen sc1", 5, "data", W_O, 4)
    prof_stamp(A, 6)
    A(f"s_mov_b32 s68, {SPIN_MAX}")
    qv = Q(A, "vmcnt", 63)
    def ld(i, model=True, E=A):
        E(f"s_add_u32 s42, s40, {((i+1)%5)*4*4096}")
        for T in range(4):
            E(f"buffer_load_dwordx4 {v(84+16*(i%3)+4*T,4)}, v2, s[20:23], s42 offen offset:{T*1024} sc1")
            if model: qv.issue(i)
    oo = [1, 2, 3, 4, 0]
    ld(0); ld(1); ld(2)
    A(f"s_mul_i32 s36, s35, 20480\ns_add_u32 s36, s36, {APART}")
    skew_addr(A, 134, 132, 133, "s36")
    for i in range(5):
        qv.wait({i})
        b = 84 + 16 * (i % 3)
        A(f"s_branch P2_chk{i}")
        A.label(f"P2_rty{i}")
        A(f"s_sub_u32 s68, s68, 1\ns_cbranch_scc1 P2_ok{i}\ns_sleep 2")
        ld(i, False)
        A("s_waitcnt vmcnt(0)")
        A.label(f"P2_chk{i}")
        A(f"v_max3_u32 v132, v{b}, v{b+1}, v{b+2}")
        for k in range(3, 15, 2): A(f"v_max3_u32 v132, v132, v{b+k}, v{b+k+1}")
        A(f"v_max_u32 v132, v132, v{b+15}\nv_cmp_eq_u32 vcc, -1, v132\ns_cbranch_vccnz P2_rty{i}")
        A.label(f"P2_ok{i}")
        if i == 0: prof_stamp(A, 11)
        S = Buf()
        if 1 <= i <= 2: ld(i + 2, True, S)
        M = [f"v_mfma_f32_16x16x32_bf16 {v(4+4*(T*5+ct),4)}, {v(WOB+20*oo[i]+4*ct,4)}, {v(b+4*T,4)}, {'0' if i==0 else v(4+4*(T*5+ct),4)}" for ct in range(5) for T in range(4)]
        weave(A, M, S.l, 0, 2)
    lds_spin(A, "AS", W_SD, "4", 132, 133)
    prof_stamp(A, 12)
    for t in range(20): A(f"ds_write_b128 v{134+t%5}, {v(4+4*t,4)} offset:{t*1024}")
    A("s_waitcnt lgkmcnt(0)")
    lds_inc(A, W_AP, 132, 133)
    endpgm(A, 1)

def p2_stream(A, nl, tag):
    AP, BP, NA = 84, 148, NAD
    isL = lambda k: 4 <= k < 4 + nl
    if nl == 0: bslot = {k: k % 5 for k in range(14)}
    else:
        bslot = {0: 0, 1: 1, 2: 2, 3: 3, 11: 0, 12: 1, 13: 2}
        for k in range(4, 11): bslot[k] = 4 - (k % 2)
    q = Q(A, "vmcnt", 63); ql = Q(A, "lgkmcnt", 15)
    def ldB(k, E=A):
        b = BP + 20 * bslot[k]
        rot_off(E, 43, 41, k, 5120)
        for ct in range(4): E(f"buffer_load_dwordx4 {v(b+4*ct,4)}, v2, s[20:23], s43 offen offset:{ct*1024} {BSC}"); q.issue(("B", k))
        E(f"buffer_load_dwordx4 {v(b+16,4)}, v3, s[20:23], s43 offen {BSC}"); q.issue(("B", k))
    def rdB(k, E=A):
        b = BP + 20 * bslot[k]; i = k - 4
        for ct in range(5): E(f"ds_read_b128 {v(b+4*ct,4)}, v{248+i//3} offset:{(i%3)*20480+ct*1024}"); ql.issue(k)
    def ldA(k, model=True, E=A):
        rot_off(E, 42, 40, k, 4096)
        for T in range(4):
            E(f"buffer_load_dwordx4 {v(AP+16*(k%4)+4*T,4)}, v2, s[20:23], s42 offen offset:{T*1024} sc1")
            if model: q.issue(("A", k))
    hsent = "hsent" in EXP
    early = nl == 0 or not hsent
    if early:
        for k in range(5 if nl == 0 else 4): ldB(k)
    else:
        A(f"s_cmp_eq_u32 s57, {OOB+4}\ns_cbranch_scc0 {tag}_nopp")
    if "p2touch" in EXP: code_warm(A, tag + "_ct", "K1_end", "s35", 254, 255, "P2_stream", back=True)
    prof_stamp(A, 8)
    if hsent:
        leader_wait(A, tag + "H", "s_cmp_eq_u32 s35, 0", f"v_min_u32 v4, 17, v0\nv_mul_u32_u24 v4, {3*4096}, v4\ns_add_u32 s36, s40, 4092", "buffer_load_dword v5, v4, s[20:23], s36 offen sc1", 5, "data", W_CH, 4)
    else:
        leader_wait(A, tag + "H", "s_cmp_eq_u32 s35, 0", f"s_lshl_b32 s36, s32, 7\ns_add_u32 s36, s36, {F_CH+F_RDY}\nv_mov_b32 v4, 0", "buffer_load_dword v5, v4, s[20:23], s36 offen sc1", 5, "1", W_CH, 4)
    if not early: A.label(f"{tag}_nopp")
    if nl and "hold" in EXP: lds_spin(A, tag + "K", W_KVL, "4", 4, 5)
    if "ahit" in EXP: A(f"s_mul_i32 s40, s33, {74*5120}\ns_add_u32 s40, s40, {WS_WF}")
    prof_stamp(A, 9)
    tick(A, None)
    for k in range(4):
        ldA(k)
        if not early: ldB(k)
    A(f"s_mov_b32 s68, {SPIN_MAX}")
    if nl:
        A(f"s_mul_i32 s36, s35, 5120\nv_add_u32 v248, s36, v2\nv_add_u32 v249, {3*20480}, v248\nv_add_u32 v250, {6*20480}, v248")
    for k in range(14):
        if nl and k == 3:
            lds_spin(A, tag + "L", W_BL, "4", 251, 252)
            A(f"s_mov_b32 s68, {SPIN_MAX}")
            rdB(4)
        tick(A, 0)
        q.wait({("A", k), ("B", k)})
        tick(A, 1)
        a_ = AP + 16 * (k % 4)
        if hsent:
            A(f"s_branch {tag}_chk{k}")
            A.label(f"{tag}_rty{k}")
            A(f"s_sub_u32 s68, s68, 1\ns_cbranch_scc1 {tag}_ok{k}\ns_sleep 3")
            ldA(k, False)
            A("s_waitcnt vmcnt(0)")
            A.label(f"{tag}_chk{k}")
            A(f"v_max3_u32 v253, v{a_}, v{a_+1}, v{a_+2}")
            for j in range(3, 15, 2): A(f"v_max3_u32 v253, v253, v{a_+j}, v{a_+j+1}")
            A(f"v_max_u32 v253, v253, v{a_+15}\nv_cmp_eq_u32 vcc, -1, v253\ns_cbranch_vccnz {tag}_rty{k}")
            A.label(f"{tag}_ok{k}")
        if k == 0: prof_stamp(A, 10)
        if isL(k): ql.wait({k})
        tick(A, 3)
        S = Buf()
        if isL(k + 1) and k >= 4: rdB(k + 1, S)
        if k >= 1 and k + 3 < 14: ldA(k + 3, True, S)
        if nl == 0 and k >= 1 and k + 4 < 14: ldB(k + 4, S)
        if nl and 1 <= k <= 3: ldB(10 + k, S)
        side, cur = [], []
        for x in S.l:
            cur.append(x)
            if x.startswith(("buffer_", "ds_")): side.append("\n".join(cur)); cur = []
        b = BP + 20 * bslot[k]
        M = [f"v_mfma_f32_16x16x32_bf16 {v(4+4*(T*5+ct),4)}, {v(b+4*ct,4)}, {v(a_+4*T,4)}, {'0' if k==0 else v(4+4*(T*5+ct),4)}" for ct in range(5) for T in range(4)]
        if "snold" in EXP: side = [x for x in side if "buffer_" not in x]
        if "snomf" in EXP and k: M = M[:1]
        weave(A, M, side, 0, 2 if len(side) > 5 else 4)
        tick(A, 2)

def phase2(A):
    A.label("P2_stream")
    A(f"s_load_dwordx2 s[6:7], s[0:1], 64\ns_setprio {2 if 'auxlo' in EXP else 0}")
    lds_inc(A, W_ED, 4, 5)
    p2_flag(A, "PS")
    p2_pre(A, 0); p2_regs(A); cw_wait(A, "PSW")
    A("s_waitcnt lgkmcnt(0)")
    srd(A, 24, 6, 2621440)
    prof_stamp(A, 7)
    A("s_cmp_eq_u32 s34, 1\ns_cbranch_scc1 P2_stream0")
    p2_stream(A, NL, "SA")
    A("s_branch P2_red")
    A.label("P2_stream0")
    if "nokvs" in EXP: A(f"s_mov_b32 s40, {OOB}\ns_mov_b32 s41, {OOB}")
    p2_stream(A, 0, "SB")
    lds_spin(A, "SK", W_KVS, "4", 251, 252)
    A.label("P2_red")
    prof_stamp(A, 11)
    A(f"""
    s_lshl_b32 s44, s32, 2
    s_add_u32 s44, s44, s35
    s_mul_i32 s44, s44, {16*1280}
    s_mul_i32 s45, s33, 160
    s_add_u32 s44, s44, s45
    v_mov_b32 v93, 0x7ffffff0
    """)
    for r in range(3):
        A(f"""v_add_u32 v90, {64*r}, v0
        v_mul_u32_u24 v91, 205, v90
        v_lshrrev_b32 v91, 11, v91           ; t
        v_mul_u32_u24 v92, 10, v91
        v_sub_u32 v92, v90, v92              ; c
        v_mul_u32_u24 v{84+r}, 1280, v91
        v_lshl_add_u32 v{84+r}, v92, 4, v{84+r}
        v_lshlrev_b32 v{87+r}, 9, v92
        v_add_u32 v91, v91, v92
        v_and_b32 v91, 15, v91
        v_lshl_add_u32 v{87+r}, v91, 4, v{87+r}""")
        if r == 2: A("v_cmp_gt_u32 vcc, 32, v0\nv_cndmask_b32 v86, v93, v86, vcc\nv_cndmask_b32 v89, 0, v89, vcc")
        A(f"buffer_load_dwordx4 {v(140+4*r,4)}, v{84+r}, s[16:19], s44 offen {NTR}")
    lds_inc(A, W_SD, 96, 97); lds_spin(A, "R1", W_SD, "4", 96, 97)
    prof_stamp(A, 4)
    for T in range(4):
        A(f"""s_sub_u32 s36, s35, {T+1}
        s_and_b32 s36, s36, 3
        s_cmp_eq_u32 s36, 3
        s_cbranch_scc1 R_own{T}
        s_add_u32 s36, s36, {3*T}
        s_mul_i32 s36, s36, 5120
        v_add_u32 v1, s36, v2""")
        for ct in range(5): A(f"ds_write_b128 v1, {v(4+4*(T*5+ct),4)} offset:{XCH+ct*1024}")
        A(f"s_branch R_nxt{T}")
        A.label(f"R_own{T}")
        for k in range(10): A(f"v_pk_mul_f32 {v(100+2*k,2)}, {v(4+20*T+2*k,2)}, 1.0 op_sel_hi:[1,0]")
        A.label(f"R_nxt{T}")
    A(f"""s_mul_i32 s36, s35, {3*5120}
    v_add_u32 v1, s36, v2
    s_mov_b32 s52, {NLOG2E}
    s_mov_b32 s53, {NLOG2E}
    s_mov_b32 s54, 1.0
    s_mov_b32 s55, 1.0
    s_waitcnt lgkmcnt(0)""")
    lds_inc(A, W_SX, 96, 97); lds_spin(A, "R2", W_SX, "4", 96, 97)
    prof_stamp(A, 7)
    for p in range(3):
        for ct in range(5): A(f"ds_read_b128 {v(4+20*p+4*ct,4)}, v1 offset:{XCH+p*5120+ct*1024}")
    A("s_waitcnt lgkmcnt(5)")
    for k in range(10): A(f"v_pk_add_f32 {v(4+2*k,2)}, {v(4+2*k,2)}, {v(24+2*k,2)}")
    A("s_waitcnt lgkmcnt(0)")
    for k in range(10): A(f"v_pk_add_f32 {v(100+2*k,2)}, {v(100+2*k,2)}, {v(44+2*k,2)}")
    for k in range(10): A(f"v_pk_add_f32 {v(100+2*k,2)}, {v(100+2*k,2)}, {v(4+2*k,2)}")
    for k in range(10): A(f"v_pk_mul_f32 {v(120+2*k,2)}, {v(100+2*k,2)}, s[52:53]")
    for i in range(20): A(f"v_exp_f32 v{120+i}, v{120+i}")
    for k in range(10): A(f"v_pk_add_f32 {v(120+2*k,2)}, {v(120+2*k,2)}, s[54:55]")
    for i in range(20): A(f"v_rcp_f32 v{120+i}, v{120+i}")
    for k in range(10): A(f"v_pk_mul_f32 {v(100+2*k,2)}, {v(100+2*k,2)}, {v(120+2*k,2)}")
    skew_addr(A, 124, 130, 131, "s36")
    for ct in range(5): A(f"ds_write_b128 v{124+ct}, {v(100+4*ct,4)} offset:{XCH+ct*1024}")
    A("s_waitcnt lgkmcnt(0)")
    for r in range(3):
        A(f"v_add_u32 v90, s36, v{87+r}\nds_read_b128 {v(100+8*r,4)}, v90 offset:{XCH}\nds_read_b128 {v(104+8*r,4)}, v90 offset:{XCH+256}")
    A(f"s_mul_i32 s36, s35, 5120\ns_add_u32 s36, s36, {APART}")
    for r in range(3): A(f"v_add_u32 v{87+r}, s36, v{87+r}\nv_add_u32 v{90+r}, {2*20480}, v{87+r}")
    prof_stamp(A, 8)
    A("s_waitcnt vmcnt(0)")
    for k in range(12): A(f"v_lshlrev_b32 v{152+2*k}, 16, v{140+k}\nv_and_b32 v{153+2*k}, 0xffff0000, v{140+k}")
    prof_stamp(A, 12)
    A("s_setprio 3")
    lds_spin(A, "R3", W_AP, "4", 96, 97)
    prof_stamp(A, 13)
    q = Q(A, "lgkmcnt", 15)
    def rds(r):
        for p in range(4):
            for h in range(2):
                A(f"ds_read_b128 {v([4,36,180][r]+8*p+4*h,4)}, v{(87 if p < 2 else 90)+r} offset:{(p%2)*20480+h*256}"); q.issue(r)
    rds(0)
    for r in range(3):
        q.wait({r})
        if r < 2: rds(r + 1)
        b = [4, 36, 180][r]
        for k in range(4):
            A(f"v_pk_add_f32 {v(b+2*k,2)}, {v(b+2*k,2)}, {v(b+8+2*k,2)}\nv_pk_add_f32 {v(b+16+2*k,2)}, {v(b+16+2*k,2)}, {v(b+24+2*k,2)}")
        for k in range(4): A(f"v_pk_add_f32 {v(b+2*k,2)}, {v(b+2*k,2)}, {v(b+16+2*k,2)}")
        for k in range(4): A(f"v_pk_fma_f32 {v(b+2*k,2)}, {v(b+2*k,2)}, {v(100+8*r+2*k,2)}, {v(152+8*r+2*k,2)}")
        for k in range(4): A(f"v_cvt_pk_bf16_f32 v{b+8+k}, v{b+2*k}, v{b+2*k+1}")
        A(f"buffer_store_dwordx4 {v(b+8,4)}, v{84+r}, s[24:27], s44 offen {OST}")
    endpgm(A, 1)
    p2_aux(A)

HEADER = open(f"cdna_kernels/{NAME}.s.ref").read().split("; Override launch")[0]

def build_single(A, aslist):
    n = NAME + "_kernel"
    t = HEADER
    t += f"; @launch kernel={n} grid=(256,1,1) block=(512,1,1) lds={K1_LDS}\n" if aslist else f"; @launch grid=(256,1,1) block=(512,1,1) lds={K1_LDS}\n"
    body = A.text()
    if "noalign" not in EXP:
        body, a_, b_ = align_pass(body); print("align: promoted", a_, "nops", b_)
    t += '.amdgcn_target "amdgcn-amd-amdhsa--gfx950"\n.text\n' + kernel_head(n) + body + "\n"
    t += '.section .rodata,"a"\n.p2align 6\n' + kernel_desc(n, 256, 100)
    return t

if __name__ == "__main__":
    if "--prof" in sys.argv: PROF = True; sys.argv.remove("--prof")
    aslist = "--list" in sys.argv or PROF
    if "--list" in sys.argv: sys.argv.remove("--list")
    for a_ in list(sys.argv):
        if a_.startswith("--thr="): THR = int(a_[6:]); sys.argv.remove(a_)
        if a_.startswith("--bsc="): BSC = a_[6:]; sys.argv.remove(a_)
        if a_.startswith("--aux="): AUXS = a_[6:]; sys.argv.remove(a_)
        if a_.startswith("--wsleep="): WSLEEP = int(a_[9:]); sys.argv.remove(a_)
        if a_.startswith("--na="): NAD = int(a_[5:]); sys.argv.remove(a_)
        if a_.startswith("--nslow="): NSLOW = int(a_[8:]); sys.argv.remove(a_)
        if a_.startswith("--rot="): ROTR, ROTC = map(int, a_[6:].split(",")); sys.argv.remove(a_)
        if a_ == "--nokrot": KROT = False; sys.argv.remove(a_)
        if a_.startswith("--pub="): PUBU = int(a_[6:]); sys.argv.remove(a_)
        if a_.startswith("--rlu="): RLU = int(a_[6:]); sys.argv.remove(a_)
        if a_.startswith("--ssleep="): SSLEEP = int(a_[9:]); sys.argv.remove(a_)
        if a_.startswith("--nt="):
            f_ = a_[5:]; NTX = 'nt' if 'x' in f_ else ''; NTW = 'nt' if 'w' in f_ else ''; NTA = 'nt' if 'a' in f_ else ''; NTR = 'nt' if 'r' in f_ else ''; sys.argv.remove(a_)
        if a_.startswith("--ntu="): NTU = int(a_[6:]); sys.argv.remove(a_)
        if a_.startswith("--cpfs="): CPFS = int(a_[7:]); sys.argv.remove(a_)
        if a_.startswith("--ost="): OST = a_[6:].replace("+", " "); sys.argv.remove(a_)
        if a_.startswith("--x="): EXP |= set(a_[4:].split(",")); sys.argv.remove(a_)
    out = sys.argv[1] if len(sys.argv) > 1 else "v5.s"
    open(out, "w").write(build_single(gen_k1(), aslist))
    print("written", out)
```

```python
import sys
from asmlib import *

NAME = "recurrent_scan__linear_kernel_hedgehog__swiglu_ffn__prompt"
USE_XN = False
WS_AF  = 0x300000
WS_WF  = 0xD00000
WS_PQ  = 0x1000000
WS_KVT = 0x1300000
WS_FLG = WS_KVT + 122880
F_CH = WS_FLG; F_CP = WS_FLG + 32 * 128; F_CK = WS_FLG + 64 * 128
F_RDY = 72 * 128
WS_KVP = 0x1400000
WS_WPF = 0x1340000
WS_ST  = 0x1380000
WS_CSP = 0x1390000
WS_SIZE = 0x10000000
LOG2E = 0x3fb8aa3b
NLOG2E = 0xbfb8aa3b
OOB = 0x7ff00000
SPIN_MAX = 100000
THR = 4
OST = ''
CPFS = 10
NTU = 20
NTX = NTW = NTA = NTR = ''
SSLEEP = 40
PUBU = 6
RLU = 8
CX1_AFTER = [0, 0]
CXSLEEP = 6
ROTR, ROTC = 0, 0
KROT = False
NAD = 4
NSLOW = 4
AUXS = 'B'
WSLEEP = 0
OSLEEP = 8
BSC = 'sc1'
PROF = False
EXP = {"nodry", "stage", "b1", "notouch"}
HST = 'sc1'
WS_PROF = 0x2000000

def prof_start(A):
    if PROF:
        A("s_memrealtime s[98:99]")
        for i in range(14): A(f"s_mov_b32 s{81+i}, 0")
        A("s_waitcnt lgkmcnt(0)\ns_mov_b32 s80, s98")
SLOTS = [0, 1, 2, 3, 4, 5, 6, 7, 8, 10, 12, 14, 17, 19]
def prof_stamp(A, i, cyc=False, force=False):
    if "slots" in EXP and not force: return
    if PROF: A(f"s_memrealtime s[98:99]\ns_waitcnt lgkmcnt(0)\ns_mov_b32 s{81+i}, s98")
    if PROF and cyc and "cyc" in EXP: A("s_memtime s[98:99]\ns_waitcnt lgkmcnt(0)\ns_sub_u32 s81, s98, s76\ns_add_u32 s81, s81, s80")
def tick(A, slot):
    if PROF and "sacc" in EXP:
        A(f"s_memtime s[98:99]\ns_waitcnt lgkmcnt(0)")
        if slot is not None: A(f"s_sub_u32 s97, s98, s96\ns_add_u32 s{81+slot}, s{81+slot}, s97")
        else: A("s_mov_b32 s81, 0\ns_mov_b32 s82, 0\ns_mov_b32 s83, 0\ns_mov_b32 s84, 0")
        A("s_mov_b32 s96, s98")
def endpgm(A, kid):
    if PROF:
        A(f"""s_waitcnt vmcnt(0)
        s_memrealtime s[98:99]
        s_mov_b64 exec, -1
        s_lshl_b32 s96, s2, 3
        s_add_u32 s96, s96, s3
        s_lshl_b32 s96, s96, 6
        s_add_u32 s96, s96, {WS_PROF + kid*272*8*64}
        s_waitcnt lgkmcnt(0)
        s_mov_b32 s95, s98""")
        for i in range(16): A(f"v_mov_b32 v{i}, s{80+i}")
        A("v_mov_b32 v16, 0")
        for i in range(4): A(f"buffer_store_dwordx4 {v(4*i,4)}, v16, s[20:23], s96 offen offset:{16*i}")
    A("s_endpgm")

def srd(A, d, b, nbytes, off=0):
    if off: A(f"s_add_u32 s{d}, s{b}, {off}\ns_addc_u32 s{d+1}, s{b+1}, 0")
    else: A(f"s_mov_b32 s{d}, s{b}\ns_mov_b32 s{d+1}, s{b+1}")
    A(f"s_mov_b32 s{d+2}, {nbytes}\ns_mov_b32 s{d+3}, 0x20000")

def bf16_round(A, d):
    A(f"v_cvt_pk_bf16_f32 v{d}, v{d}, v{d}\nv_lshlrev_b32 v{d}, 16, v{d}")

def row16_sum(A, r):
    for k in (8, 4, 2, 1):
        A(f"v_add_f32_dpp v{r}, v{r}, v{r} row_ror:{k} row_mask:0xf bank_mask:0xf")

class Q:
    def __init__(self, A, name, mx): self.A, self.name, self.mx, self.q, self.n = A, name, mx, [], 0
    def issue(self, tag):
        self.n += 1
        self.q.append(tag); assert len(self.q) <= self.mx + (0 if self.name == "vmcnt" else 99), (self.name, len(self.q))
    def wait(self, tags):
        idx = [i for i, t in enumerate(self.q) if t in tags]
        if not idx: return
        n = len(self.q) - 1 - max(idx)
        assert n <= self.mx
        self.A(f"s_waitcnt {self.name}({n})")
        self.q = self.q[max(idx) + 1:]

def code_warm(A, tag, endlabel, piece, vt, vd, start='K1_start', back=False):
    A(f"s_getpc_b64 s[70:71]")
    A.label(tag)
    A(f"""s_add_u32 s70, s70, {start}-{tag}
    s_addc_u32 s71, s71, {-1 if start == 'K1_start' or back else 0}
    s_lshl_b32 s72, {piece}, 13
    v_lshlrev_b32 v{vt}, 7, v0
    v_add_u32 v{vt}, s72, v{vt}
    v_min_u32 v{vt}, {endlabel}-{start}, v{vt}
    global_load_dword v{vd}, v{vt}, s[70:71]""")

def stats_issue(A, q, R, cs=range(5), rb=1):
    if 0 in cs:
        A(f"""v_bfe_u32 v{R+20}, v0, 4, {rb}
        v_mul_u32_u24 v{R+20}, 1280, v{R+20}
        v_and_b32 v{R+21}, 15, v0
        v_lshl_add_u32 v{R+20}, v{R+21}, 4, v{R+20}
        s_mul_i32 s69, s66, 1280""")
    for c in cs:
        A(f"buffer_load_dwordx4 {v(R+4*c,4)}, v{R+20}, s[16:19], s69 offen offset:{256*c} {NTA if 4*c < NTU else ''}"); q.issue("ST")
def stats_part1(A, R, X):
    m = R + 20
    A(f"v_mov_b32 v{X}, 0x3f803f80")
    A(f"v_dot2_f32_bf16 v{m}, v{R}, v{X}, 0\nv_dot2_f32_bf16 v{m+1}, v{R}, v{R}, 0\nv_dot2_f32_bf16 v{X+1}, v{R+1}, v{X}, 0\nv_dot2_f32_bf16 v{X+2}, v{R+1}, v{R+1}, 0")
    for i in range(2, 20, 2):
        A(f"v_dot2_f32_bf16 v{m}, v{R+i}, v{X}, v{m}\nv_dot2_f32_bf16 v{m+1}, v{R+i}, v{R+i}, v{m+1}")
        A(f"v_dot2_f32_bf16 v{X+1}, v{R+i+1}, v{X}, v{X+1}\nv_dot2_f32_bf16 v{X+2}, v{R+i+1}, v{R+i+1}, v{X+2}")
def stats_part2(A, R, X, sidx, rb=1):
    m = R + 20; s_ = R + 21
    A(f"s_nop 2\nv_add_f32 v{m}, v{m}, v{X+1}\nv_add_f32 v{s_}, v{s_}, v{X+2}")
    for k in (8, 4, 2, 1):
        A(f"v_add_f32_dpp v{m}, v{m}, v{m} row_ror:{k} row_mask:0xf bank_mask:0xf")
        A(f"v_add_f32_dpp v{s_}, v{s_}, v{s_} row_ror:{k} row_mask:0xf bank_mask:0xf")
    A(f"""v_mul_f32 v{m}, 0x3acccccd, v{m}
    v_mul_f32 v{s_}, 0x3acccccd, v{s_}
    v_fma_f32 v{s_}, -v{m}, v{m}, v{s_}
    v_max_f32 v{s_}, 0, v{s_}""")
    bf16_round(A, m); bf16_round(A, s_)
    A(f"v_add_f32 v{s_}, 0x3727c5ac, v{s_}")
    bf16_round(A, s_)
    A(f"v_sqrt_f32 v{s_}, v{s_}")
    bf16_round(A, s_)
    A(f"""v_rcp_f32 v{s_}, v{s_}
    v_bfe_u32 v{R}, v0, 4, {rb}
    v_lshlrev_b32 v{R}, 3, v{R}
    s_lshl_b32 s67, s{sidx}, {3+rb}
    s_add_u32 s67, s67, {L_ST}
    v_add_u32 v{R}, s67, v{R}
    ds_write_b64 v{R}, {v(m,2)}""")

def signal(A, vt, which):
    A(f"s_and_b32 s67, s2, 1\ns_lshl_b32 s67, s67, 6\ns_add_u32 s67, s67, {4*which}\nv_mov_b32 v{vt}, s67")
    A(f"""v_mov_b32 v{vt+1}, 1
    s_mov_b64 exec, 1
    global_atomic_add v{vt}, v{vt+1}, s[14:15]
    s_mov_b64 exec, -1""")

def p2_map(A, rb, cb):
    A(f"""s_and_b32 s{rb}, s2, 7
    s_lshl_b32 s{rb}, s{rb}, 2
    s_lshr_b32 s{cb}, s2, 3
    s_and_b32 s67, s{cb}, 3
    s_add_u32 s{rb}, s{rb}, s67
    s_lshr_b32 s{cb}, s{cb}, 2
    s_lshl_b32 s67, s67, 1
    s_add_u32 s{cb}, s{cb}, s67
    s_and_b32 s{cb}, s{cb}, 7""")
def o_offsets(A, rb, cb, e, o0, o1, o2):
    A(f"""s_lshr_b32 s{o2}, s{cb}, 1
    s_mul_i32 s{o2}, s{o2}, 5
    s_mul_i32 s{o1}, s{rb}, 74
    s_add_u32 s{o2}, s{o2}, s{o1}
    s_add_u32 s{o2}, s{o2}, 54
    s_lshl_b32 s{o2}, s{o2}, 4
    s_add_u32 s{o2}, s{o2}, s{e}
    s_lshl_b32 s{o2}, s{o2}, 8
    s_add_u32 s{o2}, s{o2}, {WS_AF}
    s_and_b32 s67, s{cb}, 1
    s_mul_i32 s{o0}, s67, {3*4096}
    s_add_u32 s{o0}, s{o0}, s{o2}
    s_add_u32 s{o1}, s{o0}, 4096
    s_lshl_b32 s67, s67, 9
    s_add_u32 s{o2}, s{o2}, s67
    s_lshl_b32 s67, s{e}, 7
    s_sub_u32 s{o2}, s{o2}, s67
    s_add_u32 s{o2}, s{o2}, {2*4096}""")
def o_lane(A, d, t):
    A(f"v_lshrrev_b32 v{d}, 4, v0\nv_lshlrev_b32 v{d}, 10, v{d}\nv_and_b32 v{t}, 15, v0\nv_lshl_add_u32 v{d}, v{t}, 4, v{d}")
def sentinel_fill(A, q, e, vt):
    p2_map(A, 74, 75); o_offsets(A, 74, 75, e, 76, 77, 78)
    for i in range(4): A(f"v_mov_b32 v{vt+i}, -1")
    o_lane(A, vt + 5, vt + 4)
    A(f"""v_lshlrev_b32 v{vt+4}, 4, v0
    buffer_store_dwordx4 {v(vt,4)}, v{vt+5}, s[20:23], s76 offen sc1
    buffer_store_dwordx4 {v(vt,4)}, v{vt+5}, s[20:23], s77 offen sc1
    buffer_store_dwordx2 {v(vt,2)}, v{vt+5}, s[20:23], s78 offen sc1""")
    for i in range(3): q.issue("PUB")
def lds_spin(A, tag, off, expect, va, vr):
    A(f"v_mov_b32 v{va}, {L_CNT}\ns_mov_b32 s68, {SPIN_MAX*10}")
    A.label(f"{tag}_spin")
    A(f"ds_read_b32 v{vr}, v{va} offset:{off}\ns_waitcnt lgkmcnt(0)\nv_cmp_ne_u32 vcc, {expect}, v{vr}\ns_cbranch_vccz {tag}_out\ns_sub_u32 s68, s68, 1\ns_sleep 1\ns_cbranch_scc0 {tag}_spin")
    A.label(f"{tag}_out")
def lds_inc(A, off, va, vr):
    A(f"v_mov_b32 v{va}, {L_CNT}\nv_mov_b32 v{vr}, 1\ns_mov_b64 exec, 1\nds_add_u32 v{va}, v{vr} offset:{off}\ns_mov_b64 exec, -1")
def leader_wait(A, tag, lead_test, setup, load, vr, expect, off, va):
    A(f"{lead_test}\ns_cbranch_scc0 {tag}_fol")
    A(setup)
    spin(A, tag, load, vr, expect)
    lds_inc(A, off, va, vr)
    A(f"s_branch {tag}_done")
    A.label(f"{tag}_fol")
    lds_spin(A, tag + "F", off, "1", va, vr)
    A.label(f"{tag}_done")
def flag_add(A, soff, slast, vt, tag):
    A(f"""v_mov_b32 v{vt}, 1
    v_mov_b32 v{vt+1}, 0
    s_mov_b64 exec, 1
    buffer_atomic_add v{vt}, v{vt+1}, s[20:23], s{soff} offen sc0
    s_waitcnt vmcnt(0)
    v_readfirstlane_b32 s36, v{vt}
    v_mov_b32 v{vt}, 1
    s_cmp_lg_u32 s36, s{slast}
    s_cbranch_scc1 {tag}
    s_add_u32 s36, s{soff}, {F_RDY}
    buffer_store_dword v{vt}, v{vt+1}, s[20:23], s36 offen sc1""")
    A.label(tag)
    A("s_mov_b64 exec, -1")
def spin(A, tag, load, vr, expect, first=True, sleep=2):
    A(f"s_mov_b32 s68, {SPIN_MAX}")
    if not first: A(f"s_branch {tag}_chk")
    A.label(f"{tag}_spin")
    A(f"{load}\ns_waitcnt vmcnt(0)")
    A.label(f"{tag}_chk")
    cmp = f"v_cmp_eq_u32 vcc, -1, v{vr}" if expect == "data" else f"v_cmp_ne_u32 vcc, {expect}, v{vr}"
    A(f"{cmp}\ns_cbranch_vccz {tag}_out\ns_sub_u32 s68, s68, 1\ns_cbranch_scc1 {tag}_out\ns_sleep {sleep}\ns_branch {tag}_spin")
    A.label(f"{tag}_out")

def relayout_issue(A, q, lab, D):
    A(f"""
    s_cmp_lt_u32 s30, 740
    s_cselect_b32 s76, {WS_WF}, {OOB}
    s_cselect_b32 s77, 0, {OOB}
    s_mul_i32 s74, s30, 6554
    s_lshr_b32 s74, s74, 16         ; s = U/10
    s_mul_i32 s75, s74, 10
    s_sub_u32 s75, s30, s75         ; cq
    s_cmp_lt_u32 s74, 54
    s_cselect_b32 s4, s72, s70
    s_cselect_b32 s5, s73, s71
    s_mov_b32 s6, {640*1280}
    s_cselect_b32 s6, {1728*1280}, s6
    s_mov_b32 s7, 0x20000
    s_cselect_b32 s31, 4, 20        ; row step per lane group
    s_lshl_b32 s36, s74, 5          ; base (w_down)
    s_mov_b32 s38, 16               ; half step
    s_cmp_lt_u32 s74, 54
    s_cbranch_scc1 {lab}
    s_sub_u32 s33, s74, 54          ; s'
    s_mul_i32 s36, s33, 205
    s_lshr_b32 s36, s36, 10         ; P
    s_mul_i32 s48, s36, 5
    s_sub_u32 s33, s33, s48         ; ty
    s_mul_i32 s36, s36, 160
    s_lshl_b32 s48, s33, 3
    s_cmp_ge_u32 s33, 3
    s_cselect_b32 s47, 56, 0
    s_add_u32 s48, s48, s47
    s_add_u32 s36, s36, s48
    s_cmp_eq_u32 s33, 2
    s_cselect_b32 s38, 80, 4
    """.replace(f"s_cselect_b32 s76, {WS_WF}, {OOB}", f"s_mov_b32 s76, {OOB}\n    s_cselect_b32 s76, {WS_WF}, s76"))
    A.label(lab)
    A(f"""
    v_lshrrev_b32 v8, 5, v0
    v_mul_lo_u32 v8, v8, s38
    v_bfe_u32 v9, v0, 3, 2
    v_add_u32 v8, v8, v9
    v_mul_u32_u24 v8, 1280, v8
    v_and_b32 v9, 7, v0
    v_lshl_add_u32 v8, v9, 4, v8
    s_mul_i32 s36, s36, 1280
    s_lshl_b32 s47, s75, 7          ; cq*128
    s_add_u32 s47, s47, s36
    s_add_u32 s47, s47, s77
    s_mul_i32 s31, s31, 1280
    """)
    for g in range(4):
        A(f"buffer_load_dwordx4 {v(D+4*g,4)}, v8, s[4:7], s47 offen {NTR}"); q.issue("RL")
        if g < 3: A("s_add_u32 s47, s47, s31")
def relayout_finish(A, q, D, O, part):
    if part == 0: relayout_fin0(A, q, D)
    else: relayout_fin1(A, q, O)
def relayout_fin0(A, q, D):
    A(f"""
    s_add_u32 s47, s43, {((RLU // 2 + 2) % 3) * XSLOT + 4096}
    v_lshlrev_b32 v10, 4, v0
    v_add_u32 v8, s47, v10
    v_lshrrev_b32 v9, 4, v0
    v_lshlrev_b32 v9, 10, v9
    v_bfe_u32 v11, v0, 2, 2
    v_lshl_add_u32 v9, v11, 7, v9
    v_and_b32 v11, 3, v0
    v_lshl_add_u32 v9, v11, 3, v9
    v_add_u32 v9, s47, v9""")
    q.wait({"RL"})
    for g in range(4): A(f"ds_write_b128 v8, {v(D+4*g,4)} offset:{g*1024}")
def relayout_fin1(A, q, O):
    A("s_waitcnt lgkmcnt(0)")
    for tq in range(4):
        A(f"ds_read_b64_tr_b16 {v(O+4*tq,2)}, v9 offset:{tq*32}\nds_read_b64_tr_b16 {v(O+2+4*tq,2)}, v9 offset:{tq*32+512}")
    for tq in range(4):
        A(f"""s_lshl_b32 s47, s75, 2
        s_add_u32 s47, s47, {tq}          ; gt
        s_mul_i32 s48, s47, 205
        s_lshr_b32 s48, s48, 10          ; cb
        s_mul_i32 s49, s48, 5
        s_sub_u32 s47, s47, s49          ; ct
        s_mul_i32 s48, s48, 74
        s_add_u32 s48, s48, s74
        s_mul_i32 s48, s48, 5
        s_add_u32 s48, s48, s47
        s_lshl_b32 s48, s48, 10
        s_add_u32 s48, s48, s76
        s_waitcnt lgkmcnt({6-2*tq})
        buffer_store_dwordx4 {v(O+4*tq,4)}, v10, s[20:23], s48 offen sc1""")
        q.issue("RS")

def wpf_issue(A, D=16):
    A(f"""
    s_mul_i32 s31, s30, 4370
    s_lshr_b32 s31, s31, 16          ; hg = F/15
    s_mul_i32 s32, s31, 15
    s_sub_u32 s32, s30, s32
    s_mul_i32 s33, s32, 86
    s_lshr_b32 s33, s33, 8           ; tau
    s_mul_i32 s34, s33, 3
    s_sub_u32 s35, s32, s34          ; c
    s_lshl_b32 s33, s33, 2
    s_mul_i32 s39, s31, 1600
    s_add_u32 s39, s39, s33
    v_bfe_u32 v4, v0, 2, 2           ; head_out
    v_and_b32 v5, 3, v0
    v_mul_u32_u24 v6, 400, v4
    v_add_u32 v6, v6, v5
    v_add_u32 v6, s39, v6
    v_lshrrev_b32 v7, 4, v0
    v_lshlrev_b32 v7, 2, v7          ; 4*g
    s_lshl_b32 s35, s35, 5
    v_add_u32 v7, s35, v7            ; 32c + 4g
    v_mov_b32 v11, 0x7ffffff0
    """)
    for j in range(8):
        A(f"""v_add_u32 v8, {16*(j>>2)+(j&3)}, v7
        v_mul_u32_u24 v9, 205, v8
        v_lshrrev_b32 v9, 12, v9          ; head_in
        v_mul_u32_u24 v10, 20, v9
        v_sub_u32 v10, v8, v10            ; d
        v_mul_u32_u24 v10, 20, v10
        v_add_u32 v10, v10, v6
        v_lshlrev_b32 v10, 1, v10
        v_cmp_eq_u32 vcc, v9, v4
        v_cndmask_b32 v10, v11, v10, vcc
        buffer_load_ushort v{D+j}, v10, s[24:27], 0 offen""")

def k1_spare(A):
    q = Q(A, "vmcnt", 63)
    A(f"""
    s_load_dwordx2 s[60:61], s[0:1], 16
    s_load_dwordx2 s[62:63], s[0:1], 24
    s_load_dwordx2 s[64:65], s[0:1], 56
    s_lshl_b32 s58, s32, 1
    s_add_u32 s58, s58, s30
    s_sub_u32 s58, s58, 2
    s_lshl_b32 s66, s32, 8
    s_lshl_b32 s67, s28, 3
    s_add_u32 s66, s66, s67
    s_and_b32 s59, s3, 3
    s_lshl_b32 s67, s59, 1
    s_add_u32 s66, s66, s67
    """)
    if "nowarm" not in EXP:
        code_warm(A, "K1_warm", "K1_end", "s3", 100, 101)
        A(f"v_add_u32 v100, 65536, v100\nv_min_u32 v100, K1_end-K1_start, v100\nglobal_load_dword v101, v100, s[70:71]")
    stats_issue(A, q, 40)
    A("s_waitcnt lgkmcnt(0)")
    srd(A, 24, 60, 25600)
    A(f"""
    s_lshl_b32 s60, s58, 3
    s_add_u32 s60, s60, s3              ; SW 0..127
    s_min_u32 s30, s60, 119
    s_mov_b32 s61, s30
    """)
    wpf_issue(A)
    A(f"""
    v_mov_b32 v28, 0
    v_mov_b32 v29, 0
    v_mov_b32 v30, 0
    v_mov_b32 v31, 0
    v_lshlrev_b32 v3, 4, v0
    s_lshl_b32 s30, s60, 10
    s_add_u32 s30, s30, {WS_FLG}
    s_cmp_lt_u32 s60, 18
    s_cselect_b32 s30, s30, {OOB}
    buffer_store_dwordx4 v[28:31], v3, s[20:23], s30 offen sc1
    v_mov_b32 v32, {L_CNT}
    ds_write_b128 v32, v[28:31]
    ds_write_b128 v32, v[28:31] offset:16
    ds_write_b128 v32, v[28:31] offset:32
    ds_write_b128 v32, v[28:31] offset:48
    """)
    A("s_waitcnt vmcnt(1)")
    for p in range(4): A(f"v_lshl_or_b32 v{24+p}, v{17+2*p}, 16, v{16+2*p}")
    A(f"""s_lshl_b32 s30, s61, 10
    s_add_u32 s30, s30, {WS_WPF}
    buffer_store_dwordx4 v[24:27], v3, s[20:23], s30 offen sc1""")
    stats_part1(A, 40, 64); stats_part2(A, 40, 64, 59)
    A(f"""
    s_waitcnt lgkmcnt(0)
    s_barrier
    v_add_u32 v32, {L_ST}, v3
    ds_read_b128 v[36:39], v32
    s_lshr_b32 s30, s66, 3
    s_lshl_b32 s30, s30, 7
    s_add_u32 s30, s30, {WS_ST}
    s_mov_b64 exec, 0xff
    s_waitcnt lgkmcnt(0)
    buffer_store_dwordx4 v[36:39], v3, s[20:23], s30 offen sc1
    s_mov_b64 exec, -1
    s_sleep {SSLEEP}
    v_mov_b32 v28, -1
    v_mov_b32 v29, -1
    v_mov_b32 v30, -1
    v_mov_b32 v31, -1
    s_lshr_b32 s30, s60, 2
    s_mul_i32 s30, s30, 74
    s_and_b32 s31, s60, 3
    s_mul_i32 s31, s31, 5
    s_add_u32 s30, s30, s31
    s_add_u32 s30, s30, 54
    s_lshl_b32 s30, s30, 12
    s_add_u32 s30, s30, {WS_AF}
    s_lshl_b32 s31, s60, 12
    s_add_u32 s31, s31, {WS_KVP}""")
    for T in range(4): A(f"buffer_store_dwordx4 v[28:31], v3, s[20:23], s31 offen offset:{T*1024} sc1")
    for i in range(5):
        for T in range(4): A(f"buffer_store_dwordx4 v[28:31], v3, s[20:23], s30 offen offset:{T*1024} sc1")
        if i < 4: A("s_add_u32 s30, s30, 4096")
    A(f"""s_waitcnt vmcnt(0)
    s_barrier
    s_cmp_lg_u32 s3, 0
    s_cbranch_scc0 SP_w0""")
    if NTR: A("s_branch SP_w")
    if WSLEEP: A(f"s_sleep {WSLEEP}")
    srd(A, 4, 62, 640 * 1280); srd(A, 8, 64, 1728 * 1280)
    A("s_mul_i32 s63, s58, 7\ns_add_u32 s63, s63, s3\ns_sub_u32 s63, s63, 1")
    A("v_lshlrev_b32 v102, 7, v0\ns_lshl_b32 s30, s63, 13")
    for k in range(3): A(f"buffer_load_dword v103, v102, s[8:11], s30 offen\ns_add_u32 s30, s30, {112*8192}")
    A("s_lshl_b32 s30, s63, 13\nbuffer_load_dword v103, v102, s[4:7], s30 offen")
    A("s_branch SP_w")
    A.label("SP_w0")
    signal(A, 32, 0)
    prof_stamp(A, 1)
    A("s_cmp_lg_u32 s58, 0\ns_cbranch_scc1 SP_fol")
    ready_addr(A, 32)
    A(f"v_mov_b32 v34, 1\nv_mov_b32 v35, 0x80\ns_mov_b32 s30, 120\nv_writelane_b32 v35, s30, 2\nv_writelane_b32 v35, s30, 3\ns_mov_b64 s[70:71], 15\ns_mov_b32 s68, {SPIN_MAX}")
    A.label("SW_spin")
    A("""s_mov_b64 exec, s[70:71]
    global_load_dword v33, v32, s[14:15] sc1
    s_waitcnt vmcnt(0)
    v_cmp_eq_u32 vcc, v35, v33
    s_andn2_b64 s[70:71], s[70:71], vcc
    s_and_b64 exec, exec, vcc
    s_cbranch_execz SW_none
    global_store_dword v32, v34, s[14:15] offset:128 sc1""")
    A.label("SW_none")
    A("""s_cmp_eq_u64 s[70:71], 0
    s_cbranch_scc1 SW_out
    s_sub_u32 s68, s68, 1
    s_cbranch_scc1 SW_out
    s_sleep 6
    s_branch SW_spin""")
    A.label("SW_out")
    A("s_mov_b64 exec, -1\ns_branch SP_w")
    A.label("SP_fol")
    ready_addr(A, 32)
    spin(A, "SPG", "global_load_dword v33, v32, s[14:15] offset:128 sc1", 33, "1", sleep=8)
    A.label("SP_w")
    A(f"s_barrier\ns_mov_b32 s34, 0\ns_mov_b32 s57, {OOB+4}\ns_cmp_lt_u32 s3, 4\ns_cbranch_scc1 P2_stream")
    A("s_branch P2_aux")

def ready_addr(A, vr):
    A(f"v_and_b32 v{vr}, 1, v0\nv_lshlrev_b32 v{vr}, 6, v{vr}\nv_and_b32 v{vr+1}, 2, v0\nv_lshl_add_u32 v{vr}, v{vr+1}, 1, v{vr}")

def dual_softmax(A, P, E, OUT, T, SL):
    mx, mn = T, T + 2
    lo = SL.replace("[", "").split(":")[0]
    A(f"v_max3_f32 v{mx}, v{P}, v{P+1}, v{P+2}\nv_min3_f32 v{mn}, v{P}, v{P+1}, v{P+2}")
    for i in range(3, 19, 2):
        A(f"v_max3_f32 v{mx}, v{mx}, v{P+i}, v{P+i+1}\nv_min3_f32 v{mn}, v{mn}, v{P+i}, v{P+i+1}")
    A(f"v_max_f32 v{mx}, v{mx}, v{P+19}\nv_min_f32 v{mn}, v{mn}, v{P+19}")
    A(f"v_mul_f32 v{mx}, {lo}, v{mx}\nv_mul_f32 v{mn}, {lo}, v{mn}")
    for k in range(10):
        A(f"v_pk_fma_f32 {v(E+2*k,2)}, {v(P+2*k,2)}, {SL}, {v(mx,2)} op_sel_hi:[1,0,0] neg_lo:[0,0,1] neg_hi:[0,0,1]")
        A(f"v_pk_fma_f32 {v(E+20+2*k,2)}, {v(P+2*k,2)}, {SL}, {v(mn,2)} op_sel_hi:[1,0,0] neg_lo:[1,0,0] neg_hi:[1,0,0]")
    for i in range(40): A(f"v_exp_f32 v{E+i}, v{E+i}")
    sp, sm = T, T + 2
    A(f"v_pk_add_f32 {v(sp,2)}, {v(E,2)}, {v(E+2,2)}\nv_pk_add_f32 {v(sm,2)}, {v(E+20,2)}, {v(E+22,2)}")
    for k in range(2, 10):
        A(f"v_pk_add_f32 {v(sp,2)}, {v(sp,2)}, {v(E+2*k,2)}\nv_pk_add_f32 {v(sm,2)}, {v(sm,2)}, {v(E+20+2*k,2)}")
    A(f"v_add_f32 v{sp}, v{sp}, v{sp+1}\nv_add_f32 v{sm}, v{sm}, v{sm+1}")
    A(f"v_rcp_f32 v{sp}, v{sp}\nv_rcp_f32 v{sm}, v{sm}")
    for k in range(10):
        A(f"v_pk_mul_f32 {v(E+2*k,2)}, {v(E+2*k,2)}, {v(sp,2)} op_sel_hi:[1,0]")
        A(f"v_pk_mul_f32 {v(E+20+2*k,2)}, {v(E+20+2*k,2)}, {v(sm,2)} op_sel_hi:[1,0]")
    for k in range(20):
        A(f"v_cvt_pk_bf16_f32 v{OUT+k}, v{E+2*k}, v{E+2*k+1}")

class Buf:
    def __init__(self): self.l = []
    def __call__(self, t): self.l += [x.strip() for x in t.strip("\n").split("\n") if x.strip()]
def weave(A, main, side, first, step):
    side = list(side)
    for i, m in enumerate(main):
        A(m)
        if side and i >= first and (i - first) % step == 0: A(side.pop(0))
    for x in side: A(x)
def softmax_inplace(B, P, E, T, SL):
    mx, mn = T, T + 2
    lo = SL.replace("[", "").split(":")[0]
    B(f"v_max3_f32 v{mx}, v{P}, v{P+1}, v{P+2}\nv_min3_f32 v{mn}, v{P}, v{P+1}, v{P+2}")
    for i in range(3, 19, 2):
        B(f"v_max3_f32 v{mx}, v{mx}, v{P+i}, v{P+i+1}\nv_min3_f32 v{mn}, v{mn}, v{P+i}, v{P+i+1}")
    B(f"v_max_f32 v{mx}, v{mx}, v{P+19}\nv_min_f32 v{mn}, v{mn}, v{P+19}")
    B(f"v_mul_f32 v{mx}, {lo}, v{mx}\nv_mul_f32 v{mn}, {lo}, v{mn}")
    for k in range(10):
        B(f"v_pk_fma_f32 {v(E+2*k,2)}, {v(P+2*k,2)}, {SL}, {v(mn,2)} op_sel_hi:[1,0,0] neg_lo:[1,0,0] neg_hi:[1,0,0]")
        B(f"v_pk_fma_f32 {v(P+2*k,2)}, {v(P+2*k,2)}, {SL}, {v(mx,2)} op_sel_hi:[1,0,0] neg_lo:[0,0,1] neg_hi:[0,0,1]")
    for i in range(20): B(f"v_exp_f32 v{P+i}, v{P+i}\nv_exp_f32 v{E+i}, v{E+i}")
    B(f"v_pk_add_f32 {v(mx,2)}, {v(P,2)}, {v(P+2,2)}\nv_pk_add_f32 {v(mn,2)}, {v(E,2)}, {v(E+2,2)}")
    for k in range(2, 10):
        B(f"v_pk_add_f32 {v(mx,2)}, {v(mx,2)}, {v(P+2*k,2)}\nv_pk_add_f32 {v(mn,2)}, {v(mn,2)}, {v(E+2*k,2)}")
    B(f"v_add_f32 v{mx}, v{mx}, v{mx+1}\nv_add_f32 v{mn}, v{mn}, v{mn+1}\nv_rcp_f32 v{mx}, v{mx}\nv_rcp_f32 v{mn}, v{mn}")
    for k in range(10):
        B(f"v_pk_mul_f32 {v(P+2*k,2)}, {v(P+2*k,2)}, {v(mx,2)} op_sel_hi:[1,0]")
        B(f"v_pk_mul_f32 {v(E+2*k,2)}, {v(E+2*k,2)}, {v(mn,2)} op_sel_hi:[1,0]")
    for k in range(10): B(f"v_cvt_pk_bf16_f32 v{P+k}, v{P+2*k}, v{P+2*k+1}")
    for k in range(10): B(f"v_cvt_pk_bf16_f32 v{P+10+k}, v{E+2*k}, v{E+2*k+1}")

XSLOT = 8192; XWAVE = 3 * XSLOT; WBASE = 4 * XWAVE
NWS = 5
PHI_P = 336; V_P = 208; PHI_BASE = 0; V_BASE = 256 * PHI_P
L_ST = 159744; L_CS = L_ST + 2048; L_CNT = L_CS + 1024
K1_LDS = 160 * 1024
NL = 7
KVB = 4 * NL * 5120
W_KVS, W_BL, W_CK, W_CH, W_CW, W_CP, W_SD, W_SX, W_AP, W_K1, W_K2, W_Q, W_ED, W_O, W_KVL = [4 * k for k in range(15)]
XCH = 0; APART = 12 * 5120
def wpf_lds(i): return (i >> 3) * XWAVE + XSLOT + (i & 7) * 1024

def k1_loader(A, gu, nW, tag, light=False):
    WU = 12288 if gu else 10240
    NCH = 12 if gu else 10
    q = Q(A, "vmcnt", 63)
    def X(j, half=None):
        for e in (range(8) if half is None else range(4 * half, 4 * half + 4)):
            if e % 4 == 0: A(f"s_add_u32 s47, s78, {j}\ns_sub_u32 s48, s47, 10\ns_cselect_b32 s47, s47, s48\ns_lshl_b32 s47, s47, 7\ns_add_u32 s47, s47, s40")
            A(f"s_add_u32 s48, s47, {e*8*1280}\ns_add_u32 m0, s43, {(j%3)*XSLOT + e*1024}\ns_nop 0")
            A(f"buffer_load_dwordx4 v{2+(e&1)}, s[16:19], s48 offen {NTX if 2*j < NTU else ''} lds"); q.issue(("X", j))
    def W(u):
        A(f"s_lshl_b32 s49, s78, 1\ns_add_u32 s49, s49, {u}\ns_sub_u32 s48, s49, 20\ns_cselect_b32 s49, s49, s48\ns_mul_i32 s49, s49, s42")
        for e in range(nW):
            A(f"s_add_u32 m0, s{44+e}, {WBASE + (u%NWS)*WU}\ns_nop 0")
            A(f"buffer_load_dwordx4 v{4+e}, s[24:27], s49 offen {NTW if u < NTU else ''} lds"); q.issue(("W", u))
    R, XU, C, CA = 16, 40, 80, 120
    def aux_issue(p):
        if 'noaux' in EXP or light: return
        stats_issue(A, q, R, [p])
        for i in range(2):
            A(f"s_mul_i32 s48, s51, {32*p + i}\ns_add_u32 s48, s48, s50")
            A(f"buffer_load_dwordx4 {v(C+4*(2*p+i),4)}, v7, s[24:27], s48 offen {NTA if 4*p < NTU else ''}"); q.issue("CS")
    def cs_sel():
        A(f"v_and_b32 v{CA+8}, 15, v0")
        for k in range(4):
            A(f"""v_cmp_eq_u32 vcc, {2*k}, v{CA+8}
            v_cndmask_b32 v{CA+4+k}, 0, v{CA+9}, vcc
            v_cmp_eq_u32 vcc, {2*k+1}, v{CA+8}
            v_cndmask_b32 v{CA+4+k}, v{CA+4+k}, v{CA+10}, vcc""".replace("v_cmp_eq_u32 vcc, 0,", f"v_mov_b32 v{CA+9}, 0x3f80\nv_mov_b32 v{CA+10}, 0x3f800000\nv_cmp_eq_u32 vcc, 0,"))
    def cs_acc():
        for i in range(10): A(f"v_mfma_f32_16x16x32_bf16 {v(CA,4)}, {v(CA+4,4)}, {v(C+4*i,4)}, {'0' if i==0 else v(CA,4)}")
    def cs_fin():
        msk = (1 << NCH) - 1
        A(f"""v_and_b32 v{C}, 15, v0
        v_lshlrev_b32 v{C}, 5, v{C}
        v_lshrrev_b32 v{C+1}, 4, v0
        v_lshl_add_u32 v{C}, v{C+1}, 4, v{C}
        s_mul_i32 s48, s41, 384
        s_add_u32 s48, s48, {L_ST+128}
        v_add_u32 v{C}, s48, v{C}
        s_mov_b64 exec, {msk | (msk << 16)}
        ds_write_b128 v{C}, {v(CA,4)}
        s_mov_b64 exec, -1
        s_waitcnt lgkmcnt(0)""")
    def only0(name, f):
        A(f"s_cmp_lg_u32 s41, 0\ns_cbranch_scc1 {tag}_{name}")
        f()
        A.label(f"{tag}_{name}")
    def cw_poll():
        A(f"v_and_b32 v{R}, 1, v0\nv_lshlrev_b32 v{R}, 6, v{R}\nglobal_load_dword v{R+1}, v{R}, s[14:15] offset:132 sc1")
    def wf_prefetch(i):
        if i == 0:
            A(f"""v_readlane_b32 s48, v{R+1}, 0
            v_readlane_b32 s49, v{R+1}, 1
            s_and_b32 s48, s48, s49
            s_lshr_b32 s49, s2, 3
            s_mul_i32 s49, s49, {740*128}
            s_add_u32 s49, s49, {WS_WF}
            s_cmp_eq_u32 s48, 1
            s_cselect_b32 s69, s49, {OOB}
            v_lshlrev_b32 v{R}, 7, v0""")
        for k in range(3):
            A(f"buffer_load_dword v{R+2}, v{R}, s[20:23], s69 offen\nv_add_u32 v{R}, {64*128 if 3*i+k != 10 else 36*128}, v{R}")
    def pfx(i):
        A(f"""s_cmp_lg_u32 s41, {i & 3}
        s_cbranch_scc1 {tag}_pfx{i}
        s_lshr_b32 s49, s2, 3
        s_mul_i32 s49, s49, {740*128}
        s_add_u32 s49, s49, {WS_WF + min(i*64, 740-64)*128}
        v_lshlrev_b32 v136, 7, v0
        buffer_load_dword v137, v136, s[20:23], s49 offen""")
        A.label(f"{tag}_pfx{i}")
    def poll_issue():
        A(f"v_and_b32 v{R+4}, 1, v0\nv_lshlrev_b32 v{R+4}, 6, v{R+4}\nglobal_load_dword v{R+5}, v{R+4}, s[14:15] offset:128 sc1")
        q.mark = q.n
    def poll_check():
        A(f"s_waitcnt vmcnt({q.n - q.mark})")
        spin(A, tag + "G", f"global_load_dword v{R+5}, v{R+4}, s[14:15] offset:128 sc1", R + 5, "1", first=False)
        prof_stamp(A, 5)
    def cons_issue():
        A(f"""v_lshrrev_b32 v{R}, 3, v0
        v_and_b32 v{R+1}, 7, v0
        v_lshlrev_b32 v{R+1}, 3, v{R+1}
        v_lshl_add_u32 v{R+1}, v{R}, 7, v{R+1}
        s_lshl_b32 s48, s32, 5
        s_lshl_b32 s49, s41, 3
        s_add_u32 s48, s48, s49
        s_lshl_b32 s48, s48, 7
        s_add_u32 s48, s48, {WS_ST}
        buffer_load_dwordx2 {v(R+2,2)}, v{R+1}, s[20:23], s48 offen sc1
        v_lshlrev_b32 v{R}, 3, v0
        v_lshlrev_b32 v{R+1}, 2, v0""")
        q.issue("C1")
        for i in range(16):
            if i and i % 5 == 0: A(f"s_add_u32 s53, s53, {5*768}")
            A(f"buffer_load_dword v{XU+i}, v{R+1}, s[20:23], s53 offen offset:{(i%5)*768} sc1"); q.issue("C1")
        if not gu:
            A(f"v_lshlrev_b32 v{R+4}, 4, v0")
            for e in range(8):
                A(f"s_add_u32 s48, s54, {e*1024}\ns_cmp_lt_u32 {e}, s55\ns_cselect_b32 s48, s48, {OOB}")
                A(f"buffer_load_dwordx4 {v(C+4*e,4)}, v{R+4}, s[20:23], s48 offen sc1"); q.issue("C2")
    def cons_fin():
        q.wait({"C1"})
        A(f"s_lshl_b32 s48, s41, 9\ns_add_u32 s48, s48, {L_ST}\nv_add_u32 v{R}, s48, v{R}\nds_write_b64 v{R}, {v(R+2,2)}")
        for st in (8, 4, 2, 1):
            for i in range(st): A(f"v_add_f32 v{XU+i}, v{XU+i}, v{XU+i+st}")
        A(f"""s_mul_i32 s48, s41, 192
        s_add_u32 s48, s48, {L_CS}
        v_add_u32 v{R+1}, s48, v{R+1}
        s_mov_b32 exec_hi, 0xffff
        ds_write_b32 v{R+1}, v{XU}
        s_mov_b64 exec, -1""")
        if not gu:
            q.wait({"C2"})
            A(f"v_add_u32 v{R+4}, s43, v{R+4}")
            for e in range(8): A(f"ds_write_b128 v{R+4}, {v(C+4*e,4)} offset:{XSLOT + e*1024}")
        A(f"v_mov_b32 v{R}, {L_CNT}\nv_mov_b32 v{R+2}, 0\nv_mov_b32 v{R+3}, 0\n" + "".join(f"ds_write_b64 v{R}, {v(R+2,2)} offset:{8*k}\n" for k in range(8)) + "s_waitcnt lgkmcnt(0)")
    q.q = [("X", 0)] * 8 + [("W", 0)] * 3 + [("W", 1)] * 3
    sched = {u: [] for u in range(20)}
    def rl_issue():
        A("s_mul_i32 s30, s32, 30\ns_add_u32 s30, s30, s29\ns_lshl_b32 s30, s30, 2\ns_add_u32 s30, s30, s41\ns_waitcnt lgkmcnt(0)")
        relayout_issue(A, q, f"{tag}_rl", 140)
    AX = {"A": [-1, 0, 1, 2, 2], "B": [-1, -1, 0, 1, 2], "G": [-1, 1, 2, 3, 4], "H": [-1, 1, 3, 5, 6], "I": [0, 2, 3, 4, 5], "J": [1, 2, 3, 4, 4], "K": [2, 2, 3, 3, 4], "L": [1, 1, 2, 2, 3], "M": [3, 4, 4, 5, 5]}[AUXS]
    def ax(u):
        for p in range(5):
            if AX[p] == u: aux_issue(p)
    ax(-1)
    sched[0] += ([] if 'cx1' in EXP else [lambda: X(1)]) + [lambda: W(2), lambda: W(3), lambda: X(2, 0), cs_sel]
    sched[1] += [lambda: X(2, 1), lambda: W(4)]
    for u in range(2, 8): sched[u] += [lambda u=u: X(u // 2 + 2, u % 2), lambda u=u: W(u + 3)]
    for u in range(8): sched[u].append(lambda u=u: ax(u))
    P0 = PUBU - 2
    post = {P0: [lambda: q.wait({"CS"}), lambda: A("s_setprio 3"), cs_acc, lambda: stats_part1(A, R, XU), lambda: A("s_setprio 0")],
            P0 + 1: [lambda: A("s_setprio 3"), lambda: stats_part2(A, R, XU, 41), cs_fin, lambda: A("s_setprio 0")]}
    for u in range(8, 17):
        j = u // 2 + 2
        if j < 10: sched[u].append(lambda j=j, h=u % 2: X(j, h))
        sched[u].append(lambda u=u: W(u + 3))
    if 'norl' not in EXP and not light:
        sched[RLU - 2].append(rl_issue)
        sched[RLU] += [lambda: relayout_finish(A, q, 140, 156, 0)]
        sched[RLU + 1] = [sched[RLU + 1][1], lambda: relayout_finish(A, q, 140, 156, 1), sched[RLU + 1][0]] + sched[RLU + 1][2:]
    if 'noaux' not in EXP and not light:
        for u in post: sched[u] += post[u]
    sched[RLU + 4] = [lambda: only0("cs", lambda: signal(A, 130, 1))] + sched[RLU + 4]
    if "pf" in EXP:
        sched[8] = [lambda: only0("cw", cw_poll)] + sched[8]
        for i in range(4): sched[11 + i].append(lambda i=i: only0(f"pf{i}", lambda: wf_prefetch(i)))
    def code_touch(k):
        A(f"s_lshr_b32 s73, s2, 3\ns_lshl_b32 s73, s73, 2\ns_add_u32 s73, s73, s41\ns_add_u32 s73, s73, {k}\ns_and_b32 s73, s73, 7")
        code_warm(A, f"{tag}_ct{k}", "K1_end", "s73", 132, 133, "K1_compute_end"); q.issue("CT")
    if "notouch" not in EXP and not light:
        sched[13].append(lambda: code_touch(0))
        sched[18].append(lambda: code_touch(3))
    if "pfx" in EXP:
        for i in range(12): sched[7 + i].append(lambda i=i: pfx(i))
    sched[15] = [lambda: only0("pi", poll_issue)] + sched[15]
    sched[16] += [lambda: only0("pc", poll_check)]
    if 'nocons' not in EXP: sched[17] += [cons_issue]
    sched[19] += [cons_fin]
    for u in range(20):
        if u == 1 and "b1" not in EXP:
            for f in sched[u]: f()
            continue
        q.wait({("W", u), ("X", u // 2)} | ({("W", 1)} if u == 0 and "b1" not in EXP else set()))
        if u == 0: prof_stamp(A, 3)
        if u == 8: prof_stamp(A, 4)
        A("s_barrier")
        if "slots" in EXP and u in SLOTS: prof_stamp(A, SLOTS.index(u), force=True)
        for f in sched[u]: f()
    A(f"s_barrier\ns_mov_b32 s57, {OOB}")
    if not gu: A("s_cmp_eq_u32 s34, 1\ns_cbranch_scc1 P2_stream")
    A("s_branch P2_aux")

ACC = 0
XF = 192
WFR = 224
NWF = 5
VX = 244
VW = 246
VL = 248
def acc(T, ct): return ACC + (T * 12 + ct) * 4

def k1_mainloop(A, gu):
    NT = 12 if gu else 10
    WU = 12288 if gu else 10240
    pitch = 192 if gu else 320
    LA = NWF - 1
    q = Q(A, "lgkmcnt", 15)
    def woff(n):
        u, ct = divmod(n, NT)
        o = (u % NWS) * WU
        o += (ct % 6) * 32 + (ct // 6) * 6144 if gu else ct * 32
        return o
    def rdW(n, halves=(0, 1)):
        r = WFR + 4 * (n % NWF); ad = VW + (n % NT) % 2
        for h in halves:
            A(f"ds_read_b64_tr_b16 {v(r+2*h,2)}, v{ad} offset:{woff(n)+4*pitch*h}"); q.issue(("W", n))
    def rdX(u, T):
        j, kh = divmod(u, 2)
        A(f"ds_read_b128 {v(XF+16*(u&1)+4*T,4)}, v{VX+kh} offset:{(j%3)*XSLOT + T*2048}"); q.issue(("X", u, T))
    NTOT = 20 * NT
    SIGU, HSU = PUBU + 2, 2
    def pub_read():
        A(f"ds_read_b128 v[252:255], v249"); q.issue("P0")
    def pub_store0():
        q.wait({"P0"})
        A(f"buffer_store_dwordx4 v[252:255], v250, s[20:23], s52 offen sc1\nv_lshlrev_b32 v250, 4, v{VL}\nv_add_u32 v249, {L_ST}, v250")
    def pub_read1():
        A(f"ds_read_b128 v[252:255], v249"); q.issue("P1")
    def pub_store1():
        q.wait({"P1"})
        A(f"s_mov_b64 exec, 0xff\nbuffer_store_dwordx4 v[252:255], v250, s[20:23], s53 offen sc1\ns_mov_b64 exec, -1")
    def sig(line):
        A(f"s_cmp_lg_u32 s3, 0\ns_cbranch_scc1 SG{int(gu)}{line}")
        signal(A, 252, line)
        A.label(f"SG{int(gu)}{line}")
    def hs(i):
        if i == 0: A(f"v_mov_b32 v252, -1\nv_mov_b32 v253, -1\nv_mov_b32 v254, -1\nv_mov_b32 v255, -1\nv_lshlrev_b32 v251, 4, v{VL}")
        if i % 4 == 0: A(f"s_add_u32 s51, s50, {(i//4)*4096}")
        A(f"buffer_store_dwordx4 v[252:255], v251, s[20:23], s51 offen offset:{(i%4)*1024} sc1")
    n0 = PUBU * NT - LA
    hooks = {n0: pub_read, n0 + 3: pub_store0, n0 + 4: pub_read1, n0 + 7: pub_store1, SIGU * NT - LA: lambda: sig(0)}
    if "cpf" in EXP: hooks[CPFS * NT // 10] = lambda: A("buffer_load_dword v254, v253, s[40:43], s44 offen")
    if gu and "hsent" in EXP:
        for i in range(12): hooks[HSU * NT + 3 * i] = (lambda i=i: hs(i))
    if 'nopub' in EXP: hooks = {SIGU * NT - LA: lambda: sig(0)}
    A("s_barrier")
    prof_stamp(A, 1)
    if PROF: A("s_memtime s[76:77]\ns_waitcnt lgkmcnt(0)")
    rdX(0, 0); rdW(0); rdX(0, 1); rdX(0, 2); rdX(0, 3)
    for n in range(1, LA): rdW(n)
    for n in range(NTOT):
        u, ct = divmod(n, NT)
        for T in range(4):
            q.wait({("W", n), ("X", u, T)})
            c = "0" if u == 0 else v(acc(T, ct), 4)
            A(f"v_mfma_f32_16x16x32_bf16 {v(acc(T,ct),4)}, {v(WFR+4*(n%NWF),4)}, {v(XF+16*(u&1)+4*T,4)}, {c}")
            m = n + LA
            if T == 0 and m < NTOT:
                if m == SIGU * NT: A("s_waitcnt vmcnt(0)")
                if m == 2 * NT and "cx1" in EXP: A(f"s_waitcnt vmcnt({CX1_AFTER[int(gu)]})")
                if m % NT == 0 and (m != NT or "b1" in EXP): A("s_barrier")
                rdW(m, (0,))
            if T == 1 and m < NTOT: rdW(m, (1,))
            if T == 2 and u + 1 < 20 and ct >= NT - LA: rdX(u + 1, ct - (NT - LA))
            if T == 3 and n in hooks: hooks[n]()
    prof_stamp(A, 2)
    if PROF: A("s_memtime s[78:79]\ns_waitcnt lgkmcnt(0)\ns_sub_u32 s81, s78, s76\ns_add_u32 s81, s81, s80")

CSR = 192
STR = 240
def epi_common(A, ntile, csr=None, st=(240, 242, 244, 246)):
    A(f"""
    v_lshrrev_b32 v249, 4, v{VL}
    v_lshlrev_b32 v249, 4, v249
    v_add_u32 v249, {L_CS}, v249
    v_and_b32 v250, 15, v{VL}
    v_lshlrev_b32 v250, 3, v250
    s_lshl_b32 s51, s3, 9
    s_add_u32 s51, s51, {L_ST}
    v_add_u32 v250, s51, v250
    s_waitcnt vmcnt(0)
    s_barrier
    """)
    for T in range(4): A(f"ds_read_b64 {v(st[T],2)}, v250 offset:{T*128}")
    for ct in range(ntile): A(f"ds_read_b128 {v(csr[ct] if csr else CSR+4*ct,4)}, v249 offset:{ct*64 + (64 if ntile == 10 and ct >= 5 else 0)}")
    A(f"v_lshlrev_b32 v249, 4, v{VL}\ns_waitcnt lgkmcnt(0)")
    prof_stamp(A, 3)
    if PROF: A("s_memtime s[76:77]\ns_waitcnt lgkmcnt(0)")
def dry_exit(A, ret):
    if "nodry" not in EXP: A(f"s_cmp_eq_u32 s79, 1\ns_cbranch_scc1 {ret}")
def dry_run(A, labels, ret):
    if "nodry" in EXP: return
    A("s_mov_b32 s79, 1\ns_mov_b64 exec, 0")
    for w in range(3): A(f"s_cmp_eq_u32 s3, {w}\ns_cbranch_scc1 {labels[w]}")
    A(f"s_branch {labels[3]}")
    A.label(ret)
    A("s_mov_b32 s79, 0\ns_mov_b64 exec, -1")
def center(A, r, T, ct):
    for h in range(2):
        A(f"v_pk_fma_f32 {v(r+2*h,2)}, {v(CSR+4*ct+2*h,2)}, {v(STR+2*T,2)}, {v(r+2*h,2)} op_sel_hi:[1,0,1] neg_lo:[1,0,0] neg_hi:[1,0,0]")

def k1_epi_gu(A):
    epi_common(A, 12)
    for T in range(4):
        A(f"v_mul_f32 v{252+T}, v{STR+2*T+1}, v{STR+2*T+1}\nv_mul_f32 v{STR+2*T+1}, {NLOG2E}, v{STR+2*T+1}\nv_rcp_f32 v{252+T}, v{252+T}")
    for c in range(3):
        A(f"s_add_u32 s51, s50, {c*4096}")
        for T0 in (0, 2):
            grp = [(T, acc(T, 2 * c), acc(T, 6 + 2 * c)) for T in (T0, T0 + 1)]
            sd = v(252 + T0, 2)
            for T, G, U in grp:
                for h in range(2): center(A, G + 4 * h, T, 2 * c + h); center(A, U + 4 * h, T, 6 + 2 * c + h)
            for T, G, U in grp:
                for k in range(4): A(f"v_pk_mul_f32 {v(U+2*k,2)}, {v(G+2*k,2)}, {v(U+2*k,2)}")
                for k in range(4): A(f"v_pk_mul_f32 {v(G+2*k,2)}, {v(G+2*k,2)}, {v(STR+2*T,2)} op_sel:[0,1] op_sel_hi:[1,1]")
            for T, G, U in grp:
                for i in range(8): A(f"v_exp_f32 v{G+i}, v{G+i}")
            for T, G, U in grp:
                b = T & 1
                for k in range(4): A(f"v_pk_fma_f32 {v(G+2*k,2)}, {v(G+2*k,2)}, {sd}, {sd} op_sel:[0,{b},{b}] op_sel_hi:[1,{b},{b}]")
            for T, G, U in grp:
                for i in range(8): A(f"v_rcp_f32 v{G+i}, v{G+i}")
            for T, G, U in grp:
                for k in range(4): A(f"v_pk_mul_f32 {v(U+2*k,2)}, {v(U+2*k,2)}, {v(G+2*k,2)}")
            for T, G, U in grp:
                for k in range(4): A(f"v_cvt_pk_bf16_f32 v{G+k}, v{U+2*k}, v{U+2*k+1}")
                A(f"buffer_store_dwordx4 {v(G,4)}, v249, s[20:23], s51 offen offset:{T*1024} {HST}")
    prof_stamp(A, 5, True)

WP = 192
def read_wpf(A, first):
    for tau in range(5):
        for c in range(3):
            i = first + 3 * tau + c
            base = 250 + (i >> 4)
            off = wpf_lds(i) - (i >> 4) * 2 * XWAVE
            if c < 2: A(f"ds_read_b128 {v(WP+10*tau+4*c,4)}, v{base} offset:{off}")
            else: A(f"ds_read_b64 {v(WP+10*tau+8,2)}, v{base} offset:{off}")
def normalize(A, ntile, scale_tiles):
    for T in range(4):
        for ct in range(ntile):
            center(A, acc(T, ct), T, ct)
        for ct in scale_tiles:
            for h in range(2):
                r = acc(T, ct) + 2 * h
                A(f"v_pk_mul_f32 {v(r,2)}, {v(r,2)}, {v(STR+2*T,2)} op_sel:[0,1] op_sel_hi:[1,1]")
def proj_mfma(A, D, B01, B2):
    for c in range(3):
        for tau in range(5):
            d = v(D + 4 * tau, 4)
            if c < 2: A(f"v_mfma_f32_16x16x32_bf16 {d}, {v(WP+10*tau+4*c,4)}, {v(B01+4*c,4)}, {'0' if c==0 else d}")
            else: A(f"v_mfma_f32_16x16x16_bf16 {d}, {v(WP+10*tau+8,2)}, {v(B2,2)}, {d}")

def k1_epi_kv(A):
    csr = [192, 196, 200, 204, 208, acc(0, 10), acc(0, 11), acc(1, 10), acc(1, 11), acc(2, 10)]
    ST = [acc(2, 11), acc(2, 11) + 2, acc(3, 11), acc(3, 11) + 2]
    epi_common(A, 10, csr, ST)
    def ctr(B, T, ct, scale):
        for h in range(2):
            r = acc(T, ct) + 2 * h
            B(f"v_pk_fma_f32 {v(r,2)}, {v(csr[ct]+2*h,2)}, {v(ST[T],2)}, {v(r,2)} op_sel_hi:[1,0,1] neg_lo:[1,0,0] neg_hi:[1,0,0]")
            if scale: B(f"v_pk_mul_f32 {v(r,2)}, {v(r,2)}, {v(ST[T],2)} op_sel:[0,1] op_sel_hi:[1,1]")
    A.label("DK0")
    for T in range(4):
        for ct in range(5): ctr(A, T, ct, False)
    dry_exit(A, "DK_ret")
    A(f"v_lshlrev_b32 v250, 4, v{VL}")
    read_wpf(A, 0)
    for T in range(4):
        for ct in range(5, 10):
            ctr(A, T, ct, True)
            r = acc(T, ct)
            A(f"v_cvt_pk_bf16_f32 v{r}, v{r}, v{r+1}\nv_cvt_pk_bf16_f32 v{r+1}, v{r+2}, v{r+3}")
    for T in range(4): A(f"v_mul_f32 v{252+T}, {LOG2E}, v{ST[T]+1}")
    VA = acc(3, 10)
    A(f"""
    v_and_b32 v243, 15, v{VL}
    s_lshl_b32 s51, s3, 6
    v_add_u32 v243, s51, v243            ; row (T=0)
    v_lshrrev_b32 v246, 4, v{VL}         ; g
    v_mul_u32_u24 v251, {PHI_P}, v243
    v_mul_u32_u24 v247, 80, v246
    v_add_u32 v251, v251, v247
    v_mul_u32_u24 v243, {V_P}, v243
    v_add_u32 v243, {V_BASE}, v243
    v_mul_u32_u24 v247, 48, v246
    v_add_u32 v242, v243, v247
    """)
    for c in range(5):
        A(f"""v_add_u32 v247, {4*c}, v246
        v_mul_u32_u24 v244, 205, v247
        v_lshrrev_b32 v244, 10, v244
        v_add_u32 v247, v247, v244
        v_lshl_add_u32 v{VA+c}, v247, 3, v243""")
    A("v_mov_b32 v244, 0x3f80\nv_mov_b32 v245, 0\ns_waitcnt lgkmcnt(0)")
    prof_stamp(A, 8)
    lds_inc(A, W_K1, 246, 247); lds_spin(A, "K1S", W_K1, "4", 246, 247)
    prof_stamp(A, 9)
    def kcvt(T):
        B = Buf()
        for k in range(8): B(f"v_cvt_pk_bf16_f32 v{acc(T,10)+k}, v{acc(T,0)+2*k}, v{acc(T,0)+2*k+1}")
        for k in range(2): B(f"v_cvt_pk_bf16_f32 v{acc(T,4)+k}, v{acc(T,4)+2*k}, v{acc(T,4)+2*k+1}")
        return B.l
    def proj(T):
        B = Buf(); proj_mfma(B, acc(T, 5), acc(T, 10), acc(T, 4)); return B.l
    vw = []
    for T in range(4):
        vw += [f"ds_write_b64 v{VA+c}, {v(acc(T,5+c),2)} offset:{T*16*V_P}" for c in range(5)] + [f"ds_write_b64 v242, v[244:245] offset:{T*16*V_P + 40}"]
    weave(A, kcvt(0) + kcvt(1) + kcvt(2), vw, 0, 1)
    for x in proj(0) + kcvt(3): A(x)
    for T in range(4):
        B = Buf()
        B(f"v_mov_b32 v{acc(T,11)}, v{252+T}")
        softmax_inplace(B, acc(T, 5), acc(T, 0), acc(T, 10), v(acc(T, 11), 2))
        side = (proj(T + 1) if T < 3 else []) + ([f"ds_write_b128 v251, {v(acc(T-1,5)+4*k,4)} offset:{(T-1)*16*PHI_P + 16*k}" for k in range(5)] if T else [])
        if T in (1, 2, 3) and "nodry" not in EXP:
            pass
        if T == 0: prof_stamp(A, 1)
        weave(A, B.l, [] if "noside" in EXP else side, 4, 6)
        if T == 1: prof_stamp(A, 13)
        if T == 3: prof_stamp(A, 2)
    for k in range(5): A(f"ds_write_b128 v251, {v(acc(3,5)+4*k,4)} offset:{3*16*PHI_P + 16*k}")
    A(f"""
    v_lshrrev_b32 v241, 5, v{VL}
    v_lshlrev_b32 v241, 3, v241          ; 8*(G>>1)
    v_bfe_u32 v242, v{VL}, 2, 2
    v_add_u32 v241, v241, v242
    v_bfe_u32 v242, v{VL}, 4, 1
    v_lshlrev_b32 v242, 5, v242
    v_and_b32 v243, 3, v{VL}
    v_lshl_add_u32 v242, v243, 3, v242   ; 32*(G&1)+8c
    v_mul_u32_u24 v237, {PHI_P}, v241
    v_add_u32 v237, v237, v242
    s_mul_i32 s51, s3, 80
    v_add_u32 v237, s51, v237
    v_add_u32 v239, {128*PHI_P}, v237
    v_mul_u32_u24 v238, {V_P}, v241
    v_add_u32 v238, v238, v242
    s_mul_i32 s51, s3, 48
    s_add_u32 s51, s51, {V_BASE}
    v_add_u32 v238, s51, v238
    v_and_b32 v241, 31, v{VL}
    v_lshrrev_b32 v242, 5, v{VL}
    v_lshlrev_b32 v242, 3, v242
    v_mul_u32_u24 v241, 80, v241
    s_lshl_b32 s51, s3, 11
    s_add_u32 s51, s51, {KVB}
    v_add3_u32 v242, v241, v242, s51
    v_add_u32 v241, s51, v249
    s_waitcnt lgkmcnt(0)
    """)
    lds_inc(A, W_K2, 246, 247); lds_spin(A, "K2S", W_K2, "4", 246, 247)
    prof_stamp(A, 4, True)
    q = Q(A, "lgkmcnt", 15)
    def rd(ks):
        b = 32 + 12 * (ks % 3)
        pa, po = (237, ks * 16 * PHI_P) if ks < 8 else (239, (ks - 8) * 16 * PHI_P)
        for h in range(2):
            A(f"ds_read_b64_tr_b16 {v(b+2*h,2)}, v238 offset:{ks*16*V_P + h*4*V_P}"); q.issue(ks)
        for nt in range(2):
            for h in range(2):
                A(f"ds_read_b64_tr_b16 {v(b+4+4*nt+2*h,2)}, v{pa} offset:{po + nt*64 + h*4*PHI_P}"); q.issue(ks)
    rd(0); rd(1)
    for ks in range(16):
        q.wait({ks})
        if ks + 2 < 16: rd(ks + 2)
        b = 32 + 12 * (ks % 3)
        for nt in range(2):
            A(f"v_mfma_f32_32x32x16_bf16 {v(16*nt,16)}, {v(b+4+4*nt,4)}, {v(b,4)}, {'0' if ks==0 else v(16*nt,16)}")
    prof_stamp(A, 5)
    A("s_mov_b32 exec_lo, 0xffffff\ns_mov_b32 exec_hi, 0xffffff")
    for gi in range(5):
        r = 4 * gi
        A(f"v_cvt_pk_bf16_f32 v{r}, v{r}, v{r+1}\nv_cvt_pk_bf16_f32 v{r+1}, v{r+2}, v{r+3}\nds_write_b64 v242, {v(r,2)} offset:{16*gi}")
    A(f"""s_mov_b64 exec, -1
    s_waitcnt lgkmcnt(0)
    ds_read_b128 v[24:27], v241
    ds_read_b128 v[28:31], v241 offset:1024
    s_waitcnt lgkmcnt(1)
    buffer_store_dwordx4 v[24:27], v249, s[20:23], s57 offen sc1
    s_waitcnt lgkmcnt(0)
    buffer_store_dwordx4 v[28:31], v249, s[20:23], s57 offen offset:1024 sc1""")

def k1_epi_q(A):
    epi_common(A, 10)
    normalize(A, 10, range(10))
    A(f"v_mov_b32 v250, v249\nv_add_u32 v251, {2*XWAVE}, v249\nv_lshlrev_b32 v247, 3, v{VL}")
    for hgi in range(2):
        read_wpf(A, 15 * hgi)
        b2 = [242, 244, 252, 254]
        for T in range(4):
            src = acc(T, 5 * hgi)
            for k in range(8): A(f"v_cvt_pk_bf16_f32 v{acc(T,10)+k}, v{src+2*k}, v{src+2*k+1}")
            for k in range(2): A(f"v_cvt_pk_bf16_f32 v{b2[T]+k}, v{src+16+2*k}, v{src+17+2*k}")
        A("s_waitcnt lgkmcnt(0)")
        if hgi == 1: lds_inc(A, W_Q, 250, 251)
        def outp(T):
            src = acc(T, 5 * hgi); B = Buf()
            for k in range(10): B(f"v_cvt_pk_bf16_f32 v{src+k}, v{src+2*k}, v{src+2*k+1}")
            B(f"s_add_u32 s51, s58, {(hgi*4+T)*2560}")
            B(f"buffer_store_dwordx4 {v(src,4)}, v249, s[20:23], s51 offen {HST}")
            B(f"buffer_store_dwordx4 {v(src+4,4)}, v249, s[20:23], s51 offen offset:1024 {HST}")
            B(f"buffer_store_dwordx2 {v(src+8,2)}, v247, s[20:23], s51 offen offset:2048 {HST}")
            return B.l
        for T in range(4):
            M = Buf(); proj_mfma(M, acc(T, 5 * hgi), acc(T, 10), b2[T])
            weave(A, M.l, ["\n".join(outp(T - 1)[i:i+2]) for i in range(0, 14, 2)] if T else [], 7, 1)
        for x in outp(3): A(x)
    prof_stamp(A, 5, True)

def type_decode(A):
    A("""s_lshl_b32 s35, s30, 1
    s_add_u32 s35, s35, s31
    s_add_u32 s29, s35, 18
    s_add_u32 s36, s30, 26
    s_cmp_eq_u32 s31, 2
    s_cselect_b32 s34, 2, 1
    s_cselect_b32 s35, s30, s35
    s_cselect_b32 s29, s36, s29
    s_mul_i32 s36, s30, 5
    s_lshl_b32 s37, s30, 2
    s_add_u32 s37, s37, 2
    s_min_u32 s36, s36, s37
    s_add_u32 s36, s36, s31
    s_sub_u32 s36, s36, 3
    s_cmp_ge_u32 s31, 3
    s_cselect_b32 s34, 0, s34
    s_cselect_b32 s35, s36, s35
    s_cselect_b32 s29, s36, s29""")

def ptr_setup(A):
    A("""s_waitcnt lgkmcnt(0)
    s_mov_b32 s16, s4
    s_mov_b32 s17, s5
    s_mov_b32 s20, s14
    s_mov_b32 s21, s15
    s_mov_b32 s14, s12
    s_mov_b32 s15, s13""")

def gen_k1():
    A = Asm()
    A.label("K1_start")
    prof_start(A)
    A(f"""
    s_load_dwordx4 s[4:7], s[0:1], 0     ; x, wqkv
    s_load_dwordx4 s[8:11], s[0:1], 40
    s_load_dwordx4 s[12:15], s[0:1], 72
    s_cmp_ge_u32 s2, 256
    s_cbranch_scc1 K1_end
    v_lshrrev_b32 v1, 6, v0
    v_and_b32 v0, 63, v0
    v_readfirstlane_b32 s3, v1
    s_and_b32 s30, s2, 7                 ; xcd
    s_lshr_b32 s31, s2, 3                ; j
    s_lshr_b32 s32, s30, 2
    s_lshl_b32 s32, s32, 2
    s_and_b32 s33, s31, 3
    s_add_u32 s32, s32, s33              ; rb
    s_and_b32 s30, s30, 3                ; cg
    s_lshr_b32 s31, s31, 2               ; cslot
    s_mov_b32 s78, 0                     ; first k stage
    v_lshrrev_b32 v7, 3, v0              ; r
    v_and_b32 v8, 7, v0                  ; p
    v_lshrrev_b32 v9, 1, v7
    v_xor_b32 v8, v8, v9
    v_mul_u32_u24 v7, 1280, v7
    v_lshl_add_u32 v2, v8, 4, v7
    v_xor_b32 v3, 64, v2
    s_mov_b32 s18, 2621440
    s_mov_b32 s19, 0x20000
    s_mov_b32 s22, {WS_SIZE}
    s_mov_b32 s23, 0x20000
    s_lshl_b32 s28, s30, 3
    s_add_u32 s28, s28, s31
    s_cmp_ge_u32 s28, 23
    s_cselect_b32 s34, 7, 0
    s_and_b32 s34, s34, s31
    s_cmp_eq_u32 s34, 7
    s_cbranch_scc1 K1_spare
    s_cmp_lt_u32 s3, 4
    s_cbranch_scc1 K1_compute
    s_sub_u32 s41, s3, 4
    s_lshl_b32 s40, s32, 8
    s_lshl_b32 s36, s41, 6
    s_add_u32 s40, s40, s36
    s_mul_i32 s40, s40, 1280
    s_mul_i32 s43, s41, {XWAVE}
    """)
    ptr_setup(A)
    prof_stamp(A, 0)
    for e in range(8):
        A(f"s_add_u32 s48, s40, {e*8*1280}\ns_add_u32 m0, s43, {e*1024}\ns_nop 0\nbuffer_load_dwordx4 v{2+(e&1)}, s[16:19], s48 offen {NTX} lds")
    type_decode(A)
    A(f"""
    s_lshr_b32 s58, s41, 1               ; half
    s_and_b32 s59, s41, 1
    s_mov_b32 s26, {640*3840}
    s_mov_b32 s60, 3840
    s_mov_b32 s61, 20
    s_mov_b32 s38, {(1<<16)//20+1}
    s_mul_i32 s37, s35, 160
    s_add_u32 s37, s37, 1280
    s_mul_i32 s39, s35, 320
    s_cmp_eq_u32 s34, 2
    s_cselect_b32 s37, s39, s37
    s_cselect_b32 s39, 0, {1280-160}
    s_mul_i32 s62, s41, 3
    s_lshl_b32 s57, s41, 1
    s_add_u32 s57, s57, 2
    s_min_u32 s62, s62, s57
    s_mov_b32 s63, 9
    s_mov_b32 s64, 0
    s_mov_b32 s65, 10240
    s_cmp_eq_u32 s34, 0
    s_cbranch_scc0 K1_lp_go
    s_mov_b32 s26, {640*3456}
    s_mov_b32 s60, 3456
    s_mov_b32 s61, 12
    s_mov_b32 s38, {(1<<16)//12+1}
    s_mul_i32 s37, s35, 192
    s_mov_b32 s39, 0
    s_mul_i32 s62, s59, 3
    s_mov_b32 s63, 5
    s_mul_i32 s64, s58, 6144
    s_mov_b32 s65, 12288
    """)
    A.label("K1_lp_go")
    A("""s_mov_b32 s27, 0x20000
    s_lshl_b32 s42, s60, 5
    v_mov_b32 v10, s39
    s_cmp_lt_u32 s41, 2
    s_cselect_b32 s24, s8, s10
    s_cselect_b32 s25, s9, s11
    s_cmp_eq_u32 s34, 0
    s_cselect_b32 s24, s24, s6
    s_cselect_b32 s25, s25, s7""")
    for e in range(3):
        A(f"""s_add_u32 s36, s62, {e}
        s_min_u32 s36, s36, s63
        s_lshl_b32 s{44+e}, s36, 10
        s_add_u32 s{44+e}, s{44+e}, s64
        s_lshl_b32 s36, s36, 6
        v_add_u32 v7, s36, v0
        v_mul_u32_u24 v8, s38, v7
        v_lshrrev_b32 v8, 16, v8
        v_mul_u32_u24 v9, s61, v8
        v_sub_u32 v9, v7, v9
        v_bfe_u32 v11, v8, 3, 1
        v_lshlrev_b32 v11, 1, v11
        v_xor_b32 v9, v9, v11
        v_mul_u32_u24 v8, s60, v8
        v_lshl_add_u32 v8, v9, 4, v8
        v_cmp_le_u32 vcc, 10, v9
        v_cndmask_b32 v9, 0, v10, vcc
        v_add3_u32 v{4+e}, v8, v9, s37
        s_add_u32 m0, s{44+e}, {WBASE}
        s_nop 0
        buffer_load_dwordx4 v{4+e}, s[24:27], 0 offen {NTW} lds""")
    for e in range(3):
        A(f"s_add_u32 s36, s{44+e}, s65\ns_add_u32 m0, s36, {WBASE}\ns_nop 0\nbuffer_load_dwordx4 v{4+e}, s[24:27], s42 offen {NTW} lds")
    if "cpf" in EXP: A("s_barrier")
    A("s_load_dwordx2 s[70:71], s[0:1], 24\ns_load_dwordx2 s[72:73], s[0:1], 56")
    prof_stamp(A, 1)
    A(f"""
    s_lshl_b32 s66, s32, 8
    s_lshl_b32 s36, s28, 3
    s_add_u32 s66, s66, s36
    s_lshl_b32 s36, s41, 1
    s_add_u32 s66, s66, s36
    s_lshl_b32 s56, s32, 4
    s_lshl_b32 s57, s59, 3
    s_add_u32 s56, s56, s57
    s_lshl_b32 s52, s29, 4
    s_mul_i32 s53, s52, 768
    s_mul_i32 s57, s41, 192
    s_add_u32 s53, s53, s57
    s_add_u32 s53, s53, {WS_CSP}
    s_lshl_b32 s57, s32, 1
    s_add_u32 s52, s52, s57
    s_add_u32 s52, s52, s59
    s_mul_i32 s52, s52, 768
    s_add_u32 s52, s52, {WS_CSP}
    v_lshrrev_b32 v12, 4, v0
    v_and_b32 v13, 15, v0
    v_mov_b32 v14, 0x7ffffff0
    v_mul_lo_u32 v7, v12, s60
    v_lshl_add_u32 v7, v13, 4, v7
    s_mul_i32 s50, s56, s60
    s_add_u32 s50, s50, s37
    s_lshl_b32 s51, s60, 2
    s_cmp_eq_u32 s34, 0
    s_cbranch_scc0 K1_l_qkv
    v_cmp_gt_u32 vcc, 12, v13
    v_cndmask_b32 v7, v14, v7, vcc
    s_mul_i32 s57, s58, 384
    s_add_u32 s52, s52, s57
    """)
    k1_loader(A, True, 3, "LG")
    A.label("K1_l_qkv")
    A(f"""
    v_cmp_gt_u32 vcc, 10, v13
    v_cndmask_b32 v7, v14, v7, vcc
    s_add_u32 s39, s39, 160
    s_mul_i32 s39, s39, s58
    s_add_u32 s50, s50, s39
    s_mul_i32 s57, s58, 320
    s_add_u32 s52, s52, s57
    s_mul_i32 s54, s35, 15
    s_mov_b32 s55, 15
    s_sub_u32 s57, s34, 1
    s_lshl_b32 s54, s54, s57
    s_lshl_b32 s55, s55, s57
    s_lshl_b32 s57, s41, 3
    s_add_u32 s54, s54, s57
    s_lshl_b32 s54, s54, 10
    s_add_u32 s54, s54, {WS_WPF}
    s_max_u32 s55, s55, s57
    s_sub_u32 s55, s55, s57
    s_cmp_ge_u32 s41, 2
    s_cbranch_scc1 K1_l_qkv2
    """)
    if "kvlight" in EXP:
        A("s_cmp_eq_u32 s34, 1\ns_cbranch_scc1 K1_l_kv")
    k1_loader(A, False, 3, "LA")
    A.label("K1_l_qkv2")
    if "kvlight" in EXP:
        A("s_cmp_eq_u32 s34, 1\ns_cbranch_scc1 K1_l_kv2")
    k1_loader(A, False, 2, "LB")
    if "kvlight" in EXP:
        A.label("K1_l_kv"); k1_loader(A, False, 3, "LC", True)
        A.label("K1_l_kv2"); k1_loader(A, False, 2, "LD", True)
    A.label("K1_spare")
    ptr_setup(A)
    k1_spare(A)
    A.label("K1_compute")
    type_decode(A)
    ptr_setup(A)
    A("s_mov_b32 s79, 0")
    if "cpf" in EXP:
        A(f"""s_mul_i32 s36, s32, 30
        s_add_u32 s36, s36, s29              ; rank 0..239
        s_cmp_eq_u32 s3, 0
        s_cselect_b32 s40, s4, s6
        s_cselect_b32 s41, s5, s7
        s_mov_b32 s42, {640*3840}
        s_cselect_b32 s42, 2621440, s42
        s_cselect_b32 s44, 4, 30             ; lines per row in the first batch
        s_cselect_b32 s45, {(1<<20)//4+1}, {(1<<20)//30+1}
        s_cselect_b32 s46, 1280, 3840
        s_cselect_b32 s47, 128, {64*3840}    ; start of stage 1
        s_cselect_b32 s48, 35, 32            ; lanes used
        s_cmp_lt_u32 s3, 2
        s_cbranch_scc1 CPF_a
        s_cmp_eq_u32 s3, 2
        s_cselect_b32 s40, s8, s10
        s_cselect_b32 s41, s9, s11
        s_mov_b32 s42, {640*3456}
        s_mov_b32 s44, 27
        s_mov_b32 s45, {(1<<20)//27+1}
        s_mov_b32 s46, 3456
        s_mov_b32 s47, {64*3456}
        s_mov_b32 s48, 29""".replace(f"s_cselect_b32 s45, {(1<<20)//4+1}, {(1<<20)//30+1}", f"s_mov_b32 s45, {(1<<20)//30+1}\n        s_cselect_b32 s45, {(1<<20)//4+1}, s45").replace("s_cselect_b32 s46, 1280, 3840", "s_mov_b32 s46, 3840\n        s_cselect_b32 s46, 1280, s46").replace(f"s_cselect_b32 s47, 128, {64*3840}", f"s_mov_b32 s47, {64*3840}\n        s_cselect_b32 s47, 128, s47"))
        A.label("CPF_a")
        def batch(vd):
            A(f"""s_mul_i32 s49, s36, s48
            v_min_u32 v{vd}, s48, v0
            v_add_u32 v{vd}, s49, v{vd}
            v_mul_hi_u32 v20, v{vd}, s50
            v_mul_lo_u32 v21, v20, s44
            v_sub_u32 v21, v{vd}, v21
            v_mul_lo_u32 v20, v20, s46
            v_lshl_add_u32 v{vd}, v21, 7, v20""")
        A("s_mov_b32 s43, 0x20000\ns_lshl_b32 s50, s45, 12")
        batch(16)
        A(f"""s_cmp_eq_u32 s3, 0
        s_cselect_b32 s44, 5, s44
        s_mov_b32 s51, {((1<<20)//5+1)<<12}
        s_cselect_b32 s50, s51, s50
        s_mul_i32 s51, s47, 5
        s_mul_i32 s48, s48, 5
        s_add_u32 s48, s48, 3
        s_lshr_b32 s48, s48, 2""")
        batch(253)
        A(f"""s_mov_b32 s44, s51
        s_barrier
        buffer_load_dword v251, v16, s[40:43], s47 offen""")
    if "cx1" in EXP:
        A(f"""s_lshl_b32 s40, s32, 8
        s_lshl_b32 s36, s3, 6
        s_add_u32 s40, s40, s36
        s_mul_i32 s40, s40, 1280
        s_add_u32 s47, s78, 1
        s_sub_u32 s48, s47, 10
        s_cselect_b32 s47, s47, s48
        s_lshl_b32 s47, s47, 7
        s_add_u32 s47, s47, s40
        s_mul_i32 s43, s3, {XWAVE}
        s_sleep {CXSLEEP}""")
        for e in range(8):
            A(f"s_add_u32 s48, s47, {e*8*1280}\ns_add_u32 m0, s43, {XSLOT + e*1024}\ns_nop 0\nbuffer_load_dwordx4 v{2+(e&1)}, s[16:19], s48 offen {NTX} lds")
    A(f"""
    s_setprio 2
    v_mov_b32 v{VL}, v0
    v_and_b32 v1, 15, v0                 ; t
    v_lshrrev_b32 v2, 4, v0              ; g
    v_lshrrev_b32 v3, 1, v1              ; (t>>1)
    s_mul_i32 s36, s3, {XWAVE}
    v_lshlrev_b32 v4, 7, v1
    v_add_u32 v4, s36, v4
    v_xor_b32 v5, v2, v3
    v_lshl_add_u32 v{VX}, v5, 4, v4
    v_xor_b32 v{VX+1}, 64, v{VX}
    s_cmp_eq_u32 s34, 0
    s_mov_b32 s36, 320
    s_cselect_b32 s36, 192, s36
    v_lshlrev_b32 v4, 3, v2              ; 8g
    v_bfe_u32 v5, v0, 2, 2
    v_add_u32 v4, v4, v5
    v_mul_lo_u32 v4, v4, s36
    v_and_b32 v5, 3, v0
    v_lshl_add_u32 v4, v5, 3, v4
    v_add_u32 v4, {WBASE}, v4
    v_and_b32 v5, 1, v2
    v_lshlrev_b32 v5, 5, v5
    v_add_u32 v{VW}, v4, v5
    v_sub_u32 v{VW+1}, v4, v5
    s_lshl_b32 s37, s32, 2
    s_add_u32 s37, s37, s3               ; rb64
    s_lshl_b32 s52, s29, 4
    s_lshl_b32 s53, s32, 1
    s_add_u32 s52, s52, s53
    s_and_b32 s53, s3, 1
    s_add_u32 s52, s52, s53
    s_mul_i32 s52, s52, 768
    s_lshr_b32 s53, s3, 1
    s_mov_b32 s54, 384
    s_mul_i32 s53, s53, s54
    s_add_u32 s52, s52, s53
    s_add_u32 s52, s52, {WS_CSP}
    s_lshl_b32 s53, s32, 5
    s_add_u32 s53, s53, s28
    s_lshl_b32 s53, s53, 7
    s_add_u32 s53, s53, {WS_ST}
    s_cmp_lg_u32 s3, 0
    s_cselect_b32 s53, {OOB}, s53
    v_lshlrev_b32 v250, 4, v0
    s_mul_i32 s55, s3, 384
    s_add_u32 s55, s55, {L_ST+128}
    v_add_u32 v249, s55, v250
    v_mov_b32 v6, 0x7ffffff0
    v_cmp_gt_u32 vcc, s54, v250
    v_cndmask_b32 v250, v6, v250, vcc
    """)
    A(f"""
    s_cmp_eq_u32 s34, 0
    s_cbranch_scc0 K1_c_qkv
    s_mul_i32 s50, s37, 74
    s_mul_i32 s51, s35, 3
    s_add_u32 s50, s50, s51
    s_lshl_b32 s50, s50, 12
    s_add_u32 s50, s50, {WS_AF}
    """)
    k1_mainloop(A, True)
    A.label("K1_compute_end")
    k1_epi_gu(A)
    if "hsent" in EXP: A(f"s_mov_b32 s57, {OOB}\nv_mov_b32 v0, v{VL}")
    else: A(f"s_lshl_b32 s57, s37, 7\ns_add_u32 s57, s57, {F_CH}\ns_mov_b32 s56, 17\nv_mov_b32 v0, v{VL}")
    A("s_branch P2_stream")
    A.label("K1_c_qkv")
    A(f"""s_lshl_b32 s57, s35, 3
    s_add_u32 s57, s57, s32
    s_lshl_b32 s57, s57, 2
    s_add_u32 s57, s57, s3
    s_lshl_b32 s57, s57, 11
    s_add_u32 s57, s57, {WS_KVP}""")
    if "nodry" not in EXP:
        A("s_cmp_eq_u32 s34, 2\ns_cbranch_scc1 DK_skip")
        dry_run(A, ["DK0", "DK0", "DK0", "DK0"], "DK_ret")
        A.label("DK_skip")
    k1_mainloop(A, False)
    A(f"""
    s_cmp_eq_u32 s34, 2
    s_cbranch_scc1 K1_c_q
    """)
    k1_epi_kv(A)
    A(f"v_mov_b32 v0, v{VL}\ns_branch P2_aux")
    A.label("K1_c_q")
    A(f"""
    s_lshl_b32 s58, s37, 3
    s_lshl_b32 s51, s35, 1
    s_add_u32 s58, s58, s51
    s_mul_i32 s58, s58, {4*2560}
    s_add_u32 s58, s58, {WS_PQ}
    """)
    k1_epi_q(A)
    A(f"s_lshl_b32 s57, s37, 7\ns_add_u32 s57, s57, {F_CP}\ns_mov_b32 s56, 3\nv_mov_b32 v0, v{VL}")
    phase2(A)
    A.label("K1_end")
    A("s_endpgm")
    return A

def p2_flag(A, tag):
    A(f"s_cmp_ge_u32 s57, {OOB}\ns_cbranch_scc1 {tag}_noflag\ns_waitcnt vmcnt(0)")
    flag_add(A, 57, 56, 4, tag + "_notlast")
    A.label(f"{tag}_noflag")
    prof_stamp(A, 6)
def p2_pre(A, first):
    p2_map(A, 74, 75)
    A(f"""
    s_and_b32 s76, s3, 3
    {f"s_mul_i32 s67, s76, 5" if first else "s_mov_b32 s67, 0"}
    s_add_u32 s67, s67, {first}
    s_mul_i32 s77, s74, 74
    s_add_u32 s77, s77, s67
    s_lshl_b32 s77, s77, 12
    s_add_u32 s77, s77, {WS_AF}
    s_mul_i32 s78, s75, 74
    s_add_u32 s78, s78, s67
    s_mul_i32 s78, s78, 5120
    s_add_u32 s78, s78, {WS_WF}
    """)
    if "hsent" in EXP: A("s_mul_i32 s79, s75, 9\ns_lshr_b32 s79, s79, 2")
    else:
        A(f"""s_and_b32 s67, s74, 3
        s_mul_i32 s67, s67, {ROTR}
        s_mul_i32 s79, s75, {ROTC}
        s_add_u32 s79, s79, s67
        s_lshr_b32 s79, s79, 2
        s_sub_u32 s67, s79, 54
        s_cselect_b32 s79, s79, s67
        s_add_u32 s79, s79, s76
        s_sub_u32 s67, s79, 54
        s_cselect_b32 s79, s79, s67""")
def p2_regs(A):
    A("s_mov_b32 s32, s74\ns_mov_b32 s33, s75\ns_mov_b32 s35, s76\ns_mov_b32 s40, s77\ns_mov_b32 s41, s78\ns_mov_b32 s58, s79\nv_lshlrev_b32 v2, 4, v0\nv_add_u32 v3, 4096, v2")
def cw_wait(A, tag):
    leader_wait(A, tag, "s_cmp_eq_u32 s3, 4", "v_and_b32 v4, 1, v0\nv_lshlrev_b32 v4, 6, v4", "global_load_dword v5, v4, s[14:15] offset:132 sc1", 5, "1", W_CW, 4)
WOB = 140
def wo_loads(A, rng, q=None):
    for i in rng:
        A(f"s_add_u32 s67, s78, {i*5120}")
        for ct in range(4): A(f"buffer_load_dwordx4 {v(WOB+20*i+4*ct,4)}, v2, s[20:23], s67 offen offset:{ct*1024} {BSC}")
        A(f"buffer_load_dwordx4 {v(WOB+20*i+16,4)}, v3, s[20:23], s67 offen {BSC}")
        if q:
            for _ in range(5): q.issue("WO")
def rot_off(A, dst, base, k, stride):
    if "hsent" not in EXP:
        A(f"""s_add_u32 s59, s58, {4*k}
        s_sub_u32 s{dst}, s59, 54
        s_cselect_b32 s59, s59, s{dst}
        s_mul_i32 s{dst}, s59, {stride}
        s_add_u32 s{dst}, s{dst}, s{base}""")
        if k == 13: A(f"s_cmp_lt_u32 s35, 2\ns_cselect_b32 s{dst}, s{dst}, {OOB}")
        return
    A(f"""s_add_u32 s59, s35, {4*k}
    s_mul_i32 s63, s59, 57
    s_lshr_b32 s63, s63, 10
    s_mul_i32 s{dst}, s63, 18
    s_sub_u32 s59, s59, s{dst}
    s_add_u32 s59, s59, s58
    s_sub_u32 s{dst}, s59, 18
    s_cselect_b32 s59, s59, s{dst}
    s_mul_i32 s59, s59, 3
    s_add_u32 s59, s59, s63
    s_mul_i32 s{dst}, s59, {stride}
    s_add_u32 s{dst}, s{dst}, s{base}""")
    if k == 13: A(f"s_cmp_lt_u32 s63, 3\ns_cselect_b32 s{dst}, s{dst}, {OOB}")

def skew_addr(A, d, t0, t1, base):
    A(f"v_lshrrev_b32 v{t0}, 5, v0\nv_add_u32 v{t0}, v{t0}, v0\nv_lshrrev_b32 v{t1}, 4, v0\nv_lshlrev_b32 v{t1}, 8, v{t1}\nv_add_u32 v{t1}, {base}, v{t1}")
    for ct in range(5): A(f"v_add_u32 v{d+ct}, {2*ct}, v{t0}\nv_and_b32 v{d+ct}, 15, v{d+ct}\nv_lshl_add_u32 v{d+ct}, v{d+ct}, 4, v{t1}")

def p2_aux(A):
    A.label("P2_aux")
    p2_pre(A, 54); p2_regs(A); cw_wait(A, "PAW")
    A("s_cmp_eq_u32 s34, 1\ns_cbranch_scc1 P2_a_2\ns_cmp_eq_u32 s34, 2\ns_cbranch_scc0 P2_a_noq")
    lds_spin(A, "AQ", W_Q, "4", 4, 5)
    A.label("P2_a_noq")
    A(f"s_mul_i32 s45, s33, {74*5120}\ns_add_u32 s45, s45, {WS_WF}\ns_mul_i32 s44, s35, 5120")
    for i in range(NL):
        rot_off(A, 43, 45, 4 + i, 5120)
        if "stage" in EXP and i == NSLOW: lds_spin(A, "AE", W_ED, "4", 4, 5)
        A(f"s_waitcnt vmcnt({(THR if i < NSLOW else 30) if 'stage' in EXP else THR})\ns_add_u32 m0, s44, {i*20480}\ns_nop 0")
        for ct in range(4): A(f"buffer_load_dwordx4 v2, s[20:23], s43 offen offset:{ct*1024} {BSC} lds")
        A(f"s_add_u32 m0, s44, {i*20480+4096}\ns_nop 0\nbuffer_load_dwordx4 v3, s[20:23], s43 offen {BSC} lds")
    wo_loads(A, range(1, 3))
    A.label("P2_a_2")
    A(f"s_setprio {0 if 'auxlo' in EXP else 3}")
    prof_stamp(A, 7)
    A(f"""s_cmp_eq_u32 s34, 1
    s_cbranch_scc1 P2_a_3
    s_lshr_b32 s36, s2, 5
    s_cmp_ge_u32 s36, 6
    s_cselect_b32 s65, 1, 0
    s_sub_u32 s64, s32, 1
    s_and_b32 s64, s64, 3
    s_and_b32 s36, s32, 28
    s_or_b32 s64, s64, s36
    s_cmp_eq_u32 s65, 1
    s_cselect_b32 s64, s64, s32""")
    leader_wait(A, "AP", "s_cmp_eq_u32 s35, 0", f"""s_lshl_b32 s37, s32, 7
    s_lshl_b32 s38, s64, 7
    v_mov_b32 v4, s37
    v_writelane_b32 v4, s38, 0
    s_mov_b32 s37, {F_CP+F_RDY}""", "buffer_load_dword v5, v4, s[20:23], s37 offen sc1", 5, "1", W_CP, 4)
    def pq_load(rb, R):
        A(f"""s_lshl_b32 s36, s{rb}, 3
        s_add_u32 s36, s36, s33
        s_mul_i32 s36, s36, {4*2560}
        s_add_u32 s36, s36, {WS_PQ}
        buffer_load_dwordx4 {v(R,4)}, v6, s[20:23], s36 offen sc1
        buffer_load_dwordx4 {v(R+4,4)}, v6, s[20:23], s36 offen offset:1024 sc1
        buffer_load_dwordx2 {v(R+8,2)}, v7, s[20:23], s36 offen offset:2048 sc1""")
    def phi(R, OUT):
        for k in range(10): A(f"v_lshlrev_b32 v{40+2*k}, 16, v{R+k}\nv_and_b32 v{41+2*k}, 0xffff0000, v{R+k}")
        dual_softmax(A, 40, 60, OUT, 240, "s[52:53]")
    A("""v_lshrrev_b32 v20, 4, v0
    v_mul_u32_u24 v20, 2560, v20
    v_and_b32 v21, 15, v0
    s_lshl_b32 s36, s35, 4
    v_add_u32 v21, s36, v21
    v_lshl_add_u32 v6, v21, 4, v20
    v_lshl_add_u32 v7, v21, 3, v20""")
    pq_load(32, 8); pq_load(64, 24)
    A(f"""
    s_lshl_b32 s47, s33, 16
    s_lshl_b32 s38, s35, 11
    s_add_u32 s47, s47, s38
    s_add_u32 s47, s47, {WS_KVP}
    s_add_u32 s48, s47, 32768
    s_add_u32 s38, s38, {KVB}
    v_and_b32 v20, 15, v0
    v_lshrrev_b32 v21, 4, v0
    v_lshlrev_b32 v19, 4, v20
    v_lshl_add_u32 v19, v21, 3, v19
    v_add_u32 v19, s38, v19
    v_and_b32 v18, 3, v0
    v_mul_u32_u24 v18, 80, v18
    v_add_u32 v18, s38, v18
    s_mov_b32 s52, {LOG2E}
    s_mov_b32 s53, {LOG2E}
    """)
    o_offsets(A, 32, 33, 35, 44, 45, 46)
    o_offsets(A, 64, 33, 35, 60, 61, 62)
    wo_loads(A, range(3, 5))
    A("s_waitcnt vmcnt(10)")
    lds_inc(A, W_BL, 4, 5)
    phi(8, 100)
    A("s_cmp_eq_u32 s65, 0\ns_cbranch_scc1 P2_a_p1")
    phi(24, 120)
    A.label("P2_a_p1")
    A("""v_and_b32 v20, 15, v0
    v_lshrrev_b32 v21, 4, v0
    v_lshlrev_b32 v16, 4, v20
    v_lshl_add_u32 v16, v21, 13, v16
    v_mov_b32 v21, 0x7ffffff0
    v_cmp_gt_u32 vcc, 8, v20
    v_cndmask_b32 v17, v21, v16, vcc
    v_mov_b32 v21, 0x3f80
    v_mov_b32 v22, 0x3f800000""")
    for k in range(4):
        A(f"v_cmp_eq_u32 vcc, {2*k}, v20\nv_cndmask_b32 v{84+k}, 0, v21, vcc\nv_cmp_eq_u32 vcc, {2*k+1}, v20\nv_cndmask_b32 v{84+k}, v{84+k}, v22, vcc")
    o_lane(A, 6, 7)
    A("v_lshlrev_b32 v7, 3, v7\nv_sub_u32 v7, v6, v7")
    FBUF = [140, 144, 148, 152, 156, 240, 244, 248, 252, 8, 12]
    for b in FBUF:
        for i in range(4): A(f"v_mov_b32 v{b+i}, 0")
    if "p2touch" in EXP: code_warm(A, "AK_ct", "K1_end", "s35", 98, 99, "P2_stream", back=True)
    prof_stamp(A, 8)
    leader_wait(A, "AK", "s_cmp_eq_u32 s35, 0", f"s_lshl_b32 s37, s33, 16\ns_add_u32 s37, s37, {WS_KVP + 1916}\nv_and_b32 v4, 31, v0\nv_lshlrev_b32 v4, 11, v4", "buffer_load_dword v5, v4, s[20:23], s37 offen sc1", 5, "data", W_CK, 4)
    prof_stamp(A, 9)
    A(f"s_mov_b32 s68, {SPIN_MAX}")
    A.label("KV_rty")
    for g in range(8):
        for q_ in range(2):
            r = 20 + 8 * g + 4 * q_
            A(f"buffer_load_dwordx4 {v(r,4)}, v{16 if g < 7 else 17}, s[20:23], s{47+q_} offen offset:{g*256} sc1")
    for g in range(8):
        r = 20 + 8 * g
        A(f"s_waitcnt vmcnt({14-2*g})")
        A(f"v_max3_u32 v96, v{r}, v{r+1}, {'v96' if g else f'v{r+7}'}")
        for k in (2, 4) + ((6,) if g else ()): A(f"v_max3_u32 v96, v{r+k}, v{r+k+1}, v96")
        if not g: A(f"v_max_u32 v96, v{r+6}, v96")
        A(f"v_mfma_f32_16x16x32_bf16 {v(88+4*(g%2),4)}, v[84:87], {v(r,4)}, 0")
        A(f"v_mfma_f32_16x16x32_bf16 {v(88+4*(g%2),4)}, v[84:87], {v(r+4,4)}, {v(88+4*(g%2),4)}")
        def put(gg):
            p = 88 + 4 * (gg % 2); d = 20 + 8 * gg
            A(f"v_cvt_pk_bf16_f32 v{d}, v{p}, v{p+1}\nv_cvt_pk_bf16_f32 v{d+1}, v{p+2}, v{p+3}\ns_mov_b64 exec, 0xffffffff\nds_write_b64 v19, {v(d,2)} offset:{gg*256}\ns_mov_b64 exec, -1")
        if g: put(g - 1)
    put(7)
    A("v_cmp_eq_u32 vcc, -1, v96\ns_cbranch_vccz KV_ok\ns_sub_u32 s68, s68, 1\ns_cbranch_scc0 KV_rty")
    A.label("KV_ok")
    lds_inc(A, W_KVL, 4, 5)
    A("s_mov_b32 s50, 0x00f0000f\ns_mov_b32 s51, 0xf0000f00\ns_waitcnt lgkmcnt(0)")
    def slices(dual):
        q = Q(A, "lgkmcnt", 15)
        order = [5, 0, 1, 2, 3, 4]
        acc2 = [64, 68, 72, 76, 80, 84]
        seq = [(t, c) for t in order for c in range(5)]
        NB = len(FBUF)
        def rdA(lo, hi):
            A("s_mov_b64 exec, s[50:51]")
            for n in range(lo, min(hi, 30)):
                t, c = seq[n]
                A(f"ds_read_b128 {v(FBUF[n % NB],4)}, v18 offset:{t*320+c*16}"); q.issue(n)
            A("s_mov_b64 exec, -1")
        rdA(0, 10)
        for k, t in enumerate(order):
            for c in range(5):
                n = 5 * k + c
                q.wait({n})
                A(f"v_mfma_f32_16x16x32_bf16 {v(40+4*t,4)}, {v(FBUF[n % NB],4)}, {v(100+4*c,4)}, {'0' if c==0 else v(40+4*t,4)}")
                if dual: A(f"v_mfma_f32_16x16x32_bf16 {v(acc2[t],4)}, {v(FBUF[n % NB],4)}, {v(120+4*c,4)}, {'0' if c==0 else v(acc2[t],4)}")
            if 5 * k + 10 < 30: rdA(5 * k + 10, 5 * k + 15)
            if k == 2:
                A("v_add_f32 v60, 0x358637bd, v60\nv_rcp_f32 v60, v60")
                if dual: A("v_add_f32 v84, 0x358637bd, v84\nv_rcp_f32 v84, v84")
        for (ac, den, O, so) in [(40, 60, 20, 44)] + ([(64, 84, 30, 60)] if dual else []):
            for k in range(10):
                r = ac + 2 * k
                A(f"v_pk_mul_f32 {v(r,2)}, {v(r,2)}, {v(den,2)} op_sel_hi:[1,0]\nv_cvt_pk_bf16_f32 v{O+k}, v{r}, v{r+1}")
            A(f"""buffer_store_dwordx4 {v(O,4)}, v6, s[20:23], s{so} offen sc1
            buffer_store_dwordx4 {v(O+4,4)}, v6, s[20:23], s{so+1} offen sc1
            buffer_store_dwordx2 {v(O+8,2)}, v7, s[20:23], s{so+2} offen sc1""")
    A("s_cmp_eq_u32 s65, 0\ns_cbranch_scc1 P2_a_s1")
    slices(True)
    A("s_branch P2_a_4")
    A.label("P2_a_s1")
    slices(False)
    A("s_branch P2_a_4")
    A.label("P2_a_3")
    wo_loads(A, range(1, 5))
    lds_inc(A, W_KVS, 4, 5)
    A.label("P2_a_4")
    prof_stamp(A, 10)
    wo_loads(A, [0])
    leader_wait(A, "AO", "s_cmp_eq_u32 s35, 0", f"""s_mul_i32 s37, s32, {74*4096}
    s_add_u32 s37, s37, {WS_AF + 56*4096 + 3*1024 + 124}
    v_bfe_u32 v4, v0, 3, 2
    v_mul_u32_u24 v4, {5*4096}, v4
    v_bfe_u32 v5, v0, 2, 1
    v_lshl_add_u32 v4, v5, 9, v4
    v_and_b32 v5, 3, v0
    v_lshl_add_u32 v4, v5, 7, v4""", "buffer_load_dword v5, v4, s[20:23], s37 offen sc1", 5, "data", W_O, 4)
    prof_stamp(A, 6)
    A(f"s_mov_b32 s68, {SPIN_MAX}")
    qv = Q(A, "vmcnt", 63)
    def ld(i, model=True, E=A):
        E(f"s_add_u32 s42, s40, {((i+1)%5)*4096}")
        for T in range(4):
            r = 84 + 16 * (i % 3) + 4 * T
            if (i + 1) % 5 == 2:
                E(f"buffer_load_dwordx2 {v(r,2)}, v139, s[20:23], s42 offen offset:{T*1024} sc1\nbuffer_load_dwordx2 {v(r+2,2)}, v139, s[20:23], s42 offen offset:{T*1024+512} sc1")
                if model: qv.issue(i)
            else: E(f"buffer_load_dwordx4 {v(r,4)}, v2, s[20:23], s42 offen offset:{T*1024} sc1")
            if model: qv.issue(i)
    oo = [1, 2, 3, 4, 0]
    A("v_lshlrev_b32 v139, 3, v0")
    ld(0); ld(1); ld(2)
    A(f"s_mul_i32 s36, s35, 20480\ns_add_u32 s36, s36, {APART}")
    skew_addr(A, 134, 132, 133, "s36")
    for i in range(5):
        qv.wait({i})
        b = 84 + 16 * (i % 3)
        A(f"s_branch P2_chk{i}")
        A.label(f"P2_rty{i}")
        A(f"s_sub_u32 s68, s68, 1\ns_cbranch_scc1 P2_ok{i}\ns_sleep 2")
        ld(i, False)
        A("s_waitcnt vmcnt(0)")
        A.label(f"P2_chk{i}")
        A(f"v_max3_u32 v132, v{b}, v{b+1}, v{b+2}")
        for k in range(3, 15, 2): A(f"v_max3_u32 v132, v132, v{b+k}, v{b+k+1}")
        A(f"v_max_u32 v132, v132, v{b+15}\nv_cmp_eq_u32 vcc, -1, v132\ns_cbranch_vccnz P2_rty{i}")
        A.label(f"P2_ok{i}")
        if i == 0: prof_stamp(A, 11)
        S = Buf()
        if 1 <= i <= 2: ld(i + 2, True, S)
        M = [f"v_mfma_f32_16x16x32_bf16 {v(4+4*(T*5+ct),4)}, {v(WOB+20*oo[i]+4*ct,4)}, {v(b+4*T,4)}, {'0' if i==0 else v(4+4*(T*5+ct),4)}" for ct in range(5) for T in range(4)]
        weave(A, M, S.l, 0, 2)
    lds_spin(A, "AS", W_SD, "4", 132, 133)
    prof_stamp(A, 12)
    for t in range(20): A(f"ds_write_b128 v{134+t%5}, {v(4+4*t,4)} offset:{t*1024}")
    A("s_waitcnt lgkmcnt(0)")
    lds_inc(A, W_AP, 132, 133)
    endpgm(A, 1)

def p2_stream(A, nl, tag):
    AP, BP, NA = 84, 148, NAD
    isL = lambda k: 4 <= k < 4 + nl
    if nl == 0: bslot = {k: k % 5 for k in range(14)}
    else:
        bslot = {0: 0, 1: 1, 2: 2, 3: 3, 11: 0, 12: 1, 13: 2}
        for k in range(4, 11): bslot[k] = 4 - (k % 2)
    q = Q(A, "vmcnt", 63); ql = Q(A, "lgkmcnt", 15)
    def ldB(k, E=A):
        b = BP + 20 * bslot[k]
        rot_off(E, 43, 41, k, 5120)
        for ct in range(4): E(f"buffer_load_dwordx4 {v(b+4*ct,4)}, v2, s[20:23], s43 offen offset:{ct*1024} {BSC}"); q.issue(("B", k))
        E(f"buffer_load_dwordx4 {v(b+16,4)}, v3, s[20:23], s43 offen {BSC}"); q.issue(("B", k))
    def rdB(k, E=A):
        b = BP + 20 * bslot[k]; i = k - 4
        for ct in range(5): E(f"ds_read_b128 {v(b+4*ct,4)}, v{248+i//3} offset:{(i%3)*20480+ct*1024}"); ql.issue(k)
    def ldA(k, model=True, E=A):
        rot_off(E, 42, 40, k, 4096)
        for T in range(4):
            E(f"buffer_load_dwordx4 {v(AP+16*(k%4)+4*T,4)}, v2, s[20:23], s42 offen offset:{T*1024} sc1")
            if model: q.issue(("A", k))
    hsent = "hsent" in EXP
    early = nl == 0 or not hsent
    if early:
        for k in range(5 if nl == 0 else 4): ldB(k)
    else:
        A(f"s_cmp_eq_u32 s57, {OOB+4}\ns_cbranch_scc0 {tag}_nopp")
    if "p2touch" in EXP: code_warm(A, tag + "_ct", "K1_end", "s35", 254, 255, "P2_stream", back=True)
    prof_stamp(A, 8)
    if hsent:
        leader_wait(A, tag + "H", "s_cmp_eq_u32 s35, 0", f"v_min_u32 v4, 17, v0\nv_mul_u32_u24 v4, {3*4096}, v4\ns_add_u32 s36, s40, 4092", "buffer_load_dword v5, v4, s[20:23], s36 offen sc1", 5, "data", W_CH, 4)
    else:
        leader_wait(A, tag + "H", "s_cmp_eq_u32 s35, 0", f"s_lshl_b32 s36, s32, 7\ns_add_u32 s36, s36, {F_CH+F_RDY}\nv_mov_b32 v4, 0", "buffer_load_dword v5, v4, s[20:23], s36 offen sc1", 5, "1", W_CH, 4)
    if not early: A.label(f"{tag}_nopp")
    if nl and "hold" in EXP: lds_spin(A, tag + "K", W_KVL, "4", 4, 5)
    if "ahit" in EXP: A(f"s_mul_i32 s40, s33, {74*5120}\ns_add_u32 s40, s40, {WS_WF}")
    prof_stamp(A, 9)
    tick(A, None)
    for k in range(4):
        ldA(k)
        if not early: ldB(k)
    A(f"s_mov_b32 s68, {SPIN_MAX}")
    if nl:
        A(f"s_mul_i32 s36, s35, 5120\nv_add_u32 v248, s36, v2\nv_add_u32 v249, {3*20480}, v248\nv_add_u32 v250, {6*20480}, v248")
    for k in range(14):
        if nl and k == 3:
            lds_spin(A, tag + "L", W_BL, "4", 251, 252)
            A(f"s_mov_b32 s68, {SPIN_MAX}")
            rdB(4)
        tick(A, 0)
        q.wait({("A", k), ("B", k)})
        tick(A, 1)
        a_ = AP + 16 * (k % 4)
        if hsent:
            A(f"s_branch {tag}_chk{k}")
            A.label(f"{tag}_rty{k}")
            A(f"s_sub_u32 s68, s68, 1\ns_cbranch_scc1 {tag}_ok{k}\ns_sleep 3")
            ldA(k, False)
            A("s_waitcnt vmcnt(0)")
            A.label(f"{tag}_chk{k}")
            A(f"v_max3_u32 v253, v{a_}, v{a_+1}, v{a_+2}")
            for j in range(3, 15, 2): A(f"v_max3_u32 v253, v253, v{a_+j}, v{a_+j+1}")
            A(f"v_max_u32 v253, v253, v{a_+15}\nv_cmp_eq_u32 vcc, -1, v253\ns_cbranch_vccnz {tag}_rty{k}")
            A.label(f"{tag}_ok{k}")
        if k == 0: prof_stamp(A, 10)
        if isL(k): ql.wait({k})
        tick(A, 3)
        S = Buf()
        if isL(k + 1) and k >= 4: rdB(k + 1, S)
        if k >= 1 and k + 3 < 14: ldA(k + 3, True, S)
        if nl == 0 and k >= 1 and k + 4 < 14: ldB(k + 4, S)
        if nl and 1 <= k <= 3: ldB(10 + k, S)
        side, cur = [], []
        for x in S.l:
            cur.append(x)
            if x.startswith(("buffer_", "ds_")): side.append("\n".join(cur)); cur = []
        b = BP + 20 * bslot[k]
        M = [f"v_mfma_f32_16x16x32_bf16 {v(4+4*(T*5+ct),4)}, {v(b+4*ct,4)}, {v(a_+4*T,4)}, {'0' if k==0 else v(4+4*(T*5+ct),4)}" for ct in range(5) for T in range(4)]
        if "snold" in EXP: side = [x for x in side if "buffer_" not in x]
        if "snomf" in EXP and k: M = M[:1]
        weave(A, M, side, 0, 2 if len(side) > 5 else 4)
        tick(A, 2)

def phase2(A):
    A.label("P2_stream")
    A(f"s_load_dwordx2 s[6:7], s[0:1], 64\ns_setprio {2 if 'auxlo' in EXP else 0}")
    lds_inc(A, W_ED, 4, 5)
    p2_flag(A, "PS")
    p2_pre(A, 0); p2_regs(A); cw_wait(A, "PSW")
    A("s_waitcnt lgkmcnt(0)")
    srd(A, 24, 6, 2621440)
    prof_stamp(A, 7)
    A("s_cmp_eq_u32 s34, 1\ns_cbranch_scc1 P2_stream0")
    p2_stream(A, NL, "SA")
    A("s_branch P2_red")
    A.label("P2_stream0")
    if "nokvs" in EXP: A(f"s_mov_b32 s40, {OOB}\ns_mov_b32 s41, {OOB}")
    p2_stream(A, 0, "SB")
    lds_spin(A, "SK", W_KVS, "4", 251, 252)
    A.label("P2_red")
    prof_stamp(A, 11)
    A(f"""
    s_lshl_b32 s44, s32, 2
    s_add_u32 s44, s44, s35
    s_mul_i32 s44, s44, {16*1280}
    s_mul_i32 s45, s33, 160
    s_add_u32 s44, s44, s45
    v_mov_b32 v93, 0x7ffffff0
    """)
    for r in range(3):
        A(f"""v_add_u32 v90, {64*r}, v0
        v_mul_u32_u24 v91, 205, v90
        v_lshrrev_b32 v91, 11, v91           ; t
        v_mul_u32_u24 v92, 10, v91
        v_sub_u32 v92, v90, v92              ; c
        v_mul_u32_u24 v{84+r}, 1280, v91
        v_lshl_add_u32 v{84+r}, v92, 4, v{84+r}
        v_lshlrev_b32 v{87+r}, 9, v92
        v_add_u32 v91, v91, v92
        v_and_b32 v91, 15, v91
        v_lshl_add_u32 v{87+r}, v91, 4, v{87+r}""")
        if r == 2: A("v_cmp_gt_u32 vcc, 32, v0\nv_cndmask_b32 v86, v93, v86, vcc\nv_cndmask_b32 v89, 0, v89, vcc")
        A(f"buffer_load_dwordx4 {v(140+4*r,4)}, v{84+r}, s[16:19], s44 offen {NTR}")
    lds_inc(A, W_SD, 96, 97); lds_spin(A, "R1", W_SD, "4", 96, 97)
    prof_stamp(A, 4)
    for T in range(4):
        A(f"""s_sub_u32 s36, s35, {T+1}
        s_and_b32 s36, s36, 3
        s_cmp_eq_u32 s36, 3
        s_cbranch_scc1 R_own{T}
        s_add_u32 s36, s36, {3*T}
        s_mul_i32 s36, s36, 5120
        v_add_u32 v1, s36, v2""")
        for ct in range(5): A(f"ds_write_b128 v1, {v(4+4*(T*5+ct),4)} offset:{XCH+ct*1024}")
        A(f"s_branch R_nxt{T}")
        A.label(f"R_own{T}")
        for k in range(10): A(f"v_pk_mul_f32 {v(100+2*k,2)}, {v(4+20*T+2*k,2)}, 1.0 op_sel_hi:[1,0]")
        A.label(f"R_nxt{T}")
    A(f"""s_mul_i32 s36, s35, {3*5120}
    v_add_u32 v1, s36, v2
    s_mov_b32 s52, {NLOG2E}
    s_mov_b32 s53, {NLOG2E}
    s_mov_b32 s54, 1.0
    s_mov_b32 s55, 1.0
    s_waitcnt lgkmcnt(0)""")
    lds_inc(A, W_SX, 96, 97); lds_spin(A, "R2", W_SX, "4", 96, 97)
    prof_stamp(A, 7)
    for p in range(3):
        for ct in range(5): A(f"ds_read_b128 {v(4+20*p+4*ct,4)}, v1 offset:{XCH+p*5120+ct*1024}")
    A("s_waitcnt lgkmcnt(5)")
    for k in range(10): A(f"v_pk_add_f32 {v(4+2*k,2)}, {v(4+2*k,2)}, {v(24+2*k,2)}")
    A("s_waitcnt lgkmcnt(0)")
    for k in range(10): A(f"v_pk_add_f32 {v(100+2*k,2)}, {v(100+2*k,2)}, {v(44+2*k,2)}")
    for k in range(10): A(f"v_pk_add_f32 {v(100+2*k,2)}, {v(100+2*k,2)}, {v(4+2*k,2)}")
    for k in range(10): A(f"v_pk_mul_f32 {v(120+2*k,2)}, {v(100+2*k,2)}, s[52:53]")
    for i in range(20): A(f"v_exp_f32 v{120+i}, v{120+i}")
    for k in range(10): A(f"v_pk_add_f32 {v(120+2*k,2)}, {v(120+2*k,2)}, s[54:55]")
    for i in range(20): A(f"v_rcp_f32 v{120+i}, v{120+i}")
    for k in range(10): A(f"v_pk_mul_f32 {v(100+2*k,2)}, {v(100+2*k,2)}, {v(120+2*k,2)}")
    skew_addr(A, 124, 130, 131, "s36")
    for ct in range(5): A(f"ds_write_b128 v{124+ct}, {v(100+4*ct,4)} offset:{XCH+ct*1024}")
    A("s_waitcnt lgkmcnt(0)")
    for r in range(3):
        A(f"v_add_u32 v90, s36, v{87+r}\nds_read_b128 {v(100+8*r,4)}, v90 offset:{XCH}\nds_read_b128 {v(104+8*r,4)}, v90 offset:{XCH+256}")
    A(f"s_mul_i32 s36, s35, 5120\ns_add_u32 s36, s36, {APART}")
    for r in range(3): A(f"v_add_u32 v{87+r}, s36, v{87+r}\nv_add_u32 v{90+r}, {2*20480}, v{87+r}")
    prof_stamp(A, 8)
    A("s_waitcnt vmcnt(0)")
    for k in range(12): A(f"v_lshlrev_b32 v{152+2*k}, 16, v{140+k}\nv_and_b32 v{153+2*k}, 0xffff0000, v{140+k}")
    prof_stamp(A, 12)
    A("s_setprio 3")
    lds_spin(A, "R3", W_AP, "4", 96, 97)
    prof_stamp(A, 13)
    q = Q(A, "lgkmcnt", 15)
    def rds(r):
        for p in range(4):
            for h in range(2):
                A(f"ds_read_b128 {v([4,36,180][r]+8*p+4*h,4)}, v{(87 if p < 2 else 90)+r} offset:{(p%2)*20480+h*256}"); q.issue(r)
    rds(0)
    for r in range(3):
        q.wait({r})
        if r < 2: rds(r + 1)
        b = [4, 36, 180][r]
        for k in range(4):
            A(f"v_pk_add_f32 {v(b+2*k,2)}, {v(b+2*k,2)}, {v(b+8+2*k,2)}\nv_pk_add_f32 {v(b+16+2*k,2)}, {v(b+16+2*k,2)}, {v(b+24+2*k,2)}")
        for k in range(4): A(f"v_pk_add_f32 {v(b+2*k,2)}, {v(b+2*k,2)}, {v(b+16+2*k,2)}")
        for k in range(4): A(f"v_pk_fma_f32 {v(b+2*k,2)}, {v(b+2*k,2)}, {v(100+8*r+2*k,2)}, {v(152+8*r+2*k,2)}")
        for k in range(4): A(f"v_cvt_pk_bf16_f32 v{b+8+k}, v{b+2*k}, v{b+2*k+1}")
        A(f"buffer_store_dwordx4 {v(b+8,4)}, v{84+r}, s[24:27], s44 offen {OST}")
    endpgm(A, 1)
    p2_aux(A)

HEADER = open(f"cdna_kernels/{NAME}.s.ref").read().split("; Override launch")[0]

def build_single(A, aslist):
    n = NAME + "_kernel"
    t = HEADER
    t += f"; @launch kernel={n} grid=(256,1,1) block=(512,1,1) lds={K1_LDS}\n" if aslist else f"; @launch grid=(256,1,1) block=(512,1,1) lds={K1_LDS}\n"
    body = A.text()
    if "noalign" not in EXP:
        body, a_, b_ = align_pass(body); print("align: promoted", a_, "nops", b_)
    t += '.amdgcn_target "amdgcn-amd-amdhsa--gfx950"\n.text\n' + kernel_head(n) + body + "\n"
    t += '.section .rodata,"a"\n.p2align 6\n' + kernel_desc(n, 256, 100)
    return t

if __name__ == "__main__":
    if "--prof" in sys.argv: PROF = True; sys.argv.remove("--prof")
    aslist = "--list" in sys.argv or PROF
    if "--list" in sys.argv: sys.argv.remove("--list")
    for a_ in list(sys.argv):
        if a_.startswith("--thr="): THR = int(a_[6:]); sys.argv.remove(a_)
        if a_.startswith("--bsc="): BSC = a_[6:]; sys.argv.remove(a_)
        if a_.startswith("--aux="): AUXS = a_[6:]; sys.argv.remove(a_)
        if a_.startswith("--wsleep="): WSLEEP = int(a_[9:]); sys.argv.remove(a_)
        if a_.startswith("--na="): NAD = int(a_[5:]); sys.argv.remove(a_)
        if a_.startswith("--nslow="): NSLOW = int(a_[8:]); sys.argv.remove(a_)
        if a_.startswith("--rot="): ROTR, ROTC = map(int, a_[6:].split(",")); sys.argv.remove(a_)
        if a_ == "--nokrot": KROT = False; sys.argv.remove(a_)
        if a_.startswith("--pub="): PUBU = int(a_[6:]); sys.argv.remove(a_)
        if a_.startswith("--rlu="): RLU = int(a_[6:]); sys.argv.remove(a_)
        if a_.startswith("--ssleep="): SSLEEP = int(a_[9:]); sys.argv.remove(a_)
        if a_.startswith("--nt="):
            f_ = a_[5:]; NTX = 'nt' if 'x' in f_ else ''; NTW = 'nt' if 'w' in f_ else ''; NTA = 'nt' if 'a' in f_ else ''; NTR = 'nt' if 'r' in f_ else ''; sys.argv.remove(a_)
        if a_.startswith("--ntu="): NTU = int(a_[6:]); sys.argv.remove(a_)
        if a_.startswith("--cpfs="): CPFS = int(a_[7:]); sys.argv.remove(a_)
        if a_.startswith("--ost="): OST = a_[6:].replace("+", " "); sys.argv.remove(a_)
        if a_.startswith("--x="): EXP |= set(a_[4:].split(",")); sys.argv.remove(a_)
    out = sys.argv[1] if len(sys.argv) > 1 else "v5.s"
    open(out, "w").write(build_single(gen_k1(), aslist))
    print("written", out)
```

```python
import sys
from asmlib import *

NAME = "recurrent_scan__linear_kernel_hedgehog__swiglu_ffn__prompt"
USE_XN = False
WS_AF  = 0x300000
WS_WF  = 0xD00000
WS_PQ  = 0x1000000
WS_KVT = 0x1300000
WS_FLG = WS_KVT + 122880
F_CH = WS_FLG; F_CP = WS_FLG + 32 * 128; F_CK = WS_FLG + 64 * 128
F_RDY = 72 * 128
WS_KVP = 0x1400000
WS_WPF = 0x1340000
WS_ST  = 0x1380000
WS_CSP = 0x1390000
WS_SIZE = 0x10000000
LOG2E = 0x3fb8aa3b
NLOG2E = 0xbfb8aa3b
OOB = 0x7ff00000
SPIN_MAX = 100000
THR = 4
OST = ''
CPFS = 10
NTU = 20
NTX = NTW = NTA = NTR = ''
SSLEEP = 10
PUBU = 6
RLU = 8
CX1_AFTER = [0, 0]
CXSLEEP = 6
ROTR, ROTC = 0, 0
KROT = False
NAD = 4
NSLOW = 4
AUXS = 'B'
WSLEEP = 0
OSLEEP = 8
BSC = 'sc1'
PROF = False
EXP = {"nodry", "stage", "b1", "notouch"}
HST = 'sc1'
WS_PROF = 0x2000000

def prof_start(A):
    if PROF:
        A("s_memrealtime s[98:99]")
        for i in range(14): A(f"s_mov_b32 s{81+i}, 0")
        A("s_waitcnt lgkmcnt(0)\ns_mov_b32 s80, s98")
SLOTS = [0, 1, 2, 3, 4, 5, 6, 7, 8, 10, 12, 14, 17, 19]
def prof_stamp(A, i, cyc=False, force=False):
    if "slots" in EXP and not force: return
    if PROF: A(f"s_memrealtime s[98:99]\ns_waitcnt lgkmcnt(0)\ns_mov_b32 s{81+i}, s98")
    if PROF and cyc and "cyc" in EXP: A("s_memtime s[98:99]\ns_waitcnt lgkmcnt(0)\ns_sub_u32 s81, s98, s76\ns_add_u32 s81, s81, s80")
def tick(A, slot):
    if PROF and "sacc" in EXP:
        A(f"s_memtime s[98:99]\ns_waitcnt lgkmcnt(0)")
        if slot is not None: A(f"s_sub_u32 s97, s98, s96\ns_add_u32 s{81+slot}, s{81+slot}, s97")
        else: A("s_mov_b32 s81, 0\ns_mov_b32 s82, 0\ns_mov_b32 s83, 0\ns_mov_b32 s84, 0")
        A("s_mov_b32 s96, s98")
def endpgm(A, kid):
    if PROF:
        A(f"""s_waitcnt vmcnt(0)
        s_memrealtime s[98:99]
        s_mov_b64 exec, -1
        s_lshl_b32 s96, s2, 3
        s_add_u32 s96, s96, s3
        s_lshl_b32 s96, s96, 6
        s_add_u32 s96, s96, {WS_PROF + kid*272*8*64}
        s_waitcnt lgkmcnt(0)
        s_mov_b32 s95, s98""")
        for i in range(16): A(f"v_mov_b32 v{i}, s{80+i}")
        A("v_mov_b32 v16, 0")
        for i in range(4): A(f"buffer_store_dwordx4 {v(4*i,4)}, v16, s[20:23], s96 offen offset:{16*i}")
    A("s_endpgm")

def srd(A, d, b, nbytes, off=0):
    if off: A(f"s_add_u32 s{d}, s{b}, {off}\ns_addc_u32 s{d+1}, s{b+1}, 0")
    else: A(f"s_mov_b32 s{d}, s{b}\ns_mov_b32 s{d+1}, s{b+1}")
    A(f"s_mov_b32 s{d+2}, {nbytes}\ns_mov_b32 s{d+3}, 0x20000")

def bf16_round(A, d):
    A(f"v_cvt_pk_bf16_f32 v{d}, v{d}, v{d}\nv_lshlrev_b32 v{d}, 16, v{d}")

def row16_sum(A, r):
    for k in (8, 4, 2, 1):
        A(f"v_add_f32_dpp v{r}, v{r}, v{r} row_ror:{k} row_mask:0xf bank_mask:0xf")

class Q:
    def __init__(self, A, name, mx): self.A, self.name, self.mx, self.q, self.n = A, name, mx, [], 0
    def issue(self, tag):
        self.n += 1
        self.q.append(tag); assert len(self.q) <= self.mx + (0 if self.name == "vmcnt" else 99), (self.name, len(self.q))
    def wait(self, tags):
        idx = [i for i, t in enumerate(self.q) if t in tags]
        if not idx: return
        n = len(self.q) - 1 - max(idx)
        assert n <= self.mx
        self.A(f"s_waitcnt {self.name}({n})")
        self.q = self.q[max(idx) + 1:]

def code_warm(A, tag, endlabel, piece, vt, vd, start='K1_start', back=False):
    A(f"s_getpc_b64 s[70:71]")
    A.label(tag)
    A(f"""s_add_u32 s70, s70, {start}-{tag}
    s_addc_u32 s71, s71, {-1 if start == 'K1_start' or back else 0}
    s_lshl_b32 s72, {piece}, 13
    v_lshlrev_b32 v{vt}, 7, v0
    v_add_u32 v{vt}, s72, v{vt}
    v_min_u32 v{vt}, {endlabel}-{start}, v{vt}
    global_load_dword v{vd}, v{vt}, s[70:71]""")

def stats_issue(A, q, R, cs=range(5), rb=1):
    if 0 in cs:
        A(f"""v_bfe_u32 v{R+20}, v0, 4, {rb}
        v_mul_u32_u24 v{R+20}, 1280, v{R+20}
        v_and_b32 v{R+21}, 15, v0
        v_lshl_add_u32 v{R+20}, v{R+21}, 4, v{R+20}
        s_mul_i32 s69, s66, 1280""")
    for c in cs:
        A(f"buffer_load_dwordx4 {v(R+4*c,4)}, v{R+20}, s[16:19], s69 offen offset:{256*c} {NTA if 4*c < NTU else ''}"); q.issue("ST")
def stats_part1(A, R, X):
    m = R + 20
    A(f"v_mov_b32 v{X}, 0x3f803f80")
    A(f"v_dot2_f32_bf16 v{m}, v{R}, v{X}, 0\nv_dot2_f32_bf16 v{m+1}, v{R}, v{R}, 0\nv_dot2_f32_bf16 v{X+1}, v{R+1}, v{X}, 0\nv_dot2_f32_bf16 v{X+2}, v{R+1}, v{R+1}, 0")
    for i in range(2, 20, 2):
        A(f"v_dot2_f32_bf16 v{m}, v{R+i}, v{X}, v{m}\nv_dot2_f32_bf16 v{m+1}, v{R+i}, v{R+i}, v{m+1}")
        A(f"v_dot2_f32_bf16 v{X+1}, v{R+i+1}, v{X}, v{X+1}\nv_dot2_f32_bf16 v{X+2}, v{R+i+1}, v{R+i+1}, v{X+2}")
def stats_part2(A, R, X, sidx, rb=1):
    m = R + 20; s_ = R + 21
    A(f"s_nop 2\nv_add_f32 v{m}, v{m}, v{X+1}\nv_add_f32 v{s_}, v{s_}, v{X+2}")
    for k in (8, 4, 2, 1):
        A(f"v_add_f32_dpp v{m}, v{m}, v{m} row_ror:{k} row_mask:0xf bank_mask:0xf")
        A(f"v_add_f32_dpp v{s_}, v{s_}, v{s_} row_ror:{k} row_mask:0xf bank_mask:0xf")
    A(f"""v_mul_f32 v{m}, 0x3acccccd, v{m}
    v_mul_f32 v{s_}, 0x3acccccd, v{s_}
    v_fma_f32 v{s_}, -v{m}, v{m}, v{s_}
    v_max_f32 v{s_}, 0, v{s_}""")
    bf16_round(A, m); bf16_round(A, s_)
    A(f"v_add_f32 v{s_}, 0x3727c5ac, v{s_}")
    bf16_round(A, s_)
    A(f"v_sqrt_f32 v{s_}, v{s_}")
    bf16_round(A, s_)
    A(f"""v_rcp_f32 v{s_}, v{s_}
    v_bfe_u32 v{R}, v0, 4, {rb}
    v_lshlrev_b32 v{R}, 3, v{R}
    s_lshl_b32 s67, s{sidx}, {3+rb}
    s_add_u32 s67, s67, {L_ST}
    v_add_u32 v{R}, s67, v{R}
    ds_write_b64 v{R}, {v(m,2)}""")

def signal(A, vt, which):
    A(f"s_and_b32 s67, s2, 1\ns_lshl_b32 s67, s67, 6\ns_add_u32 s67, s67, {4*which}\nv_mov_b32 v{vt}, s67")
    A(f"""v_mov_b32 v{vt+1}, 1
    s_mov_b64 exec, 1
    global_atomic_add v{vt}, v{vt+1}, s[14:15]
    s_mov_b64 exec, -1""")

def p2_map(A, rb, cb):
    A(f"""s_and_b32 s{rb}, s2, 7
    s_lshl_b32 s{rb}, s{rb}, 2
    s_lshr_b32 s{cb}, s2, 3
    s_and_b32 s67, s{cb}, 3
    s_add_u32 s{rb}, s{rb}, s67
    s_lshr_b32 s{cb}, s{cb}, 2
    s_lshl_b32 s67, s67, 1
    s_add_u32 s{cb}, s{cb}, s67
    s_and_b32 s{cb}, s{cb}, 7""")
def o_offsets(A, rb, cb, e, o0, o1, o2):
    A(f"""s_lshr_b32 s{o2}, s{cb}, 1
    s_mul_i32 s{o2}, s{o2}, 5
    s_mul_i32 s{o1}, s{rb}, 74
    s_add_u32 s{o2}, s{o2}, s{o1}
    s_add_u32 s{o2}, s{o2}, 54
    s_lshl_b32 s{o2}, s{o2}, 4
    s_add_u32 s{o2}, s{o2}, s{e}
    s_lshl_b32 s{o2}, s{o2}, 8
    s_add_u32 s{o2}, s{o2}, {WS_AF}
    s_and_b32 s67, s{cb}, 1
    s_mul_i32 s{o0}, s67, {3*4096}
    s_add_u32 s{o0}, s{o0}, s{o2}
    s_add_u32 s{o1}, s{o0}, 4096
    s_lshl_b32 s67, s67, 9
    s_add_u32 s{o2}, s{o2}, s67
    s_lshl_b32 s67, s{e}, 7
    s_sub_u32 s{o2}, s{o2}, s67
    s_add_u32 s{o2}, s{o2}, {2*4096}""")
def o_lane(A, d, t):
    A(f"v_lshrrev_b32 v{d}, 4, v0\nv_lshlrev_b32 v{d}, 10, v{d}\nv_and_b32 v{t}, 15, v0\nv_lshl_add_u32 v{d}, v{t}, 4, v{d}")
def sentinel_fill(A, q, e, vt):
    p2_map(A, 74, 75); o_offsets(A, 74, 75, e, 76, 77, 78)
    for i in range(4): A(f"v_mov_b32 v{vt+i}, -1")
    o_lane(A, vt + 5, vt + 4)
    A(f"""v_lshlrev_b32 v{vt+4}, 4, v0
    buffer_store_dwordx4 {v(vt,4)}, v{vt+5}, s[20:23], s76 offen sc1
    buffer_store_dwordx4 {v(vt,4)}, v{vt+5}, s[20:23], s77 offen sc1
    buffer_store_dwordx2 {v(vt,2)}, v{vt+5}, s[20:23], s78 offen sc1""")
    for i in range(3): q.issue("PUB")
def lds_spin(A, tag, off, expect, va, vr):
    A(f"v_mov_b32 v{va}, {L_CNT}\ns_mov_b32 s68, {SPIN_MAX*10}")
    A.label(f"{tag}_spin")
    A(f"ds_read_b32 v{vr}, v{va} offset:{off}\ns_waitcnt lgkmcnt(0)\nv_cmp_ne_u32 vcc, {expect}, v{vr}\ns_cbranch_vccz {tag}_out\ns_sub_u32 s68, s68, 1\ns_sleep 1\ns_cbranch_scc0 {tag}_spin")
    A.label(f"{tag}_out")
def lds_inc(A, off, va, vr):
    A(f"v_mov_b32 v{va}, {L_CNT}\nv_mov_b32 v{vr}, 1\ns_mov_b64 exec, 1\nds_add_u32 v{va}, v{vr} offset:{off}\ns_mov_b64 exec, -1")
def leader_wait(A, tag, lead_test, setup, load, vr, expect, off, va):
    A(f"{lead_test}\ns_cbranch_scc0 {tag}_fol")
    A(setup)
    spin(A, tag, load, vr, expect)
    lds_inc(A, off, va, vr)
    A(f"s_branch {tag}_done")
    A.label(f"{tag}_fol")
    lds_spin(A, tag + "F", off, "1", va, vr)
    A.label(f"{tag}_done")
def flag_add(A, soff, slast, vt, tag):
    A(f"""v_mov_b32 v{vt}, 1
    v_mov_b32 v{vt+1}, 0
    s_mov_b64 exec, 1
    buffer_atomic_add v{vt}, v{vt+1}, s[20:23], s{soff} offen sc0
    s_waitcnt vmcnt(0)
    v_readfirstlane_b32 s36, v{vt}
    v_mov_b32 v{vt}, 1
    s_cmp_lg_u32 s36, s{slast}
    s_cbranch_scc1 {tag}
    s_add_u32 s36, s{soff}, {F_RDY}
    buffer_store_dword v{vt}, v{vt+1}, s[20:23], s36 offen sc1""")
    A.label(tag)
    A("s_mov_b64 exec, -1")
def spin(A, tag, load, vr, expect, first=True, sleep=2):
    A(f"s_mov_b32 s68, {SPIN_MAX}")
    if not first: A(f"s_branch {tag}_chk")
    A.label(f"{tag}_spin")
    A(f"{load}\ns_waitcnt vmcnt(0)")
    A.label(f"{tag}_chk")
    cmp = f"v_cmp_eq_u32 vcc, -1, v{vr}" if expect == "data" else f"v_cmp_ne_u32 vcc, {expect}, v{vr}"
    A(f"{cmp}\ns_cbranch_vccz {tag}_out\ns_sub_u32 s68, s68, 1\ns_cbranch_scc1 {tag}_out\ns_sleep {sleep}\ns_branch {tag}_spin")
    A.label(f"{tag}_out")

def relayout_issue(A, q, lab, D):
    A(f"""
    s_cmp_lt_u32 s30, 740
    s_cselect_b32 s76, {WS_WF}, {OOB}
    s_cselect_b32 s77, 0, {OOB}
    s_mul_i32 s74, s30, 6554
    s_lshr_b32 s74, s74, 16         ; s = U/10
    s_mul_i32 s75, s74, 10
    s_sub_u32 s75, s30, s75         ; cq
    s_cmp_lt_u32 s74, 54
    s_cselect_b32 s4, s72, s70
    s_cselect_b32 s5, s73, s71
    s_mov_b32 s6, {640*1280}
    s_cselect_b32 s6, {1728*1280}, s6
    s_mov_b32 s7, 0x20000
    s_cselect_b32 s31, 4, 20        ; row step per lane group
    s_lshl_b32 s36, s74, 5          ; base (w_down)
    s_mov_b32 s38, 16               ; half step
    s_cmp_lt_u32 s74, 54
    s_cbranch_scc1 {lab}
    s_sub_u32 s33, s74, 54          ; s'
    s_mul_i32 s36, s33, 205
    s_lshr_b32 s36, s36, 10         ; P
    s_mul_i32 s48, s36, 5
    s_sub_u32 s33, s33, s48         ; ty
    s_mul_i32 s36, s36, 160
    s_lshl_b32 s48, s33, 3
    s_cmp_ge_u32 s33, 3
    s_cselect_b32 s47, 56, 0
    s_add_u32 s48, s48, s47
    s_add_u32 s36, s36, s48
    s_cmp_eq_u32 s33, 2
    s_cselect_b32 s38, 80, 4
    """.replace(f"s_cselect_b32 s76, {WS_WF}, {OOB}", f"s_mov_b32 s76, {OOB}\n    s_cselect_b32 s76, {WS_WF}, s76"))
    A.label(lab)
    A(f"""
    v_lshrrev_b32 v8, 5, v0
    v_mul_lo_u32 v8, v8, s38
    v_bfe_u32 v9, v0, 3, 2
    v_add_u32 v8, v8, v9
    v_mul_u32_u24 v8, 1280, v8
    v_and_b32 v9, 7, v0
    v_lshl_add_u32 v8, v9, 4, v8
    s_mul_i32 s36, s36, 1280
    s_lshl_b32 s47, s75, 7          ; cq*128
    s_add_u32 s47, s47, s36
    s_add_u32 s47, s47, s77
    s_mul_i32 s31, s31, 1280
    """)
    for g in range(4):
        A(f"buffer_load_dwordx4 {v(D+4*g,4)}, v8, s[4:7], s47 offen {NTR}"); q.issue("RL")
        if g < 3: A("s_add_u32 s47, s47, s31")
def relayout_finish(A, q, D, O, part):
    if part == 0: relayout_fin0(A, q, D)
    else: relayout_fin1(A, q, O)
def relayout_fin0(A, q, D):
    A(f"""
    s_add_u32 s47, s43, {((RLU // 2 + 2) % 3) * XSLOT + 4096}
    v_lshlrev_b32 v10, 4, v0
    v_add_u32 v8, s47, v10
    v_lshrrev_b32 v9, 4, v0
    v_lshlrev_b32 v9, 10, v9
    v_bfe_u32 v11, v0, 2, 2
    v_lshl_add_u32 v9, v11, 7, v9
    v_and_b32 v11, 3, v0
    v_lshl_add_u32 v9, v11, 3, v9
    v_add_u32 v9, s47, v9""")
    q.wait({"RL"})
    for g in range(4): A(f"ds_write_b128 v8, {v(D+4*g,4)} offset:{g*1024}")
def mark_fill(A, q, D):
    A(f"""s_mul_i32 s31, s30, 3277
    s_lshr_b32 s31, s31, 16
    s_mul_i32 s31, s31, 54
    s_add_u32 s31, s31, s30
    s_add_u32 s31, s31, 54
    s_lshl_b32 s31, s31, 12
    s_add_u32 s31, s31, {WS_AF}
    s_lshl_b32 s33, s30, 12
    s_add_u32 s33, s33, {WS_KVP - 640*4096}
    s_cmp_lt_u32 s30, 640
    s_cselect_b32 s31, s31, s33
    s_cmp_lt_u32 s30, 768
    s_cselect_b32 s31, s31, {OOB}
    v_lshlrev_b32 v{D+4}, 4, v0""")
    for i in range(4): A(f"v_mov_b32 v{D+i}, -1")
    for T in range(4): A(f"buffer_store_dwordx4 {v(D,4)}, v{D+4}, s[20:23], s31 offen offset:{T*1024} sc1"); q.issue("RS")
def relayout_fin1(A, q, O):
    A("s_waitcnt lgkmcnt(0)")
    for tq in range(4):
        A(f"ds_read_b64_tr_b16 {v(O+4*tq,2)}, v9 offset:{tq*32}\nds_read_b64_tr_b16 {v(O+2+4*tq,2)}, v9 offset:{tq*32+512}")
    for tq in range(4):
        A(f"""s_lshl_b32 s47, s75, 2
        s_add_u32 s47, s47, {tq}          ; gt
        s_mul_i32 s48, s47, 205
        s_lshr_b32 s48, s48, 10          ; cb
        s_mul_i32 s49, s48, 5
        s_sub_u32 s47, s47, s49          ; ct
        s_mul_i32 s48, s48, 74
        s_add_u32 s48, s48, s74
        s_mul_i32 s48, s48, 5
        s_add_u32 s48, s48, s47
        s_lshl_b32 s48, s48, 10
        s_add_u32 s48, s48, s76
        s_waitcnt lgkmcnt({6-2*tq})
        buffer_store_dwordx4 {v(O+4*tq,4)}, v10, s[20:23], s48 offen sc1""")
        q.issue("RS")

def wpf_issue(A, D=16):
    A(f"""
    s_mul_i32 s31, s30, 4370
    s_lshr_b32 s31, s31, 16          ; hg = F/15
    s_mul_i32 s32, s31, 15
    s_sub_u32 s32, s30, s32
    s_mul_i32 s33, s32, 86
    s_lshr_b32 s33, s33, 8           ; tau
    s_mul_i32 s34, s33, 3
    s_sub_u32 s35, s32, s34          ; c
    s_lshl_b32 s33, s33, 2
    s_mul_i32 s39, s31, 1600
    s_add_u32 s39, s39, s33
    v_bfe_u32 v4, v0, 2, 2           ; head_out
    v_and_b32 v5, 3, v0
    v_mul_u32_u24 v6, 400, v4
    v_add_u32 v6, v6, v5
    v_add_u32 v6, s39, v6
    v_lshrrev_b32 v7, 4, v0
    v_lshlrev_b32 v7, 2, v7          ; 4*g
    s_lshl_b32 s35, s35, 5
    v_add_u32 v7, s35, v7            ; 32c + 4g
    v_mov_b32 v11, 0x7ffffff0
    """)
    for j in range(8):
        A(f"""v_add_u32 v8, {16*(j>>2)+(j&3)}, v7
        v_mul_u32_u24 v9, 205, v8
        v_lshrrev_b32 v9, 12, v9          ; head_in
        v_mul_u32_u24 v10, 20, v9
        v_sub_u32 v10, v8, v10            ; d
        v_mul_u32_u24 v10, 20, v10
        v_add_u32 v10, v10, v6
        v_lshlrev_b32 v10, 1, v10
        v_cmp_eq_u32 vcc, v9, v4
        v_cndmask_b32 v10, v11, v10, vcc
        buffer_load_ushort v{D+j}, v10, s[24:27], 0 offen""")

def k1_spare(A):
    q = Q(A, "vmcnt", 63)
    A(f"""
    s_load_dwordx2 s[60:61], s[0:1], 16
    s_load_dwordx2 s[62:63], s[0:1], 24
    s_load_dwordx2 s[64:65], s[0:1], 56
    s_lshl_b32 s58, s32, 1
    s_add_u32 s58, s58, s30
    s_sub_u32 s58, s58, 2
    s_lshl_b32 s66, s32, 8
    s_lshl_b32 s67, s28, 3
    s_add_u32 s66, s66, s67
    s_and_b32 s59, s3, 3
    s_lshl_b32 s67, s59, 1
    s_add_u32 s66, s66, s67
    """)
    if "nowarm" not in EXP:
        code_warm(A, "K1_warm", "K1_end", "s3", 100, 101)
        A(f"v_add_u32 v100, 65536, v100\nv_min_u32 v100, K1_end-K1_start, v100\nglobal_load_dword v101, v100, s[70:71]")
    stats_issue(A, q, 40)
    A("s_waitcnt lgkmcnt(0)")
    srd(A, 24, 60, 25600)
    A(f"""
    s_lshl_b32 s60, s58, 3
    s_add_u32 s60, s60, s3              ; SW 0..127
    s_min_u32 s30, s60, 119
    s_mov_b32 s61, s30
    """)
    wpf_issue(A)
    A(f"""
    v_mov_b32 v28, 0
    v_mov_b32 v29, 0
    v_mov_b32 v30, 0
    v_mov_b32 v31, 0
    v_lshlrev_b32 v3, 4, v0
    s_lshl_b32 s30, s60, 10
    s_add_u32 s30, s30, {WS_FLG}
    s_cmp_lt_u32 s60, 18
    s_cselect_b32 s30, s30, {OOB}
    buffer_store_dwordx4 v[28:31], v3, s[20:23], s30 offen sc1
    v_mov_b32 v32, {L_CNT}
    ds_write_b128 v32, v[28:31]
    ds_write_b128 v32, v[28:31] offset:16
    ds_write_b128 v32, v[28:31] offset:32
    ds_write_b128 v32, v[28:31] offset:48
    """)
    A("s_waitcnt vmcnt(1)")
    for p in range(4): A(f"v_lshl_or_b32 v{24+p}, v{17+2*p}, 16, v{16+2*p}")
    A(f"""s_lshl_b32 s30, s61, 10
    s_add_u32 s30, s30, {WS_WPF}
    buffer_store_dwordx4 v[24:27], v3, s[20:23], s30 offen sc1""")
    stats_part1(A, 40, 64); stats_part2(A, 40, 64, 59)
    A(f"""
    s_waitcnt lgkmcnt(0)
    s_barrier
    v_add_u32 v32, {L_ST}, v3
    ds_read_b128 v[36:39], v32
    s_lshr_b32 s30, s66, 3
    s_lshl_b32 s30, s30, 7
    s_add_u32 s30, s30, {WS_ST}
    s_mov_b64 exec, 0xff
    s_waitcnt lgkmcnt(0)
    buffer_store_dwordx4 v[36:39], v3, s[20:23], s30 offen sc1
    s_mov_b64 exec, -1
    s_waitcnt vmcnt(0)
    s_barrier
    s_cmp_lg_u32 s3, 0
    s_cbranch_scc1 SP_f""")
    signal(A, 32, 0)
    prof_stamp(A, 0)
    A("s_cmp_eq_u32 s58, 0\ns_cbranch_scc1 SP_watch")
    A.label("SP_f")
    A(f"""s_sleep {SSLEEP}
    s_sub_u32 s59, s60, 1""")
    if not NTR:
        srd(A, 4, 62, 640 * 1280); srd(A, 8, 64, 1728 * 1280)
        A("v_lshlrev_b32 v102, 7, v0\ns_lshl_b32 s30, s59, 13")
        for k in range(3): A(f"buffer_load_dword v103, v102, s[8:11], s30 offen\ns_add_u32 s30, s30, {127*8192}")
        A("s_lshl_b32 s30, s59, 13\nbuffer_load_dword v103, v102, s[4:7], s30 offen")
    prof_stamp(A, 1)
    A("s_cmp_eq_u32 s58, 0\ns_cbranch_scc1 SP_w\ns_cmp_lg_u32 s3, 0\ns_cbranch_scc1 SP_w\ns_branch SP_fol")
    A.label("SP_watch")
    ready_addr(A, 32)
    A(f"v_mov_b32 v34, 1\nv_mov_b32 v35, 0x80\ns_mov_b32 s30, 120\nv_writelane_b32 v35, s30, 2\nv_writelane_b32 v35, s30, 3\ns_mov_b64 s[70:71], 15\ns_mov_b32 s68, {SPIN_MAX}")
    A.label("SW_spin")
    A("""s_mov_b64 exec, s[70:71]
    global_load_dword v33, v32, s[14:15] sc1
    s_waitcnt vmcnt(0)
    v_cmp_eq_u32 vcc, v35, v33
    s_andn2_b64 s[70:71], s[70:71], vcc
    s_and_b64 exec, exec, vcc
    s_cbranch_execz SW_none
    global_store_dword v32, v34, s[14:15] offset:128 sc1""")
    A.label("SW_none")
    A("""s_cmp_eq_u64 s[70:71], 0
    s_cbranch_scc1 SW_out
    s_sub_u32 s68, s68, 1
    s_cbranch_scc1 SW_out
    s_sleep 6
    s_branch SW_spin""")
    A.label("SW_out")
    A("s_mov_b64 exec, -1\ns_branch SP_w")
    A.label("SP_fol")
    ready_addr(A, 32)
    spin(A, "SPG", "global_load_dword v33, v32, s[14:15] offset:128 sc1", 33, "1", sleep=8)
    A.label("SP_w")
    A(f"s_barrier\ns_mov_b32 s34, 0\ns_mov_b32 s57, {OOB+4}\ns_cmp_lt_u32 s3, 4\ns_cbranch_scc1 P2_stream")
    A("s_branch P2_aux")

def ready_addr(A, vr):
    A(f"v_and_b32 v{vr}, 1, v0\nv_lshlrev_b32 v{vr}, 6, v{vr}\nv_and_b32 v{vr+1}, 2, v0\nv_lshl_add_u32 v{vr}, v{vr+1}, 1, v{vr}")

def dual_softmax(A, P, E, OUT, T, SL):
    mx, mn = T, T + 2
    lo = SL.replace("[", "").split(":")[0]
    A(f"v_max3_f32 v{mx}, v{P}, v{P+1}, v{P+2}\nv_min3_f32 v{mn}, v{P}, v{P+1}, v{P+2}")
    for i in range(3, 19, 2):
        A(f"v_max3_f32 v{mx}, v{mx}, v{P+i}, v{P+i+1}\nv_min3_f32 v{mn}, v{mn}, v{P+i}, v{P+i+1}")
    A(f"v_max_f32 v{mx}, v{mx}, v{P+19}\nv_min_f32 v{mn}, v{mn}, v{P+19}")
    A(f"v_mul_f32 v{mx}, {lo}, v{mx}\nv_mul_f32 v{mn}, {lo}, v{mn}")
    for k in range(10):
        A(f"v_pk_fma_f32 {v(E+2*k,2)}, {v(P+2*k,2)}, {SL}, {v(mx,2)} op_sel_hi:[1,0,0] neg_lo:[0,0,1] neg_hi:[0,0,1]")
        A(f"v_pk_fma_f32 {v(E+20+2*k,2)}, {v(P+2*k,2)}, {SL}, {v(mn,2)} op_sel_hi:[1,0,0] neg_lo:[1,0,0] neg_hi:[1,0,0]")
    for i in range(40): A(f"v_exp_f32 v{E+i}, v{E+i}")
    sp, sm = T, T + 2
    A(f"v_pk_add_f32 {v(sp,2)}, {v(E,2)}, {v(E+2,2)}\nv_pk_add_f32 {v(sm,2)}, {v(E+20,2)}, {v(E+22,2)}")
    for k in range(2, 10):
        A(f"v_pk_add_f32 {v(sp,2)}, {v(sp,2)}, {v(E+2*k,2)}\nv_pk_add_f32 {v(sm,2)}, {v(sm,2)}, {v(E+20+2*k,2)}")
    A(f"v_add_f32 v{sp}, v{sp}, v{sp+1}\nv_add_f32 v{sm}, v{sm}, v{sm+1}")
    A(f"v_rcp_f32 v{sp}, v{sp}\nv_rcp_f32 v{sm}, v{sm}")
    for k in range(10):
        A(f"v_pk_mul_f32 {v(E+2*k,2)}, {v(E+2*k,2)}, {v(sp,2)} op_sel_hi:[1,0]")
        A(f"v_pk_mul_f32 {v(E+20+2*k,2)}, {v(E+20+2*k,2)}, {v(sm,2)} op_sel_hi:[1,0]")
    for k in range(20):
        A(f"v_cvt_pk_bf16_f32 v{OUT+k}, v{E+2*k}, v{E+2*k+1}")

class Buf:
    def __init__(self): self.l = []
    def __call__(self, t): self.l += [x.strip() for x in t.strip("\n").split("\n") if x.strip()]
def weave(A, main, side, first, step):
    side = list(side)
    for i, m in enumerate(main):
        A(m)
        if side and i >= first and (i - first) % step == 0: A(side.pop(0))
    for x in side: A(x)
def softmax_inplace(B, P, E, T, SL):
    mx, mn = T, T + 2
    lo = SL.replace("[", "").split(":")[0]
    B(f"v_max3_f32 v{mx}, v{P}, v{P+1}, v{P+2}\nv_min3_f32 v{mn}, v{P}, v{P+1}, v{P+2}")
    for i in range(3, 19, 2):
        B(f"v_max3_f32 v{mx}, v{mx}, v{P+i}, v{P+i+1}\nv_min3_f32 v{mn}, v{mn}, v{P+i}, v{P+i+1}")
    B(f"v_max_f32 v{mx}, v{mx}, v{P+19}\nv_min_f32 v{mn}, v{mn}, v{P+19}")
    B(f"v_mul_f32 v{mx}, {lo}, v{mx}\nv_mul_f32 v{mn}, {lo}, v{mn}")
    for k in range(10):
        B(f"v_pk_fma_f32 {v(E+2*k,2)}, {v(P+2*k,2)}, {SL}, {v(mn,2)} op_sel_hi:[1,0,0] neg_lo:[1,0,0] neg_hi:[1,0,0]")
        B(f"v_pk_fma_f32 {v(P+2*k,2)}, {v(P+2*k,2)}, {SL}, {v(mx,2)} op_sel_hi:[1,0,0] neg_lo:[0,0,1] neg_hi:[0,0,1]")
    for i in range(20): B(f"v_exp_f32 v{P+i}, v{P+i}\nv_exp_f32 v{E+i}, v{E+i}")
    B(f"v_pk_add_f32 {v(mx,2)}, {v(P,2)}, {v(P+2,2)}\nv_pk_add_f32 {v(mn,2)}, {v(E,2)}, {v(E+2,2)}")
    for k in range(2, 10):
        B(f"v_pk_add_f32 {v(mx,2)}, {v(mx,2)}, {v(P+2*k,2)}\nv_pk_add_f32 {v(mn,2)}, {v(mn,2)}, {v(E+2*k,2)}")
    B(f"v_add_f32 v{mx}, v{mx}, v{mx+1}\nv_add_f32 v{mn}, v{mn}, v{mn+1}\nv_rcp_f32 v{mx}, v{mx}\nv_rcp_f32 v{mn}, v{mn}")
    for k in range(10):
        B(f"v_pk_mul_f32 {v(P+2*k,2)}, {v(P+2*k,2)}, {v(mx,2)} op_sel_hi:[1,0]")
        B(f"v_pk_mul_f32 {v(E+2*k,2)}, {v(E+2*k,2)}, {v(mn,2)} op_sel_hi:[1,0]")
    for k in range(10): B(f"v_cvt_pk_bf16_f32 v{P+k}, v{P+2*k}, v{P+2*k+1}")
    for k in range(10): B(f"v_cvt_pk_bf16_f32 v{P+10+k}, v{E+2*k}, v{E+2*k+1}")

XSLOT = 8192; XWAVE = 3 * XSLOT; WBASE = 4 * XWAVE
NWS = 5
PHI_P = 336; V_P = 208; PHI_BASE = 0; V_BASE = 256 * PHI_P
L_ST = 159744; L_CS = L_ST + 2048; L_CNT = L_CS + 1024
K1_LDS = 160 * 1024
NL = 7
KVB = 4 * NL * 5120
W_KVS, W_BL, W_CK, W_CH, W_CW, W_CP, W_SD, W_SX, W_AP, W_K1, W_K2, W_Q, W_ED, W_O, W_KVL = [4 * k for k in range(15)]
XCH = 0; APART = 12 * 5120
def wpf_lds(i): return (i >> 3) * XWAVE + XSLOT + (i & 7) * 1024

def k1_loader(A, gu, nW, tag, light=False):
    WU = 12288 if gu else 10240
    NCH = 12 if gu else 10
    q = Q(A, "vmcnt", 63)
    def X(j, half=None):
        for e in (range(8) if half is None else range(4 * half, 4 * half + 4)):
            if e % 4 == 0: A(f"s_add_u32 s47, s78, {j}\ns_sub_u32 s48, s47, 10\ns_cselect_b32 s47, s47, s48\ns_lshl_b32 s47, s47, 7\ns_add_u32 s47, s47, s40")
            A(f"s_add_u32 s48, s47, {e*8*1280}\ns_add_u32 m0, s43, {(j%3)*XSLOT + e*1024}\ns_nop 0")
            A(f"buffer_load_dwordx4 v{2+(e&1)}, s[16:19], s48 offen {NTX if 2*j < NTU else ''} lds"); q.issue(("X", j))
    def W(u):
        A(f"s_lshl_b32 s49, s78, 1\ns_add_u32 s49, s49, {u}\ns_sub_u32 s48, s49, 20\ns_cselect_b32 s49, s49, s48\ns_mul_i32 s49, s49, s42")
        for e in range(nW):
            A(f"s_add_u32 m0, s{44+e}, {WBASE + (u%NWS)*WU}\ns_nop 0")
            A(f"buffer_load_dwordx4 v{4+e}, s[24:27], s49 offen {NTW if u < NTU else ''} lds"); q.issue(("W", u))
    R, XU, C, CA = 16, 40, 80, 120
    def aux_issue(p):
        if 'noaux' in EXP or light: return
        stats_issue(A, q, R, [p])
        for i in range(2):
            A(f"s_mul_i32 s48, s51, {32*p + i}\ns_add_u32 s48, s48, s50")
            A(f"buffer_load_dwordx4 {v(C+4*(2*p+i),4)}, v7, s[24:27], s48 offen {NTA if 4*p < NTU else ''}"); q.issue("CS")
    def cs_sel():
        A(f"v_and_b32 v{CA+8}, 15, v0")
        for k in range(4):
            A(f"""v_cmp_eq_u32 vcc, {2*k}, v{CA+8}
            v_cndmask_b32 v{CA+4+k}, 0, v{CA+9}, vcc
            v_cmp_eq_u32 vcc, {2*k+1}, v{CA+8}
            v_cndmask_b32 v{CA+4+k}, v{CA+4+k}, v{CA+10}, vcc""".replace("v_cmp_eq_u32 vcc, 0,", f"v_mov_b32 v{CA+9}, 0x3f80\nv_mov_b32 v{CA+10}, 0x3f800000\nv_cmp_eq_u32 vcc, 0,"))
    def cs_acc():
        for i in range(10): A(f"v_mfma_f32_16x16x32_bf16 {v(CA,4)}, {v(CA+4,4)}, {v(C+4*i,4)}, {'0' if i==0 else v(CA,4)}")
    def cs_fin():
        msk = (1 << NCH) - 1
        A(f"""v_and_b32 v{C}, 15, v0
        v_lshlrev_b32 v{C}, 5, v{C}
        v_lshrrev_b32 v{C+1}, 4, v0
        v_lshl_add_u32 v{C}, v{C+1}, 4, v{C}
        s_mul_i32 s48, s41, 384
        s_add_u32 s48, s48, {L_ST+128}
        v_add_u32 v{C}, s48, v{C}
        s_mov_b64 exec, {msk | (msk << 16)}
        ds_write_b128 v{C}, {v(CA,4)}
        s_mov_b64 exec, -1
        s_waitcnt lgkmcnt(0)""")
    def only0(name, f):
        A(f"s_cmp_lg_u32 s41, 0\ns_cbranch_scc1 {tag}_{name}")
        f()
        A.label(f"{tag}_{name}")
    def cw_poll():
        A(f"v_and_b32 v{R}, 1, v0\nv_lshlrev_b32 v{R}, 6, v{R}\nglobal_load_dword v{R+1}, v{R}, s[14:15] offset:132 sc1")
    def wf_prefetch(i):
        if i == 0:
            A(f"""v_readlane_b32 s48, v{R+1}, 0
            v_readlane_b32 s49, v{R+1}, 1
            s_and_b32 s48, s48, s49
            s_lshr_b32 s49, s2, 3
            s_mul_i32 s49, s49, {740*128}
            s_add_u32 s49, s49, {WS_WF}
            s_cmp_eq_u32 s48, 1
            s_cselect_b32 s69, s49, {OOB}
            v_lshlrev_b32 v{R}, 7, v0""")
        for k in range(3):
            A(f"buffer_load_dword v{R+2}, v{R}, s[20:23], s69 offen\nv_add_u32 v{R}, {64*128 if 3*i+k != 10 else 36*128}, v{R}")
    def pfx(i):
        A(f"""s_cmp_lg_u32 s41, {i & 3}
        s_cbranch_scc1 {tag}_pfx{i}
        s_lshr_b32 s49, s2, 3
        s_mul_i32 s49, s49, {740*128}
        s_add_u32 s49, s49, {WS_WF + min(i*64, 740-64)*128}
        v_lshlrev_b32 v136, 7, v0
        buffer_load_dword v137, v136, s[20:23], s49 offen""")
        A.label(f"{tag}_pfx{i}")
    def poll_issue():
        A(f"v_and_b32 v{R+4}, 1, v0\nv_lshlrev_b32 v{R+4}, 6, v{R+4}\nglobal_load_dword v{R+5}, v{R+4}, s[14:15] offset:128 sc1")
        q.mark = q.n
    def poll_check():
        A(f"s_waitcnt vmcnt({q.n - q.mark})")
        spin(A, tag + "G", f"global_load_dword v{R+5}, v{R+4}, s[14:15] offset:128 sc1", R + 5, "1", first=False)
        prof_stamp(A, 5)
    def cons_issue():
        A(f"""v_lshrrev_b32 v{R}, 3, v0
        v_and_b32 v{R+1}, 7, v0
        v_lshlrev_b32 v{R+1}, 3, v{R+1}
        v_lshl_add_u32 v{R+1}, v{R}, 7, v{R+1}
        s_lshl_b32 s48, s32, 5
        s_lshl_b32 s49, s41, 3
        s_add_u32 s48, s48, s49
        s_lshl_b32 s48, s48, 7
        s_add_u32 s48, s48, {WS_ST}
        buffer_load_dwordx2 {v(R+2,2)}, v{R+1}, s[20:23], s48 offen sc1
        v_lshlrev_b32 v{R}, 3, v0
        v_lshlrev_b32 v{R+1}, 2, v0""")
        q.issue("C1")
        for i in range(16):
            if i and i % 5 == 0: A(f"s_add_u32 s53, s53, {5*768}")
            A(f"buffer_load_dword v{XU+i}, v{R+1}, s[20:23], s53 offen offset:{(i%5)*768} sc1"); q.issue("C1")
        if not gu:
            A(f"v_lshlrev_b32 v{R+4}, 4, v0")
            for e in range(8):
                A(f"s_add_u32 s48, s54, {e*1024}\ns_cmp_lt_u32 {e}, s55\ns_cselect_b32 s48, s48, {OOB}")
                A(f"buffer_load_dwordx4 {v(C+4*e,4)}, v{R+4}, s[20:23], s48 offen sc1"); q.issue("C2")
    def cons_fin():
        q.wait({"C1"})
        A(f"s_lshl_b32 s48, s41, 9\ns_add_u32 s48, s48, {L_ST}\nv_add_u32 v{R}, s48, v{R}\nds_write_b64 v{R}, {v(R+2,2)}")
        for st in (8, 4, 2, 1):
            for i in range(st): A(f"v_add_f32 v{XU+i}, v{XU+i}, v{XU+i+st}")
        A(f"""s_mul_i32 s48, s41, 192
        s_add_u32 s48, s48, {L_CS}
        v_add_u32 v{R+1}, s48, v{R+1}
        s_mov_b32 exec_hi, 0xffff
        ds_write_b32 v{R+1}, v{XU}
        s_mov_b64 exec, -1""")
        if not gu:
            q.wait({"C2"})
            A(f"v_add_u32 v{R+4}, s43, v{R+4}")
            for e in range(8): A(f"ds_write_b128 v{R+4}, {v(C+4*e,4)} offset:{XSLOT + e*1024}")
        A(f"v_mov_b32 v{R}, {L_CNT}\nv_mov_b32 v{R+2}, 0\nv_mov_b32 v{R+3}, 0\n" + "".join(f"ds_write_b64 v{R}, {v(R+2,2)} offset:{8*k}\n" for k in range(8)) + "s_waitcnt lgkmcnt(0)")
    q.q = [("X", 0)] * 8 + [("W", 0)] * 3 + [("W", 1)] * 3
    sched = {u: [] for u in range(20)}
    def rl_issue():
        A("s_mul_i32 s30, s32, 30\ns_add_u32 s30, s30, s29\ns_lshl_b32 s30, s30, 2\ns_add_u32 s30, s30, s41\ns_waitcnt lgkmcnt(0)")
        relayout_issue(A, q, f"{tag}_rl", 140)
    AX = {"A": [-1, 0, 1, 2, 2], "B": [-1, -1, 0, 1, 2], "G": [-1, 1, 2, 3, 4], "H": [-1, 1, 3, 5, 6], "I": [0, 2, 3, 4, 5], "J": [1, 2, 3, 4, 4], "K": [2, 2, 3, 3, 4], "L": [1, 1, 2, 2, 3], "M": [3, 4, 4, 5, 5]}[AUXS]
    def ax(u):
        for p in range(5):
            if AX[p] == u: aux_issue(p)
    ax(-1)
    sched[0] += ([] if 'cx1' in EXP else [lambda: X(1)]) + [lambda: W(2), lambda: W(3), lambda: X(2, 0), cs_sel]
    sched[1] += [lambda: X(2, 1), lambda: W(4)]
    for u in range(2, 8): sched[u] += [lambda u=u: X(u // 2 + 2, u % 2), lambda u=u: W(u + 3)]
    for u in range(8): sched[u].append(lambda u=u: ax(u))
    P0 = PUBU - 2
    post = {P0: [lambda: q.wait({"CS"}), lambda: A("s_setprio 3"), cs_acc, lambda: stats_part1(A, R, XU), lambda: A("s_setprio 0")],
            P0 + 1: [lambda: A("s_setprio 3"), lambda: stats_part2(A, R, XU, 41), cs_fin, lambda: A("s_setprio 0")]}
    for u in range(8, 17):
        j = u // 2 + 2
        if j < 10: sched[u].append(lambda j=j, h=u % 2: X(j, h))
        sched[u].append(lambda u=u: W(u + 3))
    if 'norl' not in EXP and not light:
        sched[RLU - 2].append(rl_issue)
        sched[RLU - 1].append(lambda: mark_fill(A, q, 172))
        sched[RLU] += [lambda: relayout_finish(A, q, 140, 156, 0)]
        sched[RLU + 1] = [sched[RLU + 1][1], lambda: relayout_finish(A, q, 140, 156, 1), sched[RLU + 1][0]] + sched[RLU + 1][2:]
    if 'noaux' not in EXP and not light:
        for u in post: sched[u] += post[u]
    sched[RLU + 4] = [lambda: only0("cs", lambda: signal(A, 130, 1))] + sched[RLU + 4]
    if "pf" in EXP:
        sched[8] = [lambda: only0("cw", cw_poll)] + sched[8]
        for i in range(4): sched[11 + i].append(lambda i=i: only0(f"pf{i}", lambda: wf_prefetch(i)))
    def code_touch(k):
        A(f"s_lshr_b32 s73, s2, 3\ns_lshl_b32 s73, s73, 2\ns_add_u32 s73, s73, s41\ns_add_u32 s73, s73, {k}\ns_and_b32 s73, s73, 7")
        code_warm(A, f"{tag}_ct{k}", "K1_end", "s73", 132, 133, "K1_compute_end"); q.issue("CT")
    if "notouch" not in EXP and not light:
        sched[13].append(lambda: code_touch(0))
        sched[18].append(lambda: code_touch(3))
    if "pfx" in EXP:
        for i in range(12): sched[7 + i].append(lambda i=i: pfx(i))
    sched[15] = [lambda: only0("pi", poll_issue)] + sched[15]
    sched[16] += [lambda: only0("pc", poll_check)]
    if 'nocons' not in EXP: sched[17] += [cons_issue]
    sched[19] += [cons_fin]
    for u in range(20):
        if u == 1 and "b1" not in EXP:
            for f in sched[u]: f()
            continue
        q.wait({("W", u), ("X", u // 2)} | ({("W", 1)} if u == 0 and "b1" not in EXP else set()))
        if u == 0: prof_stamp(A, 3)
        if u == 8: prof_stamp(A, 4)
        A("s_barrier")
        if "slots" in EXP and u in SLOTS: prof_stamp(A, SLOTS.index(u), force=True)
        for f in sched[u]: f()
    A(f"s_barrier\ns_mov_b32 s57, {OOB}")
    if not gu: A("s_cmp_eq_u32 s34, 1\ns_cbranch_scc1 P2_stream")
    A("s_branch P2_aux")

ACC = 0
XF = 192
WFR = 224
NWF = 5
VX = 244
VW = 246
VL = 248
def acc(T, ct): return ACC + (T * 12 + ct) * 4

def k1_mainloop(A, gu):
    NT = 12 if gu else 10
    WU = 12288 if gu else 10240
    pitch = 192 if gu else 320
    LA = NWF - 1
    q = Q(A, "lgkmcnt", 15)
    def woff(n):
        u, ct = divmod(n, NT)
        o = (u % NWS) * WU
        o += (ct % 6) * 32 + (ct // 6) * 6144 if gu else ct * 32
        return o
    def rdW(n, halves=(0, 1)):
        r = WFR + 4 * (n % NWF); ad = VW + (n % NT) % 2
        for h in halves:
            A(f"ds_read_b64_tr_b16 {v(r+2*h,2)}, v{ad} offset:{woff(n)+4*pitch*h}"); q.issue(("W", n))
    def rdX(u, T):
        j, kh = divmod(u, 2)
        A(f"ds_read_b128 {v(XF+16*(u&1)+4*T,4)}, v{VX+kh} offset:{(j%3)*XSLOT + T*2048}"); q.issue(("X", u, T))
    NTOT = 20 * NT
    SIGU, HSU = PUBU + 2, 2
    def pub_read():
        A(f"ds_read_b128 v[252:255], v249"); q.issue("P0")
    def pub_store0():
        q.wait({"P0"})
        A(f"buffer_store_dwordx4 v[252:255], v250, s[20:23], s52 offen sc1\nv_lshlrev_b32 v250, 4, v{VL}\nv_add_u32 v249, {L_ST}, v250")
    def pub_read1():
        A(f"ds_read_b128 v[252:255], v249"); q.issue("P1")
    def pub_store1():
        q.wait({"P1"})
        A(f"s_mov_b64 exec, 0xff\nbuffer_store_dwordx4 v[252:255], v250, s[20:23], s53 offen sc1\ns_mov_b64 exec, -1")
    def sig(line):
        A(f"s_cmp_lg_u32 s3, 0\ns_cbranch_scc1 SG{int(gu)}{line}")
        signal(A, 252, line)
        A.label(f"SG{int(gu)}{line}")
    def hs(i):
        if i == 0: A(f"v_mov_b32 v252, -1\nv_mov_b32 v253, -1\nv_mov_b32 v254, -1\nv_mov_b32 v255, -1\nv_lshlrev_b32 v251, 4, v{VL}")
        if i % 4 == 0: A(f"s_add_u32 s51, s50, {(i//4)*4096}")
        A(f"buffer_store_dwordx4 v[252:255], v251, s[20:23], s51 offen offset:{(i%4)*1024} sc1")
    n0 = PUBU * NT - LA
    hooks = {n0: pub_read, n0 + 3: pub_store0, n0 + 4: pub_read1, n0 + 7: pub_store1, SIGU * NT - LA: lambda: sig(0)}
    if "cpf" in EXP: hooks[CPFS * NT // 10] = lambda: A("buffer_load_dword v254, v253, s[40:43], s44 offen")
    if gu and "hsent" in EXP:
        for i in range(12): hooks[HSU * NT + 3 * i] = (lambda i=i: hs(i))
    if 'nopub' in EXP: hooks = {SIGU * NT - LA: lambda: sig(0)}
    A("s_barrier")
    prof_stamp(A, 1)
    if PROF: A("s_memtime s[76:77]\ns_waitcnt lgkmcnt(0)")
    rdX(0, 0); rdW(0); rdX(0, 1); rdX(0, 2); rdX(0, 3)
    for n in range(1, LA): rdW(n)
    for n in range(NTOT):
        u, ct = divmod(n, NT)
        for T in range(4):
            q.wait({("W", n), ("X", u, T)})
            c = "0" if u == 0 else v(acc(T, ct), 4)
            A(f"v_mfma_f32_16x16x32_bf16 {v(acc(T,ct),4)}, {v(WFR+4*(n%NWF),4)}, {v(XF+16*(u&1)+4*T,4)}, {c}")
            m = n + LA
            if T == 0 and m < NTOT:
                if m == SIGU * NT: A("s_waitcnt vmcnt(0)")
                if m == 2 * NT and "cx1" in EXP: A(f"s_waitcnt vmcnt({CX1_AFTER[int(gu)]})")
                if m % NT == 0 and (m != NT or "b1" in EXP): A("s_barrier")
                rdW(m, (0,))
            if T == 1 and m < NTOT: rdW(m, (1,))
            if T == 2 and u + 1 < 20 and ct >= NT - LA: rdX(u + 1, ct - (NT - LA))
            if T == 3 and n in hooks: hooks[n]()
    prof_stamp(A, 2)
    if PROF: A("s_memtime s[78:79]\ns_waitcnt lgkmcnt(0)\ns_sub_u32 s81, s78, s76\ns_add_u32 s81, s81, s80")

CSR = 192
STR = 240
def epi_common(A, ntile, csr=None, st=(240, 242, 244, 246)):
    A(f"""
    v_lshrrev_b32 v249, 4, v{VL}
    v_lshlrev_b32 v249, 4, v249
    v_add_u32 v249, {L_CS}, v249
    v_and_b32 v250, 15, v{VL}
    v_lshlrev_b32 v250, 3, v250
    s_lshl_b32 s51, s3, 9
    s_add_u32 s51, s51, {L_ST}
    v_add_u32 v250, s51, v250
    s_waitcnt vmcnt(0)
    s_barrier
    """)
    for T in range(4): A(f"ds_read_b64 {v(st[T],2)}, v250 offset:{T*128}")
    for ct in range(ntile): A(f"ds_read_b128 {v(csr[ct] if csr else CSR+4*ct,4)}, v249 offset:{ct*64 + (64 if ntile == 10 and ct >= 5 else 0)}")
    A(f"v_lshlrev_b32 v249, 4, v{VL}\ns_waitcnt lgkmcnt(0)")
    prof_stamp(A, 3)
    if PROF: A("s_memtime s[76:77]\ns_waitcnt lgkmcnt(0)")
def dry_exit(A, ret):
    if "nodry" not in EXP: A(f"s_cmp_eq_u32 s79, 1\ns_cbranch_scc1 {ret}")
def dry_run(A, labels, ret):
    if "nodry" in EXP: return
    A("s_mov_b32 s79, 1\ns_mov_b64 exec, 0")
    for w in range(3): A(f"s_cmp_eq_u32 s3, {w}\ns_cbranch_scc1 {labels[w]}")
    A(f"s_branch {labels[3]}")
    A.label(ret)
    A("s_mov_b32 s79, 0\ns_mov_b64 exec, -1")
def center(A, r, T, ct):
    for h in range(2):
        A(f"v_pk_fma_f32 {v(r+2*h,2)}, {v(CSR+4*ct+2*h,2)}, {v(STR+2*T,2)}, {v(r+2*h,2)} op_sel_hi:[1,0,1] neg_lo:[1,0,0] neg_hi:[1,0,0]")

def k1_epi_gu(A):
    epi_common(A, 12)
    for T in range(4):
        A(f"v_mul_f32 v{252+T}, v{STR+2*T+1}, v{STR+2*T+1}\nv_mul_f32 v{STR+2*T+1}, {NLOG2E}, v{STR+2*T+1}\nv_rcp_f32 v{252+T}, v{252+T}")
    for c in range(3):
        A(f"s_add_u32 s51, s50, {c*4096}")
        for T0 in (0, 2):
            grp = [(T, acc(T, 2 * c), acc(T, 6 + 2 * c)) for T in (T0, T0 + 1)]
            sd = v(252 + T0, 2)
            for T, G, U in grp:
                for h in range(2): center(A, G + 4 * h, T, 2 * c + h); center(A, U + 4 * h, T, 6 + 2 * c + h)
            for T, G, U in grp:
                for k in range(4): A(f"v_pk_mul_f32 {v(U+2*k,2)}, {v(G+2*k,2)}, {v(U+2*k,2)}")
                for k in range(4): A(f"v_pk_mul_f32 {v(G+2*k,2)}, {v(G+2*k,2)}, {v(STR+2*T,2)} op_sel:[0,1] op_sel_hi:[1,1]")
            for T, G, U in grp:
                for i in range(8): A(f"v_exp_f32 v{G+i}, v{G+i}")
            for T, G, U in grp:
                b = T & 1
                for k in range(4): A(f"v_pk_fma_f32 {v(G+2*k,2)}, {v(G+2*k,2)}, {sd}, {sd} op_sel:[0,{b},{b}] op_sel_hi:[1,{b},{b}]")
            for T, G, U in grp:
                for i in range(8): A(f"v_rcp_f32 v{G+i}, v{G+i}")
            for T, G, U in grp:
                for k in range(4): A(f"v_pk_mul_f32 {v(U+2*k,2)}, {v(U+2*k,2)}, {v(G+2*k,2)}")
            for T, G, U in grp:
                for k in range(4): A(f"v_cvt_pk_bf16_f32 v{G+k}, v{U+2*k}, v{U+2*k+1}")
                A(f"buffer_store_dwordx4 {v(G,4)}, v249, s[20:23], s51 offen offset:{T*1024} {HST}")
    prof_stamp(A, 5, True)

WP = 192
def read_wpf(A, first):
    for tau in range(5):
        for c in range(3):
            i = first + 3 * tau + c
            base = 250 + (i >> 4)
            off = wpf_lds(i) - (i >> 4) * 2 * XWAVE
            if c < 2: A(f"ds_read_b128 {v(WP+10*tau+4*c,4)}, v{base} offset:{off}")
            else: A(f"ds_read_b64 {v(WP+10*tau+8,2)}, v{base} offset:{off}")
def normalize(A, ntile, scale_tiles):
    for T in range(4):
        for ct in range(ntile):
            center(A, acc(T, ct), T, ct)
        for ct in scale_tiles:
            for h in range(2):
                r = acc(T, ct) + 2 * h
                A(f"v_pk_mul_f32 {v(r,2)}, {v(r,2)}, {v(STR+2*T,2)} op_sel:[0,1] op_sel_hi:[1,1]")
def proj_mfma(A, D, B01, B2):
    for c in range(3):
        for tau in range(5):
            d = v(D + 4 * tau, 4)
            if c < 2: A(f"v_mfma_f32_16x16x32_bf16 {d}, {v(WP+10*tau+4*c,4)}, {v(B01+4*c,4)}, {'0' if c==0 else d}")
            else: A(f"v_mfma_f32_16x16x16_bf16 {d}, {v(WP+10*tau+8,2)}, {v(B2,2)}, {d}")

def k1_epi_kv(A):
    csr = [192, 196, 200, 204, 208, acc(0, 10), acc(0, 11), acc(1, 10), acc(1, 11), acc(2, 10)]
    ST = [acc(2, 11), acc(2, 11) + 2, acc(3, 11), acc(3, 11) + 2]
    epi_common(A, 10, csr, ST)
    def ctr(B, T, ct, scale):
        for h in range(2):
            r = acc(T, ct) + 2 * h
            B(f"v_pk_fma_f32 {v(r,2)}, {v(csr[ct]+2*h,2)}, {v(ST[T],2)}, {v(r,2)} op_sel_hi:[1,0,1] neg_lo:[1,0,0] neg_hi:[1,0,0]")
            if scale: B(f"v_pk_mul_f32 {v(r,2)}, {v(r,2)}, {v(ST[T],2)} op_sel:[0,1] op_sel_hi:[1,1]")
    A.label("DK0")
    for T in range(4):
        for ct in range(5): ctr(A, T, ct, False)
    dry_exit(A, "DK_ret")
    A(f"v_lshlrev_b32 v250, 4, v{VL}")
    read_wpf(A, 0)
    for T in range(4):
        for ct in range(5, 10):
            ctr(A, T, ct, True)
            r = acc(T, ct)
            A(f"v_cvt_pk_bf16_f32 v{r}, v{r}, v{r+1}\nv_cvt_pk_bf16_f32 v{r+1}, v{r+2}, v{r+3}")
    for T in range(4): A(f"v_mul_f32 v{252+T}, {LOG2E}, v{ST[T]+1}")
    VA = acc(3, 10)
    A(f"""
    v_and_b32 v243, 15, v{VL}
    s_lshl_b32 s51, s3, 6
    v_add_u32 v243, s51, v243            ; row (T=0)
    v_lshrrev_b32 v246, 4, v{VL}         ; g
    v_mul_u32_u24 v251, {PHI_P}, v243
    v_mul_u32_u24 v247, 80, v246
    v_add_u32 v251, v251, v247
    v_mul_u32_u24 v243, {V_P}, v243
    v_add_u32 v243, {V_BASE}, v243
    v_mul_u32_u24 v247, 48, v246
    v_add_u32 v242, v243, v247
    """)
    for c in range(5):
        A(f"""v_add_u32 v247, {4*c}, v246
        v_mul_u32_u24 v244, 205, v247
        v_lshrrev_b32 v244, 10, v244
        v_add_u32 v247, v247, v244
        v_lshl_add_u32 v{VA+c}, v247, 3, v243""")
    A("v_mov_b32 v244, 0x3f80\nv_mov_b32 v245, 0\ns_waitcnt lgkmcnt(0)")
    prof_stamp(A, 8)
    lds_inc(A, W_K1, 246, 247); lds_spin(A, "K1S", W_K1, "4", 246, 247)
    prof_stamp(A, 9)
    def kcvt(T):
        B = Buf()
        for k in range(8): B(f"v_cvt_pk_bf16_f32 v{acc(T,10)+k}, v{acc(T,0)+2*k}, v{acc(T,0)+2*k+1}")
        for k in range(2): B(f"v_cvt_pk_bf16_f32 v{acc(T,4)+k}, v{acc(T,4)+2*k}, v{acc(T,4)+2*k+1}")
        return B.l
    def proj(T):
        B = Buf(); proj_mfma(B, acc(T, 5), acc(T, 10), acc(T, 4)); return B.l
    vw = []
    for T in range(4):
        vw += [f"ds_write_b64 v{VA+c}, {v(acc(T,5+c),2)} offset:{T*16*V_P}" for c in range(5)] + [f"ds_write_b64 v242, v[244:245] offset:{T*16*V_P + 40}"]
    weave(A, kcvt(0) + kcvt(1) + kcvt(2), vw, 0, 1)
    for x in proj(0) + kcvt(3): A(x)
    for T in range(4):
        B = Buf()
        B(f"v_mov_b32 v{acc(T,11)}, v{252+T}")
        softmax_inplace(B, acc(T, 5), acc(T, 0), acc(T, 10), v(acc(T, 11), 2))
        side = (proj(T + 1) if T < 3 else []) + ([f"ds_write_b128 v251, {v(acc(T-1,5)+4*k,4)} offset:{(T-1)*16*PHI_P + 16*k}" for k in range(5)] if T else [])
        if T in (1, 2, 3) and "nodry" not in EXP:
            pass
        if T == 0: prof_stamp(A, 1)
        weave(A, B.l, [] if "noside" in EXP else side, 4, 6)
        if T == 1: prof_stamp(A, 13)
        if T == 3: prof_stamp(A, 2)
    for k in range(5): A(f"ds_write_b128 v251, {v(acc(3,5)+4*k,4)} offset:{3*16*PHI_P + 16*k}")
    A(f"""
    v_lshrrev_b32 v241, 5, v{VL}
    v_lshlrev_b32 v241, 3, v241          ; 8*(G>>1)
    v_bfe_u32 v242, v{VL}, 2, 2
    v_add_u32 v241, v241, v242
    v_bfe_u32 v242, v{VL}, 4, 1
    v_lshlrev_b32 v242, 5, v242
    v_and_b32 v243, 3, v{VL}
    v_lshl_add_u32 v242, v243, 3, v242   ; 32*(G&1)+8c
    v_mul_u32_u24 v237, {PHI_P}, v241
    v_add_u32 v237, v237, v242
    s_mul_i32 s51, s3, 80
    v_add_u32 v237, s51, v237
    v_add_u32 v239, {128*PHI_P}, v237
    v_mul_u32_u24 v238, {V_P}, v241
    v_add_u32 v238, v238, v242
    s_mul_i32 s51, s3, 48
    s_add_u32 s51, s51, {V_BASE}
    v_add_u32 v238, s51, v238
    v_and_b32 v241, 31, v{VL}
    v_lshrrev_b32 v242, 5, v{VL}
    v_lshlrev_b32 v242, 3, v242
    v_mul_u32_u24 v241, 80, v241
    s_lshl_b32 s51, s3, 11
    s_add_u32 s51, s51, {KVB}
    v_add3_u32 v242, v241, v242, s51
    v_add_u32 v241, s51, v249
    s_waitcnt lgkmcnt(0)
    """)
    lds_inc(A, W_K2, 246, 247); lds_spin(A, "K2S", W_K2, "4", 246, 247)
    prof_stamp(A, 4, True)
    q = Q(A, "lgkmcnt", 15)
    def rd(ks):
        b = 32 + 12 * (ks % 3)
        pa, po = (237, ks * 16 * PHI_P) if ks < 8 else (239, (ks - 8) * 16 * PHI_P)
        for h in range(2):
            A(f"ds_read_b64_tr_b16 {v(b+2*h,2)}, v238 offset:{ks*16*V_P + h*4*V_P}"); q.issue(ks)
        for nt in range(2):
            for h in range(2):
                A(f"ds_read_b64_tr_b16 {v(b+4+4*nt+2*h,2)}, v{pa} offset:{po + nt*64 + h*4*PHI_P}"); q.issue(ks)
    rd(0); rd(1)
    for ks in range(16):
        q.wait({ks})
        if ks + 2 < 16: rd(ks + 2)
        b = 32 + 12 * (ks % 3)
        for nt in range(2):
            A(f"v_mfma_f32_32x32x16_bf16 {v(16*nt,16)}, {v(b+4+4*nt,4)}, {v(b,4)}, {'0' if ks==0 else v(16*nt,16)}")
    prof_stamp(A, 5)
    lds_spin(A, "KCW", W_CW, "1", 246, 247)
    A("s_mov_b32 exec_lo, 0xffffff\ns_mov_b32 exec_hi, 0xffffff")
    for gi in range(5):
        r = 4 * gi
        A(f"v_cvt_pk_bf16_f32 v{r}, v{r}, v{r+1}\nv_cvt_pk_bf16_f32 v{r+1}, v{r+2}, v{r+3}\nds_write_b64 v242, {v(r,2)} offset:{16*gi}")
    A(f"""s_mov_b64 exec, -1
    s_waitcnt lgkmcnt(0)
    ds_read_b128 v[24:27], v241
    ds_read_b128 v[28:31], v241 offset:1024
    s_waitcnt lgkmcnt(1)
    buffer_store_dwordx4 v[24:27], v249, s[20:23], s57 offen sc1
    s_waitcnt lgkmcnt(0)
    buffer_store_dwordx4 v[28:31], v249, s[20:23], s57 offen offset:1024 sc1""")

def k1_epi_q(A):
    epi_common(A, 10)
    normalize(A, 10, range(10))
    A(f"v_mov_b32 v250, v249\nv_add_u32 v251, {2*XWAVE}, v249\nv_lshlrev_b32 v247, 3, v{VL}")
    for hgi in range(2):
        read_wpf(A, 15 * hgi)
        b2 = [242, 244, 252, 254]
        for T in range(4):
            src = acc(T, 5 * hgi)
            for k in range(8): A(f"v_cvt_pk_bf16_f32 v{acc(T,10)+k}, v{src+2*k}, v{src+2*k+1}")
            for k in range(2): A(f"v_cvt_pk_bf16_f32 v{b2[T]+k}, v{src+16+2*k}, v{src+17+2*k}")
        A("s_waitcnt lgkmcnt(0)")
        if hgi == 1: lds_inc(A, W_Q, 250, 251)
        def outp(T):
            src = acc(T, 5 * hgi); B = Buf()
            for k in range(10): B(f"v_cvt_pk_bf16_f32 v{src+k}, v{src+2*k}, v{src+2*k+1}")
            B(f"s_add_u32 s51, s58, {(hgi*4+T)*2560}")
            B(f"buffer_store_dwordx4 {v(src,4)}, v249, s[20:23], s51 offen {HST}")
            B(f"buffer_store_dwordx4 {v(src+4,4)}, v249, s[20:23], s51 offen offset:1024 {HST}")
            B(f"buffer_store_dwordx2 {v(src+8,2)}, v247, s[20:23], s51 offen offset:2048 {HST}")
            return B.l
        for T in range(4):
            M = Buf(); proj_mfma(M, acc(T, 5 * hgi), acc(T, 10), b2[T])
            weave(A, M.l, ["\n".join(outp(T - 1)[i:i+2]) for i in range(0, 14, 2)] if T else [], 7, 1)
        for x in outp(3): A(x)
    prof_stamp(A, 5, True)

def type_decode(A):
    A("""s_lshl_b32 s35, s30, 1
    s_add_u32 s35, s35, s31
    s_add_u32 s29, s35, 18
    s_add_u32 s36, s30, 26
    s_cmp_eq_u32 s31, 2
    s_cselect_b32 s34, 2, 1
    s_cselect_b32 s35, s30, s35
    s_cselect_b32 s29, s36, s29
    s_mul_i32 s36, s30, 5
    s_lshl_b32 s37, s30, 2
    s_add_u32 s37, s37, 2
    s_min_u32 s36, s36, s37
    s_add_u32 s36, s36, s31
    s_sub_u32 s36, s36, 3
    s_cmp_ge_u32 s31, 3
    s_cselect_b32 s34, 0, s34
    s_cselect_b32 s35, s36, s35
    s_cselect_b32 s29, s36, s29""")

def ptr_setup(A):
    A("""s_waitcnt lgkmcnt(0)
    s_mov_b32 s16, s4
    s_mov_b32 s17, s5
    s_mov_b32 s20, s14
    s_mov_b32 s21, s15
    s_mov_b32 s14, s12
    s_mov_b32 s15, s13""")

def gen_k1():
    A = Asm()
    A.label("K1_start")
    prof_start(A)
    A(f"""
    s_load_dwordx4 s[4:7], s[0:1], 0     ; x, wqkv
    s_load_dwordx4 s[8:11], s[0:1], 40
    s_load_dwordx4 s[12:15], s[0:1], 72
    s_cmp_ge_u32 s2, 256
    s_cbranch_scc1 K1_end
    v_lshrrev_b32 v1, 6, v0
    v_and_b32 v0, 63, v0
    v_readfirstlane_b32 s3, v1
    s_and_b32 s30, s2, 7                 ; xcd
    s_lshr_b32 s31, s2, 3                ; j
    s_lshr_b32 s32, s30, 2
    s_lshl_b32 s32, s32, 2
    s_and_b32 s33, s31, 3
    s_add_u32 s32, s32, s33              ; rb
    s_and_b32 s30, s30, 3                ; cg
    s_lshr_b32 s31, s31, 2               ; cslot
    s_mov_b32 s78, 0                     ; first k stage
    v_lshrrev_b32 v7, 3, v0              ; r
    v_and_b32 v8, 7, v0                  ; p
    v_lshrrev_b32 v9, 1, v7
    v_xor_b32 v8, v8, v9
    v_mul_u32_u24 v7, 1280, v7
    v_lshl_add_u32 v2, v8, 4, v7
    v_xor_b32 v3, 64, v2
    s_mov_b32 s18, 2621440
    s_mov_b32 s19, 0x20000
    s_mov_b32 s22, {WS_SIZE}
    s_mov_b32 s23, 0x20000
    s_lshl_b32 s28, s30, 3
    s_add_u32 s28, s28, s31
    s_cmp_ge_u32 s28, 23
    s_cselect_b32 s34, 7, 0
    s_and_b32 s34, s34, s31
    s_cmp_eq_u32 s34, 7
    s_cbranch_scc1 K1_spare
    s_cmp_lt_u32 s3, 4
    s_cbranch_scc1 K1_compute
    s_sub_u32 s41, s3, 4
    s_lshl_b32 s40, s32, 8
    s_lshl_b32 s36, s41, 6
    s_add_u32 s40, s40, s36
    s_mul_i32 s40, s40, 1280
    s_mul_i32 s43, s41, {XWAVE}
    """)
    ptr_setup(A)
    prof_stamp(A, 0)
    for e in range(8):
        A(f"s_add_u32 s48, s40, {e*8*1280}\ns_add_u32 m0, s43, {e*1024}\ns_nop 0\nbuffer_load_dwordx4 v{2+(e&1)}, s[16:19], s48 offen {NTX} lds")
    type_decode(A)
    A(f"""
    s_lshr_b32 s58, s41, 1               ; half
    s_and_b32 s59, s41, 1
    s_mov_b32 s26, {640*3840}
    s_mov_b32 s60, 3840
    s_mov_b32 s61, 20
    s_mov_b32 s38, {(1<<16)//20+1}
    s_mul_i32 s37, s35, 160
    s_add_u32 s37, s37, 1280
    s_mul_i32 s39, s35, 320
    s_cmp_eq_u32 s34, 2
    s_cselect_b32 s37, s39, s37
    s_cselect_b32 s39, 0, {1280-160}
    s_mul_i32 s62, s41, 3
    s_lshl_b32 s57, s41, 1
    s_add_u32 s57, s57, 2
    s_min_u32 s62, s62, s57
    s_mov_b32 s63, 9
    s_mov_b32 s64, 0
    s_mov_b32 s65, 10240
    s_cmp_eq_u32 s34, 0
    s_cbranch_scc0 K1_lp_go
    s_mov_b32 s26, {640*3456}
    s_mov_b32 s60, 3456
    s_mov_b32 s61, 12
    s_mov_b32 s38, {(1<<16)//12+1}
    s_mul_i32 s37, s35, 192
    s_mov_b32 s39, 0
    s_mul_i32 s62, s59, 3
    s_mov_b32 s63, 5
    s_mul_i32 s64, s58, 6144
    s_mov_b32 s65, 12288
    """)
    A.label("K1_lp_go")
    A("""s_mov_b32 s27, 0x20000
    s_lshl_b32 s42, s60, 5
    v_mov_b32 v10, s39
    s_cmp_lt_u32 s41, 2
    s_cselect_b32 s24, s8, s10
    s_cselect_b32 s25, s9, s11
    s_cmp_eq_u32 s34, 0
    s_cselect_b32 s24, s24, s6
    s_cselect_b32 s25, s25, s7""")
    for e in range(3):
        A(f"""s_add_u32 s36, s62, {e}
        s_min_u32 s36, s36, s63
        s_lshl_b32 s{44+e}, s36, 10
        s_add_u32 s{44+e}, s{44+e}, s64
        s_lshl_b32 s36, s36, 6
        v_add_u32 v7, s36, v0
        v_mul_u32_u24 v8, s38, v7
        v_lshrrev_b32 v8, 16, v8
        v_mul_u32_u24 v9, s61, v8
        v_sub_u32 v9, v7, v9
        v_bfe_u32 v11, v8, 3, 1
        v_lshlrev_b32 v11, 1, v11
        v_xor_b32 v9, v9, v11
        v_mul_u32_u24 v8, s60, v8
        v_lshl_add_u32 v8, v9, 4, v8
        v_cmp_le_u32 vcc, 10, v9
        v_cndmask_b32 v9, 0, v10, vcc
        v_add3_u32 v{4+e}, v8, v9, s37
        s_add_u32 m0, s{44+e}, {WBASE}
        s_nop 0
        buffer_load_dwordx4 v{4+e}, s[24:27], 0 offen {NTW} lds""")
    for e in range(3):
        A(f"s_add_u32 s36, s{44+e}, s65\ns_add_u32 m0, s36, {WBASE}\ns_nop 0\nbuffer_load_dwordx4 v{4+e}, s[24:27], s42 offen {NTW} lds")
    if "cpf" in EXP: A("s_barrier")
    A("s_load_dwordx2 s[70:71], s[0:1], 24\ns_load_dwordx2 s[72:73], s[0:1], 56")
    prof_stamp(A, 1)
    A(f"""
    s_lshl_b32 s66, s32, 8
    s_lshl_b32 s36, s28, 3
    s_add_u32 s66, s66, s36
    s_lshl_b32 s36, s41, 1
    s_add_u32 s66, s66, s36
    s_lshl_b32 s56, s32, 4
    s_lshl_b32 s57, s59, 3
    s_add_u32 s56, s56, s57
    s_lshl_b32 s52, s29, 4
    s_mul_i32 s53, s52, 768
    s_mul_i32 s57, s41, 192
    s_add_u32 s53, s53, s57
    s_add_u32 s53, s53, {WS_CSP}
    s_lshl_b32 s57, s32, 1
    s_add_u32 s52, s52, s57
    s_add_u32 s52, s52, s59
    s_mul_i32 s52, s52, 768
    s_add_u32 s52, s52, {WS_CSP}
    v_lshrrev_b32 v12, 4, v0
    v_and_b32 v13, 15, v0
    v_mov_b32 v14, 0x7ffffff0
    v_mul_lo_u32 v7, v12, s60
    v_lshl_add_u32 v7, v13, 4, v7
    s_mul_i32 s50, s56, s60
    s_add_u32 s50, s50, s37
    s_lshl_b32 s51, s60, 2
    s_cmp_eq_u32 s34, 0
    s_cbranch_scc0 K1_l_qkv
    v_cmp_gt_u32 vcc, 12, v13
    v_cndmask_b32 v7, v14, v7, vcc
    s_mul_i32 s57, s58, 384
    s_add_u32 s52, s52, s57
    """)
    k1_loader(A, True, 3, "LG")
    A.label("K1_l_qkv")
    A(f"""
    v_cmp_gt_u32 vcc, 10, v13
    v_cndmask_b32 v7, v14, v7, vcc
    s_add_u32 s39, s39, 160
    s_mul_i32 s39, s39, s58
    s_add_u32 s50, s50, s39
    s_mul_i32 s57, s58, 320
    s_add_u32 s52, s52, s57
    s_mul_i32 s54, s35, 15
    s_mov_b32 s55, 15
    s_sub_u32 s57, s34, 1
    s_lshl_b32 s54, s54, s57
    s_lshl_b32 s55, s55, s57
    s_lshl_b32 s57, s41, 3
    s_add_u32 s54, s54, s57
    s_lshl_b32 s54, s54, 10
    s_add_u32 s54, s54, {WS_WPF}
    s_max_u32 s55, s55, s57
    s_sub_u32 s55, s55, s57
    s_cmp_ge_u32 s41, 2
    s_cbranch_scc1 K1_l_qkv2
    """)
    if "kvlight" in EXP:
        A("s_cmp_eq_u32 s34, 1\ns_cbranch_scc1 K1_l_kv")
    k1_loader(A, False, 3, "LA")
    A.label("K1_l_qkv2")
    if "kvlight" in EXP:
        A("s_cmp_eq_u32 s34, 1\ns_cbranch_scc1 K1_l_kv2")
    k1_loader(A, False, 2, "LB")
    if "kvlight" in EXP:
        A.label("K1_l_kv"); k1_loader(A, False, 3, "LC", True)
        A.label("K1_l_kv2"); k1_loader(A, False, 2, "LD", True)
    A.label("K1_spare")
    ptr_setup(A)
    k1_spare(A)
    A.label("K1_compute")
    type_decode(A)
    ptr_setup(A)
    A("s_mov_b32 s79, 0")
    if "cpf" in EXP:
        A(f"""s_mul_i32 s36, s32, 30
        s_add_u32 s36, s36, s29              ; rank 0..239
        s_cmp_eq_u32 s3, 0
        s_cselect_b32 s40, s4, s6
        s_cselect_b32 s41, s5, s7
        s_mov_b32 s42, {640*3840}
        s_cselect_b32 s42, 2621440, s42
        s_cselect_b32 s44, 4, 30             ; lines per row in the first batch
        s_cselect_b32 s45, {(1<<20)//4+1}, {(1<<20)//30+1}
        s_cselect_b32 s46, 1280, 3840
        s_cselect_b32 s47, 128, {64*3840}    ; start of stage 1
        s_cselect_b32 s48, 35, 32            ; lanes used
        s_cmp_lt_u32 s3, 2
        s_cbranch_scc1 CPF_a
        s_cmp_eq_u32 s3, 2
        s_cselect_b32 s40, s8, s10
        s_cselect_b32 s41, s9, s11
        s_mov_b32 s42, {640*3456}
        s_mov_b32 s44, 27
        s_mov_b32 s45, {(1<<20)//27+1}
        s_mov_b32 s46, 3456
        s_mov_b32 s47, {64*3456}
        s_mov_b32 s48, 29""".replace(f"s_cselect_b32 s45, {(1<<20)//4+1}, {(1<<20)//30+1}", f"s_mov_b32 s45, {(1<<20)//30+1}\n        s_cselect_b32 s45, {(1<<20)//4+1}, s45").replace("s_cselect_b32 s46, 1280, 3840", "s_mov_b32 s46, 3840\n        s_cselect_b32 s46, 1280, s46").replace(f"s_cselect_b32 s47, 128, {64*3840}", f"s_mov_b32 s47, {64*3840}\n        s_cselect_b32 s47, 128, s47"))
        A.label("CPF_a")
        def batch(vd):
            A(f"""s_mul_i32 s49, s36, s48
            v_min_u32 v{vd}, s48, v0
            v_add_u32 v{vd}, s49, v{vd}
            v_mul_hi_u32 v20, v{vd}, s50
            v_mul_lo_u32 v21, v20, s44
            v_sub_u32 v21, v{vd}, v21
            v_mul_lo_u32 v20, v20, s46
            v_lshl_add_u32 v{vd}, v21, 7, v20""")
        A("s_mov_b32 s43, 0x20000\ns_lshl_b32 s50, s45, 12")
        batch(16)
        A(f"""s_cmp_eq_u32 s3, 0
        s_cselect_b32 s44, 5, s44
        s_mov_b32 s51, {((1<<20)//5+1)<<12}
        s_cselect_b32 s50, s51, s50
        s_mul_i32 s51, s47, 5
        s_mul_i32 s48, s48, 5
        s_add_u32 s48, s48, 3
        s_lshr_b32 s48, s48, 2""")
        batch(253)
        A(f"""s_mov_b32 s44, s51
        s_barrier
        buffer_load_dword v251, v16, s[40:43], s47 offen""")
    if "cx1" in EXP:
        A(f"""s_lshl_b32 s40, s32, 8
        s_lshl_b32 s36, s3, 6
        s_add_u32 s40, s40, s36
        s_mul_i32 s40, s40, 1280
        s_add_u32 s47, s78, 1
        s_sub_u32 s48, s47, 10
        s_cselect_b32 s47, s47, s48
        s_lshl_b32 s47, s47, 7
        s_add_u32 s47, s47, s40
        s_mul_i32 s43, s3, {XWAVE}
        s_sleep {CXSLEEP}""")
        for e in range(8):
            A(f"s_add_u32 s48, s47, {e*8*1280}\ns_add_u32 m0, s43, {XSLOT + e*1024}\ns_nop 0\nbuffer_load_dwordx4 v{2+(e&1)}, s[16:19], s48 offen {NTX} lds")
    A(f"""
    s_setprio 2
    v_mov_b32 v{VL}, v0
    v_and_b32 v1, 15, v0                 ; t
    v_lshrrev_b32 v2, 4, v0              ; g
    v_lshrrev_b32 v3, 1, v1              ; (t>>1)
    s_mul_i32 s36, s3, {XWAVE}
    v_lshlrev_b32 v4, 7, v1
    v_add_u32 v4, s36, v4
    v_xor_b32 v5, v2, v3
    v_lshl_add_u32 v{VX}, v5, 4, v4
    v_xor_b32 v{VX+1}, 64, v{VX}
    s_cmp_eq_u32 s34, 0
    s_mov_b32 s36, 320
    s_cselect_b32 s36, 192, s36
    v_lshlrev_b32 v4, 3, v2              ; 8g
    v_bfe_u32 v5, v0, 2, 2
    v_add_u32 v4, v4, v5
    v_mul_lo_u32 v4, v4, s36
    v_and_b32 v5, 3, v0
    v_lshl_add_u32 v4, v5, 3, v4
    v_add_u32 v4, {WBASE}, v4
    v_and_b32 v5, 1, v2
    v_lshlrev_b32 v5, 5, v5
    v_add_u32 v{VW}, v4, v5
    v_sub_u32 v{VW+1}, v4, v5
    s_lshl_b32 s37, s32, 2
    s_add_u32 s37, s37, s3               ; rb64
    s_lshl_b32 s52, s29, 4
    s_lshl_b32 s53, s32, 1
    s_add_u32 s52, s52, s53
    s_and_b32 s53, s3, 1
    s_add_u32 s52, s52, s53
    s_mul_i32 s52, s52, 768
    s_lshr_b32 s53, s3, 1
    s_mov_b32 s54, 384
    s_mul_i32 s53, s53, s54
    s_add_u32 s52, s52, s53
    s_add_u32 s52, s52, {WS_CSP}
    s_lshl_b32 s53, s32, 5
    s_add_u32 s53, s53, s28
    s_lshl_b32 s53, s53, 7
    s_add_u32 s53, s53, {WS_ST}
    s_cmp_lg_u32 s3, 0
    s_cselect_b32 s53, {OOB}, s53
    v_lshlrev_b32 v250, 4, v0
    s_mul_i32 s55, s3, 384
    s_add_u32 s55, s55, {L_ST+128}
    v_add_u32 v249, s55, v250
    v_mov_b32 v6, 0x7ffffff0
    v_cmp_gt_u32 vcc, s54, v250
    v_cndmask_b32 v250, v6, v250, vcc
    """)
    A(f"""
    s_cmp_eq_u32 s34, 0
    s_cbranch_scc0 K1_c_qkv
    s_mul_i32 s50, s37, 74
    s_mul_i32 s51, s35, 3
    s_add_u32 s50, s50, s51
    s_lshl_b32 s50, s50, 12
    s_add_u32 s50, s50, {WS_AF}
    """)
    k1_mainloop(A, True)
    A.label("K1_compute_end")
    k1_epi_gu(A)
    if "hsent" in EXP: A(f"s_mov_b32 s57, {OOB}\nv_mov_b32 v0, v{VL}")
    else: A(f"s_lshl_b32 s57, s37, 7\ns_add_u32 s57, s57, {F_CH}\ns_mov_b32 s56, 17\nv_mov_b32 v0, v{VL}")
    A("s_branch P2_stream")
    A.label("K1_c_qkv")
    A(f"""s_lshl_b32 s57, s35, 3
    s_add_u32 s57, s57, s32
    s_lshl_b32 s57, s57, 2
    s_add_u32 s57, s57, s3
    s_lshl_b32 s57, s57, 11
    s_add_u32 s57, s57, {WS_KVP}""")
    if "nodry" not in EXP:
        A("s_cmp_eq_u32 s34, 2\ns_cbranch_scc1 DK_skip")
        dry_run(A, ["DK0", "DK0", "DK0", "DK0"], "DK_ret")
        A.label("DK_skip")
    k1_mainloop(A, False)
    A(f"""
    s_cmp_eq_u32 s34, 2
    s_cbranch_scc1 K1_c_q
    """)
    k1_epi_kv(A)
    A(f"v_mov_b32 v0, v{VL}\ns_branch P2_aux")
    A.label("K1_c_q")
    A(f"""
    s_lshl_b32 s58, s37, 3
    s_lshl_b32 s51, s35, 1
    s_add_u32 s58, s58, s51
    s_mul_i32 s58, s58, {4*2560}
    s_add_u32 s58, s58, {WS_PQ}
    """)
    k1_epi_q(A)
    A(f"s_lshl_b32 s57, s37, 7\ns_add_u32 s57, s57, {F_CP}\ns_mov_b32 s56, 3\nv_mov_b32 v0, v{VL}")
    phase2(A)
    A.label("K1_end")
    A("s_endpgm")
    return A

def p2_flag(A, tag):
    A(f"s_cmp_ge_u32 s57, {OOB}\ns_cbranch_scc1 {tag}_noflag\ns_waitcnt vmcnt(0)")
    flag_add(A, 57, 56, 4, tag + "_notlast")
    A.label(f"{tag}_noflag")
    prof_stamp(A, 6)
def p2_pre(A, first):
    p2_map(A, 74, 75)
    A(f"""
    s_and_b32 s76, s3, 3
    {f"s_mul_i32 s67, s76, 5" if first else "s_mov_b32 s67, 0"}
    s_add_u32 s67, s67, {first}
    s_mul_i32 s77, s74, 74
    s_add_u32 s77, s77, s67
    s_lshl_b32 s77, s77, 12
    s_add_u32 s77, s77, {WS_AF}
    s_mul_i32 s78, s75, 74
    s_add_u32 s78, s78, s67
    s_mul_i32 s78, s78, 5120
    s_add_u32 s78, s78, {WS_WF}
    """)
    if "hsent" in EXP: A("s_mul_i32 s79, s75, 9\ns_lshr_b32 s79, s79, 2")
    else:
        A(f"""s_and_b32 s67, s74, 3
        s_mul_i32 s67, s67, {ROTR}
        s_mul_i32 s79, s75, {ROTC}
        s_add_u32 s79, s79, s67
        s_lshr_b32 s79, s79, 2
        s_sub_u32 s67, s79, 54
        s_cselect_b32 s79, s79, s67
        s_add_u32 s79, s79, s76
        s_sub_u32 s67, s79, 54
        s_cselect_b32 s79, s79, s67""")
def p2_regs(A):
    A("s_mov_b32 s32, s74\ns_mov_b32 s33, s75\ns_mov_b32 s35, s76\ns_mov_b32 s40, s77\ns_mov_b32 s41, s78\ns_mov_b32 s58, s79\nv_lshlrev_b32 v2, 4, v0\nv_add_u32 v3, 4096, v2")
def cw_wait(A, tag):
    leader_wait(A, tag, "s_cmp_eq_u32 s3, 4", "v_and_b32 v4, 1, v0\nv_lshlrev_b32 v4, 6, v4", "global_load_dword v5, v4, s[14:15] offset:132 sc1", 5, "1", W_CW, 4)
WOB = 140
def wo_loads(A, rng, q=None):
    for i in rng:
        A(f"s_add_u32 s67, s78, {i*5120}")
        for ct in range(4): A(f"buffer_load_dwordx4 {v(WOB+20*i+4*ct,4)}, v2, s[20:23], s67 offen offset:{ct*1024} {BSC}")
        A(f"buffer_load_dwordx4 {v(WOB+20*i+16,4)}, v3, s[20:23], s67 offen {BSC}")
        if q:
            for _ in range(5): q.issue("WO")
def rot_off(A, dst, base, k, stride):
    if "hsent" not in EXP:
        A(f"""s_add_u32 s59, s58, {4*k}
        s_sub_u32 s{dst}, s59, 54
        s_cselect_b32 s59, s59, s{dst}
        s_mul_i32 s{dst}, s59, {stride}
        s_add_u32 s{dst}, s{dst}, s{base}""")
        if k == 13: A(f"s_cmp_lt_u32 s35, 2\ns_cselect_b32 s{dst}, s{dst}, {OOB}")
        return
    A(f"""s_add_u32 s59, s35, {4*k}
    s_mul_i32 s63, s59, 57
    s_lshr_b32 s63, s63, 10
    s_mul_i32 s{dst}, s63, 18
    s_sub_u32 s59, s59, s{dst}
    s_add_u32 s59, s59, s58
    s_sub_u32 s{dst}, s59, 18
    s_cselect_b32 s59, s59, s{dst}
    s_mul_i32 s59, s59, 3
    s_add_u32 s59, s59, s63
    s_mul_i32 s{dst}, s59, {stride}
    s_add_u32 s{dst}, s{dst}, s{base}""")
    if k == 13: A(f"s_cmp_lt_u32 s63, 3\ns_cselect_b32 s{dst}, s{dst}, {OOB}")

def skew_addr(A, d, t0, t1, base):
    A(f"v_lshrrev_b32 v{t0}, 5, v0\nv_add_u32 v{t0}, v{t0}, v0\nv_lshrrev_b32 v{t1}, 4, v0\nv_lshlrev_b32 v{t1}, 8, v{t1}\nv_add_u32 v{t1}, {base}, v{t1}")
    for ct in range(5): A(f"v_add_u32 v{d+ct}, {2*ct}, v{t0}\nv_and_b32 v{d+ct}, 15, v{d+ct}\nv_lshl_add_u32 v{d+ct}, v{d+ct}, 4, v{t1}")

def p2_aux(A):
    A.label("P2_aux")
    p2_pre(A, 54); p2_regs(A); cw_wait(A, "PAW")
    A("s_cmp_eq_u32 s34, 1\ns_cbranch_scc1 P2_a_2\ns_cmp_eq_u32 s34, 2\ns_cbranch_scc0 P2_a_noq")
    lds_spin(A, "AQ", W_Q, "4", 4, 5)
    A.label("P2_a_noq")
    A(f"s_mul_i32 s45, s33, {74*5120}\ns_add_u32 s45, s45, {WS_WF}\ns_mul_i32 s44, s35, 5120")
    for i in range(NL):
        rot_off(A, 43, 45, 4 + i, 5120)
        if "stage" in EXP and i == NSLOW: lds_spin(A, "AE", W_ED, "4", 4, 5)
        A(f"s_waitcnt vmcnt({(THR if i < NSLOW else 30) if 'stage' in EXP else THR})\ns_add_u32 m0, s44, {i*20480}\ns_nop 0")
        for ct in range(4): A(f"buffer_load_dwordx4 v2, s[20:23], s43 offen offset:{ct*1024} {BSC} lds")
        A(f"s_add_u32 m0, s44, {i*20480+4096}\ns_nop 0\nbuffer_load_dwordx4 v3, s[20:23], s43 offen {BSC} lds")
    wo_loads(A, range(1, 3))
    A.label("P2_a_2")
    A(f"s_setprio {0 if 'auxlo' in EXP else 3}")
    prof_stamp(A, 7)
    A(f"""s_cmp_eq_u32 s34, 1
    s_cbranch_scc1 P2_a_3
    s_lshr_b32 s36, s2, 5
    s_cmp_ge_u32 s36, 6
    s_cselect_b32 s65, 1, 0
    s_sub_u32 s64, s32, 1
    s_and_b32 s64, s64, 3
    s_and_b32 s36, s32, 28
    s_or_b32 s64, s64, s36
    s_cmp_eq_u32 s65, 1
    s_cselect_b32 s64, s64, s32""")
    leader_wait(A, "AP", "s_cmp_eq_u32 s35, 0", f"""s_lshl_b32 s37, s32, 7
    s_lshl_b32 s38, s64, 7
    v_mov_b32 v4, s37
    v_writelane_b32 v4, s38, 0
    s_mov_b32 s37, {F_CP+F_RDY}""", "buffer_load_dword v5, v4, s[20:23], s37 offen sc1", 5, "1", W_CP, 4)
    def pq_load(rb, R):
        A(f"""s_lshl_b32 s36, s{rb}, 3
        s_add_u32 s36, s36, s33
        s_mul_i32 s36, s36, {4*2560}
        s_add_u32 s36, s36, {WS_PQ}
        buffer_load_dwordx4 {v(R,4)}, v6, s[20:23], s36 offen sc1
        buffer_load_dwordx4 {v(R+4,4)}, v6, s[20:23], s36 offen offset:1024 sc1
        buffer_load_dwordx2 {v(R+8,2)}, v7, s[20:23], s36 offen offset:2048 sc1""")
    def phi(R, OUT):
        for k in range(10): A(f"v_lshlrev_b32 v{40+2*k}, 16, v{R+k}\nv_and_b32 v{41+2*k}, 0xffff0000, v{R+k}")
        dual_softmax(A, 40, 60, OUT, 240, "s[52:53]")
    A("""v_lshrrev_b32 v20, 4, v0
    v_mul_u32_u24 v20, 2560, v20
    v_and_b32 v21, 15, v0
    s_lshl_b32 s36, s35, 4
    v_add_u32 v21, s36, v21
    v_lshl_add_u32 v6, v21, 4, v20
    v_lshl_add_u32 v7, v21, 3, v20""")
    pq_load(32, 8); pq_load(64, 24)
    A(f"""
    s_lshl_b32 s47, s33, 16
    s_lshl_b32 s38, s35, 11
    s_add_u32 s47, s47, s38
    s_add_u32 s47, s47, {WS_KVP}
    s_add_u32 s48, s47, 32768
    s_add_u32 s38, s38, {KVB}
    v_and_b32 v20, 15, v0
    v_lshrrev_b32 v21, 4, v0
    v_lshlrev_b32 v19, 4, v20
    v_lshl_add_u32 v19, v21, 3, v19
    v_add_u32 v19, s38, v19
    v_and_b32 v18, 3, v0
    v_mul_u32_u24 v18, 80, v18
    v_add_u32 v18, s38, v18
    s_mov_b32 s52, {LOG2E}
    s_mov_b32 s53, {LOG2E}
    """)
    o_offsets(A, 32, 33, 35, 44, 45, 46)
    o_offsets(A, 64, 33, 35, 60, 61, 62)
    wo_loads(A, range(3, 5))
    A("s_waitcnt vmcnt(10)")
    lds_inc(A, W_BL, 4, 5)
    phi(8, 100)
    A("s_cmp_eq_u32 s65, 0\ns_cbranch_scc1 P2_a_p1")
    phi(24, 120)
    A.label("P2_a_p1")
    A("""v_and_b32 v20, 15, v0
    v_lshrrev_b32 v21, 4, v0
    v_lshlrev_b32 v16, 4, v20
    v_lshl_add_u32 v16, v21, 13, v16
    v_mov_b32 v21, 0x7ffffff0
    v_cmp_gt_u32 vcc, 8, v20
    v_cndmask_b32 v17, v21, v16, vcc
    v_mov_b32 v21, 0x3f80
    v_mov_b32 v22, 0x3f800000""")
    for k in range(4):
        A(f"v_cmp_eq_u32 vcc, {2*k}, v20\nv_cndmask_b32 v{84+k}, 0, v21, vcc\nv_cmp_eq_u32 vcc, {2*k+1}, v20\nv_cndmask_b32 v{84+k}, v{84+k}, v22, vcc")
    o_lane(A, 6, 7)
    A("v_lshlrev_b32 v7, 3, v7\nv_sub_u32 v7, v6, v7")
    FBUF = [140, 144, 148, 152, 156, 240, 244, 248, 252, 8, 12]
    for b in FBUF:
        for i in range(4): A(f"v_mov_b32 v{b+i}, 0")
    if "p2touch" in EXP: code_warm(A, "AK_ct", "K1_end", "s35", 98, 99, "P2_stream", back=True)
    prof_stamp(A, 8)
    leader_wait(A, "AK", "s_cmp_eq_u32 s35, 0", f"s_lshl_b32 s37, s33, 16\ns_add_u32 s37, s37, {WS_KVP + 1916}\nv_and_b32 v4, 31, v0\nv_lshlrev_b32 v4, 11, v4", "buffer_load_dword v5, v4, s[20:23], s37 offen sc1", 5, "data", W_CK, 4)
    prof_stamp(A, 9)
    A(f"s_mov_b32 s68, {SPIN_MAX}")
    A.label("KV_rty")
    for g in range(8):
        for q_ in range(2):
            r = 20 + 8 * g + 4 * q_
            A(f"buffer_load_dwordx4 {v(r,4)}, v{16 if g < 7 else 17}, s[20:23], s{47+q_} offen offset:{g*256} sc1")
    for g in range(8):
        r = 20 + 8 * g
        A(f"s_waitcnt vmcnt({14-2*g})")
        A(f"v_max3_u32 v96, v{r}, v{r+1}, {'v96' if g else f'v{r+7}'}")
        for k in (2, 4) + ((6,) if g else ()): A(f"v_max3_u32 v96, v{r+k}, v{r+k+1}, v96")
        if not g: A(f"v_max_u32 v96, v{r+6}, v96")
        A(f"v_mfma_f32_16x16x32_bf16 {v(88+4*(g%2),4)}, v[84:87], {v(r,4)}, 0")
        A(f"v_mfma_f32_16x16x32_bf16 {v(88+4*(g%2),4)}, v[84:87], {v(r+4,4)}, {v(88+4*(g%2),4)}")
        def put(gg):
            p = 88 + 4 * (gg % 2); d = 20 + 8 * gg
            A(f"v_cvt_pk_bf16_f32 v{d}, v{p}, v{p+1}\nv_cvt_pk_bf16_f32 v{d+1}, v{p+2}, v{p+3}\ns_mov_b64 exec, 0xffffffff\nds_write_b64 v19, {v(d,2)} offset:{gg*256}\ns_mov_b64 exec, -1")
        if g: put(g - 1)
    put(7)
    A("v_cmp_eq_u32 vcc, -1, v96\ns_cbranch_vccz KV_ok\ns_sub_u32 s68, s68, 1\ns_cbranch_scc0 KV_rty")
    A.label("KV_ok")
    lds_inc(A, W_KVL, 4, 5)
    A("s_mov_b32 s50, 0x00f0000f\ns_mov_b32 s51, 0xf0000f00\ns_waitcnt lgkmcnt(0)")
    def slices(dual):
        q = Q(A, "lgkmcnt", 15)
        order = [5, 0, 1, 2, 3, 4]
        acc2 = [64, 68, 72, 76, 80, 84]
        seq = [(t, c) for t in order for c in range(5)]
        NB = len(FBUF)
        def rdA(lo, hi):
            A("s_mov_b64 exec, s[50:51]")
            for n in range(lo, min(hi, 30)):
                t, c = seq[n]
                A(f"ds_read_b128 {v(FBUF[n % NB],4)}, v18 offset:{t*320+c*16}"); q.issue(n)
            A("s_mov_b64 exec, -1")
        rdA(0, 10)
        for k, t in enumerate(order):
            for c in range(5):
                n = 5 * k + c
                q.wait({n})
                A(f"v_mfma_f32_16x16x32_bf16 {v(40+4*t,4)}, {v(FBUF[n % NB],4)}, {v(100+4*c,4)}, {'0' if c==0 else v(40+4*t,4)}")
                if dual: A(f"v_mfma_f32_16x16x32_bf16 {v(acc2[t],4)}, {v(FBUF[n % NB],4)}, {v(120+4*c,4)}, {'0' if c==0 else v(acc2[t],4)}")
            if 5 * k + 10 < 30: rdA(5 * k + 10, 5 * k + 15)
            if k == 2:
                A("v_add_f32 v60, 0x358637bd, v60\nv_rcp_f32 v60, v60")
                if dual: A("v_add_f32 v84, 0x358637bd, v84\nv_rcp_f32 v84, v84")
        for (ac, den, O, so) in [(40, 60, 20, 44)] + ([(64, 84, 30, 60)] if dual else []):
            for k in range(10):
                r = ac + 2 * k
                A(f"v_pk_mul_f32 {v(r,2)}, {v(r,2)}, {v(den,2)} op_sel_hi:[1,0]\nv_cvt_pk_bf16_f32 v{O+k}, v{r}, v{r+1}")
            A(f"""buffer_store_dwordx4 {v(O,4)}, v6, s[20:23], s{so} offen sc1
            buffer_store_dwordx4 {v(O+4,4)}, v6, s[20:23], s{so+1} offen sc1
            buffer_store_dwordx2 {v(O+8,2)}, v7, s[20:23], s{so+2} offen sc1""")
    A("s_cmp_eq_u32 s65, 0\ns_cbranch_scc1 P2_a_s1")
    slices(True)
    A("s_branch P2_a_4")
    A.label("P2_a_s1")
    slices(False)
    A("s_branch P2_a_4")
    A.label("P2_a_3")
    wo_loads(A, range(1, 5))
    lds_inc(A, W_KVS, 4, 5)
    A.label("P2_a_4")
    prof_stamp(A, 10)
    wo_loads(A, [0])
    leader_wait(A, "AO", "s_cmp_eq_u32 s35, 0", f"""s_mul_i32 s37, s32, {74*4096}
    s_add_u32 s37, s37, {WS_AF + 56*4096 + 3*1024 + 124}
    v_bfe_u32 v4, v0, 3, 2
    v_mul_u32_u24 v4, {5*4096}, v4
    v_bfe_u32 v5, v0, 2, 1
    v_lshl_add_u32 v4, v5, 9, v4
    v_and_b32 v5, 3, v0
    v_lshl_add_u32 v4, v5, 7, v4""", "buffer_load_dword v5, v4, s[20:23], s37 offen sc1", 5, "data", W_O, 4)
    prof_stamp(A, 6)
    A(f"s_mov_b32 s68, {SPIN_MAX}")
    qv = Q(A, "vmcnt", 63)
    def ld(i, model=True, E=A):
        E(f"s_add_u32 s42, s40, {((i+1)%5)*4096}")
        for T in range(4):
            r = 84 + 16 * (i % 3) + 4 * T
            if (i + 1) % 5 == 2:
                E(f"buffer_load_dwordx2 {v(r,2)}, v139, s[20:23], s42 offen offset:{T*1024} sc1\nbuffer_load_dwordx2 {v(r+2,2)}, v139, s[20:23], s42 offen offset:{T*1024+512} sc1")
                if model: qv.issue(i)
            else: E(f"buffer_load_dwordx4 {v(r,4)}, v2, s[20:23], s42 offen offset:{T*1024} sc1")
            if model: qv.issue(i)
    oo = [1, 2, 3, 4, 0]
    A("v_lshlrev_b32 v139, 3, v0")
    ld(0); ld(1); ld(2)
    A(f"s_mul_i32 s36, s35, 20480\ns_add_u32 s36, s36, {APART}")
    skew_addr(A, 134, 132, 133, "s36")
    for i in range(5):
        qv.wait({i})
        b = 84 + 16 * (i % 3)
        A(f"s_branch P2_chk{i}")
        A.label(f"P2_rty{i}")
        A(f"s_sub_u32 s68, s68, 1\ns_cbranch_scc1 P2_ok{i}\ns_sleep 2")
        ld(i, False)
        A("s_waitcnt vmcnt(0)")
        A.label(f"P2_chk{i}")
        A(f"v_max3_u32 v132, v{b}, v{b+1}, v{b+2}")
        for k in range(3, 15, 2): A(f"v_max3_u32 v132, v132, v{b+k}, v{b+k+1}")
        A(f"v_max_u32 v132, v132, v{b+15}\nv_cmp_eq_u32 vcc, -1, v132\ns_cbranch_vccnz P2_rty{i}")
        A.label(f"P2_ok{i}")
        if i == 0: prof_stamp(A, 11)
        S = Buf()
        if 1 <= i <= 2: ld(i + 2, True, S)
        M = [f"v_mfma_f32_16x16x32_bf16 {v(4+4*(T*5+ct),4)}, {v(WOB+20*oo[i]+4*ct,4)}, {v(b+4*T,4)}, {'0' if i==0 else v(4+4*(T*5+ct),4)}" for ct in range(5) for T in range(4)]
        weave(A, M, S.l, 0, 2)
    lds_spin(A, "AS", W_SD, "4", 132, 133)
    prof_stamp(A, 12)
    for t in range(20): A(f"ds_write_b128 v{134+t%5}, {v(4+4*t,4)} offset:{t*1024}")
    A("s_waitcnt lgkmcnt(0)")
    lds_inc(A, W_AP, 132, 133)
    endpgm(A, 1)

def p2_stream(A, nl, tag):
    AP, BP, NA = 84, 148, NAD
    isL = lambda k: 4 <= k < 4 + nl
    if nl == 0: bslot = {k: k % 5 for k in range(14)}
    else:
        bslot = {0: 0, 1: 1, 2: 2, 3: 3, 11: 0, 12: 1, 13: 2}
        for k in range(4, 11): bslot[k] = 4 - (k % 2)
    q = Q(A, "vmcnt", 63); ql = Q(A, "lgkmcnt", 15)
    def ldB(k, E=A):
        b = BP + 20 * bslot[k]
        rot_off(E, 43, 41, k, 5120)
        for ct in range(4): E(f"buffer_load_dwordx4 {v(b+4*ct,4)}, v2, s[20:23], s43 offen offset:{ct*1024} {BSC}"); q.issue(("B", k))
        E(f"buffer_load_dwordx4 {v(b+16,4)}, v3, s[20:23], s43 offen {BSC}"); q.issue(("B", k))
    def rdB(k, E=A):
        b = BP + 20 * bslot[k]; i = k - 4
        for ct in range(5): E(f"ds_read_b128 {v(b+4*ct,4)}, v{248+i//3} offset:{(i%3)*20480+ct*1024}"); ql.issue(k)
    def ldA(k, model=True, E=A):
        rot_off(E, 42, 40, k, 4096)
        for T in range(4):
            E(f"buffer_load_dwordx4 {v(AP+16*(k%4)+4*T,4)}, v2, s[20:23], s42 offen offset:{T*1024} sc1")
            if model: q.issue(("A", k))
    hsent = "hsent" in EXP
    early = nl == 0 or not hsent
    if early:
        for k in range(5 if nl == 0 else 4): ldB(k)
    else:
        A(f"s_cmp_eq_u32 s57, {OOB+4}\ns_cbranch_scc0 {tag}_nopp")
    if "p2touch" in EXP: code_warm(A, tag + "_ct", "K1_end", "s35", 254, 255, "P2_stream", back=True)
    prof_stamp(A, 8)
    if hsent:
        leader_wait(A, tag + "H", "s_cmp_eq_u32 s35, 0", f"v_min_u32 v4, 17, v0\nv_mul_u32_u24 v4, {3*4096}, v4\ns_add_u32 s36, s40, 4092", "buffer_load_dword v5, v4, s[20:23], s36 offen sc1", 5, "data", W_CH, 4)
    else:
        leader_wait(A, tag + "H", "s_cmp_eq_u32 s35, 0", f"s_lshl_b32 s36, s32, 7\ns_add_u32 s36, s36, {F_CH+F_RDY}\nv_mov_b32 v4, 0", "buffer_load_dword v5, v4, s[20:23], s36 offen sc1", 5, "1", W_CH, 4)
    if not early: A.label(f"{tag}_nopp")
    if nl and "hold" in EXP: lds_spin(A, tag + "K", W_KVL, "4", 4, 5)
    if "ahit" in EXP: A(f"s_mul_i32 s40, s33, {74*5120}\ns_add_u32 s40, s40, {WS_WF}")
    prof_stamp(A, 9)
    tick(A, None)
    for k in range(4):
        ldA(k)
        if not early: ldB(k)
    A(f"s_mov_b32 s68, {SPIN_MAX}")
    if nl:
        A(f"s_mul_i32 s36, s35, 5120\nv_add_u32 v248, s36, v2\nv_add_u32 v249, {3*20480}, v248\nv_add_u32 v250, {6*20480}, v248")
    for k in range(14):
        if nl and k == 3:
            lds_spin(A, tag + "L", W_BL, "4", 251, 252)
            A(f"s_mov_b32 s68, {SPIN_MAX}")
            rdB(4)
        tick(A, 0)
        q.wait({("A", k), ("B", k)})
        tick(A, 1)
        a_ = AP + 16 * (k % 4)
        if hsent:
            A(f"s_branch {tag}_chk{k}")
            A.label(f"{tag}_rty{k}")
            A(f"s_sub_u32 s68, s68, 1\ns_cbranch_scc1 {tag}_ok{k}\ns_sleep 3")
            ldA(k, False)
            A("s_waitcnt vmcnt(0)")
            A.label(f"{tag}_chk{k}")
            A(f"v_max3_u32 v253, v{a_}, v{a_+1}, v{a_+2}")
            for j in range(3, 15, 2): A(f"v_max3_u32 v253, v253, v{a_+j}, v{a_+j+1}")
            A(f"v_max_u32 v253, v253, v{a_+15}\nv_cmp_eq_u32 vcc, -1, v253\ns_cbranch_vccnz {tag}_rty{k}")
            A.label(f"{tag}_ok{k}")
        if k == 0: prof_stamp(A, 10)
        if isL(k): ql.wait({k})
        tick(A, 3)
        S = Buf()
        if isL(k + 1) and k >= 4: rdB(k + 1, S)
        if k >= 1 and k + 3 < 14: ldA(k + 3, True, S)
        if nl == 0 and k >= 1 and k + 4 < 14: ldB(k + 4, S)
        if nl and 1 <= k <= 3: ldB(10 + k, S)
        side, cur = [], []
        for x in S.l:
            cur.append(x)
            if x.startswith(("buffer_", "ds_")): side.append("\n".join(cur)); cur = []
        b = BP + 20 * bslot[k]
        M = [f"v_mfma_f32_16x16x32_bf16 {v(4+4*(T*5+ct),4)}, {v(b+4*ct,4)}, {v(a_+4*T,4)}, {'0' if k==0 else v(4+4*(T*5+ct),4)}" for ct in range(5) for T in range(4)]
        if "snold" in EXP: side = [x for x in side if "buffer_" not in x]
        if "snomf" in EXP and k: M = M[:1]
        weave(A, M, side, 0, 2 if len(side) > 5 else 4)
        tick(A, 2)

def phase2(A):
    A.label("P2_stream")
    A(f"s_load_dwordx2 s[6:7], s[0:1], 64\ns_setprio {2 if 'auxlo' in EXP else 0}")
    lds_inc(A, W_ED, 4, 5)
    p2_flag(A, "PS")
    p2_pre(A, 0); p2_regs(A); cw_wait(A, "PSW")
    A("s_waitcnt lgkmcnt(0)")
    srd(A, 24, 6, 2621440)
    prof_stamp(A, 7)
    A("s_cmp_eq_u32 s34, 1\ns_cbranch_scc1 P2_stream0")
    p2_stream(A, NL, "SA")
    A("s_branch P2_red")
    A.label("P2_stream0")
    if "nokvs" in EXP: A(f"s_mov_b32 s40, {OOB}\ns_mov_b32 s41, {OOB}")
    p2_stream(A, 0, "SB")
    lds_spin(A, "SK", W_KVS, "4", 251, 252)
    A.label("P2_red")
    prof_stamp(A, 11)
    A(f"""
    s_lshl_b32 s44, s32, 2
    s_add_u32 s44, s44, s35
    s_mul_i32 s44, s44, {16*1280}
    s_mul_i32 s45, s33, 160
    s_add_u32 s44, s44, s45
    v_mov_b32 v93, 0x7ffffff0
    """)
    for r in range(3):
        A(f"""v_add_u32 v90, {64*r}, v0
        v_mul_u32_u24 v91, 205, v90
        v_lshrrev_b32 v91, 11, v91           ; t
        v_mul_u32_u24 v92, 10, v91
        v_sub_u32 v92, v90, v92              ; c
        v_mul_u32_u24 v{84+r}, 1280, v91
        v_lshl_add_u32 v{84+r}, v92, 4, v{84+r}
        v_lshlrev_b32 v{87+r}, 9, v92
        v_add_u32 v91, v91, v92
        v_and_b32 v91, 15, v91
        v_lshl_add_u32 v{87+r}, v91, 4, v{87+r}""")
        if r == 2: A("v_cmp_gt_u32 vcc, 32, v0\nv_cndmask_b32 v86, v93, v86, vcc\nv_cndmask_b32 v89, 0, v89, vcc")
        A(f"buffer_load_dwordx4 {v(140+4*r,4)}, v{84+r}, s[16:19], s44 offen {NTR}")
    lds_inc(A, W_SD, 96, 97); lds_spin(A, "R1", W_SD, "4", 96, 97)
    prof_stamp(A, 4)
    for T in range(4):
        A(f"""s_sub_u32 s36, s35, {T+1}
        s_and_b32 s36, s36, 3
        s_cmp_eq_u32 s36, 3
        s_cbranch_scc1 R_own{T}
        s_add_u32 s36, s36, {3*T}
        s_mul_i32 s36, s36, 5120
        v_add_u32 v1, s36, v2""")
        for ct in range(5): A(f"ds_write_b128 v1, {v(4+4*(T*5+ct),4)} offset:{XCH+ct*1024}")
        A(f"s_branch R_nxt{T}")
        A.label(f"R_own{T}")
        for k in range(10): A(f"v_pk_mul_f32 {v(100+2*k,2)}, {v(4+20*T+2*k,2)}, 1.0 op_sel_hi:[1,0]")
        A.label(f"R_nxt{T}")
    A(f"""s_mul_i32 s36, s35, {3*5120}
    v_add_u32 v1, s36, v2
    s_mov_b32 s52, {NLOG2E}
    s_mov_b32 s53, {NLOG2E}
    s_mov_b32 s54, 1.0
    s_mov_b32 s55, 1.0
    s_waitcnt lgkmcnt(0)""")
    lds_inc(A, W_SX, 96, 97); lds_spin(A, "R2", W_SX, "4", 96, 97)
    prof_stamp(A, 7)
    for p in range(3):
        for ct in range(5): A(f"ds_read_b128 {v(4+20*p+4*ct,4)}, v1 offset:{XCH+p*5120+ct*1024}")
    A("s_waitcnt lgkmcnt(5)")
    for k in range(10): A(f"v_pk_add_f32 {v(4+2*k,2)}, {v(4+2*k,2)}, {v(24+2*k,2)}")
    A("s_waitcnt lgkmcnt(0)")
    for k in range(10): A(f"v_pk_add_f32 {v(100+2*k,2)}, {v(100+2*k,2)}, {v(44+2*k,2)}")
    for k in range(10): A(f"v_pk_add_f32 {v(100+2*k,2)}, {v(100+2*k,2)}, {v(4+2*k,2)}")
    for k in range(10): A(f"v_pk_mul_f32 {v(120+2*k,2)}, {v(100+2*k,2)}, s[52:53]")
    for i in range(20): A(f"v_exp_f32 v{120+i}, v{120+i}")
    for k in range(10): A(f"v_pk_add_f32 {v(120+2*k,2)}, {v(120+2*k,2)}, s[54:55]")
    for i in range(20): A(f"v_rcp_f32 v{120+i}, v{120+i}")
    for k in range(10): A(f"v_pk_mul_f32 {v(100+2*k,2)}, {v(100+2*k,2)}, {v(120+2*k,2)}")
    skew_addr(A, 124, 130, 131, "s36")
    for ct in range(5): A(f"ds_write_b128 v{124+ct}, {v(100+4*ct,4)} offset:{XCH+ct*1024}")
    A("s_waitcnt lgkmcnt(0)")
    for r in range(3):
        A(f"v_add_u32 v90, s36, v{87+r}\nds_read_b128 {v(100+8*r,4)}, v90 offset:{XCH}\nds_read_b128 {v(104+8*r,4)}, v90 offset:{XCH+256}")
    A(f"s_mul_i32 s36, s35, 5120\ns_add_u32 s36, s36, {APART}")
    for r in range(3): A(f"v_add_u32 v{87+r}, s36, v{87+r}\nv_add_u32 v{90+r}, {2*20480}, v{87+r}")
    prof_stamp(A, 8)
    A("s_waitcnt vmcnt(0)")
    for k in range(12): A(f"v_lshlrev_b32 v{152+2*k}, 16, v{140+k}\nv_and_b32 v{153+2*k}, 0xffff0000, v{140+k}")
    prof_stamp(A, 12)
    A("s_setprio 3")
    lds_spin(A, "R3", W_AP, "4", 96, 97)
    prof_stamp(A, 13)
    q = Q(A, "lgkmcnt", 15)
    def rds(r):
        for p in range(4):
            for h in range(2):
                A(f"ds_read_b128 {v([4,36,180][r]+8*p+4*h,4)}, v{(87 if p < 2 else 90)+r} offset:{(p%2)*20480+h*256}"); q.issue(r)
    rds(0)
    for r in range(3):
        q.wait({r})
        if r < 2: rds(r + 1)
        b = [4, 36, 180][r]
        for k in range(4):
            A(f"v_pk_add_f32 {v(b+2*k,2)}, {v(b+2*k,2)}, {v(b+8+2*k,2)}\nv_pk_add_f32 {v(b+16+2*k,2)}, {v(b+16+2*k,2)}, {v(b+24+2*k,2)}")
        for k in range(4): A(f"v_pk_add_f32 {v(b+2*k,2)}, {v(b+2*k,2)}, {v(b+16+2*k,2)}")
        for k in range(4): A(f"v_pk_fma_f32 {v(b+2*k,2)}, {v(b+2*k,2)}, {v(100+8*r+2*k,2)}, {v(152+8*r+2*k,2)}")
        for k in range(4): A(f"v_cvt_pk_bf16_f32 v{b+8+k}, v{b+2*k}, v{b+2*k+1}")
        A(f"buffer_store_dwordx4 {v(b+8,4)}, v{84+r}, s[24:27], s44 offen {OST}")
    endpgm(A, 1)
    p2_aux(A)

HEADER = open(f"cdna_kernels/{NAME}.s.ref").read().split("; Override launch")[0]

def build_single(A, aslist):
    n = NAME + "_kernel"
    t = HEADER
    t += f"; @launch kernel={n} grid=(256,1,1) block=(512,1,1) lds={K1_LDS}\n" if aslist else f"; @launch grid=(256,1,1) block=(512,1,1) lds={K1_LDS}\n"
    body = A.text()
    if "noalign" not in EXP:
        body, a_, b_ = align_pass(body); print("align: promoted", a_, "nops", b_)
    t += '.amdgcn_target "amdgcn-amd-amdhsa--gfx950"\n.text\n' + kernel_head(n) + body + "\n"
    t += '.section .rodata,"a"\n.p2align 6\n' + kernel_desc(n, 256, 100)
    return t

if __name__ == "__main__":
    if "--prof" in sys.argv: PROF = True; sys.argv.remove("--prof")
    aslist = "--list" in sys.argv or PROF
    if "--list" in sys.argv: sys.argv.remove("--list")
    for a_ in list(sys.argv):
        if a_.startswith("--thr="): THR = int(a_[6:]); sys.argv.remove(a_)
        if a_.startswith("--bsc="): BSC = a_[6:]; sys.argv.remove(a_)
        if a_.startswith("--aux="): AUXS = a_[6:]; sys.argv.remove(a_)
        if a_.startswith("--wsleep="): WSLEEP = int(a_[9:]); sys.argv.remove(a_)
        if a_.startswith("--na="): NAD = int(a_[5:]); sys.argv.remove(a_)
        if a_.startswith("--nslow="): NSLOW = int(a_[8:]); sys.argv.remove(a_)
        if a_.startswith("--rot="): ROTR, ROTC = map(int, a_[6:].split(",")); sys.argv.remove(a_)
        if a_ == "--nokrot": KROT = False; sys.argv.remove(a_)
        if a_.startswith("--pub="): PUBU = int(a_[6:]); sys.argv.remove(a_)
        if a_.startswith("--rlu="): RLU = int(a_[6:]); sys.argv.remove(a_)
        if a_.startswith("--ssleep="): SSLEEP = int(a_[9:]); sys.argv.remove(a_)
        if a_.startswith("--nt="):
            f_ = a_[5:]; NTX = 'nt' if 'x' in f_ else ''; NTW = 'nt' if 'w' in f_ else ''; NTA = 'nt' if 'a' in f_ else ''; NTR = 'nt' if 'r' in f_ else ''; sys.argv.remove(a_)
        if a_.startswith("--ntu="): NTU = int(a_[6:]); sys.argv.remove(a_)
        if a_.startswith("--cpfs="): CPFS = int(a_[7:]); sys.argv.remove(a_)
        if a_.startswith("--ost="): OST = a_[6:].replace("+", " "); sys.argv.remove(a_)
        if a_.startswith("--x="): EXP |= set(a_[4:].split(",")); sys.argv.remove(a_)
    out = sys.argv[1] if len(sys.argv) > 1 else "v5.s"
    open(out, "w").write(build_single(gen_k1(), aslist))
    print("written", out)
```

```python
import sys
from asmlib import *

NAME = "recurrent_scan__linear_kernel_hedgehog__swiglu_ffn__prompt"
USE_XN = False
WS_AF  = 0x300000
WS_WF  = 0xD00000
WS_PQ  = 0x1000000
WS_KVT = 0x1300000
WS_FLG = WS_KVT + 122880
F_CH = WS_FLG; F_CP = WS_FLG + 32 * 128; F_CK = WS_FLG + 64 * 128
F_RDY = 72 * 128
WS_KVP = 0x1400000
WS_WPF = 0x1340000
WS_ST  = 0x1380000
WS_CSP = 0x1390000
WS_SIZE = 0x10000000
LOG2E = 0x3fb8aa3b
NLOG2E = 0xbfb8aa3b
OOB = 0x7ff00000
SPIN_MAX = 100000
THR = 4
OST = ''
CPFS = 10
NTU = 20
NTX = NTW = NTA = NTR = ''
SSLEEP = 10
PUBU = 6
RLU = 8
CX1_AFTER = [0, 0]
CXSLEEP = 6
ROTR, ROTC = 0, 0
KROT = False
NAD = 4
NSLOW = 4
AUXS = 'B'
WSLEEP = 0
OSLEEP = 8
BSC = 'sc1'
PROF = False
EXP = {"nodry", "stage", "b1", "notouch"}
HST = 'sc1'
WS_PROF = 0x2000000

def prof_start(A):
    if PROF:
        A("s_memrealtime s[98:99]")
        for i in range(14): A(f"s_mov_b32 s{81+i}, 0")
        A("s_waitcnt lgkmcnt(0)\ns_mov_b32 s80, s98")
SLOTS = [0, 1, 2, 3, 4, 5, 6, 7, 8, 10, 12, 14, 17, 19]
def prof_stamp(A, i, cyc=False, force=False):
    if "slots" in EXP and not force: return
    if PROF: A(f"s_memrealtime s[98:99]\ns_waitcnt lgkmcnt(0)\ns_mov_b32 s{81+i}, s98")
    if PROF and cyc and "cyc" in EXP: A("s_memtime s[98:99]\ns_waitcnt lgkmcnt(0)\ns_sub_u32 s81, s98, s76\ns_add_u32 s81, s81, s80")
def tick(A, slot):
    if PROF and "sacc" in EXP:
        A(f"s_memtime s[98:99]\ns_waitcnt lgkmcnt(0)")
        if slot is not None: A(f"s_sub_u32 s97, s98, s96\ns_add_u32 s{81+slot}, s{81+slot}, s97")
        else: A("s_mov_b32 s81, 0\ns_mov_b32 s82, 0\ns_mov_b32 s83, 0\ns_mov_b32 s84, 0")
        A("s_mov_b32 s96, s98")
def endpgm(A, kid):
    if PROF:
        A(f"""s_waitcnt vmcnt(0)
        s_memrealtime s[98:99]
        s_mov_b64 exec, -1
        s_lshl_b32 s96, s2, 3
        s_add_u32 s96, s96, s3
        s_lshl_b32 s96, s96, 6
        s_add_u32 s96, s96, {WS_PROF + kid*272*8*64}
        s_waitcnt lgkmcnt(0)
        s_mov_b32 s95, s98""")
        for i in range(16): A(f"v_mov_b32 v{i}, s{80+i}")
        A("v_mov_b32 v16, 0")
        for i in range(4): A(f"buffer_store_dwordx4 {v(4*i,4)}, v16, s[20:23], s96 offen offset:{16*i}")
    A("s_endpgm")

def srd(A, d, b, nbytes, off=0):
    if off: A(f"s_add_u32 s{d}, s{b}, {off}\ns_addc_u32 s{d+1}, s{b+1}, 0")
    else: A(f"s_mov_b32 s{d}, s{b}\ns_mov_b32 s{d+1}, s{b+1}")
    A(f"s_mov_b32 s{d+2}, {nbytes}\ns_mov_b32 s{d+3}, 0x20000")

def bf16_round(A, d):
    A(f"v_cvt_pk_bf16_f32 v{d}, v{d}, v{d}\nv_lshlrev_b32 v{d}, 16, v{d}")

def row16_sum(A, r):
    for k in (8, 4, 2, 1):
        A(f"v_add_f32_dpp v{r}, v{r}, v{r} row_ror:{k} row_mask:0xf bank_mask:0xf")

class Q:
    def __init__(self, A, name, mx): self.A, self.name, self.mx, self.q, self.n = A, name, mx, [], 0
    def issue(self, tag):
        self.n += 1
        self.q.append(tag); assert len(self.q) <= self.mx + (0 if self.name == "vmcnt" else 99), (self.name, len(self.q))
    def wait(self, tags):
        idx = [i for i, t in enumerate(self.q) if t in tags]
        if not idx: return
        n = len(self.q) - 1 - max(idx)
        assert n <= self.mx
        self.A(f"s_waitcnt {self.name}({n})")
        self.q = self.q[max(idx) + 1:]

def code_warm(A, tag, endlabel, piece, vt, vd, start='K1_start', back=False):
    A(f"s_getpc_b64 s[70:71]")
    A.label(tag)
    A(f"""s_add_u32 s70, s70, {start}-{tag}
    s_addc_u32 s71, s71, {-1 if start == 'K1_start' or back else 0}
    s_lshl_b32 s72, {piece}, 13
    v_lshlrev_b32 v{vt}, 7, v0
    v_add_u32 v{vt}, s72, v{vt}
    v_min_u32 v{vt}, {endlabel}-{start}, v{vt}
    global_load_dword v{vd}, v{vt}, s[70:71]""")

def stats_issue(A, q, R, cs=range(5), rb=1):
    if 0 in cs:
        A(f"""v_bfe_u32 v{R+20}, v0, 4, {rb}
        v_mul_u32_u24 v{R+20}, 1280, v{R+20}
        v_and_b32 v{R+21}, 15, v0
        v_lshl_add_u32 v{R+20}, v{R+21}, 4, v{R+20}
        s_mul_i32 s69, s66, 1280""")
    for c in cs:
        A(f"buffer_load_dwordx4 {v(R+4*c,4)}, v{R+20}, s[16:19], s69 offen offset:{256*c} {NTA if 4*c < NTU else ''}"); q.issue("ST")
def stats_part1(A, R, X):
    m = R + 20
    A(f"v_mov_b32 v{X}, 0x3f803f80")
    A(f"v_dot2_f32_bf16 v{m}, v{R}, v{X}, 0\nv_dot2_f32_bf16 v{m+1}, v{R}, v{R}, 0\nv_dot2_f32_bf16 v{X+1}, v{R+1}, v{X}, 0\nv_dot2_f32_bf16 v{X+2}, v{R+1}, v{R+1}, 0")
    for i in range(2, 20, 2):
        A(f"v_dot2_f32_bf16 v{m}, v{R+i}, v{X}, v{m}\nv_dot2_f32_bf16 v{m+1}, v{R+i}, v{R+i}, v{m+1}")
        A(f"v_dot2_f32_bf16 v{X+1}, v{R+i+1}, v{X}, v{X+1}\nv_dot2_f32_bf16 v{X+2}, v{R+i+1}, v{R+i+1}, v{X+2}")
def stats_part2(A, R, X, sidx, rb=1):
    m = R + 20; s_ = R + 21
    A(f"s_nop 2\nv_add_f32 v{m}, v{m}, v{X+1}\nv_add_f32 v{s_}, v{s_}, v{X+2}")
    for k in (8, 4, 2, 1):
        A(f"v_add_f32_dpp v{m}, v{m}, v{m} row_ror:{k} row_mask:0xf bank_mask:0xf")
        A(f"v_add_f32_dpp v{s_}, v{s_}, v{s_} row_ror:{k} row_mask:0xf bank_mask:0xf")
    A(f"""v_mul_f32 v{m}, 0x3acccccd, v{m}
    v_mul_f32 v{s_}, 0x3acccccd, v{s_}
    v_fma_f32 v{s_}, -v{m}, v{m}, v{s_}
    v_max_f32 v{s_}, 0, v{s_}""")
    bf16_round(A, m); bf16_round(A, s_)
    A(f"v_add_f32 v{s_}, 0x3727c5ac, v{s_}")
    bf16_round(A, s_)
    A(f"v_sqrt_f32 v{s_}, v{s_}")
    bf16_round(A, s_)
    A(f"""v_rcp_f32 v{s_}, v{s_}
    v_bfe_u32 v{R}, v0, 4, {rb}
    v_lshlrev_b32 v{R}, 3, v{R}
    s_lshl_b32 s67, s{sidx}, {3+rb}
    s_add_u32 s67, s67, {L_ST}
    v_add_u32 v{R}, s67, v{R}
    ds_write_b64 v{R}, {v(m,2)}""")

def signal(A, vt, which):
    A(f"s_and_b32 s67, s2, 1\ns_lshl_b32 s67, s67, 6\ns_add_u32 s67, s67, {4*which}\nv_mov_b32 v{vt}, s67")
    A(f"""v_mov_b32 v{vt+1}, 1
    s_mov_b64 exec, 1
    global_atomic_add v{vt}, v{vt+1}, s[14:15]
    s_mov_b64 exec, -1""")

def p2_map(A, rb, cb):
    A(f"""s_and_b32 s{rb}, s2, 7
    s_lshl_b32 s{rb}, s{rb}, 2
    s_lshr_b32 s{cb}, s2, 3
    s_and_b32 s67, s{cb}, 3
    s_add_u32 s{rb}, s{rb}, s67
    s_lshr_b32 s{cb}, s{cb}, 2
    s_lshl_b32 s67, s67, 1
    s_add_u32 s{cb}, s{cb}, s67
    s_and_b32 s{cb}, s{cb}, 7""")
def o_offsets(A, rb, cb, e, o0, o1, o2):
    A(f"""s_lshr_b32 s{o2}, s{cb}, 1
    s_mul_i32 s{o2}, s{o2}, 5
    s_mul_i32 s{o1}, s{rb}, 74
    s_add_u32 s{o2}, s{o2}, s{o1}
    s_add_u32 s{o2}, s{o2}, 54
    s_lshl_b32 s{o2}, s{o2}, 4
    s_add_u32 s{o2}, s{o2}, s{e}
    s_lshl_b32 s{o2}, s{o2}, 8
    s_add_u32 s{o2}, s{o2}, {WS_AF}
    s_and_b32 s67, s{cb}, 1
    s_mul_i32 s{o0}, s67, {3*4096}
    s_add_u32 s{o0}, s{o0}, s{o2}
    s_add_u32 s{o1}, s{o0}, 4096
    s_lshl_b32 s67, s67, 9
    s_add_u32 s{o2}, s{o2}, s67
    s_lshl_b32 s67, s{e}, 7
    s_sub_u32 s{o2}, s{o2}, s67
    s_add_u32 s{o2}, s{o2}, {2*4096}""")
def o_lane(A, d, t):
    A(f"v_lshrrev_b32 v{d}, 4, v0\nv_lshlrev_b32 v{d}, 10, v{d}\nv_and_b32 v{t}, 15, v0\nv_lshl_add_u32 v{d}, v{t}, 4, v{d}")
def sentinel_fill(A, q, e, vt):
    p2_map(A, 74, 75); o_offsets(A, 74, 75, e, 76, 77, 78)
    for i in range(4): A(f"v_mov_b32 v{vt+i}, -1")
    o_lane(A, vt + 5, vt + 4)
    A(f"""v_lshlrev_b32 v{vt+4}, 4, v0
    buffer_store_dwordx4 {v(vt,4)}, v{vt+5}, s[20:23], s76 offen sc1
    buffer_store_dwordx4 {v(vt,4)}, v{vt+5}, s[20:23], s77 offen sc1
    buffer_store_dwordx2 {v(vt,2)}, v{vt+5}, s[20:23], s78 offen sc1""")
    for i in range(3): q.issue("PUB")
def lds_spin(A, tag, off, expect, va, vr):
    A(f"v_mov_b32 v{va}, {L_CNT}\ns_mov_b32 s68, {SPIN_MAX*10}")
    A.label(f"{tag}_spin")
    A(f"ds_read_b32 v{vr}, v{va} offset:{off}\ns_waitcnt lgkmcnt(0)\nv_cmp_ne_u32 vcc, {expect}, v{vr}\ns_cbranch_vccz {tag}_out\ns_sub_u32 s68, s68, 1\ns_sleep 1\ns_cbranch_scc0 {tag}_spin")
    A.label(f"{tag}_out")
def lds_inc(A, off, va, vr):
    A(f"v_mov_b32 v{va}, {L_CNT}\nv_mov_b32 v{vr}, 1\ns_mov_b64 exec, 1\nds_add_u32 v{va}, v{vr} offset:{off}\ns_mov_b64 exec, -1")
def leader_wait(A, tag, lead_test, setup, load, vr, expect, off, va):
    A(f"{lead_test}\ns_cbranch_scc0 {tag}_fol")
    A(setup)
    spin(A, tag, load, vr, expect)
    lds_inc(A, off, va, vr)
    A(f"s_branch {tag}_done")
    A.label(f"{tag}_fol")
    lds_spin(A, tag + "F", off, "1", va, vr)
    A.label(f"{tag}_done")
def flag_add(A, soff, slast, vt, tag):
    A(f"""v_mov_b32 v{vt}, 1
    v_mov_b32 v{vt+1}, 0
    s_mov_b64 exec, 1
    buffer_atomic_add v{vt}, v{vt+1}, s[20:23], s{soff} offen sc0
    s_waitcnt vmcnt(0)
    v_readfirstlane_b32 s36, v{vt}
    v_mov_b32 v{vt}, 1
    s_cmp_lg_u32 s36, s{slast}
    s_cbranch_scc1 {tag}
    s_add_u32 s36, s{soff}, {F_RDY}
    buffer_store_dword v{vt}, v{vt+1}, s[20:23], s36 offen sc1""")
    A.label(tag)
    A("s_mov_b64 exec, -1")
def spin(A, tag, load, vr, expect, first=True, sleep=2):
    A(f"s_mov_b32 s68, {SPIN_MAX}")
    if not first: A(f"s_branch {tag}_chk")
    A.label(f"{tag}_spin")
    A(f"{load}\ns_waitcnt vmcnt(0)")
    A.label(f"{tag}_chk")
    cmp = f"v_cmp_eq_u32 vcc, -1, v{vr}" if expect == "data" else f"v_cmp_ne_u32 vcc, {expect}, v{vr}"
    A(f"{cmp}\ns_cbranch_vccz {tag}_out\ns_sub_u32 s68, s68, 1\ns_cbranch_scc1 {tag}_out\ns_sleep {sleep}\ns_branch {tag}_spin")
    A.label(f"{tag}_out")

def relayout_issue(A, q, lab, D):
    A(f"""
    s_cmp_lt_u32 s30, 740
    s_cselect_b32 s76, {WS_WF}, {OOB}
    s_cselect_b32 s77, 0, {OOB}
    s_mul_i32 s74, s30, 6554
    s_lshr_b32 s74, s74, 16         ; s = U/10
    s_mul_i32 s75, s74, 10
    s_sub_u32 s75, s30, s75         ; cq
    s_cmp_lt_u32 s74, 54
    s_cselect_b32 s4, s72, s70
    s_cselect_b32 s5, s73, s71
    s_mov_b32 s6, {640*1280}
    s_cselect_b32 s6, {1728*1280}, s6
    s_mov_b32 s7, 0x20000
    s_cselect_b32 s31, 4, 20        ; row step per lane group
    s_lshl_b32 s36, s74, 5          ; base (w_down)
    s_mov_b32 s38, 16               ; half step
    s_cmp_lt_u32 s74, 54
    s_cbranch_scc1 {lab}
    s_sub_u32 s33, s74, 54          ; s'
    s_mul_i32 s36, s33, 205
    s_lshr_b32 s36, s36, 10         ; P
    s_mul_i32 s48, s36, 5
    s_sub_u32 s33, s33, s48         ; ty
    s_mul_i32 s36, s36, 160
    s_lshl_b32 s48, s33, 3
    s_cmp_ge_u32 s33, 3
    s_cselect_b32 s47, 56, 0
    s_add_u32 s48, s48, s47
    s_add_u32 s36, s36, s48
    s_cmp_eq_u32 s33, 2
    s_cselect_b32 s38, 80, 4
    """.replace(f"s_cselect_b32 s76, {WS_WF}, {OOB}", f"s_mov_b32 s76, {OOB}\n    s_cselect_b32 s76, {WS_WF}, s76"))
    A.label(lab)
    A(f"""
    v_lshrrev_b32 v8, 5, v0
    v_mul_lo_u32 v8, v8, s38
    v_bfe_u32 v9, v0, 3, 2
    v_add_u32 v8, v8, v9
    v_mul_u32_u24 v8, 1280, v8
    v_and_b32 v9, 7, v0
    v_lshl_add_u32 v8, v9, 4, v8
    s_mul_i32 s36, s36, 1280
    s_lshl_b32 s47, s75, 7          ; cq*128
    s_add_u32 s47, s47, s36
    s_add_u32 s47, s47, s77
    s_mul_i32 s31, s31, 1280
    """)
    for g in range(4):
        A(f"buffer_load_dwordx4 {v(D+4*g,4)}, v8, s[4:7], s47 offen {NTR}"); q.issue("RL")
        if g < 3: A("s_add_u32 s47, s47, s31")
def relayout_finish(A, q, D, O, part):
    if part == 0: relayout_fin0(A, q, D)
    else: relayout_fin1(A, q, O)
def relayout_fin0(A, q, D):
    A(f"""
    s_add_u32 s47, s43, {((RLU // 2 + 2) % 3) * XSLOT + 4096}
    v_lshlrev_b32 v10, 4, v0
    v_add_u32 v8, s47, v10
    v_lshrrev_b32 v9, 4, v0
    v_lshlrev_b32 v9, 10, v9
    v_bfe_u32 v11, v0, 2, 2
    v_lshl_add_u32 v9, v11, 7, v9
    v_and_b32 v11, 3, v0
    v_lshl_add_u32 v9, v11, 3, v9
    v_add_u32 v9, s47, v9""")
    q.wait({"RL"})
    for g in range(4): A(f"ds_write_b128 v8, {v(D+4*g,4)} offset:{g*1024}")
def mark_fill(A, q, D):
    A(f"""s_mul_i32 s31, s30, 3277
    s_lshr_b32 s31, s31, 16
    s_mul_i32 s31, s31, 54
    s_add_u32 s31, s31, s30
    s_add_u32 s31, s31, 54
    s_lshl_b32 s31, s31, 12
    s_add_u32 s31, s31, {WS_AF}
    s_lshl_b32 s33, s30, 12
    s_add_u32 s33, s33, {WS_KVP - 640*4096}
    s_cmp_lt_u32 s30, 640
    s_cselect_b32 s31, s31, s33
    s_cmp_lt_u32 s30, 768
    s_cselect_b32 s31, s31, {OOB}
    v_lshlrev_b32 v{D+4}, 4, v0""")
    for i in range(4): A(f"v_mov_b32 v{D+i}, -1")
    for T in range(4): A(f"buffer_store_dwordx4 {v(D,4)}, v{D+4}, s[20:23], s31 offen offset:{T*1024} sc1"); q.issue("RS")
def relayout_fin1(A, q, O):
    A("s_waitcnt lgkmcnt(0)")
    for tq in range(4):
        A(f"ds_read_b64_tr_b16 {v(O+4*tq,2)}, v9 offset:{tq*32}\nds_read_b64_tr_b16 {v(O+2+4*tq,2)}, v9 offset:{tq*32+512}")
    for tq in range(4):
        A(f"""s_lshl_b32 s47, s75, 2
        s_add_u32 s47, s47, {tq}          ; gt
        s_mul_i32 s48, s47, 205
        s_lshr_b32 s48, s48, 10          ; cb
        s_mul_i32 s49, s48, 5
        s_sub_u32 s47, s47, s49          ; ct
        s_mul_i32 s48, s48, 74
        s_add_u32 s48, s48, s74
        s_mul_i32 s48, s48, 5
        s_add_u32 s48, s48, s47
        s_lshl_b32 s48, s48, 10
        s_add_u32 s48, s48, s76
        s_waitcnt lgkmcnt({6-2*tq})
        buffer_store_dwordx4 {v(O+4*tq,4)}, v10, s[20:23], s48 offen sc1""")
        q.issue("RS")

def wpf_issue(A, D=16):
    A(f"""
    s_mul_i32 s31, s30, 4370
    s_lshr_b32 s31, s31, 16          ; hg = F/15
    s_mul_i32 s32, s31, 15
    s_sub_u32 s32, s30, s32
    s_mul_i32 s33, s32, 86
    s_lshr_b32 s33, s33, 8           ; tau
    s_mul_i32 s34, s33, 3
    s_sub_u32 s35, s32, s34          ; c
    s_lshl_b32 s33, s33, 2
    s_mul_i32 s39, s31, 1600
    s_add_u32 s39, s39, s33
    v_bfe_u32 v4, v0, 2, 2           ; head_out
    v_and_b32 v5, 3, v0
    v_mul_u32_u24 v6, 400, v4
    v_add_u32 v6, v6, v5
    v_add_u32 v6, s39, v6
    v_lshrrev_b32 v7, 4, v0
    v_lshlrev_b32 v7, 2, v7          ; 4*g
    s_lshl_b32 s35, s35, 5
    v_add_u32 v7, s35, v7            ; 32c + 4g
    v_mov_b32 v11, 0x7ffffff0
    """)
    for j in range(8):
        A(f"""v_add_u32 v8, {16*(j>>2)+(j&3)}, v7
        v_mul_u32_u24 v9, 205, v8
        v_lshrrev_b32 v9, 12, v9          ; head_in
        v_mul_u32_u24 v10, 20, v9
        v_sub_u32 v10, v8, v10            ; d
        v_mul_u32_u24 v10, 20, v10
        v_add_u32 v10, v10, v6
        v_lshlrev_b32 v10, 1, v10
        v_cmp_eq_u32 vcc, v9, v4
        v_cndmask_b32 v10, v11, v10, vcc
        buffer_load_ushort v{D+j}, v10, s[24:27], 0 offen""")

def k1_spare(A):
    q = Q(A, "vmcnt", 63)
    A(f"""
    s_load_dwordx2 s[60:61], s[0:1], 16
    s_load_dwordx2 s[62:63], s[0:1], 24
    s_load_dwordx2 s[64:65], s[0:1], 56
    s_lshl_b32 s58, s32, 1
    s_add_u32 s58, s58, s30
    s_sub_u32 s58, s58, 2
    s_lshl_b32 s66, s32, 8
    s_lshl_b32 s67, s28, 3
    s_add_u32 s66, s66, s67
    s_and_b32 s59, s3, 3
    s_lshl_b32 s67, s59, 1
    s_add_u32 s66, s66, s67
    """)
    if "nowarm" not in EXP:
        code_warm(A, "K1_warm", "K1_end", "s3", 100, 101)
        A(f"v_add_u32 v100, 65536, v100\nv_min_u32 v100, K1_end-K1_start, v100\nglobal_load_dword v101, v100, s[70:71]")
    stats_issue(A, q, 40)
    A("s_waitcnt lgkmcnt(0)")
    srd(A, 24, 60, 25600)
    A(f"""
    s_lshl_b32 s60, s58, 3
    s_add_u32 s60, s60, s3              ; SW 0..127
    s_min_u32 s30, s60, 119
    s_mov_b32 s61, s30
    """)
    wpf_issue(A)
    A(f"""
    v_mov_b32 v28, 0
    v_mov_b32 v29, 0
    v_mov_b32 v30, 0
    v_mov_b32 v31, 0
    v_lshlrev_b32 v3, 4, v0
    s_lshl_b32 s30, s60, 10
    s_add_u32 s30, s30, {WS_FLG}
    s_cmp_lt_u32 s60, 18
    s_cselect_b32 s30, s30, {OOB}
    buffer_store_dwordx4 v[28:31], v3, s[20:23], s30 offen sc1
    v_mov_b32 v32, {L_CNT}
    ds_write_b128 v32, v[28:31]
    ds_write_b128 v32, v[28:31] offset:16
    ds_write_b128 v32, v[28:31] offset:32
    ds_write_b128 v32, v[28:31] offset:48
    """)
    A("s_waitcnt vmcnt(1)")
    for p in range(4): A(f"v_lshl_or_b32 v{24+p}, v{17+2*p}, 16, v{16+2*p}")
    A(f"""s_lshl_b32 s30, s61, 10
    s_add_u32 s30, s30, {WS_WPF}
    buffer_store_dwordx4 v[24:27], v3, s[20:23], s30 offen sc1""")
    stats_part1(A, 40, 64); stats_part2(A, 40, 64, 59)
    A(f"""
    s_waitcnt lgkmcnt(0)
    s_barrier
    v_add_u32 v32, {L_ST}, v3
    ds_read_b128 v[36:39], v32
    s_lshr_b32 s30, s66, 3
    s_lshl_b32 s30, s30, 7
    s_add_u32 s30, s30, {WS_ST}
    s_mov_b64 exec, 0xff
    s_waitcnt lgkmcnt(0)
    buffer_store_dwordx4 v[36:39], v3, s[20:23], s30 offen sc1
    s_mov_b64 exec, -1
    s_waitcnt vmcnt(0)
    s_barrier
    s_cmp_lg_u32 s3, 0
    s_cbranch_scc1 SP_f""")
    signal(A, 32, 0)
    prof_stamp(A, 0)
    A("s_cmp_eq_u32 s58, 0\ns_cbranch_scc1 SP_watch")
    A.label("SP_f")
    A(f"""s_sleep {SSLEEP}
    s_sub_u32 s59, s60, 1""")
    if not NTR:
        srd(A, 4, 62, 640 * 1280); srd(A, 8, 64, 1728 * 1280)
        A("v_lshlrev_b32 v102, 7, v0\ns_lshl_b32 s30, s59, 13")
        for k in range(3): A(f"buffer_load_dword v103, v102, s[8:11], s30 offen\ns_add_u32 s30, s30, {127*8192}")
        A("s_lshl_b32 s30, s59, 13\nbuffer_load_dword v103, v102, s[4:7], s30 offen")
    prof_stamp(A, 1)
    A("s_cmp_eq_u32 s58, 0\ns_cbranch_scc1 SP_w\ns_cmp_lg_u32 s3, 0\ns_cbranch_scc1 SP_w\ns_branch SP_fol")
    A.label("SP_watch")
    ready_addr(A, 32)
    A(f"v_mov_b32 v34, 1\nv_mov_b32 v35, 0x80\ns_mov_b32 s30, 120\nv_writelane_b32 v35, s30, 2\nv_writelane_b32 v35, s30, 3\ns_mov_b64 s[70:71], 15\ns_mov_b32 s68, {SPIN_MAX}")
    A.label("SW_spin")
    A("""s_mov_b64 exec, s[70:71]
    global_load_dword v33, v32, s[14:15] sc1
    s_waitcnt vmcnt(0)
    v_cmp_eq_u32 vcc, v35, v33
    s_andn2_b64 s[70:71], s[70:71], vcc
    s_and_b64 exec, exec, vcc
    s_cbranch_execz SW_none
    global_store_dword v32, v34, s[14:15] offset:128 sc1""")
    A.label("SW_none")
    A("""s_cmp_eq_u64 s[70:71], 0
    s_cbranch_scc1 SW_out
    s_sub_u32 s68, s68, 1
    s_cbranch_scc1 SW_out
    s_sleep 6
    s_branch SW_spin""")
    A.label("SW_out")
    A("s_mov_b64 exec, -1\ns_branch SP_w")
    A.label("SP_fol")
    ready_addr(A, 32)
    spin(A, "SPG", "global_load_dword v33, v32, s[14:15] offset:128 sc1", 33, "1", sleep=8)
    A.label("SP_w")
    A(f"s_barrier\ns_mov_b32 s34, 0\ns_mov_b32 s57, {OOB+4}\ns_cmp_lt_u32 s3, 4\ns_cbranch_scc1 P2_stream")
    A("s_branch P2_aux")

def ready_addr(A, vr):
    A(f"v_and_b32 v{vr}, 1, v0\nv_lshlrev_b32 v{vr}, 6, v{vr}\nv_and_b32 v{vr+1}, 2, v0\nv_lshl_add_u32 v{vr}, v{vr+1}, 1, v{vr}")

def dual_softmax(A, P, E, OUT, T, SL):
    mx, mn = T, T + 2
    lo = SL.replace("[", "").split(":")[0]
    A(f"v_max3_f32 v{mx}, v{P}, v{P+1}, v{P+2}\nv_min3_f32 v{mn}, v{P}, v{P+1}, v{P+2}")
    for i in range(3, 19, 2):
        A(f"v_max3_f32 v{mx}, v{mx}, v{P+i}, v{P+i+1}\nv_min3_f32 v{mn}, v{mn}, v{P+i}, v{P+i+1}")
    A(f"v_max_f32 v{mx}, v{mx}, v{P+19}\nv_min_f32 v{mn}, v{mn}, v{P+19}")
    A(f"v_mul_f32 v{mx}, {lo}, v{mx}\nv_mul_f32 v{mn}, {lo}, v{mn}")
    for k in range(10):
        A(f"v_pk_fma_f32 {v(E+2*k,2)}, {v(P+2*k,2)}, {SL}, {v(mx,2)} op_sel_hi:[1,0,0] neg_lo:[0,0,1] neg_hi:[0,0,1]")
        A(f"v_pk_fma_f32 {v(E+20+2*k,2)}, {v(P+2*k,2)}, {SL}, {v(mn,2)} op_sel_hi:[1,0,0] neg_lo:[1,0,0] neg_hi:[1,0,0]")
    for i in range(40): A(f"v_exp_f32 v{E+i}, v{E+i}")
    sp, sm = T, T + 2
    A(f"v_pk_add_f32 {v(sp,2)}, {v(E,2)}, {v(E+2,2)}\nv_pk_add_f32 {v(sm,2)}, {v(E+20,2)}, {v(E+22,2)}")
    for k in range(2, 10):
        A(f"v_pk_add_f32 {v(sp,2)}, {v(sp,2)}, {v(E+2*k,2)}\nv_pk_add_f32 {v(sm,2)}, {v(sm,2)}, {v(E+20+2*k,2)}")
    A(f"v_add_f32 v{sp}, v{sp}, v{sp+1}\nv_add_f32 v{sm}, v{sm}, v{sm+1}")
    A(f"v_rcp_f32 v{sp}, v{sp}\nv_rcp_f32 v{sm}, v{sm}")
    for k in range(10):
        A(f"v_pk_mul_f32 {v(E+2*k,2)}, {v(E+2*k,2)}, {v(sp,2)} op_sel_hi:[1,0]")
        A(f"v_pk_mul_f32 {v(E+20+2*k,2)}, {v(E+20+2*k,2)}, {v(sm,2)} op_sel_hi:[1,0]")
    for k in range(20):
        A(f"v_cvt_pk_bf16_f32 v{OUT+k}, v{E+2*k}, v{E+2*k+1}")

class Buf:
    def __init__(self): self.l = []
    def __call__(self, t): self.l += [x.strip() for x in t.strip("\n").split("\n") if x.strip()]
def weave(A, main, side, first, step):
    side = list(side)
    for i, m in enumerate(main):
        A(m)
        if side and i >= first and (i - first) % step == 0: A(side.pop(0))
    for x in side: A(x)
def softmax_inplace(B, P, E, T, SL):
    mx, mn = T, T + 2
    lo = SL.replace("[", "").split(":")[0]
    B(f"v_max3_f32 v{mx}, v{P}, v{P+1}, v{P+2}\nv_min3_f32 v{mn}, v{P}, v{P+1}, v{P+2}")
    for i in range(3, 19, 2):
        B(f"v_max3_f32 v{mx}, v{mx}, v{P+i}, v{P+i+1}\nv_min3_f32 v{mn}, v{mn}, v{P+i}, v{P+i+1}")
    B(f"v_max_f32 v{mx}, v{mx}, v{P+19}\nv_min_f32 v{mn}, v{mn}, v{P+19}")
    B(f"v_mul_f32 v{mx}, {lo}, v{mx}\nv_mul_f32 v{mn}, {lo}, v{mn}")
    for k in range(10):
        B(f"v_pk_fma_f32 {v(E+2*k,2)}, {v(P+2*k,2)}, {SL}, {v(mn,2)} op_sel_hi:[1,0,0] neg_lo:[1,0,0] neg_hi:[1,0,0]")
        B(f"v_pk_fma_f32 {v(P+2*k,2)}, {v(P+2*k,2)}, {SL}, {v(mx,2)} op_sel_hi:[1,0,0] neg_lo:[0,0,1] neg_hi:[0,0,1]")
    for i in range(20): B(f"v_exp_f32 v{P+i}, v{P+i}\nv_exp_f32 v{E+i}, v{E+i}")
    B(f"v_pk_add_f32 {v(mx,2)}, {v(P,2)}, {v(P+2,2)}\nv_pk_add_f32 {v(mn,2)}, {v(E,2)}, {v(E+2,2)}")
    for k in range(2, 10):
        B(f"v_pk_add_f32 {v(mx,2)}, {v(mx,2)}, {v(P+2*k,2)}\nv_pk_add_f32 {v(mn,2)}, {v(mn,2)}, {v(E+2*k,2)}")
    B(f"v_add_f32 v{mx}, v{mx}, v{mx+1}\nv_add_f32 v{mn}, v{mn}, v{mn+1}\nv_rcp_f32 v{mx}, v{mx}\nv_rcp_f32 v{mn}, v{mn}")
    for k in range(10):
        B(f"v_pk_mul_f32 {v(P+2*k,2)}, {v(P+2*k,2)}, {v(mx,2)} op_sel_hi:[1,0]")
        B(f"v_pk_mul_f32 {v(E+2*k,2)}, {v(E+2*k,2)}, {v(mn,2)} op_sel_hi:[1,0]")
    for k in range(10): B(f"v_cvt_pk_bf16_f32 v{P+k}, v{P+2*k}, v{P+2*k+1}")
    for k in range(10): B(f"v_cvt_pk_bf16_f32 v{P+10+k}, v{E+2*k}, v{E+2*k+1}")

XSLOT = 8192; XWAVE = 3 * XSLOT; WBASE = 4 * XWAVE
NWS = 5
PHI_P = 336; V_P = 208; PHI_BASE = 0; V_BASE = 256 * PHI_P
L_ST = 159744; L_CS = L_ST + 2048; L_CNT = L_CS + 1024
K1_LDS = 160 * 1024
NL = 7
KVB = 4 * NL * 5120
W_KVS, W_BL, W_CK, W_CH, W_CW, W_CP, W_SD, W_SX, W_AP, W_K1, W_K2, W_Q, W_ED, W_O, W_KVL = [4 * k for k in range(15)]
XCH = 0; APART = 12 * 5120
def wpf_lds(i): return (i >> 3) * XWAVE + XSLOT + (i & 7) * 1024

def k1_loader(A, gu, nW, tag, light=False):
    WU = 12288 if gu else 10240
    NCH = 12 if gu else 10
    q = Q(A, "vmcnt", 63)
    def X(j, half=None):
        for e in (range(8) if half is None else range(4 * half, 4 * half + 4)):
            if e % 4 == 0: A(f"s_add_u32 s47, s78, {j}\ns_sub_u32 s48, s47, 10\ns_cselect_b32 s47, s47, s48\ns_lshl_b32 s47, s47, 7\ns_add_u32 s47, s47, s40")
            A(f"s_add_u32 s48, s47, {e*8*1280}\ns_add_u32 m0, s43, {(j%3)*XSLOT + e*1024}\ns_nop 0")
            A(f"buffer_load_dwordx4 v{2+(e&1)}, s[16:19], s48 offen {NTX if 2*j < NTU else ''} lds"); q.issue(("X", j))
    def W(u):
        A(f"s_lshl_b32 s49, s78, 1\ns_add_u32 s49, s49, {u}\ns_sub_u32 s48, s49, 20\ns_cselect_b32 s49, s49, s48\ns_mul_i32 s49, s49, s42")
        for e in range(nW):
            A(f"s_add_u32 m0, s{44+e}, {WBASE + (u%NWS)*WU}\ns_nop 0")
            A(f"buffer_load_dwordx4 v{4+e}, s[24:27], s49 offen {NTW if u < NTU else ''} lds"); q.issue(("W", u))
    R, XU, C, CA = 16, 40, 80, 120
    def aux_issue(p):
        if 'noaux' in EXP or light: return
        stats_issue(A, q, R, [p])
        for i in range(2):
            A(f"s_mul_i32 s48, s51, {32*p + i}\ns_add_u32 s48, s48, s50")
            A(f"buffer_load_dwordx4 {v(C+4*(2*p+i),4)}, v7, s[24:27], s48 offen {NTA if 4*p < NTU else ''}"); q.issue("CS")
    def cs_sel():
        A(f"v_and_b32 v{CA+8}, 15, v0")
        for k in range(4):
            A(f"""v_cmp_eq_u32 vcc, {2*k}, v{CA+8}
            v_cndmask_b32 v{CA+4+k}, 0, v{CA+9}, vcc
            v_cmp_eq_u32 vcc, {2*k+1}, v{CA+8}
            v_cndmask_b32 v{CA+4+k}, v{CA+4+k}, v{CA+10}, vcc""".replace("v_cmp_eq_u32 vcc, 0,", f"v_mov_b32 v{CA+9}, 0x3f80\nv_mov_b32 v{CA+10}, 0x3f800000\nv_cmp_eq_u32 vcc, 0,"))
    def cs_acc():
        for i in range(10): A(f"v_mfma_f32_16x16x32_bf16 {v(CA,4)}, {v(CA+4,4)}, {v(C+4*i,4)}, {'0' if i==0 else v(CA,4)}")
    def cs_fin():
        msk = (1 << NCH) - 1
        A(f"""v_and_b32 v{C}, 15, v0
        v_lshlrev_b32 v{C}, 5, v{C}
        v_lshrrev_b32 v{C+1}, 4, v0
        v_lshl_add_u32 v{C}, v{C+1}, 4, v{C}
        s_mul_i32 s48, s41, 384
        s_add_u32 s48, s48, {L_ST+128}
        v_add_u32 v{C}, s48, v{C}
        s_mov_b64 exec, {msk | (msk << 16)}
        ds_write_b128 v{C}, {v(CA,4)}
        s_mov_b64 exec, -1
        s_waitcnt lgkmcnt(0)""")
    def only0(name, f):
        A(f"s_cmp_lg_u32 s41, 0\ns_cbranch_scc1 {tag}_{name}")
        f()
        A.label(f"{tag}_{name}")
    def cw_poll():
        A(f"v_and_b32 v{R}, 1, v0\nv_lshlrev_b32 v{R}, 6, v{R}\nglobal_load_dword v{R+1}, v{R}, s[14:15] offset:132 sc1")
    def wf_prefetch(i):
        if i == 0:
            A(f"""v_readlane_b32 s48, v{R+1}, 0
            v_readlane_b32 s49, v{R+1}, 1
            s_and_b32 s48, s48, s49
            s_lshr_b32 s49, s2, 3
            s_mul_i32 s49, s49, {740*128}
            s_add_u32 s49, s49, {WS_WF}
            s_cmp_eq_u32 s48, 1
            s_cselect_b32 s69, s49, {OOB}
            v_lshlrev_b32 v{R}, 7, v0""")
        for k in range(3):
            A(f"buffer_load_dword v{R+2}, v{R}, s[20:23], s69 offen\nv_add_u32 v{R}, {64*128 if 3*i+k != 10 else 36*128}, v{R}")
    def pfx(i):
        A(f"""s_cmp_lg_u32 s41, {i & 3}
        s_cbranch_scc1 {tag}_pfx{i}
        s_lshr_b32 s49, s2, 3
        s_mul_i32 s49, s49, {740*128}
        s_add_u32 s49, s49, {WS_WF + min(i*64, 740-64)*128}
        v_lshlrev_b32 v136, 7, v0
        buffer_load_dword v137, v136, s[20:23], s49 offen""")
        A.label(f"{tag}_pfx{i}")
    def poll_issue():
        A(f"v_and_b32 v{R+4}, 1, v0\nv_lshlrev_b32 v{R+4}, 6, v{R+4}\nglobal_load_dword v{R+5}, v{R+4}, s[14:15] offset:128 sc1")
        q.mark = q.n
    def poll_check():
        A(f"s_waitcnt vmcnt({q.n - q.mark})")
        spin(A, tag + "G", f"global_load_dword v{R+5}, v{R+4}, s[14:15] offset:128 sc1", R + 5, "1", first=False)
        prof_stamp(A, 5)
    def cons_issue():
        A(f"""v_lshrrev_b32 v{R}, 3, v0
        v_and_b32 v{R+1}, 7, v0
        v_lshlrev_b32 v{R+1}, 3, v{R+1}
        v_lshl_add_u32 v{R+1}, v{R}, 7, v{R+1}
        s_lshl_b32 s48, s32, 5
        s_lshl_b32 s49, s41, 3
        s_add_u32 s48, s48, s49
        s_lshl_b32 s48, s48, 7
        s_add_u32 s48, s48, {WS_ST}
        buffer_load_dwordx2 {v(R+2,2)}, v{R+1}, s[20:23], s48 offen sc1
        v_lshlrev_b32 v{R}, 3, v0
        v_lshlrev_b32 v{R+1}, 2, v0""")
        q.issue("C1")
        for i in range(16):
            if i and i % 5 == 0: A(f"s_add_u32 s53, s53, {5*768}")
            A(f"buffer_load_dword v{XU+i}, v{R+1}, s[20:23], s53 offen offset:{(i%5)*768} sc1"); q.issue("C1")
        if not gu:
            A(f"v_lshlrev_b32 v{R+4}, 4, v0")
            for e in range(8):
                A(f"s_add_u32 s48, s54, {e*1024}\ns_cmp_lt_u32 {e}, s55\ns_cselect_b32 s48, s48, {OOB}")
                A(f"buffer_load_dwordx4 {v(C+4*e,4)}, v{R+4}, s[20:23], s48 offen sc1"); q.issue("C2")
    def cons_fin():
        q.wait({"C1"})
        A(f"s_lshl_b32 s48, s41, 9\ns_add_u32 s48, s48, {L_ST}\nv_add_u32 v{R}, s48, v{R}\nds_write_b64 v{R}, {v(R+2,2)}")
        for st in (8, 4, 2, 1):
            for i in range(st): A(f"v_add_f32 v{XU+i}, v{XU+i}, v{XU+i+st}")
        A(f"""s_mul_i32 s48, s41, 192
        s_add_u32 s48, s48, {L_CS}
        v_add_u32 v{R+1}, s48, v{R+1}
        s_mov_b32 exec_hi, 0xffff
        ds_write_b32 v{R+1}, v{XU}
        s_mov_b64 exec, -1""")
        if not gu:
            q.wait({"C2"})
            A(f"v_add_u32 v{R+4}, s43, v{R+4}")
            for e in range(8): A(f"ds_write_b128 v{R+4}, {v(C+4*e,4)} offset:{XSLOT + e*1024}")
        A(f"v_mov_b32 v{R}, {L_CNT}\nv_mov_b32 v{R+2}, 0\nv_mov_b32 v{R+3}, 0\n" + "".join(f"ds_write_b64 v{R}, {v(R+2,2)} offset:{8*k}\n" for k in range(8)) + "s_waitcnt lgkmcnt(0)")
    q.q = [("X", 0)] * 8 + [("W", 0)] * 3 + [("W", 1)] * 3
    sched = {u: [] for u in range(20)}
    def rl_issue():
        A("s_mul_i32 s30, s32, 30\ns_add_u32 s30, s30, s29\ns_lshl_b32 s30, s30, 2\ns_add_u32 s30, s30, s41\ns_waitcnt lgkmcnt(0)")
        relayout_issue(A, q, f"{tag}_rl", 140)
    AX = {"A": [-1, 0, 1, 2, 2], "B": [-1, -1, 0, 1, 2], "G": [-1, 1, 2, 3, 4], "H": [-1, 1, 3, 5, 6], "I": [0, 2, 3, 4, 5], "J": [1, 2, 3, 4, 4], "K": [2, 2, 3, 3, 4], "L": [1, 1, 2, 2, 3], "M": [3, 4, 4, 5, 5]}[AUXS]
    def ax(u):
        for p in range(5):
            if AX[p] == u: aux_issue(p)
    ax(-1)
    sched[0] += ([] if 'cx1' in EXP else [lambda: X(1)]) + [lambda: W(2), lambda: W(3), lambda: X(2, 0), cs_sel]
    sched[1] += [lambda: X(2, 1), lambda: W(4)]
    for u in range(2, 8): sched[u] += [lambda u=u: X(u // 2 + 2, u % 2), lambda u=u: W(u + 3)]
    for u in range(8): sched[u].append(lambda u=u: ax(u))
    P0 = PUBU - 2
    post = {P0: [lambda: q.wait({"CS"}), lambda: A("s_setprio 3"), cs_acc, lambda: stats_part1(A, R, XU), lambda: A("s_setprio 0")],
            P0 + 1: [lambda: A("s_setprio 3"), lambda: stats_part2(A, R, XU, 41), cs_fin, lambda: A("s_setprio 0")]}
    for u in range(8, 17):
        j = u // 2 + 2
        if j < 10: sched[u].append(lambda j=j, h=u % 2: X(j, h))
        sched[u].append(lambda u=u: W(u + 3))
    if 'norl' not in EXP and not light:
        sched[RLU - 2].append(rl_issue)
        sched[RLU - 1].append(lambda: mark_fill(A, q, 172))
        sched[RLU] += [lambda: relayout_finish(A, q, 140, 156, 0)]
        sched[RLU + 1] = [sched[RLU + 1][1], lambda: relayout_finish(A, q, 140, 156, 1), sched[RLU + 1][0]] + sched[RLU + 1][2:]
    if 'noaux' not in EXP and not light:
        for u in post: sched[u] += post[u]
    sched[RLU + 4] = [lambda: only0("cs", lambda: signal(A, 130, 1))] + sched[RLU + 4]
    if "pf" in EXP:
        sched[8] = [lambda: only0("cw", cw_poll)] + sched[8]
        for i in range(4): sched[11 + i].append(lambda i=i: only0(f"pf{i}", lambda: wf_prefetch(i)))
    def code_touch(k):
        A(f"s_lshr_b32 s73, s2, 3\ns_lshl_b32 s73, s73, 2\ns_add_u32 s73, s73, s41\ns_add_u32 s73, s73, {k}\ns_and_b32 s73, s73, 7")
        code_warm(A, f"{tag}_ct{k}", "K1_end", "s73", 132, 133, "K1_compute_end"); q.issue("CT")
    if "notouch" not in EXP and not light:
        sched[13].append(lambda: code_touch(0))
        sched[18].append(lambda: code_touch(3))
    if "pfx" in EXP:
        for i in range(12): sched[7 + i].append(lambda i=i: pfx(i))
    sched[15] = [lambda: only0("pi", poll_issue)] + sched[15]
    sched[16] += [lambda: only0("pc", poll_check)]
    if 'nocons' not in EXP: sched[17] += [cons_issue]
    sched[19] += [cons_fin]
    for u in range(20):
        if u == 1 and "b1" not in EXP:
            for f in sched[u]: f()
            continue
        q.wait({("W", u), ("X", u // 2)} | ({("W", 1)} if u == 0 and "b1" not in EXP else set()))
        if u == 0: prof_stamp(A, 3)
        if u == 8: prof_stamp(A, 4)
        A("s_barrier")
        if "slots" in EXP and u in SLOTS: prof_stamp(A, SLOTS.index(u), force=True)
        for f in sched[u]: f()
    A(f"s_barrier\ns_mov_b32 s57, {OOB}")
    if not gu: A("s_cmp_eq_u32 s34, 1\ns_cbranch_scc1 P2_stream")
    A("s_branch P2_aux")

ACC = 0
XF = 192
WFR = 224
NWF = 5
VX = 244
VW = 246
VL = 248
def acc(T, ct): return ACC + (T * 12 + ct) * 4

def k1_mainloop(A, gu):
    NT = 12 if gu else 10
    WU = 12288 if gu else 10240
    pitch = 192 if gu else 320
    LA = NWF - 1
    q = Q(A, "lgkmcnt", 15)
    def woff(n):
        u, ct = divmod(n, NT)
        o = (u % NWS) * WU
        o += (ct % 6) * 32 + (ct // 6) * 6144 if gu else ct * 32
        return o
    def rdW(n, halves=(0, 1)):
        r = WFR + 4 * (n % NWF); ad = VW + (n % NT) % 2
        for h in halves:
            A(f"ds_read_b64_tr_b16 {v(r+2*h,2)}, v{ad} offset:{woff(n)+4*pitch*h}"); q.issue(("W", n))
    def rdX(u, T):
        j, kh = divmod(u, 2)
        A(f"ds_read_b128 {v(XF+16*(u&1)+4*T,4)}, v{VX+kh} offset:{(j%3)*XSLOT + T*2048}"); q.issue(("X", u, T))
    NTOT = 20 * NT
    SIGU, HSU = PUBU + 2, 2
    def pub_read():
        A(f"ds_read_b128 v[252:255], v249"); q.issue("P0")
    def pub_store0():
        q.wait({"P0"})
        A(f"buffer_store_dwordx4 v[252:255], v250, s[20:23], s52 offen sc1\nv_lshlrev_b32 v250, 4, v{VL}\nv_add_u32 v249, {L_ST}, v250")
    def pub_read1():
        A(f"ds_read_b128 v[252:255], v249"); q.issue("P1")
    def pub_store1():
        q.wait({"P1"})
        A(f"s_mov_b64 exec, 0xff\nbuffer_store_dwordx4 v[252:255], v250, s[20:23], s53 offen sc1\ns_mov_b64 exec, -1")
    def sig(line):
        A(f"s_cmp_lg_u32 s3, 0\ns_cbranch_scc1 SG{int(gu)}{line}")
        signal(A, 252, line)
        A.label(f"SG{int(gu)}{line}")
    def hs(i):
        if i == 0: A(f"v_mov_b32 v252, -1\nv_mov_b32 v253, -1\nv_mov_b32 v254, -1\nv_mov_b32 v255, -1\nv_lshlrev_b32 v251, 4, v{VL}")
        if i % 4 == 0: A(f"s_add_u32 s51, s50, {(i//4)*4096}")
        A(f"buffer_store_dwordx4 v[252:255], v251, s[20:23], s51 offen offset:{(i%4)*1024} sc1")
    n0 = PUBU * NT - LA
    hooks = {n0: pub_read, n0 + 3: pub_store0, n0 + 4: pub_read1, n0 + 7: pub_store1, SIGU * NT - LA: lambda: sig(0)}
    if "cpf" in EXP: hooks[CPFS * NT // 10] = lambda: A("buffer_load_dword v254, v253, s[40:43], s44 offen")
    if gu and "hsent" in EXP:
        for i in range(12): hooks[HSU * NT + 3 * i] = (lambda i=i: hs(i))
    if 'nopub' in EXP: hooks = {SIGU * NT - LA: lambda: sig(0)}
    A("s_barrier")
    prof_stamp(A, 1)
    if PROF: A("s_memtime s[76:77]\ns_waitcnt lgkmcnt(0)")
    rdX(0, 0); rdW(0); rdX(0, 1); rdX(0, 2); rdX(0, 3)
    for n in range(1, LA): rdW(n)
    for n in range(NTOT):
        u, ct = divmod(n, NT)
        for T in range(4):
            q.wait({("W", n), ("X", u, T)})
            c = "0" if u == 0 else v(acc(T, ct), 4)
            A(f"v_mfma_f32_16x16x32_bf16 {v(acc(T,ct),4)}, {v(WFR+4*(n%NWF),4)}, {v(XF+16*(u&1)+4*T,4)}, {c}")
            m = n + LA
            if T == 0 and m < NTOT:
                if m == SIGU * NT: A("s_waitcnt vmcnt(0)")
                if m == 2 * NT and "cx1" in EXP: A(f"s_waitcnt vmcnt({CX1_AFTER[int(gu)]})")
                if m % NT == 0 and (m != NT or "b1" in EXP): A("s_barrier")
                rdW(m, (0,))
            if T == 1 and m < NTOT: rdW(m, (1,))
            if T == 2 and u + 1 < 20 and ct >= NT - LA: rdX(u + 1, ct - (NT - LA))
            if T == 3 and n in hooks: hooks[n]()
    prof_stamp(A, 2)
    if PROF: A("s_memtime s[78:79]\ns_waitcnt lgkmcnt(0)\ns_sub_u32 s81, s78, s76\ns_add_u32 s81, s81, s80")

CSR = 192
STR = 240
def epi_common(A, ntile, csr=None, st=(240, 242, 244, 246)):
    A(f"""
    v_lshrrev_b32 v249, 4, v{VL}
    v_lshlrev_b32 v249, 4, v249
    v_add_u32 v249, {L_CS}, v249
    v_and_b32 v250, 15, v{VL}
    v_lshlrev_b32 v250, 3, v250
    s_lshl_b32 s51, s3, 9
    s_add_u32 s51, s51, {L_ST}
    v_add_u32 v250, s51, v250
    s_waitcnt vmcnt(0)
    s_barrier
    """)
    for T in range(4): A(f"ds_read_b64 {v(st[T],2)}, v250 offset:{T*128}")
    for ct in range(ntile): A(f"ds_read_b128 {v(csr[ct] if csr else CSR+4*ct,4)}, v249 offset:{ct*64 + (64 if ntile == 10 and ct >= 5 else 0)}")
    A(f"v_lshlrev_b32 v249, 4, v{VL}\ns_waitcnt lgkmcnt(0)")
    prof_stamp(A, 3)
    if PROF: A("s_memtime s[76:77]\ns_waitcnt lgkmcnt(0)")
def dry_exit(A, ret):
    if "nodry" not in EXP: A(f"s_cmp_eq_u32 s79, 1\ns_cbranch_scc1 {ret}")
def dry_run(A, labels, ret):
    if "nodry" in EXP: return
    A("s_mov_b32 s79, 1\ns_mov_b64 exec, 0")
    for w in range(3): A(f"s_cmp_eq_u32 s3, {w}\ns_cbranch_scc1 {labels[w]}")
    A(f"s_branch {labels[3]}")
    A.label(ret)
    A("s_mov_b32 s79, 0\ns_mov_b64 exec, -1")
def center(A, r, T, ct):
    for h in range(2):
        A(f"v_pk_fma_f32 {v(r+2*h,2)}, {v(CSR+4*ct+2*h,2)}, {v(STR+2*T,2)}, {v(r+2*h,2)} op_sel_hi:[1,0,1] neg_lo:[1,0,0] neg_hi:[1,0,0]")

def k1_epi_gu(A):
    epi_common(A, 12)
    for T in range(4):
        A(f"v_mul_f32 v{252+T}, v{STR+2*T+1}, v{STR+2*T+1}\nv_mul_f32 v{STR+2*T+1}, {NLOG2E}, v{STR+2*T+1}\nv_rcp_f32 v{252+T}, v{252+T}")
    for c in range(3):
        A(f"s_add_u32 s51, s50, {c*4096}")
        for T0 in (0, 2):
            grp = [(T, acc(T, 2 * c), acc(T, 6 + 2 * c)) for T in (T0, T0 + 1)]
            sd = v(252 + T0, 2)
            for T, G, U in grp:
                for h in range(2): center(A, G + 4 * h, T, 2 * c + h); center(A, U + 4 * h, T, 6 + 2 * c + h)
            for T, G, U in grp:
                for k in range(4): A(f"v_pk_mul_f32 {v(U+2*k,2)}, {v(G+2*k,2)}, {v(U+2*k,2)}")
                for k in range(4): A(f"v_pk_mul_f32 {v(G+2*k,2)}, {v(G+2*k,2)}, {v(STR+2*T,2)} op_sel:[0,1] op_sel_hi:[1,1]")
            for T, G, U in grp:
                for i in range(8): A(f"v_exp_f32 v{G+i}, v{G+i}")
            for T, G, U in grp:
                b = T & 1
                for k in range(4): A(f"v_pk_fma_f32 {v(G+2*k,2)}, {v(G+2*k,2)}, {sd}, {sd} op_sel:[0,{b},{b}] op_sel_hi:[1,{b},{b}]")
            for T, G, U in grp:
                for i in range(8): A(f"v_rcp_f32 v{G+i}, v{G+i}")
            for T, G, U in grp:
                for k in range(4): A(f"v_pk_mul_f32 {v(U+2*k,2)}, {v(U+2*k,2)}, {v(G+2*k,2)}")
            for T, G, U in grp:
                for k in range(4): A(f"v_cvt_pk_bf16_f32 v{G+k}, v{U+2*k}, v{U+2*k+1}")
                A(f"buffer_store_dwordx4 {v(G,4)}, v249, s[20:23], s51 offen offset:{T*1024} {HST}")
    prof_stamp(A, 5, True)

WP = 192
def read_wpf(A, first):
    for tau in range(5):
        for c in range(3):
            i = first + 3 * tau + c
            base = 250 + (i >> 4)
            off = wpf_lds(i) - (i >> 4) * 2 * XWAVE
            if c < 2: A(f"ds_read_b128 {v(WP+10*tau+4*c,4)}, v{base} offset:{off}")
            else: A(f"ds_read_b64 {v(WP+10*tau+8,2)}, v{base} offset:{off}")
def normalize(A, ntile, scale_tiles):
    for T in range(4):
        for ct in range(ntile):
            center(A, acc(T, ct), T, ct)
        for ct in scale_tiles:
            for h in range(2):
                r = acc(T, ct) + 2 * h
                A(f"v_pk_mul_f32 {v(r,2)}, {v(r,2)}, {v(STR+2*T,2)} op_sel:[0,1] op_sel_hi:[1,1]")
def proj_mfma(A, D, B01, B2):
    for c in range(3):
        for tau in range(5):
            d = v(D + 4 * tau, 4)
            if c < 2: A(f"v_mfma_f32_16x16x32_bf16 {d}, {v(WP+10*tau+4*c,4)}, {v(B01+4*c,4)}, {'0' if c==0 else d}")
            else: A(f"v_mfma_f32_16x16x16_bf16 {d}, {v(WP+10*tau+8,2)}, {v(B2,2)}, {d}")

def k1_epi_kv(A):
    csr = [192, 196, 200, 204, 208, acc(0, 10), acc(0, 11), acc(1, 10), acc(1, 11), acc(2, 10)]
    ST = [acc(2, 11), acc(2, 11) + 2, acc(3, 11), acc(3, 11) + 2]
    epi_common(A, 10, csr, ST)
    def ctr(B, T, ct, scale):
        for h in range(2):
            r = acc(T, ct) + 2 * h
            B(f"v_pk_fma_f32 {v(r,2)}, {v(csr[ct]+2*h,2)}, {v(ST[T],2)}, {v(r,2)} op_sel_hi:[1,0,1] neg_lo:[1,0,0] neg_hi:[1,0,0]")
            if scale: B(f"v_pk_mul_f32 {v(r,2)}, {v(r,2)}, {v(ST[T],2)} op_sel:[0,1] op_sel_hi:[1,1]")
    A.label("DK0")
    for T in range(4):
        for ct in range(5): ctr(A, T, ct, False)
    dry_exit(A, "DK_ret")
    A(f"v_lshlrev_b32 v250, 4, v{VL}")
    read_wpf(A, 0)
    for T in range(4):
        for ct in range(5, 10):
            ctr(A, T, ct, True)
            r = acc(T, ct)
            A(f"v_cvt_pk_bf16_f32 v{r}, v{r}, v{r+1}\nv_cvt_pk_bf16_f32 v{r+1}, v{r+2}, v{r+3}")
    for T in range(4): A(f"v_mul_f32 v{252+T}, {LOG2E}, v{ST[T]+1}")
    VA = acc(3, 10)
    A(f"""
    v_and_b32 v243, 15, v{VL}
    s_lshl_b32 s51, s3, 6
    v_add_u32 v243, s51, v243            ; row (T=0)
    v_lshrrev_b32 v246, 4, v{VL}         ; g
    v_mul_u32_u24 v251, {PHI_P}, v243
    v_mul_u32_u24 v247, 80, v246
    v_add_u32 v251, v251, v247
    v_mul_u32_u24 v243, {V_P}, v243
    v_add_u32 v243, {V_BASE}, v243
    v_mul_u32_u24 v247, 48, v246
    v_add_u32 v242, v243, v247
    """)
    for c in range(5):
        A(f"""v_add_u32 v247, {4*c}, v246
        v_mul_u32_u24 v244, 205, v247
        v_lshrrev_b32 v244, 10, v244
        v_add_u32 v247, v247, v244
        v_lshl_add_u32 v{VA+c}, v247, 3, v243""")
    A("v_mov_b32 v244, 0x3f80\nv_mov_b32 v245, 0\ns_waitcnt lgkmcnt(0)")
    prof_stamp(A, 8)
    lds_inc(A, W_K1, 246, 247); lds_spin(A, "K1S", W_K1, "4", 246, 247)
    prof_stamp(A, 9)
    def kcvt(T):
        B = Buf()
        for k in range(8): B(f"v_cvt_pk_bf16_f32 v{acc(T,10)+k}, v{acc(T,0)+2*k}, v{acc(T,0)+2*k+1}")
        for k in range(2): B(f"v_cvt_pk_bf16_f32 v{acc(T,4)+k}, v{acc(T,4)+2*k}, v{acc(T,4)+2*k+1}")
        return B.l
    def proj(T):
        B = Buf(); proj_mfma(B, acc(T, 5), acc(T, 10), acc(T, 4)); return B.l
    vw = []
    for T in range(4):
        vw += [f"ds_write_b64 v{VA+c}, {v(acc(T,5+c),2)} offset:{T*16*V_P}" for c in range(5)] + [f"ds_write_b64 v242, v[244:245] offset:{T*16*V_P + 40}"]
    weave(A, kcvt(0) + kcvt(1) + kcvt(2), vw, 0, 1)
    for x in proj(0) + kcvt(3): A(x)
    for T in range(4):
        B = Buf()
        B(f"v_mov_b32 v{acc(T,11)}, v{252+T}")
        softmax_inplace(B, acc(T, 5), acc(T, 0), acc(T, 10), v(acc(T, 11), 2))
        side = (proj(T + 1) if T < 3 else []) + ([f"ds_write_b128 v251, {v(acc(T-1,5)+4*k,4)} offset:{(T-1)*16*PHI_P + 16*k}" for k in range(5)] if T else [])
        if T in (1, 2, 3) and "nodry" not in EXP:
            pass
        if T == 0: prof_stamp(A, 1)
        weave(A, B.l, [] if "noside" in EXP else side, 4, 6)
        if T == 1: prof_stamp(A, 13)
        if T == 3: prof_stamp(A, 2)
    for k in range(5): A(f"ds_write_b128 v251, {v(acc(3,5)+4*k,4)} offset:{3*16*PHI_P + 16*k}")
    A(f"""
    v_lshrrev_b32 v241, 5, v{VL}
    v_lshlrev_b32 v241, 3, v241          ; 8*(G>>1)
    v_bfe_u32 v242, v{VL}, 2, 2
    v_add_u32 v241, v241, v242
    v_bfe_u32 v242, v{VL}, 4, 1
    v_lshlrev_b32 v242, 5, v242
    v_and_b32 v243, 3, v{VL}
    v_lshl_add_u32 v242, v243, 3, v242   ; 32*(G&1)+8c
    v_mul_u32_u24 v237, {PHI_P}, v241
    v_add_u32 v237, v237, v242
    s_mul_i32 s51, s3, 80
    v_add_u32 v237, s51, v237
    v_add_u32 v239, {128*PHI_P}, v237
    v_mul_u32_u24 v238, {V_P}, v241
    v_add_u32 v238, v238, v242
    s_mul_i32 s51, s3, 48
    s_add_u32 s51, s51, {V_BASE}
    v_add_u32 v238, s51, v238
    v_and_b32 v241, 31, v{VL}
    v_lshrrev_b32 v242, 5, v{VL}
    v_lshlrev_b32 v242, 3, v242
    v_mul_u32_u24 v241, 80, v241
    s_lshl_b32 s51, s3, 11
    s_add_u32 s51, s51, {KVB}
    v_add3_u32 v242, v241, v242, s51
    v_add_u32 v241, s51, v249
    s_waitcnt lgkmcnt(0)
    """)
    lds_inc(A, W_K2, 246, 247); lds_spin(A, "K2S", W_K2, "4", 246, 247)
    prof_stamp(A, 4, True)
    q = Q(A, "lgkmcnt", 15)
    def rd(ks):
        b = 32 + 12 * (ks % 3)
        pa, po = (237, ks * 16 * PHI_P) if ks < 8 else (239, (ks - 8) * 16 * PHI_P)
        for h in range(2):
            A(f"ds_read_b64_tr_b16 {v(b+2*h,2)}, v238 offset:{ks*16*V_P + h*4*V_P}"); q.issue(ks)
        for nt in range(2):
            for h in range(2):
                A(f"ds_read_b64_tr_b16 {v(b+4+4*nt+2*h,2)}, v{pa} offset:{po + nt*64 + h*4*PHI_P}"); q.issue(ks)
    rd(0); rd(1)
    for ks in range(16):
        q.wait({ks})
        if ks + 2 < 16: rd(ks + 2)
        b = 32 + 12 * (ks % 3)
        for nt in range(2):
            A(f"v_mfma_f32_32x32x16_bf16 {v(16*nt,16)}, {v(b+4+4*nt,4)}, {v(b,4)}, {'0' if ks==0 else v(16*nt,16)}")
    prof_stamp(A, 5)
    lds_spin(A, "KCW", W_CW, "1", 246, 247)
    A("s_mov_b32 exec_lo, 0xffffff\ns_mov_b32 exec_hi, 0xffffff")
    for gi in range(5):
        r = 4 * gi
        A(f"v_cvt_pk_bf16_f32 v{r}, v{r}, v{r+1}\nv_cvt_pk_bf16_f32 v{r+1}, v{r+2}, v{r+3}\nds_write_b64 v242, {v(r,2)} offset:{16*gi}")
    A(f"""s_mov_b64 exec, -1
    s_waitcnt lgkmcnt(0)
    ds_read_b128 v[24:27], v241
    ds_read_b128 v[28:31], v241 offset:1024
    s_waitcnt lgkmcnt(1)
    buffer_store_dwordx4 v[24:27], v249, s[20:23], s57 offen sc1
    s_waitcnt lgkmcnt(0)
    buffer_store_dwordx4 v[28:31], v249, s[20:23], s57 offen offset:1024 sc1""")

def k1_epi_q(A):
    epi_common(A, 10)
    normalize(A, 10, range(10))
    A(f"v_mov_b32 v250, v249\nv_add_u32 v251, {2*XWAVE}, v249\nv_lshlrev_b32 v247, 3, v{VL}")
    for hgi in range(2):
        read_wpf(A, 15 * hgi)
        b2 = [242, 244, 252, 254]
        for T in range(4):
            src = acc(T, 5 * hgi)
            for k in range(8): A(f"v_cvt_pk_bf16_f32 v{acc(T,10)+k}, v{src+2*k}, v{src+2*k+1}")
            for k in range(2): A(f"v_cvt_pk_bf16_f32 v{b2[T]+k}, v{src+16+2*k}, v{src+17+2*k}")
        A("s_waitcnt lgkmcnt(0)")
        if hgi == 1: lds_inc(A, W_Q, 250, 251)
        def outp(T):
            src = acc(T, 5 * hgi); B = Buf()
            for k in range(10): B(f"v_cvt_pk_bf16_f32 v{src+k}, v{src+2*k}, v{src+2*k+1}")
            B(f"s_add_u32 s51, s58, {(hgi*4+T)*2560}")
            B(f"buffer_store_dwordx4 {v(src,4)}, v249, s[20:23], s51 offen {HST}")
            B(f"buffer_store_dwordx4 {v(src+4,4)}, v249, s[20:23], s51 offen offset:1024 {HST}")
            B(f"buffer_store_dwordx2 {v(src+8,2)}, v247, s[20:23], s51 offen offset:2048 {HST}")
            return B.l
        for T in range(4):
            M = Buf(); proj_mfma(M, acc(T, 5 * hgi), acc(T, 10), b2[T])
            weave(A, M.l, ["\n".join(outp(T - 1)[i:i+2]) for i in range(0, 14, 2)] if T else [], 7, 1)
        for x in outp(3): A(x)
    prof_stamp(A, 5, True)

def type_decode(A):
    A("""s_lshl_b32 s35, s30, 1
    s_add_u32 s35, s35, s31
    s_add_u32 s29, s35, 18
    s_add_u32 s36, s30, 26
    s_cmp_eq_u32 s31, 2
    s_cselect_b32 s34, 2, 1
    s_cselect_b32 s35, s30, s35
    s_cselect_b32 s29, s36, s29
    s_mul_i32 s36, s30, 5
    s_lshl_b32 s37, s30, 2
    s_add_u32 s37, s37, 2
    s_min_u32 s36, s36, s37
    s_add_u32 s36, s36, s31
    s_sub_u32 s36, s36, 3
    s_cmp_ge_u32 s31, 3
    s_cselect_b32 s34, 0, s34
    s_cselect_b32 s35, s36, s35
    s_cselect_b32 s29, s36, s29""")

def ptr_setup(A):
    A("""s_waitcnt lgkmcnt(0)
    s_mov_b32 s16, s4
    s_mov_b32 s17, s5
    s_mov_b32 s20, s14
    s_mov_b32 s21, s15
    s_mov_b32 s14, s12
    s_mov_b32 s15, s13""")

def gen_k1():
    A = Asm()
    A.label("K1_start")
    prof_start(A)
    A(f"""
    s_load_dwordx4 s[4:7], s[0:1], 0     ; x, wqkv
    s_load_dwordx4 s[8:11], s[0:1], 40
    s_load_dwordx4 s[12:15], s[0:1], 72
    s_cmp_ge_u32 s2, 256
    s_cbranch_scc1 K1_end
    {"s_lshl_b32 s3, s2, 3" if "perm" in EXP else ""}
    {"s_lshr_b32 s2, s2, 5" if "perm" in EXP else ""}
    {"s_or_b32 s2, s2, s3" if "perm" in EXP else ""}
    {"s_and_b32 s2, s2, 255" if "perm" in EXP else ""}
    v_lshrrev_b32 v1, 6, v0
    v_and_b32 v0, 63, v0
    v_readfirstlane_b32 s3, v1
    s_and_b32 s30, s2, 7                 ; xcd
    s_lshr_b32 s31, s2, 3                ; j
    s_lshr_b32 s32, s30, 2
    s_lshl_b32 s32, s32, 2
    s_and_b32 s33, s31, 3
    s_add_u32 s32, s32, s33              ; rb
    s_and_b32 s30, s30, 3                ; cg
    s_lshr_b32 s31, s31, 2               ; cslot
    s_mov_b32 s78, 0                     ; first k stage
    v_lshrrev_b32 v7, 3, v0              ; r
    v_and_b32 v8, 7, v0                  ; p
    v_lshrrev_b32 v9, 1, v7
    v_xor_b32 v8, v8, v9
    v_mul_u32_u24 v7, 1280, v7
    v_lshl_add_u32 v2, v8, 4, v7
    v_xor_b32 v3, 64, v2
    s_mov_b32 s18, 2621440
    s_mov_b32 s19, 0x20000
    s_mov_b32 s22, {WS_SIZE}
    s_mov_b32 s23, 0x20000
    s_lshl_b32 s28, s30, 3
    s_add_u32 s28, s28, s31
    s_cmp_ge_u32 s28, 23
    s_cselect_b32 s34, 7, 0
    s_and_b32 s34, s34, s31
    s_cmp_eq_u32 s34, 7
    s_cbranch_scc1 K1_spare
    s_cmp_lt_u32 s3, 4
    s_cbranch_scc1 K1_compute
    s_sub_u32 s41, s3, 4
    s_lshl_b32 s40, s32, 8
    s_lshl_b32 s36, s41, 6
    s_add_u32 s40, s40, s36
    s_mul_i32 s40, s40, 1280
    s_mul_i32 s43, s41, {XWAVE}
    """)
    ptr_setup(A)
    prof_stamp(A, 0)
    for e in range(8):
        A(f"s_add_u32 s48, s40, {e*8*1280}\ns_add_u32 m0, s43, {e*1024}\ns_nop 0\nbuffer_load_dwordx4 v{2+(e&1)}, s[16:19], s48 offen {NTX} lds")
    type_decode(A)
    A(f"""
    s_lshr_b32 s58, s41, 1               ; half
    s_and_b32 s59, s41, 1
    s_mov_b32 s26, {640*3840}
    s_mov_b32 s60, 3840
    s_mov_b32 s61, 20
    s_mov_b32 s38, {(1<<16)//20+1}
    s_mul_i32 s37, s35, 160
    s_add_u32 s37, s37, 1280
    s_mul_i32 s39, s35, 320
    s_cmp_eq_u32 s34, 2
    s_cselect_b32 s37, s39, s37
    s_cselect_b32 s39, 0, {1280-160}
    s_mul_i32 s62, s41, 3
    s_lshl_b32 s57, s41, 1
    s_add_u32 s57, s57, 2
    s_min_u32 s62, s62, s57
    s_mov_b32 s63, 9
    s_mov_b32 s64, 0
    s_mov_b32 s65, 10240
    s_cmp_eq_u32 s34, 0
    s_cbranch_scc0 K1_lp_go
    s_mov_b32 s26, {640*3456}
    s_mov_b32 s60, 3456
    s_mov_b32 s61, 12
    s_mov_b32 s38, {(1<<16)//12+1}
    s_mul_i32 s37, s35, 192
    s_mov_b32 s39, 0
    s_mul_i32 s62, s59, 3
    s_mov_b32 s63, 5
    s_mul_i32 s64, s58, 6144
    s_mov_b32 s65, 12288
    """)
    A.label("K1_lp_go")
    A("""s_mov_b32 s27, 0x20000
    s_lshl_b32 s42, s60, 5
    v_mov_b32 v10, s39
    s_cmp_lt_u32 s41, 2
    s_cselect_b32 s24, s8, s10
    s_cselect_b32 s25, s9, s11
    s_cmp_eq_u32 s34, 0
    s_cselect_b32 s24, s24, s6
    s_cselect_b32 s25, s25, s7""")
    for e in range(3):
        A(f"""s_add_u32 s36, s62, {e}
        s_min_u32 s36, s36, s63
        s_lshl_b32 s{44+e}, s36, 10
        s_add_u32 s{44+e}, s{44+e}, s64
        s_lshl_b32 s36, s36, 6
        v_add_u32 v7, s36, v0
        v_mul_u32_u24 v8, s38, v7
        v_lshrrev_b32 v8, 16, v8
        v_mul_u32_u24 v9, s61, v8
        v_sub_u32 v9, v7, v9
        v_bfe_u32 v11, v8, 3, 1
        v_lshlrev_b32 v11, 1, v11
        v_xor_b32 v9, v9, v11
        v_mul_u32_u24 v8, s60, v8
        v_lshl_add_u32 v8, v9, 4, v8
        v_cmp_le_u32 vcc, 10, v9
        v_cndmask_b32 v9, 0, v10, vcc
        v_add3_u32 v{4+e}, v8, v9, s37
        s_add_u32 m0, s{44+e}, {WBASE}
        s_nop 0
        buffer_load_dwordx4 v{4+e}, s[24:27], 0 offen {NTW} lds""")
    for e in range(3):
        A(f"s_add_u32 s36, s{44+e}, s65\ns_add_u32 m0, s36, {WBASE}\ns_nop 0\nbuffer_load_dwordx4 v{4+e}, s[24:27], s42 offen {NTW} lds")
    if "cpf" in EXP: A("s_barrier")
    A("s_load_dwordx2 s[70:71], s[0:1], 24\ns_load_dwordx2 s[72:73], s[0:1], 56")
    prof_stamp(A, 1)
    A(f"""
    s_lshl_b32 s66, s32, 8
    s_lshl_b32 s36, s28, 3
    s_add_u32 s66, s66, s36
    s_lshl_b32 s36, s41, 1
    s_add_u32 s66, s66, s36
    s_lshl_b32 s56, s32, 4
    s_lshl_b32 s57, s59, 3
    s_add_u32 s56, s56, s57
    s_lshl_b32 s52, s29, 4
    s_mul_i32 s53, s52, 768
    s_mul_i32 s57, s41, 192
    s_add_u32 s53, s53, s57
    s_add_u32 s53, s53, {WS_CSP}
    s_lshl_b32 s57, s32, 1
    s_add_u32 s52, s52, s57
    s_add_u32 s52, s52, s59
    s_mul_i32 s52, s52, 768
    s_add_u32 s52, s52, {WS_CSP}
    v_lshrrev_b32 v12, 4, v0
    v_and_b32 v13, 15, v0
    v_mov_b32 v14, 0x7ffffff0
    v_mul_lo_u32 v7, v12, s60
    v_lshl_add_u32 v7, v13, 4, v7
    s_mul_i32 s50, s56, s60
    s_add_u32 s50, s50, s37
    s_lshl_b32 s51, s60, 2
    s_cmp_eq_u32 s34, 0
    s_cbranch_scc0 K1_l_qkv
    v_cmp_gt_u32 vcc, 12, v13
    v_cndmask_b32 v7, v14, v7, vcc
    s_mul_i32 s57, s58, 384
    s_add_u32 s52, s52, s57
    """)
    k1_loader(A, True, 3, "LG")
    A.label("K1_l_qkv")
    A(f"""
    v_cmp_gt_u32 vcc, 10, v13
    v_cndmask_b32 v7, v14, v7, vcc
    s_add_u32 s39, s39, 160
    s_mul_i32 s39, s39, s58
    s_add_u32 s50, s50, s39
    s_mul_i32 s57, s58, 320
    s_add_u32 s52, s52, s57
    s_mul_i32 s54, s35, 15
    s_mov_b32 s55, 15
    s_sub_u32 s57, s34, 1
    s_lshl_b32 s54, s54, s57
    s_lshl_b32 s55, s55, s57
    s_lshl_b32 s57, s41, 3
    s_add_u32 s54, s54, s57
    s_lshl_b32 s54, s54, 10
    s_add_u32 s54, s54, {WS_WPF}
    s_max_u32 s55, s55, s57
    s_sub_u32 s55, s55, s57
    s_cmp_ge_u32 s41, 2
    s_cbranch_scc1 K1_l_qkv2
    """)
    if "kvlight" in EXP:
        A("s_cmp_eq_u32 s34, 1\ns_cbranch_scc1 K1_l_kv")
    k1_loader(A, False, 3, "LA")
    A.label("K1_l_qkv2")
    if "kvlight" in EXP:
        A("s_cmp_eq_u32 s34, 1\ns_cbranch_scc1 K1_l_kv2")
    k1_loader(A, False, 2, "LB")
    if "kvlight" in EXP:
        A.label("K1_l_kv"); k1_loader(A, False, 3, "LC", True)
        A.label("K1_l_kv2"); k1_loader(A, False, 2, "LD", True)
    A.label("K1_spare")
    ptr_setup(A)
    k1_spare(A)
    A.label("K1_compute")
    type_decode(A)
    ptr_setup(A)
    A("s_mov_b32 s79, 0")
    if "cpf" in EXP:
        A(f"""s_mul_i32 s36, s32, 30
        s_add_u32 s36, s36, s29              ; rank 0..239
        s_cmp_eq_u32 s3, 0
        s_cselect_b32 s40, s4, s6
        s_cselect_b32 s41, s5, s7
        s_mov_b32 s42, {640*3840}
        s_cselect_b32 s42, 2621440, s42
        s_cselect_b32 s44, 4, 30             ; lines per row in the first batch
        s_cselect_b32 s45, {(1<<20)//4+1}, {(1<<20)//30+1}
        s_cselect_b32 s46, 1280, 3840
        s_cselect_b32 s47, 128, {64*3840}    ; start of stage 1
        s_cselect_b32 s48, 35, 32            ; lanes used
        s_cmp_lt_u32 s3, 2
        s_cbranch_scc1 CPF_a
        s_cmp_eq_u32 s3, 2
        s_cselect_b32 s40, s8, s10
        s_cselect_b32 s41, s9, s11
        s_mov_b32 s42, {640*3456}
        s_mov_b32 s44, 27
        s_mov_b32 s45, {(1<<20)//27+1}
        s_mov_b32 s46, 3456
        s_mov_b32 s47, {64*3456}
        s_mov_b32 s48, 29""".replace(f"s_cselect_b32 s45, {(1<<20)//4+1}, {(1<<20)//30+1}", f"s_mov_b32 s45, {(1<<20)//30+1}\n        s_cselect_b32 s45, {(1<<20)//4+1}, s45").replace("s_cselect_b32 s46, 1280, 3840", "s_mov_b32 s46, 3840\n        s_cselect_b32 s46, 1280, s46").replace(f"s_cselect_b32 s47, 128, {64*3840}", f"s_mov_b32 s47, {64*3840}\n        s_cselect_b32 s47, 128, s47"))
        A.label("CPF_a")
        def batch(vd):
            A(f"""s_mul_i32 s49, s36, s48
            v_min_u32 v{vd}, s48, v0
            v_add_u32 v{vd}, s49, v{vd}
            v_mul_hi_u32 v20, v{vd}, s50
            v_mul_lo_u32 v21, v20, s44
            v_sub_u32 v21, v{vd}, v21
            v_mul_lo_u32 v20, v20, s46
            v_lshl_add_u32 v{vd}, v21, 7, v20""")
        A("s_mov_b32 s43, 0x20000\ns_lshl_b32 s50, s45, 12")
        batch(16)
        A(f"""s_cmp_eq_u32 s3, 0
        s_cselect_b32 s44, 5, s44
        s_mov_b32 s51, {((1<<20)//5+1)<<12}
        s_cselect_b32 s50, s51, s50
        s_mul_i32 s51, s47, 5
        s_mul_i32 s48, s48, 5
        s_add_u32 s48, s48, 3
        s_lshr_b32 s48, s48, 2""")
        batch(253)
        A(f"""s_mov_b32 s44, s51
        s_barrier
        buffer_load_dword v251, v16, s[40:43], s47 offen""")
    if "cx1" in EXP:
        A(f"""s_lshl_b32 s40, s32, 8
        s_lshl_b32 s36, s3, 6
        s_add_u32 s40, s40, s36
        s_mul_i32 s40, s40, 1280
        s_add_u32 s47, s78, 1
        s_sub_u32 s48, s47, 10
        s_cselect_b32 s47, s47, s48
        s_lshl_b32 s47, s47, 7
        s_add_u32 s47, s47, s40
        s_mul_i32 s43, s3, {XWAVE}
        s_sleep {CXSLEEP}""")
        for e in range(8):
            A(f"s_add_u32 s48, s47, {e*8*1280}\ns_add_u32 m0, s43, {XSLOT + e*1024}\ns_nop 0\nbuffer_load_dwordx4 v{2+(e&1)}, s[16:19], s48 offen {NTX} lds")
    A(f"""
    s_setprio 2
    v_mov_b32 v{VL}, v0
    v_and_b32 v1, 15, v0                 ; t
    v_lshrrev_b32 v2, 4, v0              ; g
    v_lshrrev_b32 v3, 1, v1              ; (t>>1)
    s_mul_i32 s36, s3, {XWAVE}
    v_lshlrev_b32 v4, 7, v1
    v_add_u32 v4, s36, v4
    v_xor_b32 v5, v2, v3
    v_lshl_add_u32 v{VX}, v5, 4, v4
    v_xor_b32 v{VX+1}, 64, v{VX}
    s_cmp_eq_u32 s34, 0
    s_mov_b32 s36, 320
    s_cselect_b32 s36, 192, s36
    v_lshlrev_b32 v4, 3, v2              ; 8g
    v_bfe_u32 v5, v0, 2, 2
    v_add_u32 v4, v4, v5
    v_mul_lo_u32 v4, v4, s36
    v_and_b32 v5, 3, v0
    v_lshl_add_u32 v4, v5, 3, v4
    v_add_u32 v4, {WBASE}, v4
    v_and_b32 v5, 1, v2
    v_lshlrev_b32 v5, 5, v5
    v_add_u32 v{VW}, v4, v5
    v_sub_u32 v{VW+1}, v4, v5
    s_lshl_b32 s37, s32, 2
    s_add_u32 s37, s37, s3               ; rb64
    s_lshl_b32 s52, s29, 4
    s_lshl_b32 s53, s32, 1
    s_add_u32 s52, s52, s53
    s_and_b32 s53, s3, 1
    s_add_u32 s52, s52, s53
    s_mul_i32 s52, s52, 768
    s_lshr_b32 s53, s3, 1
    s_mov_b32 s54, 384
    s_mul_i32 s53, s53, s54
    s_add_u32 s52, s52, s53
    s_add_u32 s52, s52, {WS_CSP}
    s_lshl_b32 s53, s32, 5
    s_add_u32 s53, s53, s28
    s_lshl_b32 s53, s53, 7
    s_add_u32 s53, s53, {WS_ST}
    s_cmp_lg_u32 s3, 0
    s_cselect_b32 s53, {OOB}, s53
    v_lshlrev_b32 v250, 4, v0
    s_mul_i32 s55, s3, 384
    s_add_u32 s55, s55, {L_ST+128}
    v_add_u32 v249, s55, v250
    v_mov_b32 v6, 0x7ffffff0
    v_cmp_gt_u32 vcc, s54, v250
    v_cndmask_b32 v250, v6, v250, vcc
    """)
    A(f"""
    s_cmp_eq_u32 s34, 0
    s_cbranch_scc0 K1_c_qkv
    s_mul_i32 s50, s37, 74
    s_mul_i32 s51, s35, 3
    s_add_u32 s50, s50, s51
    s_lshl_b32 s50, s50, 12
    s_add_u32 s50, s50, {WS_AF}
    """)
    k1_mainloop(A, True)
    A.label("K1_compute_end")
    k1_epi_gu(A)
    if "hsent" in EXP: A(f"s_mov_b32 s57, {OOB}\nv_mov_b32 v0, v{VL}")
    else: A(f"s_lshl_b32 s57, s37, 7\ns_add_u32 s57, s57, {F_CH}\ns_mov_b32 s56, 17\nv_mov_b32 v0, v{VL}")
    A("s_branch P2_stream")
    A.label("K1_c_qkv")
    A(f"""s_lshl_b32 s57, s35, 3
    s_add_u32 s57, s57, s32
    s_lshl_b32 s57, s57, 2
    s_add_u32 s57, s57, s3
    s_lshl_b32 s57, s57, 11
    s_add_u32 s57, s57, {WS_KVP}""")
    if "nodry" not in EXP:
        A("s_cmp_eq_u32 s34, 2\ns_cbranch_scc1 DK_skip")
        dry_run(A, ["DK0", "DK0", "DK0", "DK0"], "DK_ret")
        A.label("DK_skip")
    k1_mainloop(A, False)
    A(f"""
    s_cmp_eq_u32 s34, 2
    s_cbranch_scc1 K1_c_q
    """)
    k1_epi_kv(A)
    A(f"v_mov_b32 v0, v{VL}\ns_branch P2_aux")
    A.label("K1_c_q")
    A(f"""
    s_lshl_b32 s58, s37, 3
    s_lshl_b32 s51, s35, 1
    s_add_u32 s58, s58, s51
    s_mul_i32 s58, s58, {4*2560}
    s_add_u32 s58, s58, {WS_PQ}
    """)
    k1_epi_q(A)
    A(f"s_lshl_b32 s57, s37, 7\ns_add_u32 s57, s57, {F_CP}\ns_mov_b32 s56, 3\nv_mov_b32 v0, v{VL}")
    phase2(A)
    A.label("K1_end")
    A("s_endpgm")
    return A

def p2_flag(A, tag):
    A(f"s_cmp_ge_u32 s57, {OOB}\ns_cbranch_scc1 {tag}_noflag\ns_waitcnt vmcnt(0)")
    flag_add(A, 57, 56, 4, tag + "_notlast")
    A.label(f"{tag}_noflag")
    prof_stamp(A, 6)
def p2_pre(A, first):
    p2_map(A, 74, 75)
    A(f"""
    s_and_b32 s76, s3, 3
    {f"s_mul_i32 s67, s76, 5" if first else "s_mov_b32 s67, 0"}
    s_add_u32 s67, s67, {first}
    s_mul_i32 s77, s74, 74
    s_add_u32 s77, s77, s67
    s_lshl_b32 s77, s77, 12
    s_add_u32 s77, s77, {WS_AF}
    s_mul_i32 s78, s75, 74
    s_add_u32 s78, s78, s67
    s_mul_i32 s78, s78, 5120
    s_add_u32 s78, s78, {WS_WF}
    """)
    if "hsent" in EXP: A("s_mul_i32 s79, s75, 9\ns_lshr_b32 s79, s79, 2")
    else:
        A(f"""s_and_b32 s67, s74, 3
        s_mul_i32 s67, s67, {ROTR}
        s_mul_i32 s79, s75, {ROTC}
        s_add_u32 s79, s79, s67
        s_lshr_b32 s79, s79, 2
        s_sub_u32 s67, s79, 54
        s_cselect_b32 s79, s79, s67
        s_add_u32 s79, s79, s76
        s_sub_u32 s67, s79, 54
        s_cselect_b32 s79, s79, s67""")
def p2_regs(A):
    A("s_mov_b32 s32, s74\ns_mov_b32 s33, s75\ns_mov_b32 s35, s76\ns_mov_b32 s40, s77\ns_mov_b32 s41, s78\ns_mov_b32 s58, s79\nv_lshlrev_b32 v2, 4, v0\nv_add_u32 v3, 4096, v2")
def cw_wait(A, tag):
    leader_wait(A, tag, "s_cmp_eq_u32 s3, 4", "v_and_b32 v4, 1, v0\nv_lshlrev_b32 v4, 6, v4", "global_load_dword v5, v4, s[14:15] offset:132 sc1", 5, "1", W_CW, 4)
WOB = 140
def wo_loads(A, rng, q=None):
    for i in rng:
        A(f"s_add_u32 s67, s78, {i*5120}")
        for ct in range(4): A(f"buffer_load_dwordx4 {v(WOB+20*i+4*ct,4)}, v2, s[20:23], s67 offen offset:{ct*1024} {BSC}")
        A(f"buffer_load_dwordx4 {v(WOB+20*i+16,4)}, v3, s[20:23], s67 offen {BSC}")
        if q:
            for _ in range(5): q.issue("WO")
def rot_off(A, dst, base, k, stride):
    if "hsent" not in EXP:
        A(f"""s_add_u32 s59, s58, {4*k}
        s_sub_u32 s{dst}, s59, 54
        s_cselect_b32 s59, s59, s{dst}
        s_mul_i32 s{dst}, s59, {stride}
        s_add_u32 s{dst}, s{dst}, s{base}""")
        if k == 13: A(f"s_cmp_lt_u32 s35, 2\ns_cselect_b32 s{dst}, s{dst}, {OOB}")
        return
    A(f"""s_add_u32 s59, s35, {4*k}
    s_mul_i32 s63, s59, 57
    s_lshr_b32 s63, s63, 10
    s_mul_i32 s{dst}, s63, 18
    s_sub_u32 s59, s59, s{dst}
    s_add_u32 s59, s59, s58
    s_sub_u32 s{dst}, s59, 18
    s_cselect_b32 s59, s59, s{dst}
    s_mul_i32 s59, s59, 3
    s_add_u32 s59, s59, s63
    s_mul_i32 s{dst}, s59, {stride}
    s_add_u32 s{dst}, s{dst}, s{base}""")
    if k == 13: A(f"s_cmp_lt_u32 s63, 3\ns_cselect_b32 s{dst}, s{dst}, {OOB}")

def skew_addr(A, d, t0, t1, base):
    A(f"v_lshrrev_b32 v{t0}, 5, v0\nv_add_u32 v{t0}, v{t0}, v0\nv_lshrrev_b32 v{t1}, 4, v0\nv_lshlrev_b32 v{t1}, 8, v{t1}\nv_add_u32 v{t1}, {base}, v{t1}")
    for ct in range(5): A(f"v_add_u32 v{d+ct}, {2*ct}, v{t0}\nv_and_b32 v{d+ct}, 15, v{d+ct}\nv_lshl_add_u32 v{d+ct}, v{d+ct}, 4, v{t1}")

def p2_aux(A):
    A.label("P2_aux")
    p2_pre(A, 54); p2_regs(A); cw_wait(A, "PAW")
    A("s_cmp_eq_u32 s34, 1\ns_cbranch_scc1 P2_a_2\ns_cmp_eq_u32 s34, 2\ns_cbranch_scc0 P2_a_noq")
    lds_spin(A, "AQ", W_Q, "4", 4, 5)
    A.label("P2_a_noq")
    A(f"s_mul_i32 s45, s33, {74*5120}\ns_add_u32 s45, s45, {WS_WF}\ns_mul_i32 s44, s35, 5120")
    for i in range(NL):
        rot_off(A, 43, 45, 4 + i, 5120)
        if "stage" in EXP and i == NSLOW: lds_spin(A, "AE", W_ED, "4", 4, 5)
        A(f"s_waitcnt vmcnt({(THR if i < NSLOW else 30) if 'stage' in EXP else THR})\ns_add_u32 m0, s44, {i*20480}\ns_nop 0")
        for ct in range(4): A(f"buffer_load_dwordx4 v2, s[20:23], s43 offen offset:{ct*1024} {BSC} lds")
        A(f"s_add_u32 m0, s44, {i*20480+4096}\ns_nop 0\nbuffer_load_dwordx4 v3, s[20:23], s43 offen {BSC} lds")
    wo_loads(A, range(1, 3))
    A.label("P2_a_2")
    A(f"s_setprio {0 if 'auxlo' in EXP else 3}")
    prof_stamp(A, 7)
    A(f"""s_cmp_eq_u32 s34, 1
    s_cbranch_scc1 P2_a_3
    s_lshr_b32 s36, s2, 5
    s_cmp_ge_u32 s36, 6
    s_cselect_b32 s65, 1, 0
    s_sub_u32 s64, s32, 1
    s_and_b32 s64, s64, 3
    s_and_b32 s36, s32, 28
    s_or_b32 s64, s64, s36
    s_cmp_eq_u32 s65, 1
    s_cselect_b32 s64, s64, s32""")
    leader_wait(A, "AP", "s_cmp_eq_u32 s35, 0", f"""s_lshl_b32 s37, s32, 7
    s_lshl_b32 s38, s64, 7
    v_mov_b32 v4, s37
    v_writelane_b32 v4, s38, 0
    s_mov_b32 s37, {F_CP+F_RDY}""", "buffer_load_dword v5, v4, s[20:23], s37 offen sc1", 5, "1", W_CP, 4)
    def pq_load(rb, R):
        A(f"""s_lshl_b32 s36, s{rb}, 3
        s_add_u32 s36, s36, s33
        s_mul_i32 s36, s36, {4*2560}
        s_add_u32 s36, s36, {WS_PQ}
        buffer_load_dwordx4 {v(R,4)}, v6, s[20:23], s36 offen sc1
        buffer_load_dwordx4 {v(R+4,4)}, v6, s[20:23], s36 offen offset:1024 sc1
        buffer_load_dwordx2 {v(R+8,2)}, v7, s[20:23], s36 offen offset:2048 sc1""")
    def phi(R, OUT):
        for k in range(10): A(f"v_lshlrev_b32 v{40+2*k}, 16, v{R+k}\nv_and_b32 v{41+2*k}, 0xffff0000, v{R+k}")
        dual_softmax(A, 40, 60, OUT, 240, "s[52:53]")
    A("""v_lshrrev_b32 v20, 4, v0
    v_mul_u32_u24 v20, 2560, v20
    v_and_b32 v21, 15, v0
    s_lshl_b32 s36, s35, 4
    v_add_u32 v21, s36, v21
    v_lshl_add_u32 v6, v21, 4, v20
    v_lshl_add_u32 v7, v21, 3, v20""")
    pq_load(32, 8); pq_load(64, 24)
    A(f"""
    s_lshl_b32 s47, s33, 16
    s_lshl_b32 s38, s35, 11
    s_add_u32 s47, s47, s38
    s_add_u32 s47, s47, {WS_KVP}
    s_add_u32 s48, s47, 32768
    s_add_u32 s38, s38, {KVB}
    v_and_b32 v20, 15, v0
    v_lshrrev_b32 v21, 4, v0
    v_lshlrev_b32 v19, 4, v20
    v_lshl_add_u32 v19, v21, 3, v19
    v_add_u32 v19, s38, v19
    v_and_b32 v18, 3, v0
    v_mul_u32_u24 v18, 80, v18
    v_add_u32 v18, s38, v18
    s_mov_b32 s52, {LOG2E}
    s_mov_b32 s53, {LOG2E}
    """)
    o_offsets(A, 32, 33, 35, 44, 45, 46)
    o_offsets(A, 64, 33, 35, 60, 61, 62)
    wo_loads(A, range(3, 5))
    A("s_waitcnt vmcnt(10)")
    lds_inc(A, W_BL, 4, 5)
    phi(8, 100)
    A("s_cmp_eq_u32 s65, 0\ns_cbranch_scc1 P2_a_p1")
    phi(24, 120)
    A.label("P2_a_p1")
    A("""v_and_b32 v20, 15, v0
    v_lshrrev_b32 v21, 4, v0
    v_lshlrev_b32 v16, 4, v20
    v_lshl_add_u32 v16, v21, 13, v16
    v_mov_b32 v21, 0x7ffffff0
    v_cmp_gt_u32 vcc, 8, v20
    v_cndmask_b32 v17, v21, v16, vcc
    v_mov_b32 v21, 0x3f80
    v_mov_b32 v22, 0x3f800000""")
    for k in range(4):
        A(f"v_cmp_eq_u32 vcc, {2*k}, v20\nv_cndmask_b32 v{84+k}, 0, v21, vcc\nv_cmp_eq_u32 vcc, {2*k+1}, v20\nv_cndmask_b32 v{84+k}, v{84+k}, v22, vcc")
    o_lane(A, 6, 7)
    A("v_lshlrev_b32 v7, 3, v7\nv_sub_u32 v7, v6, v7")
    FBUF = [140, 144, 148, 152, 156, 240, 244, 248, 252, 8, 12]
    for b in FBUF:
        for i in range(4): A(f"v_mov_b32 v{b+i}, 0")
    if "p2touch" in EXP: code_warm(A, "AK_ct", "K1_end", "s35", 98, 99, "P2_stream", back=True)
    prof_stamp(A, 8)
    leader_wait(A, "AK", "s_cmp_eq_u32 s35, 0", f"s_lshl_b32 s37, s33, 16\ns_add_u32 s37, s37, {WS_KVP + 1916}\nv_and_b32 v4, 31, v0\nv_lshlrev_b32 v4, 11, v4", "buffer_load_dword v5, v4, s[20:23], s37 offen sc1", 5, "data", W_CK, 4)
    prof_stamp(A, 9)
    A(f"s_mov_b32 s68, {SPIN_MAX}")
    A.label("KV_rty")
    for g in range(8):
        for q_ in range(2):
            r = 20 + 8 * g + 4 * q_
            A(f"buffer_load_dwordx4 {v(r,4)}, v{16 if g < 7 else 17}, s[20:23], s{47+q_} offen offset:{g*256} sc1")
    for g in range(8):
        r = 20 + 8 * g
        A(f"s_waitcnt vmcnt({14-2*g})")
        A(f"v_max3_u32 v96, v{r}, v{r+1}, {'v96' if g else f'v{r+7}'}")
        for k in (2, 4) + ((6,) if g else ()): A(f"v_max3_u32 v96, v{r+k}, v{r+k+1}, v96")
        if not g: A(f"v_max_u32 v96, v{r+6}, v96")
        A(f"v_mfma_f32_16x16x32_bf16 {v(88+4*(g%2),4)}, v[84:87], {v(r,4)}, 0")
        A(f"v_mfma_f32_16x16x32_bf16 {v(88+4*(g%2),4)}, v[84:87], {v(r+4,4)}, {v(88+4*(g%2),4)}")
        def put(gg):
            p = 88 + 4 * (gg % 2); d = 20 + 8 * gg
            A(f"v_cvt_pk_bf16_f32 v{d}, v{p}, v{p+1}\nv_cvt_pk_bf16_f32 v{d+1}, v{p+2}, v{p+3}\ns_mov_b64 exec, 0xffffffff\nds_write_b64 v19, {v(d,2)} offset:{gg*256}\ns_mov_b64 exec, -1")
        if g: put(g - 1)
    put(7)
    A("v_cmp_eq_u32 vcc, -1, v96\ns_cbranch_vccz KV_ok\ns_sub_u32 s68, s68, 1\ns_cbranch_scc0 KV_rty")
    A.label("KV_ok")
    lds_inc(A, W_KVL, 4, 5)
    A("s_mov_b32 s50, 0x00f0000f\ns_mov_b32 s51, 0xf0000f00\ns_waitcnt lgkmcnt(0)")
    def slices(dual):
        q = Q(A, "lgkmcnt", 15)
        order = [5, 0, 1, 2, 3, 4]
        acc2 = [64, 68, 72, 76, 80, 84]
        seq = [(t, c) for t in order for c in range(5)]
        NB = len(FBUF)
        def rdA(lo, hi):
            A("s_mov_b64 exec, s[50:51]")
            for n in range(lo, min(hi, 30)):
                t, c = seq[n]
                A(f"ds_read_b128 {v(FBUF[n % NB],4)}, v18 offset:{t*320+c*16}"); q.issue(n)
            A("s_mov_b64 exec, -1")
        rdA(0, 10)
        for k, t in enumerate(order):
            for c in range(5):
                n = 5 * k + c
                q.wait({n})
                A(f"v_mfma_f32_16x16x32_bf16 {v(40+4*t,4)}, {v(FBUF[n % NB],4)}, {v(100+4*c,4)}, {'0' if c==0 else v(40+4*t,4)}")
                if dual: A(f"v_mfma_f32_16x16x32_bf16 {v(acc2[t],4)}, {v(FBUF[n % NB],4)}, {v(120+4*c,4)}, {'0' if c==0 else v(acc2[t],4)}")
            if 5 * k + 10 < 30: rdA(5 * k + 10, 5 * k + 15)
            if k == 2:
                A("v_add_f32 v60, 0x358637bd, v60\nv_rcp_f32 v60, v60")
                if dual: A("v_add_f32 v84, 0x358637bd, v84\nv_rcp_f32 v84, v84")
        for (ac, den, O, so) in [(40, 60, 20, 44)] + ([(64, 84, 30, 60)] if dual else []):
            for k in range(10):
                r = ac + 2 * k
                A(f"v_pk_mul_f32 {v(r,2)}, {v(r,2)}, {v(den,2)} op_sel_hi:[1,0]\nv_cvt_pk_bf16_f32 v{O+k}, v{r}, v{r+1}")
            A(f"""buffer_store_dwordx4 {v(O,4)}, v6, s[20:23], s{so} offen sc1
            buffer_store_dwordx4 {v(O+4,4)}, v6, s[20:23], s{so+1} offen sc1
            buffer_store_dwordx2 {v(O+8,2)}, v7, s[20:23], s{so+2} offen sc1""")
    A("s_cmp_eq_u32 s65, 0\ns_cbranch_scc1 P2_a_s1")
    slices(True)
    A("s_branch P2_a_4")
    A.label("P2_a_s1")
    slices(False)
    A("s_branch P2_a_4")
    A.label("P2_a_3")
    wo_loads(A, range(1, 5))
    lds_inc(A, W_KVS, 4, 5)
    A.label("P2_a_4")
    prof_stamp(A, 10)
    wo_loads(A, [0])
    leader_wait(A, "AO", "s_cmp_eq_u32 s35, 0", f"""s_mul_i32 s37, s32, {74*4096}
    s_add_u32 s37, s37, {WS_AF + 56*4096 + 3*1024 + 124}
    v_bfe_u32 v4, v0, 3, 2
    v_mul_u32_u24 v4, {5*4096}, v4
    v_bfe_u32 v5, v0, 2, 1
    v_lshl_add_u32 v4, v5, 9, v4
    v_and_b32 v5, 3, v0
    v_lshl_add_u32 v4, v5, 7, v4""", "buffer_load_dword v5, v4, s[20:23], s37 offen sc1", 5, "data", W_O, 4)
    prof_stamp(A, 6)
    A(f"s_mov_b32 s68, {SPIN_MAX}")
    qv = Q(A, "vmcnt", 63)
    def ld(i, model=True, E=A):
        E(f"s_add_u32 s42, s40, {((i+1)%5)*4096}")
        for T in range(4):
            r = 84 + 16 * (i % 3) + 4 * T
            if (i + 1) % 5 == 2:
                E(f"buffer_load_dwordx2 {v(r,2)}, v139, s[20:23], s42 offen offset:{T*1024} sc1\nbuffer_load_dwordx2 {v(r+2,2)}, v139, s[20:23], s42 offen offset:{T*1024+512} sc1")
                if model: qv.issue(i)
            else: E(f"buffer_load_dwordx4 {v(r,4)}, v2, s[20:23], s42 offen offset:{T*1024} sc1")
            if model: qv.issue(i)
    oo = [1, 2, 3, 4, 0]
    A("v_lshlrev_b32 v139, 3, v0")
    ld(0); ld(1); ld(2)
    A(f"s_mul_i32 s36, s35, 20480\ns_add_u32 s36, s36, {APART}")
    skew_addr(A, 134, 132, 133, "s36")
    for i in range(5):
        qv.wait({i})
        b = 84 + 16 * (i % 3)
        A(f"s_branch P2_chk{i}")
        A.label(f"P2_rty{i}")
        A(f"s_sub_u32 s68, s68, 1\ns_cbranch_scc1 P2_ok{i}\ns_sleep 2")
        ld(i, False)
        A("s_waitcnt vmcnt(0)")
        A.label(f"P2_chk{i}")
        A(f"v_max3_u32 v132, v{b}, v{b+1}, v{b+2}")
        for k in range(3, 15, 2): A(f"v_max3_u32 v132, v132, v{b+k}, v{b+k+1}")
        A(f"v_max_u32 v132, v132, v{b+15}\nv_cmp_eq_u32 vcc, -1, v132\ns_cbranch_vccnz P2_rty{i}")
        A.label(f"P2_ok{i}")
        if i == 0: prof_stamp(A, 11)
        S = Buf()
        if 1 <= i <= 2: ld(i + 2, True, S)
        M = [f"v_mfma_f32_16x16x32_bf16 {v(4+4*(T*5+ct),4)}, {v(WOB+20*oo[i]+4*ct,4)}, {v(b+4*T,4)}, {'0' if i==0 else v(4+4*(T*5+ct),4)}" for ct in range(5) for T in range(4)]
        weave(A, M, S.l, 0, 2)
    lds_spin(A, "AS", W_SD, "4", 132, 133)
    prof_stamp(A, 12)
    for t in range(20): A(f"ds_write_b128 v{134+t%5}, {v(4+4*t,4)} offset:{t*1024}")
    A("s_waitcnt lgkmcnt(0)")
    lds_inc(A, W_AP, 132, 133)
    endpgm(A, 1)

def p2_stream(A, nl, tag):
    AP, BP, NA = 84, 148, NAD
    isL = lambda k: 4 <= k < 4 + nl
    if nl == 0: bslot = {k: k % 5 for k in range(14)}
    else:
        bslot = {0: 0, 1: 1, 2: 2, 3: 3, 11: 0, 12: 1, 13: 2}
        for k in range(4, 11): bslot[k] = 4 - (k % 2)
    q = Q(A, "vmcnt", 63); ql = Q(A, "lgkmcnt", 15)
    def ldB(k, E=A):
        b = BP + 20 * bslot[k]
        rot_off(E, 43, 41, k, 5120)
        for ct in range(4): E(f"buffer_load_dwordx4 {v(b+4*ct,4)}, v2, s[20:23], s43 offen offset:{ct*1024} {BSC}"); q.issue(("B", k))
        E(f"buffer_load_dwordx4 {v(b+16,4)}, v3, s[20:23], s43 offen {BSC}"); q.issue(("B", k))
    def rdB(k, E=A):
        b = BP + 20 * bslot[k]; i = k - 4
        for ct in range(5): E(f"ds_read_b128 {v(b+4*ct,4)}, v{248+i//3} offset:{(i%3)*20480+ct*1024}"); ql.issue(k)
    def ldA(k, model=True, E=A):
        rot_off(E, 42, 40, k, 4096)
        for T in range(4):
            E(f"buffer_load_dwordx4 {v(AP+16*(k%4)+4*T,4)}, v2, s[20:23], s42 offen offset:{T*1024} sc1")
            if model: q.issue(("A", k))
    hsent = "hsent" in EXP
    early = nl == 0 or not hsent
    if early:
        for k in range(5 if nl == 0 else 4): ldB(k)
    else:
        A(f"s_cmp_eq_u32 s57, {OOB+4}\ns_cbranch_scc0 {tag}_nopp")
    if "p2touch" in EXP: code_warm(A, tag + "_ct", "K1_end", "s35", 254, 255, "P2_stream", back=True)
    prof_stamp(A, 8)
    if hsent:
        leader_wait(A, tag + "H", "s_cmp_eq_u32 s35, 0", f"v_min_u32 v4, 17, v0\nv_mul_u32_u24 v4, {3*4096}, v4\ns_add_u32 s36, s40, 4092", "buffer_load_dword v5, v4, s[20:23], s36 offen sc1", 5, "data", W_CH, 4)
    else:
        leader_wait(A, tag + "H", "s_cmp_eq_u32 s35, 0", f"s_lshl_b32 s36, s32, 7\ns_add_u32 s36, s36, {F_CH+F_RDY}\nv_mov_b32 v4, 0", "buffer_load_dword v5, v4, s[20:23], s36 offen sc1", 5, "1", W_CH, 4)
    if not early: A.label(f"{tag}_nopp")
    if nl and "hold" in EXP: lds_spin(A, tag + "K", W_KVL, "4", 4, 5)
    if "ahit" in EXP: A(f"s_mul_i32 s40, s33, {74*5120}\ns_add_u32 s40, s40, {WS_WF}")
    prof_stamp(A, 9)
    tick(A, None)
    for k in range(4):
        ldA(k)
        if not early: ldB(k)
    A(f"s_mov_b32 s68, {SPIN_MAX}")
    if nl:
        A(f"s_mul_i32 s36, s35, 5120\nv_add_u32 v248, s36, v2\nv_add_u32 v249, {3*20480}, v248\nv_add_u32 v250, {6*20480}, v248")
    for k in range(14):
        if nl and k == 3:
            lds_spin(A, tag + "L", W_BL, "4", 251, 252)
            A(f"s_mov_b32 s68, {SPIN_MAX}")
            rdB(4)
        tick(A, 0)
        q.wait({("A", k), ("B", k)})
        tick(A, 1)
        a_ = AP + 16 * (k % 4)
        if hsent:
            A(f"s_branch {tag}_chk{k}")
            A.label(f"{tag}_rty{k}")
            A(f"s_sub_u32 s68, s68, 1\ns_cbranch_scc1 {tag}_ok{k}\ns_sleep 3")
            ldA(k, False)
            A("s_waitcnt vmcnt(0)")
            A.label(f"{tag}_chk{k}")
            A(f"v_max3_u32 v253, v{a_}, v{a_+1}, v{a_+2}")
            for j in range(3, 15, 2): A(f"v_max3_u32 v253, v253, v{a_+j}, v{a_+j+1}")
            A(f"v_max_u32 v253, v253, v{a_+15}\nv_cmp_eq_u32 vcc, -1, v253\ns_cbranch_vccnz {tag}_rty{k}")
            A.label(f"{tag}_ok{k}")
        if k == 0: prof_stamp(A, 10)
        if isL(k): ql.wait({k})
        tick(A, 3)
        S = Buf()
        if isL(k + 1) and k >= 4: rdB(k + 1, S)
        if k >= 1 and k + 3 < 14: ldA(k + 3, True, S)
        if nl == 0 and k >= 1 and k + 4 < 14: ldB(k + 4, S)
        if nl and 1 <= k <= 3: ldB(10 + k, S)
        side, cur = [], []
        for x in S.l:
            cur.append(x)
            if x.startswith(("buffer_", "ds_")): side.append("\n".join(cur)); cur = []
        b = BP + 20 * bslot[k]
        M = [f"v_mfma_f32_16x16x32_bf16 {v(4+4*(T*5+ct),4)}, {v(b+4*ct,4)}, {v(a_+4*T,4)}, {'0' if k==0 else v(4+4*(T*5+ct),4)}" for ct in range(5) for T in range(4)]
        if "snold" in EXP: side = [x for x in side if "buffer_" not in x]
        if "snomf" in EXP and k: M = M[:1]
        weave(A, M, side, 0, 2 if len(side) > 5 else 4)
        tick(A, 2)

def phase2(A):
    A.label("P2_stream")
    A(f"s_load_dwordx2 s[6:7], s[0:1], 64\ns_setprio {2 if 'auxlo' in EXP else 0}")
    lds_inc(A, W_ED, 4, 5)
    p2_flag(A, "PS")
    p2_pre(A, 0); p2_regs(A); cw_wait(A, "PSW")
    A("s_waitcnt lgkmcnt(0)")
    srd(A, 24, 6, 2621440)
    prof_stamp(A, 7)
    A("s_cmp_eq_u32 s34, 1\ns_cbranch_scc1 P2_stream0")
    p2_stream(A, NL, "SA")
    A("s_branch P2_red")
    A.label("P2_stream0")
    if "nokvs" in EXP: A(f"s_mov_b32 s40, {OOB}\ns_mov_b32 s41, {OOB}")
    p2_stream(A, 0, "SB")
    lds_spin(A, "SK", W_KVS, "4", 251, 252)
    A.label("P2_red")
    prof_stamp(A, 11)
    A(f"""
    s_lshl_b32 s44, s32, 2
    s_add_u32 s44, s44, s35
    s_mul_i32 s44, s44, {16*1280}
    s_mul_i32 s45, s33, 160
    s_add_u32 s44, s44, s45
    v_mov_b32 v93, 0x7ffffff0
    """)
    for r in range(3):
        A(f"""v_add_u32 v90, {64*r}, v0
        v_mul_u32_u24 v91, 205, v90
        v_lshrrev_b32 v91, 11, v91           ; t
        v_mul_u32_u24 v92, 10, v91
        v_sub_u32 v92, v90, v92              ; c
        v_mul_u32_u24 v{84+r}, 1280, v91
        v_lshl_add_u32 v{84+r}, v92, 4, v{84+r}
        v_lshlrev_b32 v{87+r}, 9, v92
        v_add_u32 v91, v91, v92
        v_and_b32 v91, 15, v91
        v_lshl_add_u32 v{87+r}, v91, 4, v{87+r}""")
        if r == 2: A("v_cmp_gt_u32 vcc, 32, v0\nv_cndmask_b32 v86, v93, v86, vcc\nv_cndmask_b32 v89, 0, v89, vcc")
        A(f"buffer_load_dwordx4 {v(140+4*r,4)}, v{84+r}, s[16:19], s44 offen {NTR}")
    lds_inc(A, W_SD, 96, 97); lds_spin(A, "R1", W_SD, "4", 96, 97)
    prof_stamp(A, 4)
    for T in range(4):
        A(f"""s_sub_u32 s36, s35, {T+1}
        s_and_b32 s36, s36, 3
        s_cmp_eq_u32 s36, 3
        s_cbranch_scc1 R_own{T}
        s_add_u32 s36, s36, {3*T}
        s_mul_i32 s36, s36, 5120
        v_add_u32 v1, s36, v2""")
        for ct in range(5): A(f"ds_write_b128 v1, {v(4+4*(T*5+ct),4)} offset:{XCH+ct*1024}")
        A(f"s_branch R_nxt{T}")
        A.label(f"R_own{T}")
        for k in range(10): A(f"v_pk_mul_f32 {v(100+2*k,2)}, {v(4+20*T+2*k,2)}, 1.0 op_sel_hi:[1,0]")
        A.label(f"R_nxt{T}")
    A(f"""s_mul_i32 s36, s35, {3*5120}
    v_add_u32 v1, s36, v2
    s_mov_b32 s52, {NLOG2E}
    s_mov_b32 s53, {NLOG2E}
    s_mov_b32 s54, 1.0
    s_mov_b32 s55, 1.0
    s_waitcnt lgkmcnt(0)""")
    lds_inc(A, W_SX, 96, 97); lds_spin(A, "R2", W_SX, "4", 96, 97)
    prof_stamp(A, 7)
    for p in range(3):
        for ct in range(5): A(f"ds_read_b128 {v(4+20*p+4*ct,4)}, v1 offset:{XCH+p*5120+ct*1024}")
    A("s_waitcnt lgkmcnt(5)")
    for k in range(10): A(f"v_pk_add_f32 {v(4+2*k,2)}, {v(4+2*k,2)}, {v(24+2*k,2)}")
    A("s_waitcnt lgkmcnt(0)")
    for k in range(10): A(f"v_pk_add_f32 {v(100+2*k,2)}, {v(100+2*k,2)}, {v(44+2*k,2)}")
    for k in range(10): A(f"v_pk_add_f32 {v(100+2*k,2)}, {v(100+2*k,2)}, {v(4+2*k,2)}")
    for k in range(10): A(f"v_pk_mul_f32 {v(120+2*k,2)}, {v(100+2*k,2)}, s[52:53]")
    for i in range(20): A(f"v_exp_f32 v{120+i}, v{120+i}")
    for k in range(10): A(f"v_pk_add_f32 {v(120+2*k,2)}, {v(120+2*k,2)}, s[54:55]")
    for i in range(20): A(f"v_rcp_f32 v{120+i}, v{120+i}")
    for k in range(10): A(f"v_pk_mul_f32 {v(100+2*k,2)}, {v(100+2*k,2)}, {v(120+2*k,2)}")
    skew_addr(A, 124, 130, 131, "s36")
    for ct in range(5): A(f"ds_write_b128 v{124+ct}, {v(100+4*ct,4)} offset:{XCH+ct*1024}")
    A("s_waitcnt lgkmcnt(0)")
    for r in range(3):
        A(f"v_add_u32 v90, s36, v{87+r}\nds_read_b128 {v(100+8*r,4)}, v90 offset:{XCH}\nds_read_b128 {v(104+8*r,4)}, v90 offset:{XCH+256}")
    A(f"s_mul_i32 s36, s35, 5120\ns_add_u32 s36, s36, {APART}")
    for r in range(3): A(f"v_add_u32 v{87+r}, s36, v{87+r}\nv_add_u32 v{90+r}, {2*20480}, v{87+r}")
    prof_stamp(A, 8)
    A("s_waitcnt vmcnt(0)")
    for k in range(12): A(f"v_lshlrev_b32 v{152+2*k}, 16, v{140+k}\nv_and_b32 v{153+2*k}, 0xffff0000, v{140+k}")
    prof_stamp(A, 12)
    A("s_setprio 3")
    lds_spin(A, "R3", W_AP, "4", 96, 97)
    prof_stamp(A, 13)
    q = Q(A, "lgkmcnt", 15)
    def rds(r):
        for p in range(4):
            for h in range(2):
                A(f"ds_read_b128 {v([4,36,180][r]+8*p+4*h,4)}, v{(87 if p < 2 else 90)+r} offset:{(p%2)*20480+h*256}"); q.issue(r)
    rds(0)
    for r in range(3):
        q.wait({r})
        if r < 2: rds(r + 1)
        b = [4, 36, 180][r]
        for k in range(4):
            A(f"v_pk_add_f32 {v(b+2*k,2)}, {v(b+2*k,2)}, {v(b+8+2*k,2)}\nv_pk_add_f32 {v(b+16+2*k,2)}, {v(b+16+2*k,2)}, {v(b+24+2*k,2)}")
        for k in range(4): A(f"v_pk_add_f32 {v(b+2*k,2)}, {v(b+2*k,2)}, {v(b+16+2*k,2)}")
        for k in range(4): A(f"v_pk_fma_f32 {v(b+2*k,2)}, {v(b+2*k,2)}, {v(100+8*r+2*k,2)}, {v(152+8*r+2*k,2)}")
        for k in range(4): A(f"v_cvt_pk_bf16_f32 v{b+8+k}, v{b+2*k}, v{b+2*k+1}")
        A(f"buffer_store_dwordx4 {v(b+8,4)}, v{84+r}, s[24:27], s44 offen {OST}")
    endpgm(A, 1)
    p2_aux(A)

HEADER = open(f"cdna_kernels/{NAME}.s.ref").read().split("; Override launch")[0]

def build_single(A, aslist):
    n = NAME + "_kernel"
    t = HEADER
    t += f"; @launch kernel={n} grid=(256,1,1) block=(512,1,1) lds={K1_LDS}\n" if aslist else f"; @launch grid=(256,1,1) block=(512,1,1) lds={K1_LDS}\n"
    body = A.text()
    if "noalign" not in EXP:
        body, a_, b_ = align_pass(body); print("align: promoted", a_, "nops", b_)
    t += '.amdgcn_target "amdgcn-amd-amdhsa--gfx950"\n.text\n' + kernel_head(n) + body + "\n"
    t += '.section .rodata,"a"\n.p2align 6\n' + kernel_desc(n, 256, 100)
    return t

if __name__ == "__main__":
    if "--prof" in sys.argv: PROF = True; sys.argv.remove("--prof")
    aslist = "--list" in sys.argv or PROF
    if "--list" in sys.argv: sys.argv.remove("--list")
    for a_ in list(sys.argv):
        if a_.startswith("--thr="): THR = int(a_[6:]); sys.argv.remove(a_)
        if a_.startswith("--bsc="): BSC = a_[6:]; sys.argv.remove(a_)
        if a_.startswith("--aux="): AUXS = a_[6:]; sys.argv.remove(a_)
        if a_.startswith("--wsleep="): WSLEEP = int(a_[9:]); sys.argv.remove(a_)
        if a_.startswith("--na="): NAD = int(a_[5:]); sys.argv.remove(a_)
        if a_.startswith("--nslow="): NSLOW = int(a_[8:]); sys.argv.remove(a_)
        if a_.startswith("--rot="): ROTR, ROTC = map(int, a_[6:].split(",")); sys.argv.remove(a_)
        if a_ == "--nokrot": KROT = False; sys.argv.remove(a_)
        if a_.startswith("--pub="): PUBU = int(a_[6:]); sys.argv.remove(a_)
        if a_.startswith("--rlu="): RLU = int(a_[6:]); sys.argv.remove(a_)
        if a_.startswith("--ssleep="): SSLEEP = int(a_[9:]); sys.argv.remove(a_)
        if a_.startswith("--nt="):
            f_ = a_[5:]; NTX = 'nt' if 'x' in f_ else ''; NTW = 'nt' if 'w' in f_ else ''; NTA = 'nt' if 'a' in f_ else ''; NTR = 'nt' if 'r' in f_ else ''; sys.argv.remove(a_)
        if a_.startswith("--ntu="): NTU = int(a_[6:]); sys.argv.remove(a_)
        if a_.startswith("--cpfs="): CPFS = int(a_[7:]); sys.argv.remove(a_)
        if a_.startswith("--ost="): OST = a_[6:].replace("+", " "); sys.argv.remove(a_)
        if a_.startswith("--x="): EXP |= set(a_[4:].split(",")); sys.argv.remove(a_)
    out = sys.argv[1] if len(sys.argv) > 1 else "v5.s"
    open(out, "w").write(build_single(gen_k1(), aslist))
    print("written", out)
```

```python
import sys
from asmlib import *

NAME = "recurrent_scan__linear_kernel_hedgehog__swiglu_ffn__prompt"
USE_XN = False
WS_AF  = 0x300000
WS_WF  = 0xD00000
WS_PQ  = 0x1000000
WS_KVT = 0x1300000
WS_FLG = WS_KVT + 122880
F_CH = WS_FLG; F_CP = WS_FLG + 32 * 128; F_CK = WS_FLG + 64 * 128
F_RDY = 72 * 128
WS_KVP = 0x1400000
WS_WPF = 0x1340000
WS_ST  = 0x1380000
WS_CSP = 0x1390000
WS_SIZE = 0x10000000
LOG2E = 0x3fb8aa3b
NLOG2E = 0xbfb8aa3b
OOB = 0x7ff00000
SPIN_MAX = 100000
THR = 4
HOLDK = 0
OST = ''
CPFS = 10
NTU = 20
NTX = NTW = NTA = NTR = ''
SSLEEP = 10
PUBU = 6
RLU = 8
CX1_AFTER = [0, 0]
CXSLEEP = 6
ROTR, ROTC = 0, 0
KROT = False
NAD = 4
NSLOW = 4
AUXS = 'B'
WSLEEP = 0
OSLEEP = 8
BSC = 'sc1'
PROF = False
EXP = {"nodry", "stage", "b1", "notouch"}
HST = 'sc1'
WS_PROF = 0x2000000

def prof_start(A):
    if PROF:
        A("s_memrealtime s[98:99]")
        for i in range(14): A(f"s_mov_b32 s{81+i}, 0")
        A("s_waitcnt lgkmcnt(0)\ns_mov_b32 s80, s98")
SLOTS = [0, 1, 2, 3, 4, 5, 6, 7, 8, 10, 12, 14, 17, 19]
def prof_stamp(A, i, cyc=False, force=False):
    if "slots" in EXP and not force: return
    if PROF: A(f"s_memrealtime s[98:99]\ns_waitcnt lgkmcnt(0)\ns_mov_b32 s{81+i}, s98")
    if PROF and cyc and "cyc" in EXP: A("s_memtime s[98:99]\ns_waitcnt lgkmcnt(0)\ns_sub_u32 s81, s98, s76\ns_add_u32 s81, s81, s80")
def tick(A, slot):
    if PROF and "sacc" in EXP:
        A(f"s_memtime s[98:99]\ns_waitcnt lgkmcnt(0)")
        if slot is not None: A(f"s_sub_u32 s97, s98, s96\ns_add_u32 s{81+slot}, s{81+slot}, s97")
        else: A("s_mov_b32 s81, 0\ns_mov_b32 s82, 0\ns_mov_b32 s83, 0\ns_mov_b32 s84, 0")
        A("s_mov_b32 s96, s98")
def endpgm(A, kid):
    if PROF:
        A(f"""s_waitcnt vmcnt(0)
        s_memrealtime s[98:99]
        s_mov_b64 exec, -1
        s_lshl_b32 s96, s2, 3
        s_add_u32 s96, s96, s3
        s_lshl_b32 s96, s96, 6
        s_add_u32 s96, s96, {WS_PROF + kid*272*8*64}
        s_waitcnt lgkmcnt(0)
        s_mov_b32 s95, s98""")
        for i in range(16): A(f"v_mov_b32 v{i}, s{80+i}")
        A("v_mov_b32 v16, 0")
        for i in range(4): A(f"buffer_store_dwordx4 {v(4*i,4)}, v16, s[20:23], s96 offen offset:{16*i}")
    A("s_endpgm")

def srd(A, d, b, nbytes, off=0):
    if off: A(f"s_add_u32 s{d}, s{b}, {off}\ns_addc_u32 s{d+1}, s{b+1}, 0")
    else: A(f"s_mov_b32 s{d}, s{b}\ns_mov_b32 s{d+1}, s{b+1}")
    A(f"s_mov_b32 s{d+2}, {nbytes}\ns_mov_b32 s{d+3}, 0x20000")

def bf16_round(A, d):
    A(f"v_cvt_pk_bf16_f32 v{d}, v{d}, v{d}\nv_lshlrev_b32 v{d}, 16, v{d}")

def row16_sum(A, r):
    for k in (8, 4, 2, 1):
        A(f"v_add_f32_dpp v{r}, v{r}, v{r} row_ror:{k} row_mask:0xf bank_mask:0xf")

class Q:
    def __init__(self, A, name, mx): self.A, self.name, self.mx, self.q, self.n = A, name, mx, [], 0
    def issue(self, tag):
        self.n += 1
        self.q.append(tag); assert len(self.q) <= self.mx + (0 if self.name == "vmcnt" else 99), (self.name, len(self.q))
    def wait(self, tags):
        idx = [i for i, t in enumerate(self.q) if t in tags]
        if not idx: return
        n = len(self.q) - 1 - max(idx)
        assert n <= self.mx
        self.A(f"s_waitcnt {self.name}({n})")
        self.q = self.q[max(idx) + 1:]

def code_warm(A, tag, endlabel, piece, vt, vd, start='K1_start', back=False):
    A(f"s_getpc_b64 s[70:71]")
    A.label(tag)
    A(f"""s_add_u32 s70, s70, {start}-{tag}
    s_addc_u32 s71, s71, {-1 if start == 'K1_start' or back else 0}
    s_lshl_b32 s72, {piece}, 13
    v_lshlrev_b32 v{vt}, 7, v0
    v_add_u32 v{vt}, s72, v{vt}
    v_min_u32 v{vt}, {endlabel}-{start}, v{vt}
    global_load_dword v{vd}, v{vt}, s[70:71]""")

def stats_issue(A, q, R, cs=range(5), rb=1):
    if 0 in cs:
        A(f"""v_bfe_u32 v{R+20}, v0, 4, {rb}
        v_mul_u32_u24 v{R+20}, 1280, v{R+20}
        v_and_b32 v{R+21}, 15, v0
        v_lshl_add_u32 v{R+20}, v{R+21}, 4, v{R+20}
        s_mul_i32 s69, s66, 1280""")
    for c in cs:
        A(f"buffer_load_dwordx4 {v(R+4*c,4)}, v{R+20}, s[16:19], s69 offen offset:{256*c} {NTA if 4*c < NTU else ''}"); q.issue("ST")
def stats_part1(A, R, X):
    m = R + 20
    A(f"v_mov_b32 v{X}, 0x3f803f80")
    A(f"v_dot2_f32_bf16 v{m}, v{R}, v{X}, 0\nv_dot2_f32_bf16 v{m+1}, v{R}, v{R}, 0\nv_dot2_f32_bf16 v{X+1}, v{R+1}, v{X}, 0\nv_dot2_f32_bf16 v{X+2}, v{R+1}, v{R+1}, 0")
    for i in range(2, 20, 2):
        A(f"v_dot2_f32_bf16 v{m}, v{R+i}, v{X}, v{m}\nv_dot2_f32_bf16 v{m+1}, v{R+i}, v{R+i}, v{m+1}")
        A(f"v_dot2_f32_bf16 v{X+1}, v{R+i+1}, v{X}, v{X+1}\nv_dot2_f32_bf16 v{X+2}, v{R+i+1}, v{R+i+1}, v{X+2}")
def stats_part2(A, R, X, sidx, rb=1):
    m = R + 20; s_ = R + 21
    A(f"s_nop 2\nv_add_f32 v{m}, v{m}, v{X+1}\nv_add_f32 v{s_}, v{s_}, v{X+2}")
    for k in (8, 4, 2, 1):
        A(f"v_add_f32_dpp v{m}, v{m}, v{m} row_ror:{k} row_mask:0xf bank_mask:0xf")
        A(f"v_add_f32_dpp v{s_}, v{s_}, v{s_} row_ror:{k} row_mask:0xf bank_mask:0xf")
    A(f"""v_mul_f32 v{m}, 0x3acccccd, v{m}
    v_mul_f32 v{s_}, 0x3acccccd, v{s_}
    v_fma_f32 v{s_}, -v{m}, v{m}, v{s_}
    v_max_f32 v{s_}, 0, v{s_}""")
    bf16_round(A, m); bf16_round(A, s_)
    A(f"v_add_f32 v{s_}, 0x3727c5ac, v{s_}")
    bf16_round(A, s_)
    A(f"v_sqrt_f32 v{s_}, v{s_}")
    bf16_round(A, s_)
    A(f"""v_rcp_f32 v{s_}, v{s_}
    v_bfe_u32 v{R}, v0, 4, {rb}
    v_lshlrev_b32 v{R}, 3, v{R}
    s_lshl_b32 s67, s{sidx}, {3+rb}
    s_add_u32 s67, s67, {L_ST}
    v_add_u32 v{R}, s67, v{R}
    ds_write_b64 v{R}, {v(m,2)}""")

def signal(A, vt, which):
    A(f"s_and_b32 s67, s2, 1\ns_lshl_b32 s67, s67, 6\ns_add_u32 s67, s67, {4*which}\nv_mov_b32 v{vt}, s67")
    A(f"""v_mov_b32 v{vt+1}, 1
    s_mov_b64 exec, 1
    global_atomic_add v{vt}, v{vt+1}, s[14:15]
    s_mov_b64 exec, -1""")

def p2_map(A, rb, cb):
    A(f"""s_and_b32 s{rb}, s2, 7
    s_lshl_b32 s{rb}, s{rb}, 2
    s_lshr_b32 s{cb}, s2, 3
    s_and_b32 s67, s{cb}, 3
    s_add_u32 s{rb}, s{rb}, s67
    s_lshr_b32 s{cb}, s{cb}, 2
    s_lshl_b32 s67, s67, 1
    s_add_u32 s{cb}, s{cb}, s67
    s_and_b32 s{cb}, s{cb}, 7""")
def o_offsets(A, rb, cb, e, o0, o1, o2):
    A(f"""s_lshr_b32 s{o2}, s{cb}, 1
    s_mul_i32 s{o2}, s{o2}, 5
    s_mul_i32 s{o1}, s{rb}, 74
    s_add_u32 s{o2}, s{o2}, s{o1}
    s_add_u32 s{o2}, s{o2}, 54
    s_lshl_b32 s{o2}, s{o2}, 4
    s_add_u32 s{o2}, s{o2}, s{e}
    s_lshl_b32 s{o2}, s{o2}, 8
    s_add_u32 s{o2}, s{o2}, {WS_AF}
    s_and_b32 s67, s{cb}, 1
    s_mul_i32 s{o0}, s67, {3*4096}
    s_add_u32 s{o0}, s{o0}, s{o2}
    s_add_u32 s{o1}, s{o0}, 4096
    s_lshl_b32 s67, s67, 9
    s_add_u32 s{o2}, s{o2}, s67
    s_lshl_b32 s67, s{e}, 7
    s_sub_u32 s{o2}, s{o2}, s67
    s_add_u32 s{o2}, s{o2}, {2*4096}""")
def o_lane(A, d, t):
    A(f"v_lshrrev_b32 v{d}, 4, v0\nv_lshlrev_b32 v{d}, 10, v{d}\nv_and_b32 v{t}, 15, v0\nv_lshl_add_u32 v{d}, v{t}, 4, v{d}")
def sentinel_fill(A, q, e, vt):
    p2_map(A, 74, 75); o_offsets(A, 74, 75, e, 76, 77, 78)
    for i in range(4): A(f"v_mov_b32 v{vt+i}, -1")
    o_lane(A, vt + 5, vt + 4)
    A(f"""v_lshlrev_b32 v{vt+4}, 4, v0
    buffer_store_dwordx4 {v(vt,4)}, v{vt+5}, s[20:23], s76 offen sc1
    buffer_store_dwordx4 {v(vt,4)}, v{vt+5}, s[20:23], s77 offen sc1
    buffer_store_dwordx2 {v(vt,2)}, v{vt+5}, s[20:23], s78 offen sc1""")
    for i in range(3): q.issue("PUB")
def lds_spin(A, tag, off, expect, va, vr):
    A(f"v_mov_b32 v{va}, {L_CNT}\ns_mov_b32 s68, {SPIN_MAX*10}")
    A.label(f"{tag}_spin")
    A(f"ds_read_b32 v{vr}, v{va} offset:{off}\ns_waitcnt lgkmcnt(0)\nv_cmp_ne_u32 vcc, {expect}, v{vr}\ns_cbranch_vccz {tag}_out\ns_sub_u32 s68, s68, 1\ns_sleep 1\ns_cbranch_scc0 {tag}_spin")
    A.label(f"{tag}_out")
def lds_inc(A, off, va, vr):
    A(f"v_mov_b32 v{va}, {L_CNT}\nv_mov_b32 v{vr}, 1\ns_mov_b64 exec, 1\nds_add_u32 v{va}, v{vr} offset:{off}\ns_mov_b64 exec, -1")
def leader_wait(A, tag, lead_test, setup, load, vr, expect, off, va):
    A(f"{lead_test}\ns_cbranch_scc0 {tag}_fol")
    A(setup)
    spin(A, tag, load, vr, expect)
    lds_inc(A, off, va, vr)
    A(f"s_branch {tag}_done")
    A.label(f"{tag}_fol")
    lds_spin(A, tag + "F", off, "1", va, vr)
    A.label(f"{tag}_done")
def flag_add(A, soff, slast, vt, tag):
    A(f"""v_mov_b32 v{vt}, 1
    v_mov_b32 v{vt+1}, 0
    s_mov_b64 exec, 1
    buffer_atomic_add v{vt}, v{vt+1}, s[20:23], s{soff} offen sc0
    s_waitcnt vmcnt(0)
    v_readfirstlane_b32 s36, v{vt}
    v_mov_b32 v{vt}, 1
    s_cmp_lg_u32 s36, s{slast}
    s_cbranch_scc1 {tag}
    s_add_u32 s36, s{soff}, {F_RDY}
    buffer_store_dword v{vt}, v{vt+1}, s[20:23], s36 offen sc1""")
    A.label(tag)
    A("s_mov_b64 exec, -1")
def spin(A, tag, load, vr, expect, first=True, sleep=2):
    A(f"s_mov_b32 s68, {SPIN_MAX}")
    if not first: A(f"s_branch {tag}_chk")
    A.label(f"{tag}_spin")
    A(f"{load}\ns_waitcnt vmcnt(0)")
    A.label(f"{tag}_chk")
    cmp = f"v_cmp_eq_u32 vcc, -1, v{vr}" if expect == "data" else f"v_cmp_ne_u32 vcc, {expect}, v{vr}"
    A(f"{cmp}\ns_cbranch_vccz {tag}_out\ns_sub_u32 s68, s68, 1\ns_cbranch_scc1 {tag}_out\ns_sleep {sleep}\ns_branch {tag}_spin")
    A.label(f"{tag}_out")

def relayout_issue(A, q, lab, D):
    A(f"""
    s_cmp_lt_u32 s30, 740
    s_cselect_b32 s76, {WS_WF}, {OOB}
    s_cselect_b32 s77, 0, {OOB}
    s_mul_i32 s74, s30, 6554
    s_lshr_b32 s74, s74, 16         ; s = U/10
    s_mul_i32 s75, s74, 10
    s_sub_u32 s75, s30, s75         ; cq
    s_cmp_lt_u32 s74, 54
    s_cselect_b32 s4, s72, s70
    s_cselect_b32 s5, s73, s71
    s_mov_b32 s6, {640*1280}
    s_cselect_b32 s6, {1728*1280}, s6
    s_mov_b32 s7, 0x20000
    s_cselect_b32 s31, 4, 20        ; row step per lane group
    s_lshl_b32 s36, s74, 5          ; base (w_down)
    s_mov_b32 s38, 16               ; half step
    s_cmp_lt_u32 s74, 54
    s_cbranch_scc1 {lab}
    s_sub_u32 s33, s74, 54          ; s'
    s_mul_i32 s36, s33, 205
    s_lshr_b32 s36, s36, 10         ; P
    s_mul_i32 s48, s36, 5
    s_sub_u32 s33, s33, s48         ; ty
    s_mul_i32 s36, s36, 160
    s_lshl_b32 s48, s33, 3
    s_cmp_ge_u32 s33, 3
    s_cselect_b32 s47, 56, 0
    s_add_u32 s48, s48, s47
    s_add_u32 s36, s36, s48
    s_cmp_eq_u32 s33, 2
    s_cselect_b32 s38, 80, 4
    """.replace(f"s_cselect_b32 s76, {WS_WF}, {OOB}", f"s_mov_b32 s76, {OOB}\n    s_cselect_b32 s76, {WS_WF}, s76"))
    A.label(lab)
    A(f"""
    v_lshrrev_b32 v8, 5, v0
    v_mul_lo_u32 v8, v8, s38
    v_bfe_u32 v9, v0, 3, 2
    v_add_u32 v8, v8, v9
    v_mul_u32_u24 v8, 1280, v8
    v_and_b32 v9, 7, v0
    v_lshl_add_u32 v8, v9, 4, v8
    s_mul_i32 s36, s36, 1280
    s_lshl_b32 s47, s75, 7          ; cq*128
    s_add_u32 s47, s47, s36
    s_add_u32 s47, s47, s77
    s_mul_i32 s31, s31, 1280
    """)
    for g in range(4):
        A(f"buffer_load_dwordx4 {v(D+4*g,4)}, v8, s[4:7], s47 offen {NTR}"); q.issue("RL")
        if g < 3: A("s_add_u32 s47, s47, s31")
def relayout_finish(A, q, D, O, part):
    if part == 0: relayout_fin0(A, q, D)
    else: relayout_fin1(A, q, O)
def relayout_fin0(A, q, D):
    A(f"""
    s_add_u32 s47, s43, {((RLU // 2 + 2) % 3) * XSLOT + 4096}
    v_lshlrev_b32 v10, 4, v0
    v_add_u32 v8, s47, v10
    v_lshrrev_b32 v9, 4, v0
    v_lshlrev_b32 v9, 10, v9
    v_bfe_u32 v11, v0, 2, 2
    v_lshl_add_u32 v9, v11, 7, v9
    v_and_b32 v11, 3, v0
    v_lshl_add_u32 v9, v11, 3, v9
    v_add_u32 v9, s47, v9""")
    q.wait({"RL"})
    for g in range(4): A(f"ds_write_b128 v8, {v(D+4*g,4)} offset:{g*1024}")
def mark_fill(A, q, D):
    A(f"""s_mul_i32 s31, s30, 3277
    s_lshr_b32 s31, s31, 16
    s_mul_i32 s31, s31, 54
    s_add_u32 s31, s31, s30
    s_add_u32 s31, s31, 54
    s_lshl_b32 s31, s31, 12
    s_add_u32 s31, s31, {WS_AF}
    s_lshl_b32 s33, s30, 12
    s_add_u32 s33, s33, {WS_KVP - 640*4096}
    s_cmp_lt_u32 s30, 640
    s_cselect_b32 s31, s31, s33
    s_cmp_lt_u32 s30, 768
    s_cselect_b32 s31, s31, {OOB}
    v_lshlrev_b32 v{D+4}, 4, v0""")
    for i in range(4): A(f"v_mov_b32 v{D+i}, -1")
    for T in range(4): A(f"buffer_store_dwordx4 {v(D,4)}, v{D+4}, s[20:23], s31 offen offset:{T*1024} sc1"); q.issue("RS")
def relayout_fin1(A, q, O):
    A("s_waitcnt lgkmcnt(0)")
    for tq in range(4):
        A(f"ds_read_b64_tr_b16 {v(O+4*tq,2)}, v9 offset:{tq*32}\nds_read_b64_tr_b16 {v(O+2+4*tq,2)}, v9 offset:{tq*32+512}")
    for tq in range(4):
        A(f"""s_lshl_b32 s47, s75, 2
        s_add_u32 s47, s47, {tq}          ; gt
        s_mul_i32 s48, s47, 205
        s_lshr_b32 s48, s48, 10          ; cb
        s_mul_i32 s49, s48, 5
        s_sub_u32 s47, s47, s49          ; ct
        s_mul_i32 s48, s48, 74
        s_add_u32 s48, s48, s74
        s_mul_i32 s48, s48, 5
        s_add_u32 s48, s48, s47
        s_lshl_b32 s48, s48, 10
        s_add_u32 s48, s48, s76
        s_waitcnt lgkmcnt({6-2*tq})
        buffer_store_dwordx4 {v(O+4*tq,4)}, v10, s[20:23], s48 offen sc1""")
        q.issue("RS")

def wpf_issue(A, D=16):
    A(f"""
    s_mul_i32 s31, s30, 4370
    s_lshr_b32 s31, s31, 16          ; hg = F/15
    s_mul_i32 s32, s31, 15
    s_sub_u32 s32, s30, s32
    s_mul_i32 s33, s32, 86
    s_lshr_b32 s33, s33, 8           ; tau
    s_mul_i32 s34, s33, 3
    s_sub_u32 s35, s32, s34          ; c
    s_lshl_b32 s33, s33, 2
    s_mul_i32 s39, s31, 1600
    s_add_u32 s39, s39, s33
    v_bfe_u32 v4, v0, 2, 2           ; head_out
    v_and_b32 v5, 3, v0
    v_mul_u32_u24 v6, 400, v4
    v_add_u32 v6, v6, v5
    v_add_u32 v6, s39, v6
    v_lshrrev_b32 v7, 4, v0
    v_lshlrev_b32 v7, 2, v7          ; 4*g
    s_lshl_b32 s35, s35, 5
    v_add_u32 v7, s35, v7            ; 32c + 4g
    v_mov_b32 v11, 0x7ffffff0
    """)
    for j in range(8):
        A(f"""v_add_u32 v8, {16*(j>>2)+(j&3)}, v7
        v_mul_u32_u24 v9, 205, v8
        v_lshrrev_b32 v9, 12, v9          ; head_in
        v_mul_u32_u24 v10, 20, v9
        v_sub_u32 v10, v8, v10            ; d
        v_mul_u32_u24 v10, 20, v10
        v_add_u32 v10, v10, v6
        v_lshlrev_b32 v10, 1, v10
        v_cmp_eq_u32 vcc, v9, v4
        v_cndmask_b32 v10, v11, v10, vcc
        buffer_load_ushort v{D+j}, v10, s[24:27], 0 offen""")

def k1_spare(A):
    q = Q(A, "vmcnt", 63)
    A(f"""
    s_load_dwordx2 s[60:61], s[0:1], 16
    s_load_dwordx2 s[62:63], s[0:1], 24
    s_load_dwordx2 s[64:65], s[0:1], 56
    s_lshl_b32 s58, s32, 1
    s_add_u32 s58, s58, s30
    s_sub_u32 s58, s58, 2
    s_lshl_b32 s66, s32, 8
    s_lshl_b32 s67, s28, 3
    s_add_u32 s66, s66, s67
    s_and_b32 s59, s3, 3
    s_lshl_b32 s67, s59, 1
    s_add_u32 s66, s66, s67
    """)
    if "nowarm" not in EXP:
        code_warm(A, "K1_warm", "K1_end", "s3", 100, 101)
        A(f"v_add_u32 v100, 65536, v100\nv_min_u32 v100, K1_end-K1_start, v100\nglobal_load_dword v101, v100, s[70:71]")
    stats_issue(A, q, 40)
    A("s_waitcnt lgkmcnt(0)")
    srd(A, 24, 60, 25600)
    A(f"""
    s_lshl_b32 s60, s58, 3
    s_add_u32 s60, s60, s3              ; SW 0..127
    s_min_u32 s30, s60, 119
    s_mov_b32 s61, s30
    """)
    wpf_issue(A)
    A(f"""
    v_mov_b32 v28, 0
    v_mov_b32 v29, 0
    v_mov_b32 v30, 0
    v_mov_b32 v31, 0
    v_lshlrev_b32 v3, 4, v0
    s_lshl_b32 s30, s60, 10
    s_add_u32 s30, s30, {WS_FLG}
    s_cmp_lt_u32 s60, 18
    s_cselect_b32 s30, s30, {OOB}
    buffer_store_dwordx4 v[28:31], v3, s[20:23], s30 offen sc1
    v_mov_b32 v32, {L_CNT}
    ds_write_b128 v32, v[28:31]
    ds_write_b128 v32, v[28:31] offset:16
    ds_write_b128 v32, v[28:31] offset:32
    ds_write_b128 v32, v[28:31] offset:48
    """)
    A("s_waitcnt vmcnt(1)")
    for p in range(4): A(f"v_lshl_or_b32 v{24+p}, v{17+2*p}, 16, v{16+2*p}")
    A(f"""s_lshl_b32 s30, s61, 10
    s_add_u32 s30, s30, {WS_WPF}
    buffer_store_dwordx4 v[24:27], v3, s[20:23], s30 offen sc1""")
    stats_part1(A, 40, 64); stats_part2(A, 40, 64, 59)
    A(f"""
    s_waitcnt lgkmcnt(0)
    s_barrier
    v_add_u32 v32, {L_ST}, v3
    ds_read_b128 v[36:39], v32
    s_lshr_b32 s30, s66, 3
    s_lshl_b32 s30, s30, 7
    s_add_u32 s30, s30, {WS_ST}
    s_mov_b64 exec, 0xff
    s_waitcnt lgkmcnt(0)
    buffer_store_dwordx4 v[36:39], v3, s[20:23], s30 offen sc1
    s_mov_b64 exec, -1
    s_waitcnt vmcnt(0)
    s_barrier
    s_cmp_lg_u32 s3, 0
    s_cbranch_scc1 SP_f""")
    signal(A, 32, 0)
    prof_stamp(A, 0)
    A("s_cmp_eq_u32 s58, 0\ns_cbranch_scc1 SP_watch")
    A.label("SP_f")
    A(f"""s_sleep {SSLEEP}
    s_sub_u32 s59, s60, 1""")
    if not NTR:
        srd(A, 4, 62, 640 * 1280); srd(A, 8, 64, 1728 * 1280)
        A("v_lshlrev_b32 v102, 7, v0\ns_lshl_b32 s30, s59, 13")
        for k in range(3): A(f"buffer_load_dword v103, v102, s[8:11], s30 offen\ns_add_u32 s30, s30, {127*8192}")
        A("s_lshl_b32 s30, s59, 13\nbuffer_load_dword v103, v102, s[4:7], s30 offen")
    prof_stamp(A, 1)
    A("s_cmp_eq_u32 s58, 0\ns_cbranch_scc1 SP_w\ns_cmp_lg_u32 s3, 0\ns_cbranch_scc1 SP_w\ns_branch SP_fol")
    A.label("SP_watch")
    ready_addr(A, 32)
    A(f"v_mov_b32 v34, 1\nv_mov_b32 v35, 0x80\ns_mov_b32 s30, 120\nv_writelane_b32 v35, s30, 2\nv_writelane_b32 v35, s30, 3\ns_mov_b64 s[70:71], 15\ns_mov_b32 s68, {SPIN_MAX}")
    A.label("SW_spin")
    A("""s_mov_b64 exec, s[70:71]
    global_load_dword v33, v32, s[14:15] sc1
    s_waitcnt vmcnt(0)
    v_cmp_eq_u32 vcc, v35, v33
    s_andn2_b64 s[70:71], s[70:71], vcc
    s_and_b64 exec, exec, vcc
    s_cbranch_execz SW_none
    global_store_dword v32, v34, s[14:15] offset:128 sc1""")
    A.label("SW_none")
    A("""s_cmp_eq_u64 s[70:71], 0
    s_cbranch_scc1 SW_out
    s_sub_u32 s68, s68, 1
    s_cbranch_scc1 SW_out
    s_sleep 6
    s_branch SW_spin""")
    A.label("SW_out")
    A("s_mov_b64 exec, -1\ns_branch SP_w")
    A.label("SP_fol")
    ready_addr(A, 32)
    spin(A, "SPG", "global_load_dword v33, v32, s[14:15] offset:128 sc1", 33, "1", sleep=8)
    A.label("SP_w")
    A(f"s_barrier\ns_mov_b32 s34, 0\ns_mov_b32 s57, {OOB+4}\ns_cmp_lt_u32 s3, 4\ns_cbranch_scc1 P2_stream")
    A("s_branch P2_aux")

def ready_addr(A, vr):
    A(f"v_and_b32 v{vr}, 1, v0\nv_lshlrev_b32 v{vr}, 6, v{vr}\nv_and_b32 v{vr+1}, 2, v0\nv_lshl_add_u32 v{vr}, v{vr+1}, 1, v{vr}")

def dual_softmax(A, P, E, OUT, T, SL):
    mx, mn = T, T + 2
    lo = SL.replace("[", "").split(":")[0]
    A(f"v_max3_f32 v{mx}, v{P}, v{P+1}, v{P+2}\nv_min3_f32 v{mn}, v{P}, v{P+1}, v{P+2}")
    for i in range(3, 19, 2):
        A(f"v_max3_f32 v{mx}, v{mx}, v{P+i}, v{P+i+1}\nv_min3_f32 v{mn}, v{mn}, v{P+i}, v{P+i+1}")
    A(f"v_max_f32 v{mx}, v{mx}, v{P+19}\nv_min_f32 v{mn}, v{mn}, v{P+19}")
    A(f"v_mul_f32 v{mx}, {lo}, v{mx}\nv_mul_f32 v{mn}, {lo}, v{mn}")
    for k in range(10):
        A(f"v_pk_fma_f32 {v(E+2*k,2)}, {v(P+2*k,2)}, {SL}, {v(mx,2)} op_sel_hi:[1,0,0] neg_lo:[0,0,1] neg_hi:[0,0,1]")
        A(f"v_pk_fma_f32 {v(E+20+2*k,2)}, {v(P+2*k,2)}, {SL}, {v(mn,2)} op_sel_hi:[1,0,0] neg_lo:[1,0,0] neg_hi:[1,0,0]")
    for i in range(40): A(f"v_exp_f32 v{E+i}, v{E+i}")
    sp, sm = T, T + 2
    A(f"v_pk_add_f32 {v(sp,2)}, {v(E,2)}, {v(E+2,2)}\nv_pk_add_f32 {v(sm,2)}, {v(E+20,2)}, {v(E+22,2)}")
    for k in range(2, 10):
        A(f"v_pk_add_f32 {v(sp,2)}, {v(sp,2)}, {v(E+2*k,2)}\nv_pk_add_f32 {v(sm,2)}, {v(sm,2)}, {v(E+20+2*k,2)}")
    A(f"v_add_f32 v{sp}, v{sp}, v{sp+1}\nv_add_f32 v{sm}, v{sm}, v{sm+1}")
    A(f"v_rcp_f32 v{sp}, v{sp}\nv_rcp_f32 v{sm}, v{sm}")
    for k in range(10):
        A(f"v_pk_mul_f32 {v(E+2*k,2)}, {v(E+2*k,2)}, {v(sp,2)} op_sel_hi:[1,0]")
        A(f"v_pk_mul_f32 {v(E+20+2*k,2)}, {v(E+20+2*k,2)}, {v(sm,2)} op_sel_hi:[1,0]")
    for k in range(20):
        A(f"v_cvt_pk_bf16_f32 v{OUT+k}, v{E+2*k}, v{E+2*k+1}")

class Buf:
    def __init__(self): self.l = []
    def __call__(self, t): self.l += [x.strip() for x in t.strip("\n").split("\n") if x.strip()]
def weave(A, main, side, first, step):
    side = list(side)
    for i, m in enumerate(main):
        A(m)
        if side and i >= first and (i - first) % step == 0: A(side.pop(0))
    for x in side: A(x)
def softmax_inplace(B, P, E, T, SL):
    mx, mn = T, T + 2
    lo = SL.replace("[", "").split(":")[0]
    B(f"v_max3_f32 v{mx}, v{P}, v{P+1}, v{P+2}\nv_min3_f32 v{mn}, v{P}, v{P+1}, v{P+2}")
    for i in range(3, 19, 2):
        B(f"v_max3_f32 v{mx}, v{mx}, v{P+i}, v{P+i+1}\nv_min3_f32 v{mn}, v{mn}, v{P+i}, v{P+i+1}")
    B(f"v_max_f32 v{mx}, v{mx}, v{P+19}\nv_min_f32 v{mn}, v{mn}, v{P+19}")
    B(f"v_mul_f32 v{mx}, {lo}, v{mx}\nv_mul_f32 v{mn}, {lo}, v{mn}")
    for k in range(10):
        B(f"v_pk_fma_f32 {v(E+2*k,2)}, {v(P+2*k,2)}, {SL}, {v(mn,2)} op_sel_hi:[1,0,0] neg_lo:[1,0,0] neg_hi:[1,0,0]")
        B(f"v_pk_fma_f32 {v(P+2*k,2)}, {v(P+2*k,2)}, {SL}, {v(mx,2)} op_sel_hi:[1,0,0] neg_lo:[0,0,1] neg_hi:[0,0,1]")
    for i in range(20): B(f"v_exp_f32 v{P+i}, v{P+i}\nv_exp_f32 v{E+i}, v{E+i}")
    B(f"v_pk_add_f32 {v(mx,2)}, {v(P,2)}, {v(P+2,2)}\nv_pk_add_f32 {v(mn,2)}, {v(E,2)}, {v(E+2,2)}")
    for k in range(2, 10):
        B(f"v_pk_add_f32 {v(mx,2)}, {v(mx,2)}, {v(P+2*k,2)}\nv_pk_add_f32 {v(mn,2)}, {v(mn,2)}, {v(E+2*k,2)}")
    B(f"v_add_f32 v{mx}, v{mx}, v{mx+1}\nv_add_f32 v{mn}, v{mn}, v{mn+1}\nv_rcp_f32 v{mx}, v{mx}\nv_rcp_f32 v{mn}, v{mn}")
    for k in range(10):
        B(f"v_pk_mul_f32 {v(P+2*k,2)}, {v(P+2*k,2)}, {v(mx,2)} op_sel_hi:[1,0]")
        B(f"v_pk_mul_f32 {v(E+2*k,2)}, {v(E+2*k,2)}, {v(mn,2)} op_sel_hi:[1,0]")
    for k in range(10): B(f"v_cvt_pk_bf16_f32 v{P+k}, v{P+2*k}, v{P+2*k+1}")
    for k in range(10): B(f"v_cvt_pk_bf16_f32 v{P+10+k}, v{E+2*k}, v{E+2*k+1}")

XSLOT = 8192; XWAVE = 3 * XSLOT; WBASE = 4 * XWAVE
NWS = 5
PHI_P = 336; V_P = 208; PHI_BASE = 0; V_BASE = 256 * PHI_P
L_ST = 159744; L_CS = L_ST + 2048; L_CNT = L_CS + 1024
K1_LDS = 160 * 1024
NL = 7
KVB = 4 * NL * 5120
W_KVS, W_BL, W_CK, W_CH, W_CW, W_CP, W_SD, W_SX, W_AP, W_K1, W_K2, W_Q, W_ED, W_O, W_KVL = [4 * k for k in range(15)]
XCH = 0; APART = 12 * 5120
def wpf_lds(i): return (i >> 3) * XWAVE + XSLOT + (i & 7) * 1024

def k1_loader(A, gu, nW, tag, light=False):
    WU = 12288 if gu else 10240
    NCH = 12 if gu else 10
    q = Q(A, "vmcnt", 63)
    def X(j, half=None):
        for e in (range(8) if half is None else range(4 * half, 4 * half + 4)):
            if e % 4 == 0: A(f"s_add_u32 s47, s78, {j}\ns_sub_u32 s48, s47, 10\ns_cselect_b32 s47, s47, s48\ns_lshl_b32 s47, s47, 7\ns_add_u32 s47, s47, s40")
            A(f"s_add_u32 s48, s47, {e*8*1280}\ns_add_u32 m0, s43, {(j%3)*XSLOT + e*1024}\ns_nop 0")
            A(f"buffer_load_dwordx4 v{2+(e&1)}, s[16:19], s48 offen {NTX if 2*j < NTU else ''} lds"); q.issue(("X", j))
    def W(u):
        A(f"s_lshl_b32 s49, s78, 1\ns_add_u32 s49, s49, {u}\ns_sub_u32 s48, s49, 20\ns_cselect_b32 s49, s49, s48\ns_mul_i32 s49, s49, s42")
        for e in range(nW):
            A(f"s_add_u32 m0, s{44+e}, {WBASE + (u%NWS)*WU}\ns_nop 0")
            A(f"buffer_load_dwordx4 v{4+e}, s[24:27], s49 offen {NTW if u < NTU else ''} lds"); q.issue(("W", u))
    R, XU, C, CA = 16, 40, 80, 120
    def aux_issue(p):
        if 'noaux' in EXP or light: return
        stats_issue(A, q, R, [p])
        for i in range(2):
            A(f"s_mul_i32 s48, s51, {32*p + i}\ns_add_u32 s48, s48, s50")
            A(f"buffer_load_dwordx4 {v(C+4*(2*p+i),4)}, v7, s[24:27], s48 offen {NTA if 4*p < NTU else ''}"); q.issue("CS")
    def cs_sel():
        A(f"v_and_b32 v{CA+8}, 15, v0")
        for k in range(4):
            A(f"""v_cmp_eq_u32 vcc, {2*k}, v{CA+8}
            v_cndmask_b32 v{CA+4+k}, 0, v{CA+9}, vcc
            v_cmp_eq_u32 vcc, {2*k+1}, v{CA+8}
            v_cndmask_b32 v{CA+4+k}, v{CA+4+k}, v{CA+10}, vcc""".replace("v_cmp_eq_u32 vcc, 0,", f"v_mov_b32 v{CA+9}, 0x3f80\nv_mov_b32 v{CA+10}, 0x3f800000\nv_cmp_eq_u32 vcc, 0,"))
    def cs_acc():
        for i in range(10): A(f"v_mfma_f32_16x16x32_bf16 {v(CA,4)}, {v(CA+4,4)}, {v(C+4*i,4)}, {'0' if i==0 else v(CA,4)}")
    def cs_fin():
        msk = (1 << NCH) - 1
        A(f"""v_and_b32 v{C}, 15, v0
        v_lshlrev_b32 v{C}, 5, v{C}
        v_lshrrev_b32 v{C+1}, 4, v0
        v_lshl_add_u32 v{C}, v{C+1}, 4, v{C}
        s_mul_i32 s48, s41, 384
        s_add_u32 s48, s48, {L_ST+128}
        v_add_u32 v{C}, s48, v{C}
        s_mov_b64 exec, {msk | (msk << 16)}
        ds_write_b128 v{C}, {v(CA,4)}
        s_mov_b64 exec, -1
        s_waitcnt lgkmcnt(0)""")
    def only0(name, f):
        A(f"s_cmp_lg_u32 s41, 0\ns_cbranch_scc1 {tag}_{name}")
        f()
        A.label(f"{tag}_{name}")
    def cw_poll():
        A(f"v_and_b32 v{R}, 1, v0\nv_lshlrev_b32 v{R}, 6, v{R}\nglobal_load_dword v{R+1}, v{R}, s[14:15] offset:132 sc1")
    def wf_prefetch(i):
        if i == 0:
            A(f"""v_readlane_b32 s48, v{R+1}, 0
            v_readlane_b32 s49, v{R+1}, 1
            s_and_b32 s48, s48, s49
            s_lshr_b32 s49, s2, 3
            s_mul_i32 s49, s49, {740*128}
            s_add_u32 s49, s49, {WS_WF}
            s_cmp_eq_u32 s48, 1
            s_cselect_b32 s69, s49, {OOB}
            v_lshlrev_b32 v{R}, 7, v0""")
        for k in range(3):
            A(f"buffer_load_dword v{R+2}, v{R}, s[20:23], s69 offen\nv_add_u32 v{R}, {64*128 if 3*i+k != 10 else 36*128}, v{R}")
    def pfx(i):
        A(f"""s_cmp_lg_u32 s41, {i & 3}
        s_cbranch_scc1 {tag}_pfx{i}
        s_lshr_b32 s49, s2, 3
        s_mul_i32 s49, s49, {740*128}
        s_add_u32 s49, s49, {WS_WF + min(i*64, 740-64)*128}
        v_lshlrev_b32 v136, 7, v0
        buffer_load_dword v137, v136, s[20:23], s49 offen""")
        A.label(f"{tag}_pfx{i}")
    def poll_issue():
        A(f"v_and_b32 v{R+4}, 1, v0\nv_lshlrev_b32 v{R+4}, 6, v{R+4}\nglobal_load_dword v{R+5}, v{R+4}, s[14:15] offset:128 sc1")
        q.mark = q.n
    def poll_check():
        A(f"s_waitcnt vmcnt({q.n - q.mark})")
        spin(A, tag + "G", f"global_load_dword v{R+5}, v{R+4}, s[14:15] offset:128 sc1", R + 5, "1", first=False)
        prof_stamp(A, 5)
    def cons_issue():
        A(f"""v_lshrrev_b32 v{R}, 3, v0
        v_and_b32 v{R+1}, 7, v0
        v_lshlrev_b32 v{R+1}, 3, v{R+1}
        v_lshl_add_u32 v{R+1}, v{R}, 7, v{R+1}
        s_lshl_b32 s48, s32, 5
        s_lshl_b32 s49, s41, 3
        s_add_u32 s48, s48, s49
        s_lshl_b32 s48, s48, 7
        s_add_u32 s48, s48, {WS_ST}
        buffer_load_dwordx2 {v(R+2,2)}, v{R+1}, s[20:23], s48 offen sc1
        v_lshlrev_b32 v{R}, 3, v0
        v_lshlrev_b32 v{R+1}, 2, v0""")
        q.issue("C1")
        for i in range(16):
            if i and i % 5 == 0: A(f"s_add_u32 s53, s53, {5*768}")
            A(f"buffer_load_dword v{XU+i}, v{R+1}, s[20:23], s53 offen offset:{(i%5)*768} sc1"); q.issue("C1")
        if not gu:
            A(f"v_lshlrev_b32 v{R+4}, 4, v0")
            for e in range(8):
                A(f"s_add_u32 s48, s54, {e*1024}\ns_cmp_lt_u32 {e}, s55\ns_cselect_b32 s48, s48, {OOB}")
                A(f"buffer_load_dwordx4 {v(C+4*e,4)}, v{R+4}, s[20:23], s48 offen sc1"); q.issue("C2")
    def cons_fin():
        q.wait({"C1"})
        A(f"s_lshl_b32 s48, s41, 9\ns_add_u32 s48, s48, {L_ST}\nv_add_u32 v{R}, s48, v{R}\nds_write_b64 v{R}, {v(R+2,2)}")
        for st in (8, 4, 2, 1):
            for i in range(st): A(f"v_add_f32 v{XU+i}, v{XU+i}, v{XU+i+st}")
        A(f"""s_mul_i32 s48, s41, 192
        s_add_u32 s48, s48, {L_CS}
        v_add_u32 v{R+1}, s48, v{R+1}
        s_mov_b32 exec_hi, 0xffff
        ds_write_b32 v{R+1}, v{XU}
        s_mov_b64 exec, -1""")
        if not gu:
            q.wait({"C2"})
            A(f"v_add_u32 v{R+4}, s43, v{R+4}")
            for e in range(8): A(f"ds_write_b128 v{R+4}, {v(C+4*e,4)} offset:{XSLOT + e*1024}")
        A(f"v_mov_b32 v{R}, {L_CNT}\nv_mov_b32 v{R+2}, 0\nv_mov_b32 v{R+3}, 0\n" + "".join(f"ds_write_b64 v{R}, {v(R+2,2)} offset:{8*k}\n" for k in range(8)) + "s_waitcnt lgkmcnt(0)")
    q.q = [("X", 0)] * 8 + [("W", 0)] * 3 + [("W", 1)] * 3
    sched = {u: [] for u in range(20)}
    def rl_issue():
        A("s_mul_i32 s30, s32, 30\ns_add_u32 s30, s30, s29\ns_lshl_b32 s30, s30, 2\ns_add_u32 s30, s30, s41\ns_waitcnt lgkmcnt(0)")
        relayout_issue(A, q, f"{tag}_rl", 140)
    AX = {"A": [-1, 0, 1, 2, 2], "B": [-1, -1, 0, 1, 2], "G": [-1, 1, 2, 3, 4], "H": [-1, 1, 3, 5, 6], "I": [0, 2, 3, 4, 5], "J": [1, 2, 3, 4, 4], "K": [2, 2, 3, 3, 4], "L": [1, 1, 2, 2, 3], "M": [3, 4, 4, 5, 5]}[AUXS]
    def ax(u):
        for p in range(5):
            if AX[p] == u: aux_issue(p)
    ax(-1)
    sched[0] += ([] if 'cx1' in EXP else [lambda: X(1)]) + [lambda: W(2), lambda: W(3), lambda: X(2, 0), cs_sel]
    sched[1] += [lambda: X(2, 1), lambda: W(4)]
    for u in range(2, 8): sched[u] += [lambda u=u: X(u // 2 + 2, u % 2), lambda u=u: W(u + 3)]
    for u in range(8): sched[u].append(lambda u=u: ax(u))
    P0 = PUBU - 2
    post = {P0: [lambda: q.wait({"CS"}), lambda: A("s_setprio 3"), cs_acc, lambda: stats_part1(A, R, XU), lambda: A("s_setprio 0")],
            P0 + 1: [lambda: A("s_setprio 3"), lambda: stats_part2(A, R, XU, 41), cs_fin, lambda: A("s_setprio 0")]}
    for u in range(8, 17):
        j = u // 2 + 2
        if j < 10: sched[u].append(lambda j=j, h=u % 2: X(j, h))
        sched[u].append(lambda u=u: W(u + 3))
    if 'norl' not in EXP and not light:
        sched[RLU - 2].append(rl_issue)
        sched[RLU - 1].append(lambda: mark_fill(A, q, 172))
        sched[RLU] += [lambda: relayout_finish(A, q, 140, 156, 0)]
        sched[RLU + 1] = [sched[RLU + 1][1], lambda: relayout_finish(A, q, 140, 156, 1), sched[RLU + 1][0]] + sched[RLU + 1][2:]
    if 'noaux' not in EXP and not light:
        for u in post: sched[u] += post[u]
    sched[RLU + 4] = [lambda: only0("cs", lambda: signal(A, 130, 1))] + sched[RLU + 4]
    if "pf" in EXP:
        sched[8] = [lambda: only0("cw", cw_poll)] + sched[8]
        for i in range(4): sched[11 + i].append(lambda i=i: only0(f"pf{i}", lambda: wf_prefetch(i)))
    def code_touch(k):
        A(f"s_lshr_b32 s73, s2, 3\ns_lshl_b32 s73, s73, 2\ns_add_u32 s73, s73, s41\ns_add_u32 s73, s73, {k}\ns_and_b32 s73, s73, 7")
        code_warm(A, f"{tag}_ct{k}", "K1_end", "s73", 132, 133, "K1_compute_end"); q.issue("CT")
    if "notouch" not in EXP and not light:
        sched[13].append(lambda: code_touch(0))
        sched[18].append(lambda: code_touch(3))
    if "pfx" in EXP:
        for i in range(12): sched[7 + i].append(lambda i=i: pfx(i))
    sched[15] = [lambda: only0("pi", poll_issue)] + sched[15]
    sched[16] += [lambda: only0("pc", poll_check)]
    if 'nocons' not in EXP: sched[17] += [cons_issue]
    sched[19] += [cons_fin]
    for u in range(20):
        if u == 1 and "b1" not in EXP:
            for f in sched[u]: f()
            continue
        q.wait({("W", u), ("X", u // 2)} | ({("W", 1)} if u == 0 and "b1" not in EXP else set()))
        if u == 0: prof_stamp(A, 3)
        if u == 8: prof_stamp(A, 4)
        A("s_barrier")
        if "slots" in EXP and u in SLOTS: prof_stamp(A, SLOTS.index(u), force=True)
        for f in sched[u]: f()
    A(f"s_barrier\ns_mov_b32 s57, {OOB}")
    if not gu: A("s_cmp_eq_u32 s34, 1\ns_cbranch_scc1 P2_stream")
    A("s_branch P2_aux")

ACC = 0
XF = 192
WFR = 224
NWF = 5
VX = 244
VW = 246
VL = 248
def acc(T, ct): return ACC + (T * 12 + ct) * 4

def k1_mainloop(A, gu):
    NT = 12 if gu else 10
    WU = 12288 if gu else 10240
    pitch = 192 if gu else 320
    LA = NWF - 1
    q = Q(A, "lgkmcnt", 15)
    def woff(n):
        u, ct = divmod(n, NT)
        o = (u % NWS) * WU
        o += (ct % 6) * 32 + (ct // 6) * 6144 if gu else ct * 32
        return o
    def rdW(n, halves=(0, 1)):
        r = WFR + 4 * (n % NWF); ad = VW + (n % NT) % 2
        for h in halves:
            A(f"ds_read_b64_tr_b16 {v(r+2*h,2)}, v{ad} offset:{woff(n)+4*pitch*h}"); q.issue(("W", n))
    def rdX(u, T):
        j, kh = divmod(u, 2)
        A(f"ds_read_b128 {v(XF+16*(u&1)+4*T,4)}, v{VX+kh} offset:{(j%3)*XSLOT + T*2048}"); q.issue(("X", u, T))
    NTOT = 20 * NT
    SIGU, HSU = PUBU + 2, 2
    def pub_read():
        A(f"ds_read_b128 v[252:255], v249"); q.issue("P0")
    def pub_store0():
        q.wait({"P0"})
        A(f"buffer_store_dwordx4 v[252:255], v250, s[20:23], s52 offen sc1\nv_lshlrev_b32 v250, 4, v{VL}\nv_add_u32 v249, {L_ST}, v250")
    def pub_read1():
        A(f"ds_read_b128 v[252:255], v249"); q.issue("P1")
    def pub_store1():
        q.wait({"P1"})
        A(f"s_mov_b64 exec, 0xff\nbuffer_store_dwordx4 v[252:255], v250, s[20:23], s53 offen sc1\ns_mov_b64 exec, -1")
    def sig(line):
        A(f"s_cmp_lg_u32 s3, 0\ns_cbranch_scc1 SG{int(gu)}{line}")
        signal(A, 252, line)
        A.label(f"SG{int(gu)}{line}")
    def hs(i):
        if i == 0: A(f"v_mov_b32 v252, -1\nv_mov_b32 v253, -1\nv_mov_b32 v254, -1\nv_mov_b32 v255, -1\nv_lshlrev_b32 v251, 4, v{VL}")
        if i % 4 == 0: A(f"s_add_u32 s51, s50, {(i//4)*4096}")
        A(f"buffer_store_dwordx4 v[252:255], v251, s[20:23], s51 offen offset:{(i%4)*1024} sc1")
    n0 = PUBU * NT - LA
    hooks = {n0: pub_read, n0 + 3: pub_store0, n0 + 4: pub_read1, n0 + 7: pub_store1, SIGU * NT - LA: lambda: sig(0)}
    if "cpf" in EXP: hooks[CPFS * NT // 10] = lambda: A("buffer_load_dword v254, v253, s[40:43], s44 offen")
    if gu and "hsent" in EXP:
        for i in range(12): hooks[HSU * NT + 3 * i] = (lambda i=i: hs(i))
    if 'nopub' in EXP: hooks = {SIGU * NT - LA: lambda: sig(0)}
    A("s_barrier")
    prof_stamp(A, 1)
    if PROF: A("s_memtime s[76:77]\ns_waitcnt lgkmcnt(0)")
    rdX(0, 0); rdW(0); rdX(0, 1); rdX(0, 2); rdX(0, 3)
    for n in range(1, LA): rdW(n)
    for n in range(NTOT):
        u, ct = divmod(n, NT)
        for T in range(4):
            q.wait({("W", n), ("X", u, T)})
            c = "0" if u == 0 else v(acc(T, ct), 4)
            A(f"v_mfma_f32_16x16x32_bf16 {v(acc(T,ct),4)}, {v(WFR+4*(n%NWF),4)}, {v(XF+16*(u&1)+4*T,4)}, {c}")
            m = n + LA
            if T == 0 and m < NTOT:
                if m == SIGU * NT: A("s_waitcnt vmcnt(0)")
                if m == 2 * NT and "cx1" in EXP: A(f"s_waitcnt vmcnt({CX1_AFTER[int(gu)]})")
                if m % NT == 0 and (m != NT or "b1" in EXP): A("s_barrier")
                rdW(m, (0,))
            if T == 1 and m < NTOT: rdW(m, (1,))
            if T == 2 and u + 1 < 20 and ct >= NT - LA: rdX(u + 1, ct - (NT - LA))
            if T == 3 and n in hooks: hooks[n]()
    prof_stamp(A, 2)
    if PROF: A("s_memtime s[78:79]\ns_waitcnt lgkmcnt(0)\ns_sub_u32 s81, s78, s76\ns_add_u32 s81, s81, s80")

CSR = 192
STR = 240
def epi_common(A, ntile, csr=None, st=(240, 242, 244, 246)):
    A(f"""
    v_lshrrev_b32 v249, 4, v{VL}
    v_lshlrev_b32 v249, 4, v249
    v_add_u32 v249, {L_CS}, v249
    v_and_b32 v250, 15, v{VL}
    v_lshlrev_b32 v250, 3, v250
    s_lshl_b32 s51, s3, 9
    s_add_u32 s51, s51, {L_ST}
    v_add_u32 v250, s51, v250
    s_waitcnt vmcnt(0)
    s_barrier
    """)
    for T in range(4): A(f"ds_read_b64 {v(st[T],2)}, v250 offset:{T*128}")
    for ct in range(ntile): A(f"ds_read_b128 {v(csr[ct] if csr else CSR+4*ct,4)}, v249 offset:{ct*64 + (64 if ntile == 10 and ct >= 5 else 0)}")
    A(f"v_lshlrev_b32 v249, 4, v{VL}\ns_waitcnt lgkmcnt(0)")
    prof_stamp(A, 3)
    if PROF: A("s_memtime s[76:77]\ns_waitcnt lgkmcnt(0)")
def dry_exit(A, ret):
    if "nodry" not in EXP: A(f"s_cmp_eq_u32 s79, 1\ns_cbranch_scc1 {ret}")
def dry_run(A, labels, ret):
    if "nodry" in EXP: return
    A("s_mov_b32 s79, 1\ns_mov_b64 exec, 0")
    for w in range(3): A(f"s_cmp_eq_u32 s3, {w}\ns_cbranch_scc1 {labels[w]}")
    A(f"s_branch {labels[3]}")
    A.label(ret)
    A("s_mov_b32 s79, 0\ns_mov_b64 exec, -1")
def center(A, r, T, ct):
    for h in range(2):
        A(f"v_pk_fma_f32 {v(r+2*h,2)}, {v(CSR+4*ct+2*h,2)}, {v(STR+2*T,2)}, {v(r+2*h,2)} op_sel_hi:[1,0,1] neg_lo:[1,0,0] neg_hi:[1,0,0]")

def k1_epi_gu(A):
    epi_common(A, 12)
    for T in range(4):
        A(f"v_mul_f32 v{252+T}, v{STR+2*T+1}, v{STR+2*T+1}\nv_mul_f32 v{STR+2*T+1}, {NLOG2E}, v{STR+2*T+1}\nv_rcp_f32 v{252+T}, v{252+T}")
    for c in range(3):
        A(f"s_add_u32 s51, s50, {c*4096}")
        for T0 in (0, 2):
            grp = [(T, acc(T, 2 * c), acc(T, 6 + 2 * c)) for T in (T0, T0 + 1)]
            sd = v(252 + T0, 2)
            for T, G, U in grp:
                for h in range(2): center(A, G + 4 * h, T, 2 * c + h); center(A, U + 4 * h, T, 6 + 2 * c + h)
            for T, G, U in grp:
                for k in range(4): A(f"v_pk_mul_f32 {v(U+2*k,2)}, {v(G+2*k,2)}, {v(U+2*k,2)}")
                for k in range(4): A(f"v_pk_mul_f32 {v(G+2*k,2)}, {v(G+2*k,2)}, {v(STR+2*T,2)} op_sel:[0,1] op_sel_hi:[1,1]")
            for T, G, U in grp:
                for i in range(8): A(f"v_exp_f32 v{G+i}, v{G+i}")
            for T, G, U in grp:
                b = T & 1
                for k in range(4): A(f"v_pk_fma_f32 {v(G+2*k,2)}, {v(G+2*k,2)}, {sd}, {sd} op_sel:[0,{b},{b}] op_sel_hi:[1,{b},{b}]")
            for T, G, U in grp:
                for i in range(8): A(f"v_rcp_f32 v{G+i}, v{G+i}")
            for T, G, U in grp:
                for k in range(4): A(f"v_pk_mul_f32 {v(U+2*k,2)}, {v(U+2*k,2)}, {v(G+2*k,2)}")
            for T, G, U in grp:
                for k in range(4): A(f"v_cvt_pk_bf16_f32 v{G+k}, v{U+2*k}, v{U+2*k+1}")
                A(f"buffer_store_dwordx4 {v(G,4)}, v249, s[20:23], s51 offen offset:{T*1024} {HST}")
    prof_stamp(A, 5, True)

WP = 192
def read_wpf(A, first):
    for tau in range(5):
        for c in range(3):
            i = first + 3 * tau + c
            base = 250 + (i >> 4)
            off = wpf_lds(i) - (i >> 4) * 2 * XWAVE
            if c < 2: A(f"ds_read_b128 {v(WP+10*tau+4*c,4)}, v{base} offset:{off}")
            else: A(f"ds_read_b64 {v(WP+10*tau+8,2)}, v{base} offset:{off}")
def normalize(A, ntile, scale_tiles):
    for T in range(4):
        for ct in range(ntile):
            center(A, acc(T, ct), T, ct)
        for ct in scale_tiles:
            for h in range(2):
                r = acc(T, ct) + 2 * h
                A(f"v_pk_mul_f32 {v(r,2)}, {v(r,2)}, {v(STR+2*T,2)} op_sel:[0,1] op_sel_hi:[1,1]")
def proj_mfma(A, D, B01, B2):
    for c in range(3):
        for tau in range(5):
            d = v(D + 4 * tau, 4)
            if c < 2: A(f"v_mfma_f32_16x16x32_bf16 {d}, {v(WP+10*tau+4*c,4)}, {v(B01+4*c,4)}, {'0' if c==0 else d}")
            else: A(f"v_mfma_f32_16x16x16_bf16 {d}, {v(WP+10*tau+8,2)}, {v(B2,2)}, {d}")

def k1_epi_kv(A):
    csr = [192, 196, 200, 204, 208, acc(0, 10), acc(0, 11), acc(1, 10), acc(1, 11), acc(2, 10)]
    ST = [acc(2, 11), acc(2, 11) + 2, acc(3, 11), acc(3, 11) + 2]
    epi_common(A, 10, csr, ST)
    def ctr(B, T, ct, scale):
        for h in range(2):
            r = acc(T, ct) + 2 * h
            B(f"v_pk_fma_f32 {v(r,2)}, {v(csr[ct]+2*h,2)}, {v(ST[T],2)}, {v(r,2)} op_sel_hi:[1,0,1] neg_lo:[1,0,0] neg_hi:[1,0,0]")
            if scale: B(f"v_pk_mul_f32 {v(r,2)}, {v(r,2)}, {v(ST[T],2)} op_sel:[0,1] op_sel_hi:[1,1]")
    A.label("DK0")
    for T in range(4):
        for ct in range(5): ctr(A, T, ct, False)
    dry_exit(A, "DK_ret")
    A(f"v_lshlrev_b32 v250, 4, v{VL}")
    read_wpf(A, 0)
    for T in range(4):
        for ct in range(5, 10):
            ctr(A, T, ct, True)
            r = acc(T, ct)
            A(f"v_cvt_pk_bf16_f32 v{r}, v{r}, v{r+1}\nv_cvt_pk_bf16_f32 v{r+1}, v{r+2}, v{r+3}")
    for T in range(4): A(f"v_mul_f32 v{252+T}, {LOG2E}, v{ST[T]+1}")
    VA = acc(3, 10)
    A(f"""
    v_and_b32 v243, 15, v{VL}
    s_lshl_b32 s51, s3, 6
    v_add_u32 v243, s51, v243            ; row (T=0)
    v_lshrrev_b32 v246, 4, v{VL}         ; g
    v_mul_u32_u24 v251, {PHI_P}, v243
    v_mul_u32_u24 v247, 80, v246
    v_add_u32 v251, v251, v247
    v_mul_u32_u24 v243, {V_P}, v243
    v_add_u32 v243, {V_BASE}, v243
    v_mul_u32_u24 v247, 48, v246
    v_add_u32 v242, v243, v247
    """)
    for c in range(5):
        A(f"""v_add_u32 v247, {4*c}, v246
        v_mul_u32_u24 v244, 205, v247
        v_lshrrev_b32 v244, 10, v244
        v_add_u32 v247, v247, v244
        v_lshl_add_u32 v{VA+c}, v247, 3, v243""")
    A("v_mov_b32 v244, 0x3f80\nv_mov_b32 v245, 0\ns_waitcnt lgkmcnt(0)")
    prof_stamp(A, 8)
    lds_inc(A, W_K1, 246, 247); lds_spin(A, "K1S", W_K1, "4", 246, 247)
    prof_stamp(A, 9)
    def kcvt(T):
        B = Buf()
        for k in range(8): B(f"v_cvt_pk_bf16_f32 v{acc(T,10)+k}, v{acc(T,0)+2*k}, v{acc(T,0)+2*k+1}")
        for k in range(2): B(f"v_cvt_pk_bf16_f32 v{acc(T,4)+k}, v{acc(T,4)+2*k}, v{acc(T,4)+2*k+1}")
        return B.l
    def proj(T):
        B = Buf(); proj_mfma(B, acc(T, 5), acc(T, 10), acc(T, 4)); return B.l
    vw = []
    for T in range(4):
        vw += [f"ds_write_b64 v{VA+c}, {v(acc(T,5+c),2)} offset:{T*16*V_P}" for c in range(5)] + [f"ds_write_b64 v242, v[244:245] offset:{T*16*V_P + 40}"]
    weave(A, kcvt(0) + kcvt(1) + kcvt(2), vw, 0, 1)
    for x in proj(0) + kcvt(3): A(x)
    for T in range(4):
        B = Buf()
        B(f"v_mov_b32 v{acc(T,11)}, v{252+T}")
        softmax_inplace(B, acc(T, 5), acc(T, 0), acc(T, 10), v(acc(T, 11), 2))
        side = (proj(T + 1) if T < 3 else []) + ([f"ds_write_b128 v251, {v(acc(T-1,5)+4*k,4)} offset:{(T-1)*16*PHI_P + 16*k}" for k in range(5)] if T else [])
        if T in (1, 2, 3) and "nodry" not in EXP:
            pass
        if T == 0: prof_stamp(A, 1)
        weave(A, B.l, [] if "noside" in EXP else side, 4, 6)
        if T == 1: prof_stamp(A, 13)
        if T == 3: prof_stamp(A, 2)
    for k in range(5): A(f"ds_write_b128 v251, {v(acc(3,5)+4*k,4)} offset:{3*16*PHI_P + 16*k}")
    A(f"""
    v_lshrrev_b32 v241, 5, v{VL}
    v_lshlrev_b32 v241, 3, v241          ; 8*(G>>1)
    v_bfe_u32 v242, v{VL}, 2, 2
    v_add_u32 v241, v241, v242
    v_bfe_u32 v242, v{VL}, 4, 1
    v_lshlrev_b32 v242, 5, v242
    v_and_b32 v243, 3, v{VL}
    v_lshl_add_u32 v242, v243, 3, v242   ; 32*(G&1)+8c
    v_mul_u32_u24 v237, {PHI_P}, v241
    v_add_u32 v237, v237, v242
    s_mul_i32 s51, s3, 80
    v_add_u32 v237, s51, v237
    v_add_u32 v239, {128*PHI_P}, v237
    v_mul_u32_u24 v238, {V_P}, v241
    v_add_u32 v238, v238, v242
    s_mul_i32 s51, s3, 48
    s_add_u32 s51, s51, {V_BASE}
    v_add_u32 v238, s51, v238
    v_and_b32 v241, 31, v{VL}
    v_lshrrev_b32 v242, 5, v{VL}
    v_lshlrev_b32 v242, 3, v242
    v_mul_u32_u24 v241, 80, v241
    s_lshl_b32 s51, s3, 11
    s_add_u32 s51, s51, {KVB}
    v_add3_u32 v242, v241, v242, s51
    v_add_u32 v241, s51, v249
    s_waitcnt lgkmcnt(0)
    """)
    lds_inc(A, W_K2, 246, 247); lds_spin(A, "K2S", W_K2, "4", 246, 247)
    prof_stamp(A, 4, True)
    q = Q(A, "lgkmcnt", 15)
    def rd(ks):
        b = 32 + 12 * (ks % 3)
        pa, po = (237, ks * 16 * PHI_P) if ks < 8 else (239, (ks - 8) * 16 * PHI_P)
        for h in range(2):
            A(f"ds_read_b64_tr_b16 {v(b+2*h,2)}, v238 offset:{ks*16*V_P + h*4*V_P}"); q.issue(ks)
        for nt in range(2):
            for h in range(2):
                A(f"ds_read_b64_tr_b16 {v(b+4+4*nt+2*h,2)}, v{pa} offset:{po + nt*64 + h*4*PHI_P}"); q.issue(ks)
    rd(0); rd(1)
    for ks in range(16):
        q.wait({ks})
        if ks + 2 < 16: rd(ks + 2)
        b = 32 + 12 * (ks % 3)
        for nt in range(2):
            A(f"v_mfma_f32_32x32x16_bf16 {v(16*nt,16)}, {v(b+4+4*nt,4)}, {v(b,4)}, {'0' if ks==0 else v(16*nt,16)}")
    prof_stamp(A, 5)
    lds_spin(A, "KCW", W_CW, "1", 246, 247)
    A("s_mov_b32 exec_lo, 0xffffff\ns_mov_b32 exec_hi, 0xffffff")
    for gi in range(5):
        r = 4 * gi
        A(f"v_cvt_pk_bf16_f32 v{r}, v{r}, v{r+1}\nv_cvt_pk_bf16_f32 v{r+1}, v{r+2}, v{r+3}\nds_write_b64 v242, {v(r,2)} offset:{16*gi}")
    A(f"""s_mov_b64 exec, -1
    s_waitcnt lgkmcnt(0)
    ds_read_b128 v[24:27], v241
    ds_read_b128 v[28:31], v241 offset:1024
    s_waitcnt lgkmcnt(1)
    buffer_store_dwordx4 v[24:27], v249, s[20:23], s57 offen sc1
    s_waitcnt lgkmcnt(0)
    buffer_store_dwordx4 v[28:31], v249, s[20:23], s57 offen offset:1024 sc1""")

def k1_epi_q(A):
    epi_common(A, 10)
    normalize(A, 10, range(10))
    A(f"v_mov_b32 v250, v249\nv_add_u32 v251, {2*XWAVE}, v249\nv_lshlrev_b32 v247, 3, v{VL}")
    for hgi in range(2):
        read_wpf(A, 15 * hgi)
        b2 = [242, 244, 252, 254]
        for T in range(4):
            src = acc(T, 5 * hgi)
            for k in range(8): A(f"v_cvt_pk_bf16_f32 v{acc(T,10)+k}, v{src+2*k}, v{src+2*k+1}")
            for k in range(2): A(f"v_cvt_pk_bf16_f32 v{b2[T]+k}, v{src+16+2*k}, v{src+17+2*k}")
        A("s_waitcnt lgkmcnt(0)")
        if hgi == 1: lds_inc(A, W_Q, 250, 251)
        def outp(T):
            src = acc(T, 5 * hgi); B = Buf()
            for k in range(10): B(f"v_cvt_pk_bf16_f32 v{src+k}, v{src+2*k}, v{src+2*k+1}")
            B(f"s_add_u32 s51, s58, {(hgi*4+T)*2560}")
            B(f"buffer_store_dwordx4 {v(src,4)}, v249, s[20:23], s51 offen {HST}")
            B(f"buffer_store_dwordx4 {v(src+4,4)}, v249, s[20:23], s51 offen offset:1024 {HST}")
            B(f"buffer_store_dwordx2 {v(src+8,2)}, v247, s[20:23], s51 offen offset:2048 {HST}")
            return B.l
        for T in range(4):
            M = Buf(); proj_mfma(M, acc(T, 5 * hgi), acc(T, 10), b2[T])
            weave(A, M.l, ["\n".join(outp(T - 1)[i:i+2]) for i in range(0, 14, 2)] if T else [], 7, 1)
        for x in outp(3): A(x)
    prof_stamp(A, 5, True)

def type_decode(A):
    A("""s_lshl_b32 s35, s30, 1
    s_add_u32 s35, s35, s31
    s_add_u32 s29, s35, 18
    s_add_u32 s36, s30, 26
    s_cmp_eq_u32 s31, 2
    s_cselect_b32 s34, 2, 1
    s_cselect_b32 s35, s30, s35
    s_cselect_b32 s29, s36, s29
    s_mul_i32 s36, s30, 5
    s_lshl_b32 s37, s30, 2
    s_add_u32 s37, s37, 2
    s_min_u32 s36, s36, s37
    s_add_u32 s36, s36, s31
    s_sub_u32 s36, s36, 3
    s_cmp_ge_u32 s31, 3
    s_cselect_b32 s34, 0, s34
    s_cselect_b32 s35, s36, s35
    s_cselect_b32 s29, s36, s29""")

def ptr_setup(A):
    A("""s_waitcnt lgkmcnt(0)
    s_mov_b32 s16, s4
    s_mov_b32 s17, s5
    s_mov_b32 s20, s14
    s_mov_b32 s21, s15
    s_mov_b32 s14, s12
    s_mov_b32 s15, s13""")

def gen_k1():
    A = Asm()
    A.label("K1_start")
    prof_start(A)
    A(f"""
    s_load_dwordx4 s[4:7], s[0:1], 0     ; x, wqkv
    s_load_dwordx4 s[8:11], s[0:1], 40
    s_load_dwordx4 s[12:15], s[0:1], 72
    s_cmp_ge_u32 s2, 256
    s_cbranch_scc1 K1_end
    {"s_lshl_b32 s3, s2, 3" if "perm" in EXP else ""}
    {"s_lshr_b32 s2, s2, 5" if "perm" in EXP else ""}
    {"s_or_b32 s2, s2, s3" if "perm" in EXP else ""}
    {"s_and_b32 s2, s2, 255" if "perm" in EXP else ""}
    v_lshrrev_b32 v1, 6, v0
    v_and_b32 v0, 63, v0
    v_readfirstlane_b32 s3, v1
    s_and_b32 s30, s2, 7                 ; xcd
    s_lshr_b32 s31, s2, 3                ; j
    s_lshr_b32 s32, s30, 2
    s_lshl_b32 s32, s32, 2
    s_and_b32 s33, s31, 3
    s_add_u32 s32, s32, s33              ; rb
    s_and_b32 s30, s30, 3                ; cg
    s_lshr_b32 s31, s31, 2               ; cslot
    s_mov_b32 s78, 0                     ; first k stage
    v_lshrrev_b32 v7, 3, v0              ; r
    v_and_b32 v8, 7, v0                  ; p
    v_lshrrev_b32 v9, 1, v7
    v_xor_b32 v8, v8, v9
    v_mul_u32_u24 v7, 1280, v7
    v_lshl_add_u32 v2, v8, 4, v7
    v_xor_b32 v3, 64, v2
    s_mov_b32 s18, 2621440
    s_mov_b32 s19, 0x20000
    s_mov_b32 s22, {WS_SIZE}
    s_mov_b32 s23, 0x20000
    s_lshl_b32 s28, s30, 3
    s_add_u32 s28, s28, s31
    s_cmp_ge_u32 s28, 23
    s_cselect_b32 s34, 7, 0
    s_and_b32 s34, s34, s31
    s_cmp_eq_u32 s34, 7
    s_cbranch_scc1 K1_spare
    s_cmp_lt_u32 s3, 4
    s_cbranch_scc1 K1_compute
    s_sub_u32 s41, s3, 4
    s_lshl_b32 s40, s32, 8
    s_lshl_b32 s36, s41, 6
    s_add_u32 s40, s40, s36
    s_mul_i32 s40, s40, 1280
    s_mul_i32 s43, s41, {XWAVE}
    """)
    ptr_setup(A)
    prof_stamp(A, 0)
    for e in range(8):
        A(f"s_add_u32 s48, s40, {e*8*1280}\ns_add_u32 m0, s43, {e*1024}\ns_nop 0\nbuffer_load_dwordx4 v{2+(e&1)}, s[16:19], s48 offen {NTX} lds")
    type_decode(A)
    A(f"""
    s_lshr_b32 s58, s41, 1               ; half
    s_and_b32 s59, s41, 1
    s_mov_b32 s26, {640*3840}
    s_mov_b32 s60, 3840
    s_mov_b32 s61, 20
    s_mov_b32 s38, {(1<<16)//20+1}
    s_mul_i32 s37, s35, 160
    s_add_u32 s37, s37, 1280
    s_mul_i32 s39, s35, 320
    s_cmp_eq_u32 s34, 2
    s_cselect_b32 s37, s39, s37
    s_cselect_b32 s39, 0, {1280-160}
    s_mul_i32 s62, s41, 3
    s_lshl_b32 s57, s41, 1
    s_add_u32 s57, s57, 2
    s_min_u32 s62, s62, s57
    s_mov_b32 s63, 9
    s_mov_b32 s64, 0
    s_mov_b32 s65, 10240
    s_cmp_eq_u32 s34, 0
    s_cbranch_scc0 K1_lp_go
    s_mov_b32 s26, {640*3456}
    s_mov_b32 s60, 3456
    s_mov_b32 s61, 12
    s_mov_b32 s38, {(1<<16)//12+1}
    s_mul_i32 s37, s35, 192
    s_mov_b32 s39, 0
    s_mul_i32 s62, s59, 3
    s_mov_b32 s63, 5
    s_mul_i32 s64, s58, 6144
    s_mov_b32 s65, 12288
    """)
    A.label("K1_lp_go")
    A("""s_mov_b32 s27, 0x20000
    s_lshl_b32 s42, s60, 5
    v_mov_b32 v10, s39
    s_cmp_lt_u32 s41, 2
    s_cselect_b32 s24, s8, s10
    s_cselect_b32 s25, s9, s11
    s_cmp_eq_u32 s34, 0
    s_cselect_b32 s24, s24, s6
    s_cselect_b32 s25, s25, s7""")
    for e in range(3):
        A(f"""s_add_u32 s36, s62, {e}
        s_min_u32 s36, s36, s63
        s_lshl_b32 s{44+e}, s36, 10
        s_add_u32 s{44+e}, s{44+e}, s64
        s_lshl_b32 s36, s36, 6
        v_add_u32 v7, s36, v0
        v_mul_u32_u24 v8, s38, v7
        v_lshrrev_b32 v8, 16, v8
        v_mul_u32_u24 v9, s61, v8
        v_sub_u32 v9, v7, v9
        v_bfe_u32 v11, v8, 3, 1
        v_lshlrev_b32 v11, 1, v11
        v_xor_b32 v9, v9, v11
        v_mul_u32_u24 v8, s60, v8
        v_lshl_add_u32 v8, v9, 4, v8
        v_cmp_le_u32 vcc, 10, v9
        v_cndmask_b32 v9, 0, v10, vcc
        v_add3_u32 v{4+e}, v8, v9, s37
        s_add_u32 m0, s{44+e}, {WBASE}
        s_nop 0
        buffer_load_dwordx4 v{4+e}, s[24:27], 0 offen {NTW} lds""")
    for e in range(3):
        A(f"s_add_u32 s36, s{44+e}, s65\ns_add_u32 m0, s36, {WBASE}\ns_nop 0\nbuffer_load_dwordx4 v{4+e}, s[24:27], s42 offen {NTW} lds")
    if "cpf" in EXP: A("s_barrier")
    A("s_load_dwordx2 s[70:71], s[0:1], 24\ns_load_dwordx2 s[72:73], s[0:1], 56")
    prof_stamp(A, 1)
    A(f"""
    s_lshl_b32 s66, s32, 8
    s_lshl_b32 s36, s28, 3
    s_add_u32 s66, s66, s36
    s_lshl_b32 s36, s41, 1
    s_add_u32 s66, s66, s36
    s_lshl_b32 s56, s32, 4
    s_lshl_b32 s57, s59, 3
    s_add_u32 s56, s56, s57
    s_lshl_b32 s52, s29, 4
    s_mul_i32 s53, s52, 768
    s_mul_i32 s57, s41, 192
    s_add_u32 s53, s53, s57
    s_add_u32 s53, s53, {WS_CSP}
    s_lshl_b32 s57, s32, 1
    s_add_u32 s52, s52, s57
    s_add_u32 s52, s52, s59
    s_mul_i32 s52, s52, 768
    s_add_u32 s52, s52, {WS_CSP}
    v_lshrrev_b32 v12, 4, v0
    v_and_b32 v13, 15, v0
    v_mov_b32 v14, 0x7ffffff0
    v_mul_lo_u32 v7, v12, s60
    v_lshl_add_u32 v7, v13, 4, v7
    s_mul_i32 s50, s56, s60
    s_add_u32 s50, s50, s37
    s_lshl_b32 s51, s60, 2
    s_cmp_eq_u32 s34, 0
    s_cbranch_scc0 K1_l_qkv
    v_cmp_gt_u32 vcc, 12, v13
    v_cndmask_b32 v7, v14, v7, vcc
    s_mul_i32 s57, s58, 384
    s_add_u32 s52, s52, s57
    """)
    k1_loader(A, True, 3, "LG")
    A.label("K1_l_qkv")
    A(f"""
    v_cmp_gt_u32 vcc, 10, v13
    v_cndmask_b32 v7, v14, v7, vcc
    s_add_u32 s39, s39, 160
    s_mul_i32 s39, s39, s58
    s_add_u32 s50, s50, s39
    s_mul_i32 s57, s58, 320
    s_add_u32 s52, s52, s57
    s_mul_i32 s54, s35, 15
    s_mov_b32 s55, 15
    s_sub_u32 s57, s34, 1
    s_lshl_b32 s54, s54, s57
    s_lshl_b32 s55, s55, s57
    s_lshl_b32 s57, s41, 3
    s_add_u32 s54, s54, s57
    s_lshl_b32 s54, s54, 10
    s_add_u32 s54, s54, {WS_WPF}
    s_max_u32 s55, s55, s57
    s_sub_u32 s55, s55, s57
    s_cmp_ge_u32 s41, 2
    s_cbranch_scc1 K1_l_qkv2
    """)
    if "kvlight" in EXP:
        A("s_cmp_eq_u32 s34, 1\ns_cbranch_scc1 K1_l_kv")
    k1_loader(A, False, 3, "LA")
    A.label("K1_l_qkv2")
    if "kvlight" in EXP:
        A("s_cmp_eq_u32 s34, 1\ns_cbranch_scc1 K1_l_kv2")
    k1_loader(A, False, 2, "LB")
    if "kvlight" in EXP:
        A.label("K1_l_kv"); k1_loader(A, False, 3, "LC", True)
        A.label("K1_l_kv2"); k1_loader(A, False, 2, "LD", True)
    A.label("K1_spare")
    ptr_setup(A)
    k1_spare(A)
    A.label("K1_compute")
    type_decode(A)
    ptr_setup(A)
    A("s_mov_b32 s79, 0")
    if "cpf" in EXP:
        A(f"""s_mul_i32 s36, s32, 30
        s_add_u32 s36, s36, s29              ; rank 0..239
        s_cmp_eq_u32 s3, 0
        s_cselect_b32 s40, s4, s6
        s_cselect_b32 s41, s5, s7
        s_mov_b32 s42, {640*3840}
        s_cselect_b32 s42, 2621440, s42
        s_cselect_b32 s44, 4, 30             ; lines per row in the first batch
        s_cselect_b32 s45, {(1<<20)//4+1}, {(1<<20)//30+1}
        s_cselect_b32 s46, 1280, 3840
        s_cselect_b32 s47, 128, {64*3840}    ; start of stage 1
        s_cselect_b32 s48, 35, 32            ; lanes used
        s_cmp_lt_u32 s3, 2
        s_cbranch_scc1 CPF_a
        s_cmp_eq_u32 s3, 2
        s_cselect_b32 s40, s8, s10
        s_cselect_b32 s41, s9, s11
        s_mov_b32 s42, {640*3456}
        s_mov_b32 s44, 27
        s_mov_b32 s45, {(1<<20)//27+1}
        s_mov_b32 s46, 3456
        s_mov_b32 s47, {64*3456}
        s_mov_b32 s48, 29""".replace(f"s_cselect_b32 s45, {(1<<20)//4+1}, {(1<<20)//30+1}", f"s_mov_b32 s45, {(1<<20)//30+1}\n        s_cselect_b32 s45, {(1<<20)//4+1}, s45").replace("s_cselect_b32 s46, 1280, 3840", "s_mov_b32 s46, 3840\n        s_cselect_b32 s46, 1280, s46").replace(f"s_cselect_b32 s47, 128, {64*3840}", f"s_mov_b32 s47, {64*3840}\n        s_cselect_b32 s47, 128, s47"))
        A.label("CPF_a")
        def batch(vd):
            A(f"""s_mul_i32 s49, s36, s48
            v_min_u32 v{vd}, s48, v0
            v_add_u32 v{vd}, s49, v{vd}
            v_mul_hi_u32 v20, v{vd}, s50
            v_mul_lo_u32 v21, v20, s44
            v_sub_u32 v21, v{vd}, v21
            v_mul_lo_u32 v20, v20, s46
            v_lshl_add_u32 v{vd}, v21, 7, v20""")
        A("s_mov_b32 s43, 0x20000\ns_lshl_b32 s50, s45, 12")
        batch(16)
        A(f"""s_cmp_eq_u32 s3, 0
        s_cselect_b32 s44, 5, s44
        s_mov_b32 s51, {((1<<20)//5+1)<<12}
        s_cselect_b32 s50, s51, s50
        s_mul_i32 s51, s47, 5
        s_mul_i32 s48, s48, 5
        s_add_u32 s48, s48, 3
        s_lshr_b32 s48, s48, 2""")
        batch(253)
        A(f"""s_mov_b32 s44, s51
        s_barrier
        buffer_load_dword v251, v16, s[40:43], s47 offen""")
    if "cx1" in EXP:
        A(f"""s_lshl_b32 s40, s32, 8
        s_lshl_b32 s36, s3, 6
        s_add_u32 s40, s40, s36
        s_mul_i32 s40, s40, 1280
        s_add_u32 s47, s78, 1
        s_sub_u32 s48, s47, 10
        s_cselect_b32 s47, s47, s48
        s_lshl_b32 s47, s47, 7
        s_add_u32 s47, s47, s40
        s_mul_i32 s43, s3, {XWAVE}
        s_sleep {CXSLEEP}""")
        for e in range(8):
            A(f"s_add_u32 s48, s47, {e*8*1280}\ns_add_u32 m0, s43, {XSLOT + e*1024}\ns_nop 0\nbuffer_load_dwordx4 v{2+(e&1)}, s[16:19], s48 offen {NTX} lds")
    A(f"""
    s_setprio 2
    v_mov_b32 v{VL}, v0
    v_and_b32 v1, 15, v0                 ; t
    v_lshrrev_b32 v2, 4, v0              ; g
    v_lshrrev_b32 v3, 1, v1              ; (t>>1)
    s_mul_i32 s36, s3, {XWAVE}
    v_lshlrev_b32 v4, 7, v1
    v_add_u32 v4, s36, v4
    v_xor_b32 v5, v2, v3
    v_lshl_add_u32 v{VX}, v5, 4, v4
    v_xor_b32 v{VX+1}, 64, v{VX}
    s_cmp_eq_u32 s34, 0
    s_mov_b32 s36, 320
    s_cselect_b32 s36, 192, s36
    v_lshlrev_b32 v4, 3, v2              ; 8g
    v_bfe_u32 v5, v0, 2, 2
    v_add_u32 v4, v4, v5
    v_mul_lo_u32 v4, v4, s36
    v_and_b32 v5, 3, v0
    v_lshl_add_u32 v4, v5, 3, v4
    v_add_u32 v4, {WBASE}, v4
    v_and_b32 v5, 1, v2
    v_lshlrev_b32 v5, 5, v5
    v_add_u32 v{VW}, v4, v5
    v_sub_u32 v{VW+1}, v4, v5
    s_lshl_b32 s37, s32, 2
    s_add_u32 s37, s37, s3               ; rb64
    s_lshl_b32 s52, s29, 4
    s_lshl_b32 s53, s32, 1
    s_add_u32 s52, s52, s53
    s_and_b32 s53, s3, 1
    s_add_u32 s52, s52, s53
    s_mul_i32 s52, s52, 768
    s_lshr_b32 s53, s3, 1
    s_mov_b32 s54, 384
    s_mul_i32 s53, s53, s54
    s_add_u32 s52, s52, s53
    s_add_u32 s52, s52, {WS_CSP}
    s_lshl_b32 s53, s32, 5
    s_add_u32 s53, s53, s28
    s_lshl_b32 s53, s53, 7
    s_add_u32 s53, s53, {WS_ST}
    s_cmp_lg_u32 s3, 0
    s_cselect_b32 s53, {OOB}, s53
    v_lshlrev_b32 v250, 4, v0
    s_mul_i32 s55, s3, 384
    s_add_u32 s55, s55, {L_ST+128}
    v_add_u32 v249, s55, v250
    v_mov_b32 v6, 0x7ffffff0
    v_cmp_gt_u32 vcc, s54, v250
    v_cndmask_b32 v250, v6, v250, vcc
    """)
    A(f"""
    s_cmp_eq_u32 s34, 0
    s_cbranch_scc0 K1_c_qkv
    s_mul_i32 s50, s37, 74
    s_mul_i32 s51, s35, 3
    s_add_u32 s50, s50, s51
    s_lshl_b32 s50, s50, 12
    s_add_u32 s50, s50, {WS_AF}
    """)
    k1_mainloop(A, True)
    A.label("K1_compute_end")
    k1_epi_gu(A)
    if "hsent" in EXP: A(f"s_mov_b32 s57, {OOB}\nv_mov_b32 v0, v{VL}")
    else: A(f"s_lshl_b32 s57, s37, 7\ns_add_u32 s57, s57, {F_CH}\ns_mov_b32 s56, 17\nv_mov_b32 v0, v{VL}")
    A("s_branch P2_stream")
    A.label("K1_c_qkv")
    A(f"""s_lshl_b32 s57, s35, 3
    s_add_u32 s57, s57, s32
    s_lshl_b32 s57, s57, 2
    s_add_u32 s57, s57, s3
    s_lshl_b32 s57, s57, 11
    s_add_u32 s57, s57, {WS_KVP}""")
    if "nodry" not in EXP:
        A("s_cmp_eq_u32 s34, 2\ns_cbranch_scc1 DK_skip")
        dry_run(A, ["DK0", "DK0", "DK0", "DK0"], "DK_ret")
        A.label("DK_skip")
    k1_mainloop(A, False)
    A(f"""
    s_cmp_eq_u32 s34, 2
    s_cbranch_scc1 K1_c_q
    """)
    k1_epi_kv(A)
    A(f"v_mov_b32 v0, v{VL}\ns_branch P2_aux")
    A.label("K1_c_q")
    A(f"""
    s_lshl_b32 s58, s37, 3
    s_lshl_b32 s51, s35, 1
    s_add_u32 s58, s58, s51
    s_mul_i32 s58, s58, {4*2560}
    s_add_u32 s58, s58, {WS_PQ}
    """)
    k1_epi_q(A)
    A(f"s_lshl_b32 s57, s37, 7\ns_add_u32 s57, s57, {F_CP}\ns_mov_b32 s56, 3\nv_mov_b32 v0, v{VL}")
    phase2(A)
    A.label("K1_end")
    A("s_endpgm")
    return A

def p2_flag(A, tag):
    A(f"s_cmp_ge_u32 s57, {OOB}\ns_cbranch_scc1 {tag}_noflag\ns_waitcnt vmcnt(0)")
    flag_add(A, 57, 56, 4, tag + "_notlast")
    A.label(f"{tag}_noflag")
    prof_stamp(A, 6)
def p2_pre(A, first):
    p2_map(A, 74, 75)
    A(f"""
    s_and_b32 s76, s3, 3
    {f"s_mul_i32 s67, s76, 5" if first else "s_mov_b32 s67, 0"}
    s_add_u32 s67, s67, {first}
    s_mul_i32 s77, s74, 74
    s_add_u32 s77, s77, s67
    s_lshl_b32 s77, s77, 12
    s_add_u32 s77, s77, {WS_AF}
    s_mul_i32 s78, s75, 74
    s_add_u32 s78, s78, s67
    s_mul_i32 s78, s78, 5120
    s_add_u32 s78, s78, {WS_WF}
    """)
    if "hsent" in EXP: A("s_mul_i32 s79, s75, 9\ns_lshr_b32 s79, s79, 2")
    else:
        A(f"""s_and_b32 s67, s74, 3
        s_mul_i32 s67, s67, {ROTR}
        s_mul_i32 s79, s75, {ROTC}
        s_add_u32 s79, s79, s67
        s_lshr_b32 s79, s79, 2
        s_sub_u32 s67, s79, 54
        s_cselect_b32 s79, s79, s67
        s_add_u32 s79, s79, s76
        s_sub_u32 s67, s79, 54
        s_cselect_b32 s79, s79, s67""")
def p2_regs(A):
    A("s_mov_b32 s32, s74\ns_mov_b32 s33, s75\ns_mov_b32 s35, s76\ns_mov_b32 s40, s77\ns_mov_b32 s41, s78\ns_mov_b32 s58, s79\nv_lshlrev_b32 v2, 4, v0\nv_add_u32 v3, 4096, v2")
def cw_wait(A, tag):
    leader_wait(A, tag, "s_cmp_eq_u32 s3, 4", "v_and_b32 v4, 1, v0\nv_lshlrev_b32 v4, 6, v4", "global_load_dword v5, v4, s[14:15] offset:132 sc1", 5, "1", W_CW, 4)
WOB = 140
def wo_loads(A, rng, q=None):
    for i in rng:
        A(f"s_add_u32 s67, s78, {i*5120}")
        for ct in range(4): A(f"buffer_load_dwordx4 {v(WOB+20*i+4*ct,4)}, v2, s[20:23], s67 offen offset:{ct*1024} {BSC}")
        A(f"buffer_load_dwordx4 {v(WOB+20*i+16,4)}, v3, s[20:23], s67 offen {BSC}")
        if q:
            for _ in range(5): q.issue("WO")
def rot_off(A, dst, base, k, stride):
    if "hsent" not in EXP:
        A(f"""s_add_u32 s59, s58, {4*k}
        s_sub_u32 s{dst}, s59, 54
        s_cselect_b32 s59, s59, s{dst}
        s_mul_i32 s{dst}, s59, {stride}
        s_add_u32 s{dst}, s{dst}, s{base}""")
        if k == 13: A(f"s_cmp_lt_u32 s35, 2\ns_cselect_b32 s{dst}, s{dst}, {OOB}")
        return
    A(f"""s_add_u32 s59, s35, {4*k}
    s_mul_i32 s63, s59, 57
    s_lshr_b32 s63, s63, 10
    s_mul_i32 s{dst}, s63, 18
    s_sub_u32 s59, s59, s{dst}
    s_add_u32 s59, s59, s58
    s_sub_u32 s{dst}, s59, 18
    s_cselect_b32 s59, s59, s{dst}
    s_mul_i32 s59, s59, 3
    s_add_u32 s59, s59, s63
    s_mul_i32 s{dst}, s59, {stride}
    s_add_u32 s{dst}, s{dst}, s{base}""")
    if k == 13: A(f"s_cmp_lt_u32 s63, 3\ns_cselect_b32 s{dst}, s{dst}, {OOB}")

def skew_addr(A, d, t0, t1, base):
    A(f"v_lshrrev_b32 v{t0}, 5, v0\nv_add_u32 v{t0}, v{t0}, v0\nv_lshrrev_b32 v{t1}, 4, v0\nv_lshlrev_b32 v{t1}, 8, v{t1}\nv_add_u32 v{t1}, {base}, v{t1}")
    for ct in range(5): A(f"v_add_u32 v{d+ct}, {2*ct}, v{t0}\nv_and_b32 v{d+ct}, 15, v{d+ct}\nv_lshl_add_u32 v{d+ct}, v{d+ct}, 4, v{t1}")

def p2_aux(A):
    A.label("P2_aux")
    p2_pre(A, 54); p2_regs(A); cw_wait(A, "PAW")
    A("s_cmp_eq_u32 s34, 1\ns_cbranch_scc1 P2_a_2\ns_cmp_eq_u32 s34, 2\ns_cbranch_scc0 P2_a_noq")
    lds_spin(A, "AQ", W_Q, "4", 4, 5)
    A.label("P2_a_noq")
    A(f"s_mul_i32 s45, s33, {74*5120}\ns_add_u32 s45, s45, {WS_WF}\ns_mul_i32 s44, s35, 5120")
    for i in range(NL):
        rot_off(A, 43, 45, 4 + i, 5120)
        if "stage" in EXP and i == NSLOW: lds_spin(A, "AE", W_ED, "4", 4, 5)
        A(f"s_waitcnt vmcnt({(THR if i < NSLOW else 30) if 'stage' in EXP else THR})\ns_add_u32 m0, s44, {i*20480}\ns_nop 0")
        for ct in range(4): A(f"buffer_load_dwordx4 v2, s[20:23], s43 offen offset:{ct*1024} {BSC} lds")
        A(f"s_add_u32 m0, s44, {i*20480+4096}\ns_nop 0\nbuffer_load_dwordx4 v3, s[20:23], s43 offen {BSC} lds")
    wo_loads(A, range(1, 3))
    A.label("P2_a_2")
    A(f"s_setprio {0 if 'auxlo' in EXP else 3}")
    prof_stamp(A, 7)
    A(f"""s_cmp_eq_u32 s34, 1
    s_cbranch_scc1 P2_a_3
    s_lshr_b32 s36, s2, 5
    s_cmp_ge_u32 s36, 6
    s_cselect_b32 s65, 1, 0
    s_sub_u32 s64, s32, 1
    s_and_b32 s64, s64, 3
    s_and_b32 s36, s32, 28
    s_or_b32 s64, s64, s36
    s_cmp_eq_u32 s65, 1
    s_cselect_b32 s64, s64, s32""")
    leader_wait(A, "AP", "s_cmp_eq_u32 s35, 0", f"""s_lshl_b32 s37, s32, 7
    s_lshl_b32 s38, s64, 7
    v_mov_b32 v4, s37
    v_writelane_b32 v4, s38, 0
    s_mov_b32 s37, {F_CP+F_RDY}""", "buffer_load_dword v5, v4, s[20:23], s37 offen sc1", 5, "1", W_CP, 4)
    def pq_load(rb, R):
        A(f"""s_lshl_b32 s36, s{rb}, 3
        s_add_u32 s36, s36, s33
        s_mul_i32 s36, s36, {4*2560}
        s_add_u32 s36, s36, {WS_PQ}
        buffer_load_dwordx4 {v(R,4)}, v6, s[20:23], s36 offen sc1
        buffer_load_dwordx4 {v(R+4,4)}, v6, s[20:23], s36 offen offset:1024 sc1
        buffer_load_dwordx2 {v(R+8,2)}, v7, s[20:23], s36 offen offset:2048 sc1""")
    def phi(R, OUT):
        for k in range(10): A(f"v_lshlrev_b32 v{40+2*k}, 16, v{R+k}\nv_and_b32 v{41+2*k}, 0xffff0000, v{R+k}")
        dual_softmax(A, 40, 60, OUT, 240, "s[52:53]")
    A("""v_lshrrev_b32 v20, 4, v0
    v_mul_u32_u24 v20, 2560, v20
    v_and_b32 v21, 15, v0
    s_lshl_b32 s36, s35, 4
    v_add_u32 v21, s36, v21
    v_lshl_add_u32 v6, v21, 4, v20
    v_lshl_add_u32 v7, v21, 3, v20""")
    pq_load(32, 8); pq_load(64, 24)
    A(f"""
    s_lshl_b32 s47, s33, 16
    s_lshl_b32 s38, s35, 11
    s_add_u32 s47, s47, s38
    s_add_u32 s47, s47, {WS_KVP}
    s_add_u32 s48, s47, 32768
    s_add_u32 s38, s38, {KVB}
    v_and_b32 v20, 15, v0
    v_lshrrev_b32 v21, 4, v0
    v_lshlrev_b32 v19, 4, v20
    v_lshl_add_u32 v19, v21, 3, v19
    v_add_u32 v19, s38, v19
    v_and_b32 v18, 3, v0
    v_mul_u32_u24 v18, 80, v18
    v_add_u32 v18, s38, v18
    s_mov_b32 s52, {LOG2E}
    s_mov_b32 s53, {LOG2E}
    """)
    o_offsets(A, 32, 33, 35, 44, 45, 46)
    o_offsets(A, 64, 33, 35, 60, 61, 62)
    wo_loads(A, range(3, 5))
    A("s_waitcnt vmcnt(10)")
    lds_inc(A, W_BL, 4, 5)
    phi(8, 100)
    A("s_cmp_eq_u32 s65, 0\ns_cbranch_scc1 P2_a_p1")
    phi(24, 120)
    A.label("P2_a_p1")
    A("""v_and_b32 v20, 15, v0
    v_lshrrev_b32 v21, 4, v0
    v_lshlrev_b32 v16, 4, v20
    v_lshl_add_u32 v16, v21, 13, v16
    v_mov_b32 v21, 0x7ffffff0
    v_cmp_gt_u32 vcc, 8, v20
    v_cndmask_b32 v17, v21, v16, vcc
    v_mov_b32 v21, 0x3f80
    v_mov_b32 v22, 0x3f800000""")
    for k in range(4):
        A(f"v_cmp_eq_u32 vcc, {2*k}, v20\nv_cndmask_b32 v{84+k}, 0, v21, vcc\nv_cmp_eq_u32 vcc, {2*k+1}, v20\nv_cndmask_b32 v{84+k}, v{84+k}, v22, vcc")
    o_lane(A, 6, 7)
    A("v_lshlrev_b32 v7, 3, v7\nv_sub_u32 v7, v6, v7")
    FBUF = [140, 144, 148, 152, 156, 240, 244, 248, 252, 8, 12]
    for b in FBUF:
        for i in range(4): A(f"v_mov_b32 v{b+i}, 0")
    if "p2touch" in EXP: code_warm(A, "AK_ct", "K1_end", "s35", 98, 99, "P2_stream", back=True)
    prof_stamp(A, 8)
    leader_wait(A, "AK", "s_cmp_eq_u32 s35, 0", f"s_lshl_b32 s37, s33, 16\ns_add_u32 s37, s37, {WS_KVP + 1916}\nv_and_b32 v4, 31, v0\nv_lshlrev_b32 v4, 11, v4", "buffer_load_dword v5, v4, s[20:23], s37 offen sc1", 5, "data", W_CK, 4)
    prof_stamp(A, 9)
    A(f"s_mov_b32 s68, {SPIN_MAX}")
    A.label("KV_rty")
    for g in range(8):
        for q_ in range(2):
            r = 20 + 8 * g + 4 * q_
            A(f"buffer_load_dwordx4 {v(r,4)}, v{16 if g < 7 else 17}, s[20:23], s{47+q_} offen offset:{g*256} sc1")
    for g in range(8):
        r = 20 + 8 * g
        A(f"s_waitcnt vmcnt({14-2*g})")
        A(f"v_max3_u32 v96, v{r}, v{r+1}, {'v96' if g else f'v{r+7}'}")
        for k in (2, 4) + ((6,) if g else ()): A(f"v_max3_u32 v96, v{r+k}, v{r+k+1}, v96")
        if not g: A(f"v_max_u32 v96, v{r+6}, v96")
        A(f"v_mfma_f32_16x16x32_bf16 {v(88+4*(g%2),4)}, v[84:87], {v(r,4)}, 0")
        A(f"v_mfma_f32_16x16x32_bf16 {v(88+4*(g%2),4)}, v[84:87], {v(r+4,4)}, {v(88+4*(g%2),4)}")
        def put(gg):
            p = 88 + 4 * (gg % 2); d = 20 + 8 * gg
            A(f"v_cvt_pk_bf16_f32 v{d}, v{p}, v{p+1}\nv_cvt_pk_bf16_f32 v{d+1}, v{p+2}, v{p+3}\ns_mov_b64 exec, 0xffffffff\nds_write_b64 v19, {v(d,2)} offset:{gg*256}\ns_mov_b64 exec, -1")
        if g: put(g - 1)
    put(7)
    A("v_cmp_eq_u32 vcc, -1, v96\ns_cbranch_vccz KV_ok\ns_sub_u32 s68, s68, 1\ns_cbranch_scc0 KV_rty")
    A.label("KV_ok")
    lds_inc(A, W_KVL, 4, 5)
    A("s_mov_b32 s50, 0x00f0000f\ns_mov_b32 s51, 0xf0000f00\ns_waitcnt lgkmcnt(0)")
    def slices(dual):
        q = Q(A, "lgkmcnt", 15)
        order = [5, 0, 1, 2, 3, 4]
        acc2 = [64, 68, 72, 76, 80, 84]
        seq = [(t, c) for t in order for c in range(5)]
        NB = len(FBUF)
        def rdA(lo, hi):
            A("s_mov_b64 exec, s[50:51]")
            for n in range(lo, min(hi, 30)):
                t, c = seq[n]
                A(f"ds_read_b128 {v(FBUF[n % NB],4)}, v18 offset:{t*320+c*16}"); q.issue(n)
            A("s_mov_b64 exec, -1")
        rdA(0, 10)
        for k, t in enumerate(order):
            for c in range(5):
                n = 5 * k + c
                q.wait({n})
                A(f"v_mfma_f32_16x16x32_bf16 {v(40+4*t,4)}, {v(FBUF[n % NB],4)}, {v(100+4*c,4)}, {'0' if c==0 else v(40+4*t,4)}")
                if dual: A(f"v_mfma_f32_16x16x32_bf16 {v(acc2[t],4)}, {v(FBUF[n % NB],4)}, {v(120+4*c,4)}, {'0' if c==0 else v(acc2[t],4)}")
            if 5 * k + 10 < 30: rdA(5 * k + 10, 5 * k + 15)
            if k == 2:
                A("v_add_f32 v60, 0x358637bd, v60\nv_rcp_f32 v60, v60")
                if dual: A("v_add_f32 v84, 0x358637bd, v84\nv_rcp_f32 v84, v84")
        for (ac, den, O, so) in [(40, 60, 20, 44)] + ([(64, 84, 30, 60)] if dual else []):
            for k in range(10):
                r = ac + 2 * k
                A(f"v_pk_mul_f32 {v(r,2)}, {v(r,2)}, {v(den,2)} op_sel_hi:[1,0]\nv_cvt_pk_bf16_f32 v{O+k}, v{r}, v{r+1}")
            A(f"""buffer_store_dwordx4 {v(O,4)}, v6, s[20:23], s{so} offen sc1
            buffer_store_dwordx4 {v(O+4,4)}, v6, s[20:23], s{so+1} offen sc1
            buffer_store_dwordx2 {v(O+8,2)}, v7, s[20:23], s{so+2} offen sc1""")
    A("s_cmp_eq_u32 s65, 0\ns_cbranch_scc1 P2_a_s1")
    slices(True)
    A("s_branch P2_a_4")
    A.label("P2_a_s1")
    slices(False)
    A("s_branch P2_a_4")
    A.label("P2_a_3")
    wo_loads(A, range(1, 5))
    lds_inc(A, W_KVS, 4, 5)
    A.label("P2_a_4")
    prof_stamp(A, 10)
    wo_loads(A, [0])
    leader_wait(A, "AO", "s_cmp_eq_u32 s35, 0", f"""s_mul_i32 s37, s32, {74*4096}
    s_add_u32 s37, s37, {WS_AF + 56*4096 + 3*1024 + 124}
    v_bfe_u32 v4, v0, 3, 2
    v_mul_u32_u24 v4, {5*4096}, v4
    v_bfe_u32 v5, v0, 2, 1
    v_lshl_add_u32 v4, v5, 9, v4
    v_and_b32 v5, 3, v0
    v_lshl_add_u32 v4, v5, 7, v4""", "buffer_load_dword v5, v4, s[20:23], s37 offen sc1", 5, "data", W_O, 4)
    prof_stamp(A, 6)
    A(f"s_mov_b32 s68, {SPIN_MAX}")
    qv = Q(A, "vmcnt", 63)
    def ld(i, model=True, E=A):
        E(f"s_add_u32 s42, s40, {((i+1)%5)*4096}")
        for T in range(4):
            r = 84 + 16 * (i % 3) + 4 * T
            if (i + 1) % 5 == 2:
                E(f"buffer_load_dwordx2 {v(r,2)}, v139, s[20:23], s42 offen offset:{T*1024} sc1\nbuffer_load_dwordx2 {v(r+2,2)}, v139, s[20:23], s42 offen offset:{T*1024+512} sc1")
                if model: qv.issue(i)
            else: E(f"buffer_load_dwordx4 {v(r,4)}, v2, s[20:23], s42 offen offset:{T*1024} sc1")
            if model: qv.issue(i)
    oo = [1, 2, 3, 4, 0]
    A("v_lshlrev_b32 v139, 3, v0")
    ld(0); ld(1); ld(2)
    A(f"s_mul_i32 s36, s35, 20480\ns_add_u32 s36, s36, {APART}")
    skew_addr(A, 134, 132, 133, "s36")
    for i in range(5):
        qv.wait({i})
        b = 84 + 16 * (i % 3)
        A(f"s_branch P2_chk{i}")
        A.label(f"P2_rty{i}")
        A(f"s_sub_u32 s68, s68, 1\ns_cbranch_scc1 P2_ok{i}\ns_sleep 2")
        ld(i, False)
        A("s_waitcnt vmcnt(0)")
        A.label(f"P2_chk{i}")
        A(f"v_max3_u32 v132, v{b}, v{b+1}, v{b+2}")
        for k in range(3, 15, 2): A(f"v_max3_u32 v132, v132, v{b+k}, v{b+k+1}")
        A(f"v_max_u32 v132, v132, v{b+15}\nv_cmp_eq_u32 vcc, -1, v132\ns_cbranch_vccnz P2_rty{i}")
        A.label(f"P2_ok{i}")
        if i == 0: prof_stamp(A, 11)
        S = Buf()
        if 1 <= i <= 2: ld(i + 2, True, S)
        M = [f"v_mfma_f32_16x16x32_bf16 {v(4+4*(T*5+ct),4)}, {v(WOB+20*oo[i]+4*ct,4)}, {v(b+4*T,4)}, {'0' if i==0 else v(4+4*(T*5+ct),4)}" for ct in range(5) for T in range(4)]
        weave(A, M, S.l, 0, 2)
    lds_spin(A, "AS", W_SD, "4", 132, 133)
    prof_stamp(A, 12)
    for t in range(20): A(f"ds_write_b128 v{134+t%5}, {v(4+4*t,4)} offset:{t*1024}")
    A("s_waitcnt lgkmcnt(0)")
    lds_inc(A, W_AP, 132, 133)
    endpgm(A, 1)

def p2_stream(A, nl, tag):
    AP, BP, NA = 84, 148, NAD
    isL = lambda k: 4 <= k < 4 + nl
    if nl == 0: bslot = {k: k % 5 for k in range(14)}
    else:
        bslot = {0: 0, 1: 1, 2: 2, 3: 3, 11: 0, 12: 1, 13: 2}
        for k in range(4, 11): bslot[k] = 4 - (k % 2)
    q = Q(A, "vmcnt", 63); ql = Q(A, "lgkmcnt", 15)
    def ldB(k, E=A):
        b = BP + 20 * bslot[k]
        rot_off(E, 43, 41, k, 5120)
        for ct in range(4): E(f"buffer_load_dwordx4 {v(b+4*ct,4)}, v2, s[20:23], s43 offen offset:{ct*1024} {BSC}"); q.issue(("B", k))
        E(f"buffer_load_dwordx4 {v(b+16,4)}, v3, s[20:23], s43 offen {BSC}"); q.issue(("B", k))
    def rdB(k, E=A):
        b = BP + 20 * bslot[k]; i = k - 4
        for ct in range(5): E(f"ds_read_b128 {v(b+4*ct,4)}, v{248+i//3} offset:{(i%3)*20480+ct*1024}"); ql.issue(k)
    def ldA(k, model=True, E=A):
        rot_off(E, 42, 40, k, 4096)
        for T in range(4):
            E(f"buffer_load_dwordx4 {v(AP+16*(k%4)+4*T,4)}, v2, s[20:23], s42 offen offset:{T*1024} sc1")
            if model: q.issue(("A", k))
    hsent = "hsent" in EXP
    early = nl == 0 or not hsent
    if early:
        for k in range(5 if nl == 0 else 4): ldB(k)
    else:
        A(f"s_cmp_eq_u32 s57, {OOB+4}\ns_cbranch_scc0 {tag}_nopp")
    if "p2touch" in EXP: code_warm(A, tag + "_ct", "K1_end", "s35", 254, 255, "P2_stream", back=True)
    prof_stamp(A, 8)
    if hsent:
        leader_wait(A, tag + "H", "s_cmp_eq_u32 s35, 0", f"v_min_u32 v4, 17, v0\nv_mul_u32_u24 v4, {3*4096}, v4\ns_add_u32 s36, s40, 4092", "buffer_load_dword v5, v4, s[20:23], s36 offen sc1", 5, "data", W_CH, 4)
    else:
        leader_wait(A, tag + "H", "s_cmp_eq_u32 s35, 0", f"s_lshl_b32 s36, s32, 7\ns_add_u32 s36, s36, {F_CH+F_RDY}\nv_mov_b32 v4, 0", "buffer_load_dword v5, v4, s[20:23], s36 offen sc1", 5, "1", W_CH, 4)
    if not early: A.label(f"{tag}_nopp")
    if nl and "hold" in EXP: lds_spin(A, tag + "K", W_KVL, "4", 4, 5)
    if (nl and "holdO" in EXP) or "holdO2" in EXP: lds_spin(A, tag + "K", W_O, "1", 4, 5)
    if "ahit" in EXP: A(f"s_mul_i32 s40, s33, {74*5120}\ns_add_u32 s40, s40, {WS_WF}")
    prof_stamp(A, 9)
    tick(A, None)
    for k in range(4):
        ldA(k)
        if not early: ldB(k)
    A(f"s_mov_b32 s68, {SPIN_MAX}")
    if nl:
        A(f"s_mul_i32 s36, s35, 5120\nv_add_u32 v248, s36, v2\nv_add_u32 v249, {3*20480}, v248\nv_add_u32 v250, {6*20480}, v248")
    for k in range(14):
        if nl and k == 3:
            lds_spin(A, tag + "L", W_BL, "4", 251, 252)
            A(f"s_mov_b32 s68, {SPIN_MAX}")
            rdB(4)
        if k == HOLDK and nl and "holdK" in EXP: lds_spin(A, tag + "K", W_O, "1", 251, 252)
        tick(A, 0)
        q.wait({("A", k), ("B", k)})
        tick(A, 1)
        a_ = AP + 16 * (k % 4)
        if hsent:
            A(f"s_branch {tag}_chk{k}")
            A.label(f"{tag}_rty{k}")
            A(f"s_sub_u32 s68, s68, 1\ns_cbranch_scc1 {tag}_ok{k}\ns_sleep 3")
            ldA(k, False)
            A("s_waitcnt vmcnt(0)")
            A.label(f"{tag}_chk{k}")
            A(f"v_max3_u32 v253, v{a_}, v{a_+1}, v{a_+2}")
            for j in range(3, 15, 2): A(f"v_max3_u32 v253, v253, v{a_+j}, v{a_+j+1}")
            A(f"v_max_u32 v253, v253, v{a_+15}\nv_cmp_eq_u32 vcc, -1, v253\ns_cbranch_vccnz {tag}_rty{k}")
            A.label(f"{tag}_ok{k}")
        if k == 0: prof_stamp(A, 10)
        if isL(k): ql.wait({k})
        tick(A, 3)
        S = Buf()
        if isL(k + 1) and k >= 4: rdB(k + 1, S)
        if k >= 1 and k + 3 < 14: ldA(k + 3, True, S)
        if nl == 0 and k >= 1 and k + 4 < 14: ldB(k + 4, S)
        if nl and 1 <= k <= 3: ldB(10 + k, S)
        side, cur = [], []
        for x in S.l:
            cur.append(x)
            if x.startswith(("buffer_", "ds_")): side.append("\n".join(cur)); cur = []
        b = BP + 20 * bslot[k]
        M = [f"v_mfma_f32_16x16x32_bf16 {v(4+4*(T*5+ct),4)}, {v(b+4*ct,4)}, {v(a_+4*T,4)}, {'0' if k==0 else v(4+4*(T*5+ct),4)}" for ct in range(5) for T in range(4)]
        if "snold" in EXP: side = [x for x in side if "buffer_" not in x]
        if "snomf" in EXP and k: M = M[:1]
        weave(A, M, side, 0, 2 if len(side) > 5 else 4)
        tick(A, 2)

def phase2(A):
    A.label("P2_stream")
    A(f"s_load_dwordx2 s[6:7], s[0:1], 64\ns_setprio {2 if 'auxlo' in EXP else 0}")
    lds_inc(A, W_ED, 4, 5)
    p2_flag(A, "PS")
    p2_pre(A, 0); p2_regs(A); cw_wait(A, "PSW")
    A("s_waitcnt lgkmcnt(0)")
    srd(A, 24, 6, 2621440)
    prof_stamp(A, 7)
    A("s_cmp_eq_u32 s34, 1\ns_cbranch_scc1 P2_stream0")
    p2_stream(A, NL, "SA")
    A("s_branch P2_red")
    A.label("P2_stream0")
    if "nokvs" in EXP: A(f"s_mov_b32 s40, {OOB}\ns_mov_b32 s41, {OOB}")
    p2_stream(A, 0, "SB")
    lds_spin(A, "SK", W_KVS, "4", 251, 252)
    A.label("P2_red")
    prof_stamp(A, 11)
    A(f"""
    s_lshl_b32 s44, s32, 2
    s_add_u32 s44, s44, s35
    s_mul_i32 s44, s44, {16*1280}
    s_mul_i32 s45, s33, 160
    s_add_u32 s44, s44, s45
    v_mov_b32 v93, 0x7ffffff0
    """)
    for r in range(3):
        A(f"""v_add_u32 v90, {64*r}, v0
        v_mul_u32_u24 v91, 205, v90
        v_lshrrev_b32 v91, 11, v91           ; t
        v_mul_u32_u24 v92, 10, v91
        v_sub_u32 v92, v90, v92              ; c
        v_mul_u32_u24 v{84+r}, 1280, v91
        v_lshl_add_u32 v{84+r}, v92, 4, v{84+r}
        v_lshlrev_b32 v{87+r}, 9, v92
        v_add_u32 v91, v91, v92
        v_and_b32 v91, 15, v91
        v_lshl_add_u32 v{87+r}, v91, 4, v{87+r}""")
        if r == 2: A("v_cmp_gt_u32 vcc, 32, v0\nv_cndmask_b32 v86, v93, v86, vcc\nv_cndmask_b32 v89, 0, v89, vcc")
        A(f"buffer_load_dwordx4 {v(140+4*r,4)}, v{84+r}, s[16:19], s44 offen {NTR}")
    lds_inc(A, W_SD, 96, 97); lds_spin(A, "R1", W_SD, "4", 96, 97)
    prof_stamp(A, 4)
    for T in range(4):
        A(f"""s_sub_u32 s36, s35, {T+1}
        s_and_b32 s36, s36, 3
        s_cmp_eq_u32 s36, 3
        s_cbranch_scc1 R_own{T}
        s_add_u32 s36, s36, {3*T}
        s_mul_i32 s36, s36, 5120
        v_add_u32 v1, s36, v2""")
        for ct in range(5): A(f"ds_write_b128 v1, {v(4+4*(T*5+ct),4)} offset:{XCH+ct*1024}")
        A(f"s_branch R_nxt{T}")
        A.label(f"R_own{T}")
        for k in range(10): A(f"v_pk_mul_f32 {v(100+2*k,2)}, {v(4+20*T+2*k,2)}, 1.0 op_sel_hi:[1,0]")
        A.label(f"R_nxt{T}")
    A(f"""s_mul_i32 s36, s35, {3*5120}
    v_add_u32 v1, s36, v2
    s_mov_b32 s52, {NLOG2E}
    s_mov_b32 s53, {NLOG2E}
    s_mov_b32 s54, 1.0
    s_mov_b32 s55, 1.0
    s_waitcnt lgkmcnt(0)""")
    lds_inc(A, W_SX, 96, 97); lds_spin(A, "R2", W_SX, "4", 96, 97)
    prof_stamp(A, 7)
    for p in range(3):
        for ct in range(5): A(f"ds_read_b128 {v(4+20*p+4*ct,4)}, v1 offset:{XCH+p*5120+ct*1024}")
    A("s_waitcnt lgkmcnt(5)")
    for k in range(10): A(f"v_pk_add_f32 {v(4+2*k,2)}, {v(4+2*k,2)}, {v(24+2*k,2)}")
    A("s_waitcnt lgkmcnt(0)")
    for k in range(10): A(f"v_pk_add_f32 {v(100+2*k,2)}, {v(100+2*k,2)}, {v(44+2*k,2)}")
    for k in range(10): A(f"v_pk_add_f32 {v(100+2*k,2)}, {v(100+2*k,2)}, {v(4+2*k,2)}")
    for k in range(10): A(f"v_pk_mul_f32 {v(120+2*k,2)}, {v(100+2*k,2)}, s[52:53]")
    for i in range(20): A(f"v_exp_f32 v{120+i}, v{120+i}")
    for k in range(10): A(f"v_pk_add_f32 {v(120+2*k,2)}, {v(120+2*k,2)}, s[54:55]")
    for i in range(20): A(f"v_rcp_f32 v{120+i}, v{120+i}")
    for k in range(10): A(f"v_pk_mul_f32 {v(100+2*k,2)}, {v(100+2*k,2)}, {v(120+2*k,2)}")
    skew_addr(A, 124, 130, 131, "s36")
    for ct in range(5): A(f"ds_write_b128 v{124+ct}, {v(100+4*ct,4)} offset:{XCH+ct*1024}")
    A("s_waitcnt lgkmcnt(0)")
    for r in range(3):
        A(f"v_add_u32 v90, s36, v{87+r}\nds_read_b128 {v(100+8*r,4)}, v90 offset:{XCH}\nds_read_b128 {v(104+8*r,4)}, v90 offset:{XCH+256}")
    A(f"s_mul_i32 s36, s35, 5120\ns_add_u32 s36, s36, {APART}")
    for r in range(3): A(f"v_add_u32 v{87+r}, s36, v{87+r}\nv_add_u32 v{90+r}, {2*20480}, v{87+r}")
    prof_stamp(A, 8)
    A("s_waitcnt vmcnt(0)")
    for k in range(12): A(f"v_lshlrev_b32 v{152+2*k}, 16, v{140+k}\nv_and_b32 v{153+2*k}, 0xffff0000, v{140+k}")
    prof_stamp(A, 12)
    A("s_setprio 3")
    lds_spin(A, "R3", W_AP, "4", 96, 97)
    prof_stamp(A, 13)
    q = Q(A, "lgkmcnt", 15)
    def rds(r):
        for p in range(4):
            for h in range(2):
                A(f"ds_read_b128 {v([4,36,180][r]+8*p+4*h,4)}, v{(87 if p < 2 else 90)+r} offset:{(p%2)*20480+h*256}"); q.issue(r)
    rds(0)
    for r in range(3):
        q.wait({r})
        if r < 2: rds(r + 1)
        b = [4, 36, 180][r]
        for k in range(4):
            A(f"v_pk_add_f32 {v(b+2*k,2)}, {v(b+2*k,2)}, {v(b+8+2*k,2)}\nv_pk_add_f32 {v(b+16+2*k,2)}, {v(b+16+2*k,2)}, {v(b+24+2*k,2)}")
        for k in range(4): A(f"v_pk_add_f32 {v(b+2*k,2)}, {v(b+2*k,2)}, {v(b+16+2*k,2)}")
        for k in range(4): A(f"v_pk_fma_f32 {v(b+2*k,2)}, {v(b+2*k,2)}, {v(100+8*r+2*k,2)}, {v(152+8*r+2*k,2)}")
        for k in range(4): A(f"v_cvt_pk_bf16_f32 v{b+8+k}, v{b+2*k}, v{b+2*k+1}")
        A(f"buffer_store_dwordx4 {v(b+8,4)}, v{84+r}, s[24:27], s44 offen {OST}")
    endpgm(A, 1)
    p2_aux(A)

HEADER = open(f"cdna_kernels/{NAME}.s.ref").read().split("; Override launch")[0]

def build_single(A, aslist):
    n = NAME + "_kernel"
    t = HEADER
    t += f"; @launch kernel={n} grid=(256,1,1) block=(512,1,1) lds={K1_LDS}\n" if aslist else f"; @launch grid=(256,1,1) block=(512,1,1) lds={K1_LDS}\n"
    body = A.text()
    if "noalign" not in EXP:
        body, a_, b_ = align_pass(body); print("align: promoted", a_, "nops", b_)
    t += '.amdgcn_target "amdgcn-amd-amdhsa--gfx950"\n.text\n' + kernel_head(n) + body + "\n"
    t += '.section .rodata,"a"\n.p2align 6\n' + kernel_desc(n, 256, 100)
    return t

if __name__ == "__main__":
    if "--prof" in sys.argv: PROF = True; sys.argv.remove("--prof")
    aslist = "--list" in sys.argv or PROF
    if "--list" in sys.argv: sys.argv.remove("--list")
    for a_ in list(sys.argv):
        if a_.startswith("--thr="): THR = int(a_[6:]); sys.argv.remove(a_)
        if a_.startswith("--bsc="): BSC = a_[6:]; sys.argv.remove(a_)
        if a_.startswith("--aux="): AUXS = a_[6:]; sys.argv.remove(a_)
        if a_.startswith("--wsleep="): WSLEEP = int(a_[9:]); sys.argv.remove(a_)
        if a_.startswith("--na="): NAD = int(a_[5:]); sys.argv.remove(a_)
        if a_.startswith("--nslow="): NSLOW = int(a_[8:]); sys.argv.remove(a_)
        if a_.startswith("--rot="): ROTR, ROTC = map(int, a_[6:].split(",")); sys.argv.remove(a_)
        if a_ == "--nokrot": KROT = False; sys.argv.remove(a_)
        if a_.startswith("--pub="): PUBU = int(a_[6:]); sys.argv.remove(a_)
        if a_.startswith("--rlu="): RLU = int(a_[6:]); sys.argv.remove(a_)
        if a_.startswith("--ssleep="): SSLEEP = int(a_[9:]); sys.argv.remove(a_)
        if a_.startswith("--nt="):
            f_ = a_[5:]; NTX = 'nt' if 'x' in f_ else ''; NTW = 'nt' if 'w' in f_ else ''; NTA = 'nt' if 'a' in f_ else ''; NTR = 'nt' if 'r' in f_ else ''; sys.argv.remove(a_)
        if a_.startswith("--ntu="): NTU = int(a_[6:]); sys.argv.remove(a_)
        if a_.startswith("--cpfs="): CPFS = int(a_[7:]); sys.argv.remove(a_)
        if a_.startswith("--ost="): OST = a_[6:].replace("+", " "); sys.argv.remove(a_)
        if a_.startswith("--holdk="): HOLDK = int(a_[8:]); sys.argv.remove(a_)
        if a_.startswith("--x="): EXP |= set(a_[4:].split(",")); sys.argv.remove(a_)
    out = sys.argv[1] if len(sys.argv) > 1 else "v5.s"
    open(out, "w").write(build_single(gen_k1(), aslist))
    print("written", out)
```
